```python
import torch

def _softmax(x, axis=-1):
    return torch.softmax(x, dim=axis)
def _gelu(x):
    return torch.nn.functional.gelu(x, approximate="tanh")
def _silu(x):
    return torch.nn.functional.silu(x)
def _sigmoid(x):
    return torch.sigmoid(x)
def _layernorm(x, axis=-1, eps=1e-5):
    m = x.mean(dim=axis, keepdim=True)
    v = x.var(dim=axis, keepdim=True, unbiased=False)
    return (x - m) / torch.sqrt(v + eps)
def _scatter_add(tgt, idx, src, axis=0):
    return tgt.clone().index_add_(axis, idx, src)
def _segment_sum(src, seg, n):
    out = torch.zeros((n,) + src.shape[1:], dtype=src.dtype)
    return out.index_add_(0, seg, src)
def _pad(x, pw):
    flat = tuple(v for pair in reversed(pw) for v in pair)
    return torch.nn.functional.pad(x, flat)

kernel_name = 'concat_heads__mha_block_cached__gqa_block_cached__near_ridge'

def setup_inputs():

    _w = (lambda a: (lambda t: t.to(torch.bfloat16) if t.is_floating_point() else t)(torch.as_tensor(a)))
    def _A_setup():
        B, Sq, D = 32, 48, 448
        H, Sk, Dh = 16, 48, 256
        return {
            "x": _w((lambda *s: torch.randn(*s, dtype=torch.bfloat16) * 0.8)(B, Sq, D)),
            "k_cache": _w((lambda *s: torch.randn(*s, dtype=torch.bfloat16) * 0.8)(B, H, Sk, Dh)),
            "v_cache": _w((lambda *s: torch.randn(*s, dtype=torch.bfloat16) * 0.05)(B, H, Sk, Dh)),
            "wq": _w((lambda *s: torch.randn(*s, dtype=torch.bfloat16) * 0.8)(D, H * Dh) * (D ** -0.5)),
            "wo": _w((lambda *s: torch.randn(*s, dtype=torch.bfloat16) * 0.05)(H * Dh, D) * ((H * Dh) ** -0.5)),
        }
    _A_in = _A_setup()

    def _B_setup():
        B, Sq, D = 32, 48, 448
        Hq, Hkv, Sk, Dh = 16, 16, 48, 256
        assert Hq % Hkv == 0, (Hq, Hkv)
        return {
            "x": _w((lambda *s: torch.randn(*s, dtype=torch.bfloat16) * 0.8)(B, Sq, D)),
            "k_cache": _w((lambda *s: torch.randn(*s, dtype=torch.bfloat16) * 0.8)(B, Hkv, Sk, Dh)),
            "v_cache": _w((lambda *s: torch.randn(*s, dtype=torch.bfloat16) * 0.05)(B, Hkv, Sk, Dh)),
            "wq": _w((lambda *s: torch.randn(*s, dtype=torch.bfloat16) * 0.8)(D, Hq * Dh) * (D ** -0.5)),
            "wo": _w((lambda *s: torch.randn(*s, dtype=torch.bfloat16) * 0.05)(Hq * Dh, D) * ((Hq * Dh) ** -0.5)),
        }
    _B_in = _B_setup()

    return {
        "A_x": _A_in["x"],
        "A_k_cache": _A_in["k_cache"],
        "A_v_cache": _A_in["v_cache"],
        "A_wq": _A_in["wq"],
        "A_wo": _A_in["wo"],
        "B_x": _B_in["x"],
        "B_k_cache": _B_in["k_cache"],
        "B_v_cache": _B_in["v_cache"],
        "B_wq": _B_in["wq"],
        "B_wo": _B_in["wo"],
    }

def reference(A_x, A_k_cache, A_v_cache, A_wq, A_wo, B_x, B_k_cache, B_v_cache, B_wq, B_wo):
    def _A_ref(x, k_cache, v_cache, wq, wo):
        B, Sq, D = x.shape
        H, Dh = 16, 256
        q = (lambda x, *d: x.permute(*d))((x @ wq).reshape(B, Sq, H, Dh), 0, 2, 1, 3)
        scores = torch.einsum("bhqd,bhkd->bhqk", q, k_cache) * (Dh ** -0.5)
        p = _softmax(scores, axis=-1)
        o = torch.einsum("bhqk,bhkd->bhqd", p, v_cache)
        return (lambda x, *d: x.permute(*d))(o, 0, 2, 1, 3).reshape(B, Sq, H * Dh) @ wo

    def _B_ref(x, k_cache, v_cache, wq, wo):
        B, Sq, D = x.shape
        Hq, Dh = 16, 256
        Hkv = k_cache.shape[1]
        rep = Hq // Hkv
        q = (lambda x, *d: x.permute(*d))((x @ wq).reshape(B, Sq, Hq, Dh), 0, 2, 1, 3)
        k = (lambda x, n, axis: torch.repeat_interleave(x, n, dim=axis))(k_cache, rep, axis=1)
        v = (lambda x, n, axis: torch.repeat_interleave(x, n, dim=axis))(v_cache, rep, axis=1)
        scores = torch.einsum("bhqd,bhkd->bhqk", q, k) * (Dh ** -0.5)
        p = _softmax(scores, axis=-1)
        o = torch.einsum("bhqk,bhkd->bhqd", p, v)
        return (lambda x, *d: x.permute(*d))(o, 0, 2, 1, 3).reshape(B, Sq, Hq * Dh) @ wo

    a = _A_ref(A_x, A_k_cache, A_v_cache, A_wq, A_wo)
    b = _B_ref(B_x, B_k_cache, B_v_cache, B_wq, B_wo)
    return torch.concatenate([a, b], axis=-1)
```

```python
import re

REG_RE = re.compile(r'\b([vas])(\d+)\b|\b([vas])\[(\d+):(\d+)\]')

def regs_of(tok):
    out = []
    tok = tok.strip()
    m = re.fullmatch(r'-?(?:abs\()?([vas])(\d+)\)?', tok)
    if m:
        return [(m.group(1), int(m.group(2)))]
    m = re.fullmatch(r'-?([vas])\[(\d+):(\d+)\]', tok)
    if m:
        return [(m.group(1), i) for i in range(int(m.group(2)), int(m.group(3)) + 1)]
    if tok in ('vcc',):
        return [('s', 106), ('s', 107)]
    if tok == 'm0':
        return [('s', 124)]
    if tok == 'exec':
        return [('s', 126), ('s', 127)]
    return out

TRANS = ('v_exp_f32', 'v_log_f32', 'v_rcp_f32', 'v_rsq_f32', 'v_sqrt_f32')

class Gen:
    def __init__(self):
        self.lines = []
        self.n = 0
        self.lgkm = []
        self.vm = []
        self.valu_w = {}
        self.trans_w = {}
        self.mfma_w = {}
        self.mfma_c = {}
        self.salu_m0 = -100
        self.mfma_op = {}
        self.valu_sw = {}
        self.store_r = {}
        self.smem_pending = False
        self.stats = {'nop': 0, 'wait': 0, 'mfma': 0, 'ins': 0}

    def raw(self, text):
        self.lines.append(text)

    def comment(self, text):
        self.lines.append('    ; ' + text)

    def _emit(self, text, slots=1):
        self.lines.append('    ' + text)
        self.n += slots
        self.stats['ins'] += 1

    def nop(self, k):
        while k > 0:
            c = min(k, 16)
            self._emit(f's_nop {c-1}', c)
            self.stats['nop'] += c
            k -= c

    def _wait(self, vm=None, lg=None):
        parts = []
        if vm is not None:
            vm = min(vm, 63)
            if vm < len(self.vm):
                parts.append(f'vmcnt({vm})')
                self.vm = self.vm[len(self.vm) - vm:] if vm else []
        if lg is not None:
            lg = min(lg, 15)
            if lg < len(self.lgkm):
                parts.append(f'lgkmcnt({lg})')
                self.lgkm = self.lgkm[len(self.lgkm) - lg:] if lg else []
        if parts:
            self._emit('s_waitcnt ' + ' '.join(parts))
            self.stats['wait'] += 1

    def wait_tag(self, tag, lg=None):
        idx = [i for i, (d, t) in enumerate(self.vm) if t == tag]
        vm = (len(self.vm) - 1 - idx[-1]) if idx else None
        self._wait(vm=vm, lg=lg)

    def wait_all(self, vm=True, lg=True):
        self._wait(vm=0 if vm else None, lg=0 if lg else None)

    def smem_wait(self):
        self._emit('s_waitcnt lgkmcnt(0)')
        self.lgkm = []

    def barrier(self):
        self._emit('s_barrier')

    def __call__(self, text, tag=None):
        text = text.strip()
        op, _, rest = text.partition(' ')
        toks = [t.strip() for t in rest.split(',')] if rest else []
        mods = ''
        if toks:
            parts = toks[-1].split()
            toks[-1] = parts[0]
            mods = ' '.join(parts[1:])
        rd, wr = [], []
        kind = None
        if op.startswith('v_mfma'):
            kind = 'mfma'
            wr = regs_of(toks[0]); a = regs_of(toks[1]); b = regs_of(toks[2]); c = regs_of(toks[3])
            rd = a + b + c
        elif op.startswith('ds_read'):
            kind = 'dsr'; wr = regs_of(toks[0]); rd = regs_of(toks[1])
        elif op.startswith('ds_write'):
            kind = 'dsw'; rd = sum((regs_of(t) for t in toks), [])
        elif op.startswith('buffer_load') or op.startswith('global_load'):
            kind = 'vml'
            if 'lds' in mods.split():
                kind = 'dma'; rd = sum((regs_of(t) for t in toks), [])
            else:
                wr = regs_of(toks[0]); rd = sum((regs_of(t) for t in toks[1:]), [])
        elif op.startswith('buffer_store') or op.startswith('global_store') or op.startswith('buffer_atomic') or op.startswith('global_atomic'):
            kind = 'vms'; rd = sum((regs_of(t) for t in toks), [])
        elif op.startswith('v_permlane'):
            kind = 'valu'; wr = regs_of(toks[0]) + regs_of(toks[1]); rd = list(wr)
        elif op.startswith('v_'):
            kind = 'valu'
            wr = regs_of(toks[0]); rd = sum((regs_of(t) for t in toks[1:]), [])
            if op.startswith('v_fmac') or op.startswith('v_pk_fmac'):
                rd += wr
        elif op.startswith('s_load') or op.startswith('s_memtime') or op.startswith('s_memrealtime'):
            kind = 'smem'; wr = regs_of(toks[0]); rd = sum((regs_of(t) for t in toks[1:]), [])
        elif op.startswith('s_'):
            kind = 'salu'
            if op.startswith('s_cmp') or op.startswith('s_cbranch') or op.startswith('s_branch') or op in ('s_endpgm', 's_setprio', 's_sleep', 's_nop'):
                rd = sum((regs_of(t) for t in toks), [])
            else:
                wr = regs_of(toks[0]); rd = sum((regs_of(t) for t in toks[1:]), [])
        else:
            raise ValueError('unknown op ' + text)
        srd, swr = set(rd), set(wr)
        touch = srd | swr
        need_lg = None
        for i, d in enumerate(self.lgkm):
            if d & touch:
                need_lg = len(self.lgkm) - 1 - i
        need_vm = None
        for i, (d, t) in enumerate(self.vm):
            if d & touch:
                need_vm = len(self.vm) - 1 - i
        if need_lg is not None or need_vm is not None:
            self._wait(vm=need_vm, lg=need_lg)
        need = 0
        def req(slot, k):
            nonlocal need
            gap = self.n - slot - 1
            if gap < k:
                need = max(need, k - gap)
        if kind == 'mfma':
            passes = 8 if '32x32' in op else 4
            for r in srd:
                if r in self.valu_w: req(self.valu_w[r], 2)
            ab = set(regs_of(toks[1]) + regs_of(toks[2]))
            cset = tuple(regs_of(toks[3]))
            for r in ab:
                if r in self.mfma_w:
                    s, d, p = self.mfma_w[r]; req(s, {4: 8, 8: 12}[p])
            for r in cset:
                if r in self.mfma_w:
                    s, d, p = self.mfma_w[r]
                    if d != cset or p != passes or self.mfma_op.get(r) != op: req(s, {4: 6, 8: 10}[p])
            for r in swr:
                if r in self.mfma_w:
                    s, d, p = self.mfma_w[r]
                    if d != tuple(wr): req(s, {4: 6, 8: 10}[p])
        else:
            chk = touch if kind in ('valu', 'dsr', 'vml') else srd
            for r in chk:
                if r in self.mfma_w:
                    s, d, p = self.mfma_w[r]; req(s, {4: 8, 8: 12}[p])
            if kind in ('valu', 'dsr', 'vml'):
                for r in swr:
                    if r in self.mfma_c:
                        s, p = self.mfma_c[r]; req(s, {4: 3, 8: 7}[p])
                    if r in self.store_r: req(self.store_r[r], 2)
        if kind == 'valu':
            if op not in TRANS and not any(op.startswith(t) for t in TRANS):
                for r in srd:
                    if r in self.trans_w: req(self.trans_w[r], 1)
            if op.startswith('v_permlane'):
                for r in srd:
                    if r in self.valu_w: req(self.valu_w[r], 2)
            if op.startswith('v_readfirstlane') or op.startswith('v_readlane'):
                for r in srd:
                    if r in self.valu_w: req(self.valu_w[r], 1)
            if 'dpp' in mods or 'row_' in mods or 'quad_perm' in mods:
                for r in srd:
                    if r in self.valu_w: req(self.valu_w[r], 2)
            for r in srd:
                if r[0] == 's' and r in self.valu_sw: req(self.valu_sw[r], 2)
        if kind in ('mfma',):
            for r in srd:
                if r in self.trans_w: req(self.trans_w[r], 2)
        if kind in ('vml', 'vms', 'dma'):
            for r in srd:
                if r[0] == 's' and r in self.valu_sw: req(self.valu_sw[r], 5)
        if kind == 'salu' or kind == 'smem':
            for r in srd:
                if r in self.valu_sw: req(self.valu_sw[r], 4)
        if kind == 'dma':
            req(self.salu_m0, 1)
        if need:
            self.nop(need)
        slot = self.n
        self._emit(text)
        if kind == 'mfma':
            self.stats['mfma'] += 1
            passes = 8 if '32x32' in op else 4
            for r in swr:
                self.mfma_w[r] = (slot, tuple(wr), passes); self.valu_w.pop(r, None); self.trans_w.pop(r, None)
                self.mfma_op[r] = op
            for r in regs_of(toks[3]):
                self.mfma_c[r] = (slot, passes)
        elif kind == 'valu':
            for r in swr:
                if r[0] == 's':
                    self.valu_sw[r] = slot
                else:
                    self.valu_w[r] = slot; self.mfma_w.pop(r, None)
                    if any(op.startswith(t) for t in TRANS): self.trans_w[r] = slot
                    else: self.trans_w.pop(r, None)
        elif kind in ('dsr', 'dsw'):
            self.lgkm.append(swr)
            for r in swr:
                self.mfma_w.pop(r, None); self.valu_w.pop(r, None); self.trans_w.pop(r, None)
        elif kind in ('vml', 'vms', 'dma'):
            self.vm.append((swr, tag))
            for r in swr:
                self.mfma_w.pop(r, None); self.valu_w.pop(r, None); self.trans_w.pop(r, None)
            if kind == 'vms' and ('x4' in op or 'x3' in op):
                for r in regs_of(toks[0]):
                    self.store_r[r] = slot
        elif kind == 'salu':
            for r in swr:
                self.valu_sw.pop(r, None)
                if r == ('s', 124): self.salu_m0 = slot

    def text(self):
        return '\n'.join(self.lines) + '\n'
```

```python
import sys, struct
from asmgen import Gen

NAME = "concat_heads__mha_block_cached__gqa_block_cached__near_ridge"
MAIN = NAME + "_kernel"
RED = "reduce_partials_kernel"

OPT = dict(bar_group=10, D=7, stamps=False, code_pf=True)
for a in sys.argv[2:]:
    k, v = a.split('=')
    OPT[k] = int(v)

SLOT = 32768
VB = 3 * SLOT
PB = VB + 49152
LDS_BYTES = 163840

S_X, S_K, S_V, S_WQ, S_WO, S_WS = 8, 12, 16, 20, 24, 28
sW, sBSEL, sJ, sBR, sH0, sB0, sB = 32, 33, 34, 35, 36, 37, 38
sXO = 40
sKO = 43
sWQO = 46
sWOO = 47
sWOO2 = 48
sVO = 49
sM = 50
sVM = 51
sST = 52
sC = 53
sT0, sT1, sT2, sT3 = 54, 55, 56, 57
sVBASE = 58
sWOBASE = 59
sPC = 60
sSTAMP = 64

def QACC(T, t):
    return (((T // 2) * 3 + t) * 4) + (96 if T & 1 else 0)
def QFRAG(s, t):
    return (s * 3 + t) * 4
SACC = 192
vWQR = 192
vWQD = 208
vXO = 216
vKO = 217
vL = 218
vT = 219
vWOD = 228
vVD = 232
vVR = 233
vWOR = 241
vSTO = 249
vPW = 250
vPW2 = 251
vOW = 252
vOR = 253
vCP = 254
vPOWN = 96
vPCUR = 114
vSM = 132
vEP = 144
def OACC(T, t):
    return (((T // 2) * 3 + t) * 4) + (48 if T & 1 else 0)
def OFRAG(sl, t):
    return (sl * 3 + t) * 4
aFR = 0
aK = 32
aX = 128
XRING = 10
aOUT = 32
def OUTACC(c, T, t):
    return aOUT + ((c * 2 + T) * 3 + t) * 4

def vr(b, n=4): return f"v[{b}:{b+n-1}]"
def ar(b, n=4): return f"a[{b}:{b+n-1}]"
def sr(b, n=4): return f"s[{b}:{b+n-1}]"

g = Gen()
nstamp = 0
def stamp():
    global nstamp
    if OPT['stamps']:
        g(f"s_memtime s[{sSTAMP+2*nstamp}:{sSTAMP+2*nstamp+1}]")
        nstamp += 1

def header():
    g.raw("; fused attention block: launch 1 computes per-head-pair partial outputs, launch 2 sums them")
    g.raw(f"; @launch kernel={MAIN} grid=(256,1,1) block=(256,1,1) lds={LDS_BYTES}")
    g.raw(f"; @launch kernel={RED} grid=(448,1,1) block=(384,1,1) lds=0")
    g.raw('.amdgcn_target "amdgcn-amd-amdhsa--gfx950"')
    g.raw(".text")

def kernel_open(name):
    g.raw(f".globl {name}")
    g.raw(".p2align 8")
    g.raw(f".type {name},@function")
    g.raw(f"{name}:")

def srd(dst, lo, hi, nbytes):
    g(f"s_mov_b32 s{dst}, s{lo}")
    g(f"s_and_b32 s{dst+1}, s{hi}, 0xffff")
    g(f"s_mov_b32 s{dst+2}, {nbytes}")
    g(f"s_mov_b32 s{dst+3}, 0x20000")

def wq_dma(R):
    s = R
    slot = (R % 3) * SLOT
    out = []
    out.append((f"s_add_u32 s{sWQO}, s{sT3}, {s*262144}", None))
    for i in range(8):
        if i % 4 == 0:
            out.append((f"s_add_u32 m0, s{sM}, {slot + (i//4)*4096}", None))
        out.append((f"buffer_load_dwordx4 v{vWQD+i}, {sr(S_WQ)}, s{sWQO} offen offset:{(i%4)*1024} lds", f"R{R}"))
    return out

def wo_dma(R):
    hh, c = divmod(R - 14, 7)
    slot = (R % 3) * SLOT
    out = []
    out.append((f"s_add_u32 s{sWOO}, s{sWOBASE}, {hh*229376 + c*128}", None))
    out.append((f"s_add_u32 s{sWOO2}, s{sWOBASE}, {hh*229376 + c*128 + 28672}", None))
    for i in range(8):
        if i % 4 == 0:
            out.append((f"s_add_u32 m0, s{sM}, {slot + (i//4)*4096}", None))
        so = sWOO if i < 4 else sWOO2
        out.append((f"buffer_load_dwordx4 v{vWOD+(i%4)}, {sr(S_WO)}, s{so} offen offset:{(i%4)*1024} lds", f"R{R}"))
    return out

def ring_dma(R):
    if R < 14: return wq_dma(R)
    if R < 28: return wo_dma(R)
    return []

def x_loads(s):
    out = []
    for t in range(3):
        d = aX + (s % XRING) * 12 + t * 4
        out.append((f"buffer_load_dwordx4 {ar(d)}, v{vXO}, {sr(S_X)}, s{sXO+t} offen offset:{64*s}", None))
    return out

def k_loads():
    out = []
    for s in range(8):
        for u in range(3):
            for p in range(2):
                d = aK + (u * 8 + s) * 4 + 2 * p
                out.append((f"buffer_load_dwordx2 {ar(d,2)}, v{vKO}, {sr(S_K)}, s{sKO+u} offen offset:{64*s+32*p}", None))
    return out

def v_dma(hh):
    out = []
    for bb in range(2):
        for m in range(6):
            out.append((f"s_add_u32 s{sVO}, s{sVBASE}, {hh*24576 + bb*393216 + m*4096}", None))
            out.append((f"s_add_u32 m0, s{sVM}, {bb*24576 + m*4096}", None))
            out.append((f"buffer_load_dwordx4 v{vVD}, {sr(S_V)}, s{sVO} offen lds", f"V{hh}"))
    return out

class FillQ:
    def __init__(self): self.q = []
    def add(self, items): self.q.extend(items)
    def pop(self):
        t, tag = self.q.pop(0)
        g(t, tag=tag)
    def __len__(self): return len(self.q)
    def drain(self):
        while self.q: self.pop()

fq = FillQ()

def run_stages(groups, after_barrier, first_gate_open=True, tail_barrier=None, ring=8, nreg=4):
    D = min(OPT['D'], ring - 1)
    open_stage = groups[0]['stage']
    pend = []
    for n, gr in enumerate(groups):
        d = aFR + (n % ring) * nreg
        for k, rt in enumerate(gr['reads']):
            pend.append((n, rt.format(d=ar(d + 2 * k, 2))))
    rp = 0
    def can_read(n_cur, done_cur):
        if rp >= len(pend): return False
        n, _ = pend[rp]
        if groups[n]['stage'] > open_stage: return False
        lim = n_cur + D + (1 if done_cur else 0)
        return n <= min(lim, n_cur + ring - 1 + (1 if done_cur else 0))
    while rp < len(pend) and pend[rp][0] < D and groups[pend[rp][0]]['stage'] <= open_stage:
        g(pend[rp][1]); rp += 1
    idx_in_stage = 0
    for n, gr in enumerate(groups):
        if n > 0 and groups[n-1]['stage'] != gr['stage']:
            idx_in_stage = 0
        d = aFR + (n % ring) * nreg
        while rp < len(pend) and pend[rp][0] <= n:
            assert groups[pend[rp][0]]['stage'] <= open_stage
            g(pend[rp][1]); rp += 1
        nm = len(gr['mfmas'])
        for k, mt in enumerate(gr['mfmas']):
            g(mt.format(a=ar(d), a2=ar(d + 4, 2)))
            budget = 2
            while budget:
                if can_read(n, False):
                    g(pend[rp][1]); rp += 1; budget -= 1
                elif len(fq):
                    fq.pop(); budget -= 1
                else:
                    break
        R = gr['stage']
        last_stage = groups[-1]['stage']
        if idx_in_stage == OPT['bar_group'] and (R < last_stage or tail_barrier):
            while rp < len(pend) and groups[pend[rp][0]]['stage'] <= R:
                g(pend[rp][1]); rp += 1
            g.wait_tag(f"R{R+1}", lg=0)
            g.barrier()
            open_stage = R + 1
            fq.add(after_barrier(R + 1))
        idx_in_stage += 1

def interleave(mf, fill, per=2):
    fill = list(fill)
    for m in mf:
        g(m)
        for _ in range(per):
            if fill: g(fill.pop(0))
            elif len(fq): fq.pop()
    for f in fill: g(f)

def softmax_ops(t):
    S = [SACC + 12 * t + k for k in range(12)]
    m, x = vSM + 4 * t, vSM + 4 * t + 1
    o = []
    o.append(f"v_max3_f32 v{m}, v{S[0]}, v{S[1]}, v{S[2]}")
    o.append(f"v_max3_f32 v{x}, v{S[3]}, v{S[4]}, v{S[5]}")
    o.append(f"v_max3_f32 v{m}, v{m}, v{S[6]}, v{S[7]}")
    o.append(f"v_max3_f32 v{x}, v{x}, v{S[8]}, v{S[9]}")
    o.append(f"v_max3_f32 v{m}, v{m}, v{S[10]}, v{S[11]}")
    o.append(f"v_max_f32 v{m}, v{m}, v{x}")
    for sw in ("v_permlane32_swap_b32", "v_permlane16_swap_b32"):
        o.append(f"v_mov_b32 v{x}, v{m}")
        o.append(f"{sw} v{m}, v{x}")
        o.append(f"v_max_f32 v{m}, v{m}, v{x}")
    o.append(f"v_mul_f32 v{m}, s{sC}, v{m}")
    for k in range(12):
        o.append(f"v_fma_f32 v{S[k]}, v{S[k]}, s{sC}, -v{m}")
    for k in range(12):
        o.append(f"v_exp_f32 v{S[k]}, v{S[k]}")
    o.append(f"v_add_f32 v{m}, v{S[0]}, v{S[1]}")
    o.append(f"v_add_f32 v{x}, v{S[2]}, v{S[3]}")
    for k in range(4, 12, 2):
        o.append(f"v_add_f32 v{m}, v{m}, v{S[k]}")
        o.append(f"v_add_f32 v{x}, v{x}, v{S[k+1]}")
    o.append(f"v_add_f32 v{m}, v{m}, v{x}")
    for sw in ("v_permlane32_swap_b32", "v_permlane16_swap_b32"):
        o.append(f"v_mov_b32 v{x}, v{m}")
        o.append(f"{sw} v{m}, v{x}")
        o.append(f"v_add_f32 v{m}, v{m}, v{x}")
    o.append(f"v_rcp_f32 v{m}, v{m}")
    for k in range(12):
        o.append(f"v_mul_f32 v{S[k]}, v{S[k]}, v{m}")
    for k in range(6):
        o.append(f"v_cvt_pk_bf16_f32 v{vPOWN + 6*t + k}, v{S[2*k]}, v{S[2*k+1]}")
    return o

def merge(*lists):
    out = []
    n = max(len(l) for l in lists)
    for i in range(n):
        for l in lists:
            if i < len(l): out.append(l[i])
    return out

def cvt_pairs(acc, s_list, t):
    o = []
    for s in s_list:
        b, b2 = acc(2 * s, t), acc(2 * s + 1, t)
        o.append(f"v_cvt_pk_bf16_f32 v{b}, v{b}, v{b+1}")
        o.append(f"v_cvt_pk_bf16_f32 v{b+1}, v{b+2}, v{b+3}")
        o.append(f"v_cvt_pk_bf16_f32 v{b+2}, v{b2}, v{b2+1}")
        o.append(f"v_cvt_pk_bf16_f32 v{b+3}, v{b2+2}, v{b2+3}")
    return o

def p_write(which, lbl):
    g.wait_all(vm=False, lg=True)
    g(f"s_cmp_lg_u32 s{sJ}, {which}")
    g(f"s_cbranch_scc1 {lbl}")
    n0 = g.n
    for t in range(3):
        g(f"ds_write_b128 v{vPW}, {vr(vPOWN+6*t)} offset:{t*1536}")
        g(f"ds_write_b64 v{vPW2}, {vr(vPOWN+6*t+4,2)} offset:{t*1536}")
    g.wait_all(vm=False, lg=True)
    g.raw(f"{lbl}:")
    g.n = n0

def p_read():
    for t in range(3):
        g(f"ds_read_b128 {vr(vPCUR+6*t)}, v{vPW} offset:{t*1536}")
        g(f"ds_read_b64 {vr(vPCUR+6*t+4,2)}, v{vPW2} offset:{t*1536}")

def pv_phase():
    reads = []
    for T in range(8):
        d = aFR + (T % 4) * 8
        reads.append([f"ds_read_b64_tr_b16 {ar(d+2*u,2)}, v{vVR+T} offset:{u*8192}" for u in range(3)])
    for T in range(3):
        for r in reads[T]: g(r)
    for T in range(9):
        d = aFR + (T % 4) * 8
        dp = aFR + ((T - 1) % 4) * 8
        mf = []
        if T < 8:
            mf += [f"v_mfma_f32_16x16x32_bf16 {vr(OACC(T,t))}, {ar(d)}, {vr(vPCUR+6*t)}, 0" for t in range(3)]
        if T > 0:
            mf += [f"v_mfma_f32_16x16x16_bf16 {vr(OACC(T-1,t))}, {ar(dp+4,2)}, {vr(vPCUR+6*t+4,2)}, {vr(OACC(T-1,t))}" for t in range(3)]
        fill = []
        if T >= 1 and T + 2 < 8:
            pass
        interleave(mf, fill, per=1)
        if T >= 1 and T + 3 - 0 < 8 + 0 and (T + 3) < 8:
            pass
        nxt = T + 3
        if T >= 0 and nxt < 8:
            if T >= 1 or True:
                for r in reads[nxt]: g(r)
    cv = []
    for t in range(3):
        cv += cvt_pairs(OACC, range(4), t)
    for sl in range(4):
        for t in range(3):
            for ins in cvt_pairs(OACC, [sl], t): g(ins)
            g(f"ds_write_b128 v{vOW}, {vr(OFRAG(sl,t))} offset:{(3*sl+t)*2048}")
    g.wait_all(vm=False, lg=True)
    g.barrier()
    for sl in range(4):
        for t in range(3):
            g(f"ds_read_b128 {vr(OFRAG(4+sl,t))}, v{vOR} offset:{(3*sl+t)*2048}")

def q_groups():
    gs = []
    for s in range(14):
        slot = s % 3
        win, base = (1, 0) if slot == 2 else (0, slot * SLOT)
        for T in range(16):
            reads = [f"ds_read_b64_tr_b16 {{d}}, v{vWQR + win*8 + (T & 7)} offset:{base + rd*16384 + (T>>3)*256}" for rd in range(2)]
            mf = []
            for t in range(3):
                acc = vr(QACC(T, t))
                xb = ar(aX + (s % XRING) * 12 + t * 4)
                mf.append(f"v_mfma_f32_16x16x32_bf16 {acc}, {{a}}, {xb}, {acc if s else 0}")
            gs.append(dict(stage=s, reads=reads, mfmas=mf))
    return gs

def o_groups(hh):
    gs = []
    for c in range(7):
        R = 14 + hh * 7 + c
        slot = R % 3
        win, base = (1, 0) if slot == 2 else (0, slot * SLOT)
        for sl in range(8):
            for T in range(2):
                areg = vWOR + win * 4 + (sl // 4) * 2 + T
                reads = [f"ds_read_b64_tr_b16 {{d}}, v{areg} offset:{base + (sl & 3)*4096 + rd*2048}" for rd in range(2)]
                mf = []
                for t in range(3):
                    acc = ar(OUTACC(c, T, t))
                    first = (hh == 0 and sl == 0)
                    mf.append(f"v_mfma_f32_16x16x32_bf16 {acc}, {{a}}, {vr(OFRAG(sl,t))}, {0 if first else acc}")
                gs.append(dict(stage=R, reads=reads, mfmas=mf))
    return gs

def epilogue_ops(c):
    o = []
    o.append((f"s_add_u32 s{sT0}, s{sST}, {c*6144}", None))
    for t in range(3):
        tb = vEP + t * 8
        for T in range(2):
            for r in range(4):
                o.append((f"v_accvgpr_read_b32 v{tb + T*4 + r}, a{OUTACC(c,T,t)+r}", None))
        for k in range(4):
            o.append((f"v_cvt_pk_bf16_f32 v{tb+k}, v{tb+2*k}, v{tb+2*k+1}", None))
        o.append((f"buffer_store_dwordx4 {vr(tb)}, v{vSTO}, {sr(S_WS)}, s{sT0} offen offset:{t*1024}", None))
    return o

def main_kernel():
    kernel_open(MAIN)
    g(f"s_cmp_ge_u32 s2, 256")
    g(f"s_cbranch_scc1 L_main_end")
    g("s_load_dwordx8 s[64:71], s[0:1], 0")
    g("s_load_dwordx2 s[72:73], s[0:1], 32")
    g("s_load_dwordx8 s[76:83], s[0:1], 40")
    g("s_load_dwordx2 s[84:85], s[0:1], 72")
    g("s_load_dwordx2 s[86:87], s[0:1], 96")
    g(f"s_getpc_b64 s[{sPC}:{sPC+1}]")
    g.raw("L_pc:")
    g(f"v_lshrrev_b32 v{vT}, 6, v0")
    g(f"v_and_b32 v{vL}, 63, v0")
    g(f"v_readfirstlane_b32 s{sW}, v{vT}")
    g(f"s_and_b32 s{sT0}, s2, 7")
    g(f"s_lshr_b32 s{sT1}, s2, 3")
    g(f"s_lshr_b32 s{sBR}, s{sT0}, 2")
    g(f"s_and_b32 s{sT0}, s{sT0}, 3")
    g(f"s_lshl_b32 s{sT0}, s{sT0}, 2")
    g(f"s_and_b32 s{sT2}, s{sT1}, 1")
    g(f"s_lshl_b32 s{sT2}, s{sT2}, 1")
    g(f"s_add_u32 s{sH0}, s{sT0}, s{sT2}")
    g(f"s_lshr_b32 s{sB0}, s{sT1}, 1")
    g(f"s_lshl_b32 s{sB0}, s{sB0}, 1")
    g(f"s_and_b32 s{sBSEL}, s{sW}, 1")
    g(f"s_lshr_b32 s{sJ}, s{sW}, 1")
    g(f"s_add_u32 s{sB}, s{sB0}, s{sBSEL}")
    g(f"s_lshl_b32 s{sM}, s{sW}, 13")
    g(f"s_lshl_b32 s{sVM}, s{sW}, 10")
    g(f"s_add_u32 s{sVM}, s{sVM}, {VB}")
    g(f"s_lshl_b32 s{sT3}, s{sH0}, 9")
    g(f"s_mul_i32 s{sWOBASE}, s{sH0}, 229376")
    g(f"s_lshl_b32 s{sT0}, s{sB0}, 4")
    g(f"s_add_u32 s{sT0}, s{sT0}, s{sH0}")
    g(f"s_mul_i32 s{sVBASE}, s{sT0}, 24576")
    g(f"s_mul_i32 s{sXO}, s{sB}, 43008")
    g(f"s_add_u32 s{sXO+1}, s{sXO}, 14336")
    g(f"s_add_u32 s{sXO+2}, s{sXO}, 28672")
    g(f"s_lshl_b32 s{sT0}, s{sB}, 4")
    g(f"s_add_u32 s{sT0}, s{sT0}, s{sH0}")
    g(f"s_add_u32 s{sT0}, s{sT0}, s{sJ}")
    g(f"s_mul_i32 s{sKO}, s{sT0}, 24576")
    g(f"s_add_u32 s{sKO+1}, s{sKO}, 8192")
    g(f"s_add_u32 s{sKO+2}, s{sKO}, 16384")
    g(f"s_add_u32 s{sT0}, s{sH0}, s{sBR}")
    g(f"s_lshl_b32 s{sT0}, s{sT0}, 5")
    g(f"s_add_u32 s{sT0}, s{sT0}, s{sB}")
    g(f"s_mul_i32 s{sST}, s{sT0}, 43008")
    g(f"s_mul_i32 s{sT0}, s{sJ}, 3072")
    g(f"s_add_u32 s{sST}, s{sST}, s{sT0}")
    g(f"s_mov_b32 s{sC}, 0x{struct.unpack('<I', struct.pack('<f', 1.4426950408889634/16.0))[0]:08x}")
    L = vL
    t0, t1, t2, t3, t4 = vT, vT + 1, vT + 2, vT + 3, vT + 4
    g(f"s_lshl_b32 s{sT0}, s{sBSEL}, 4")
    g(f"s_lshl_b32 s{sT1}, s{sJ}, 2")
    g(f"s_add_u32 s{sT0}, s{sT0}, s{sT1}")
    g(f"s_lshl_b32 s{sT0}, s{sT0}, 13")
    for i in range(8):
        g(f"v_xor_b32 v{t0}, {2*i}, v{L}")
        g(f"v_lshlrev_b32 v{t0}, 4, v{t0}")
        const = (8 * (i >> 2) + (i & 3)) * 8192 - (i & 3) * 1024
        g(f"v_add_u32 v{t0}, {const}, v{t0}")
        g(f"v_add_u32 v{vWQD+i}, s{sT0}, v{t0}")
    g(f"v_and_b32 v{t0}, 15, v{L}")
    g(f"v_lshrrev_b32 v{t1}, 4, v{L}")
    g(f"v_mul_u32_u24 v{t2}, 896, v{t0}")
    g(f"v_lshl_add_u32 v{vXO}, v{t1}, 4, v{t2}")
    g(f"v_lshlrev_b32 v{t2}, 9, v{t0}")
    g(f"v_lshl_add_u32 v{vKO}, v{t1}, 3, v{t2}")
    g.smem_wait()
    g(f"s_cmp_eq_u32 s{sBR}, 0")
    for k in range(5):
        g(f"s_cselect_b64 s[{64+2*k}:{65+2*k}], s[{64+2*k}:{65+2*k}], s[{76+2*k}:{77+2*k}]")
    srd(S_WQ, 70, 71, 3670016)
    srd(S_X, 64, 65, 1376256)
    for it in ring_dma(0): g(it[0], tag=it[1])
    for it in x_loads(0): g(it[0], tag=it[1])
    for it in ring_dma(1): g(it[0], tag=it[1])
    for it in x_loads(1): g(it[0], tag=it[1])
    if OPT['code_pf']:
        g(f"s_lshr_b32 s{sT0}, s2, 3")
        g(f"s_lshl_b32 s{sT0}, s{sT0}, 2")
        g(f"s_add_u32 s{sT0}, s{sT0}, s{sW}")
        g(f"s_and_b32 s{sT0}, s{sT0}, 63")
        g(f"s_min_u32 s{sT0}, s{sT0}, (L_main_end-L_pc)/1024-1")
        g(f"s_lshl_b32 s{sT0}, s{sT0}, 10")
        g(f"v_lshl_add_u32 v{vCP}, v{L}, 4, s{sT0}")
        g(f"global_load_dword v{vCP}, v{vCP}, s[{sPC}:{sPC+1}]")
    for it in ring_dma(2): g(it[0], tag=it[1])
    for it in x_loads(2): g(it[0], tag=it[1])
    srd(S_K, 66, 67, 12582912)
    srd(S_V, 68, 69, 12582912)
    srd(S_WO, 72, 73, 3670016)
    srd(S_WS, 86, 87, 22020096)
    g(f"v_lshrrev_b32 v{t0}, 2, v{L}")
    g(f"v_and_b32 v{t1}, 7, v{t0}")
    g(f"v_and_b32 v{t2}, 3, v{L}")
    g(f"v_lshlrev_b32 v{t2}, 3, v{t2}")
    g(f"s_lshl_b32 s{sT0}, s{sJ}, 9")
    g(f"v_lshl_add_u32 v{t3}, v{t0}, 10, v{t2}")
    g(f"v_add_u32 v{t3}, s{sT0}, v{t3}")
    for T in range(8):
        g(f"v_xor_b32 v{t4}, {T}, v{t1}")
        g(f"v_lshl_add_u32 v{vWQR+T}, v{t4}, 5, v{t3}")
        g(f"v_add_u32 v{vWQR+8+T}, 0x10000, v{vWQR+T}")
    g(f"s_mul_i32 s{sT0}, s{sBSEL}, 24576")
    g(f"s_lshl_b32 s{sT1}, s{sJ}, 8")
    g(f"s_add_u32 s{sT0}, s{sT0}, s{sT1}")
    g(f"s_add_u32 s{sT0}, s{sT0}, {VB}")
    g(f"v_lshl_add_u32 v{t3}, v{t0}, 9, v{t2}")
    g(f"v_add_u32 v{t3}, s{sT0}, v{t3}")
    for T in range(8):
        g(f"v_xor_b32 v{t4}, {T}, v{t1}")
        g(f"v_lshl_add_u32 v{vVR+T}, v{t4}, 5, v{t3}")
    g(f"v_lshrrev_b32 v{t3}, 4, v{L}")
    g(f"v_lshlrev_b32 v{t3}, 9, v{t3}")
    g(f"v_and_b32 v{t4}, 15, v{L}")
    g(f"v_lshl_add_u32 v{t3}, v{t4}, 4, v{t3}")
    g(f"v_add_u32 v{vOW}, s{sT0}, v{t3}")
    g(f"v_xor_b32 v{vOR}, 0x100, v{vOW}")
    g(f"v_lshl_add_u32 v{t3}, v{t0}, 7, v{t2}")
    g(f"v_bfe_u32 v{t1}, v{L}, 3, 2")
    g(f"s_lshl_b32 s{sT0}, s{sJ}, 1")
    g(f"s_lshl_b32 s{sT1}, s{sJ}, 14")
    g(f"s_xor_b32 s{sT2}, s{sT1}, 0x4000")
    for T in range(2):
        g(f"s_add_u32 s{sWOO}, s{sT0}, {T}")
        g(f"v_xor_b32 v{t4}, s{sWOO}, v{t1}")
        g(f"v_lshl_add_u32 v{t4}, v{t4}, 5, v{t3}")
        g(f"v_add_u32 v{vWOR+T}, s{sT1}, v{t4}")
        g(f"v_add_u32 v{vWOR+2+T}, s{sT2}, v{t4}")
        g(f"v_add_u32 v{vWOR+4+T}, 0x10000, v{vWOR+T}")
        g(f"v_add_u32 v{vWOR+6+T}, 0x10000, v{vWOR+2+T}")
    g(f"v_lshrrev_b32 v{t0}, 3, v{L}")
    g(f"v_mul_u32_u24 v{t0}, 896, v{t0}")
    g(f"v_lshrrev_b32 v{t1}, 4, v{L}")
    g(f"v_lshlrev_b32 v{t1}, 1, v{t1}")
    g(f"v_and_b32 v{t2}, 7, v{L}")
    g(f"v_xor_b32 v{t1}, v{t1}, v{t2}")
    g(f"v_lshl_add_u32 v{t0}, v{t1}, 4, v{t0}")
    g(f"s_mul_i32 s{sT0}, s{sW}, 57344")
    g(f"v_add_u32 v{vWOD}, s{sT0}, v{t0}")
    for k in range(1, 4):
        g(f"v_add_u32 v{vWOD+k}, {k*6144}, v{vWOD}")
    g(f"v_lshrrev_b32 v{t0}, 5, v{L}")
    g(f"s_lshl_b32 s{sT0}, s{sW}, 2")
    g(f"v_lshl_add_u32 v{t1}, v{t0}, 1, s{sT0}")
    g(f"v_and_b32 v{t2}, 31, v{L}")
    g(f"v_xor_b32 v{t1}, v{t1}, v{t2}")
    g(f"v_lshlrev_b32 v{t1}, 4, v{t1}")
    g(f"v_lshl_add_u32 v{t1}, v{t0}, 9, v{t1}")
    g(f"s_lshl_b32 s{sT0}, s{sW}, 10")
    g(f"v_add_u32 v{vVD}, s{sT0}, v{t1}")
    g(f"v_lshlrev_b32 v{vSTO}, 4, v{L}")
    g(f"s_mul_i32 s{sT0}, s{sBSEL}, 4608")
    g(f"s_add_u32 s{sT0}, s{sT0}, {PB}")
    g(f"v_add_u32 v{vPW}, s{sT0}, v{vSTO}")
    g(f"s_add_u32 s{sT0}, s{sT0}, 1024")
    g(f"v_lshl_add_u32 v{vPW2}, v{L}, 3, s{sT0}")
    for s in range(3, 6):
        for it in x_loads(s): g(it[0], tag=it[1])
    stamp()
    g.wait_tag("R0")
    g.barrier()
    stamp()
    kl = k_loads()
    vd0 = v_dma(0)
    def after1(R):
        out = []
        out += ring_dma(R + 2)
        if R + 5 < 14: out += x_loads(R + 5)
        if 1 <= R <= 8: out += kl[(R-1)*6:R*6]
        if 7 <= R <= 12: out += vd0[(R-7)*6:(R-6)*6]
        return out
    run_stages(q_groups(), after1, tail_barrier=True)
    fq.drain()
    stamp()
    def s_mf(t):
        return [f"v_mfma_f32_16x16x32_bf16 {vr(SACC+(t*3+u)*4)}, {ar(aK+(u*8+s)*4)}, {vr(QFRAG(s,t))}, {vr(SACC+(t*3+u)*4) if s else 0}"
                for s in range(8) for u in range(3)]
    for ins in cvt_pairs(QACC, range(8), 0): g(ins)
    interleave(s_mf(0), cvt_pairs(QACC, range(8), 1))
    interleave(s_mf(1), cvt_pairs(QACC, range(8), 2))
    sm0 = softmax_ops(0)
    interleave(s_mf(2), sm0[:40])
    for ins in merge(sm0[40:], softmax_ops(1), softmax_ops(2)): g(ins)
    stamp()
    p_write(0, "L_pw0")
    g.wait_tag("V0", lg=0)
    g.barrier()
    p_read()
    pv_phase()
    stamp()
    vd1 = v_dma(1)
    def after2(R):
        out = ring_dma(R + 2)
        if 15 <= R <= 17: out += vd1[(R-15)*12:(R-14)*12]
        return out
    run_stages(o_groups(0), after2, tail_barrier=True)
    fq.drain()
    stamp()
    p_write(1, "L_pw1")
    g.wait_tag("V1", lg=0)
    g.barrier()
    p_read()
    pv_phase()
    stamp()
    def after3(R):
        out = ring_dma(R + 2)
        c = R - 21 - 2
        if c >= 0: out += epilogue_ops(c)
        return out
    run_stages(o_groups(1), after3, tail_barrier=False)
    fq.drain()
    for c in (5, 6):
        fq.add(epilogue_ops(c))
    fq.drain()
    stamp()
    if OPT['stamps']:
        g.wait_all()
        g(f"s_memtime s[{sSTAMP+2*nstamp}:{sSTAMP+2*nstamp+1}]")
        g.smem_wait()
        g(f"s_lshl_b32 s{sT0}, s2, 2")
        g(f"s_add_u32 s{sT0}, s{sT0}, s{sW}")
        g(f"s_lshl_b32 s{sT0}, s{sT0}, 6")
        g(f"s_add_u32 s{sT0}, s{sT0}, {24<<20}")
        g(f"s_mov_b32 s{S_WS+2}, 0x10000000")
        g("v_mov_b32 v1, 0")
        for k in range(nstamp + 1):
            g(f"v_mov_b32 v2, s{sSTAMP+2*k}")
            g(f"buffer_store_dword v2, v1, {sr(S_WS)}, s{sT0} offen offset:{4*k}")
    g.raw("L_main_end:")
    g("s_endpgm")

def reduce_kernel():
    global g
    lines = g.lines
    g = Gen(); g.lines = lines
    kernel_open(RED)
    g("s_cmp_ge_u32 s2, 448")
    g("s_cbranch_scc1 L_red_end")
    g("s_load_dwordx2 s[4:5], s[0:1], 80")
    g("s_load_dwordx2 s[6:7], s[0:1], 96")
    g("s_mov_b32 s16, 0x24924925")
    g("s_mul_hi_u32 s17, s2, s16")
    g("s_mul_i32 s18, s17, 7")
    g("s_sub_u32 s18, s2, s18")
    g("s_mul_i32 s19, s17, 43008")
    g("s_mul_i32 s20, s18, 6144")
    g("s_add_u32 s19, s19, s20")
    g("v_lshlrev_b32 v1, 4, v0")
    g("v_lshrrev_b32 v2, 6, v0")
    g("v_and_b32 v3, 63, v0")
    g("v_readfirstlane_b32 s21, v2")
    g("s_cmp_ge_u32 s21, 3")
    g("s_cselect_b32 s22, 1, 0")
    g("s_mul_i32 s23, s22, 3")
    g("s_sub_u32 s23, s21, s23")
    g("s_and_b32 s24, s17, 31")
    g("s_lshr_b32 s25, s17, 5")
    g("s_mul_i32 s24, s24, 48")
    g("s_lshl_b32 s23, s23, 4")
    g("s_add_u32 s24, s24, s23")
    g("s_mul_i32 s24, s24, 1792")
    g("s_mul_i32 s25, s25, 896")
    g("s_add_u32 s24, s24, s25")
    g("s_lshl_b32 s26, s18, 7")
    g("s_add_u32 s24, s24, s26")
    g("s_lshl_b32 s26, s22, 6")
    g("s_add_u32 s24, s24, s26")
    g("v_and_b32 v4, 15, v3")
    g("v_mul_u32_u24 v4, 1792, v4")
    g("v_lshrrev_b32 v5, 4, v3")
    g("v_lshl_add_u32 v4, v5, 4, v4")
    g.smem_wait()
    srd(8, 6, 7, 22020096)
    srd(12, 4, 5, 2752512)
    for p in range(8):
        if p:
            g(f"s_add_u32 s19, s19, {64*43008}")
        g(f"buffer_load_dwordx4 {vr(8+4*p)}, v1, s[8:11], s19 offen")
    for p in range(8):
        for k in range(4):
            src = 8 + 4 * p + k
            if p == 0:
                g(f"v_lshlrev_b32 v{40+2*k}, 16, v{src}")
                g(f"v_and_b32 v{41+2*k}, 0xffff0000, v{src}")
            else:
                g(f"v_lshlrev_b32 v{48+2*k}, 16, v{src}")
                g(f"v_and_b32 v{49+2*k}, 0xffff0000, v{src}")
        if p:
            for k in range(8):
                g(f"v_add_f32 v{40+k}, v{40+k}, v{48+k}")
    for k in range(4):
        g(f"v_cvt_pk_bf16_f32 v{56+k}, v{40+2*k}, v{41+2*k}")
    g("v_permlane32_swap_b32 v56, v58")
    g("v_permlane32_swap_b32 v57, v59")
    g("v_permlane16_swap_b32 v56, v58")
    g("v_permlane16_swap_b32 v57, v59")
    g("buffer_store_dwordx4 v[56:59], v4, s[12:15], s24 offen")
    g.raw("L_red_end:")
    g("s_endpgm")

def descriptors():
    g.raw('.section .rodata,"a"')
    for name, nv, acc in ((MAIN, 512, 256), (RED, 64, 64)):
        g.raw(".p2align 6")
        g.raw(f".amdhsa_kernel {name}")
        g.raw(f"  .amdhsa_next_free_vgpr {nv}")
        g.raw("  .amdhsa_next_free_sgpr 102")
        g.raw(f"  .amdhsa_accum_offset {acc}")
        g.raw("  .amdhsa_group_segment_fixed_size 0")
        g.raw("  .amdhsa_kernarg_size 104")
        g.raw("  .amdhsa_user_sgpr_count 2")
        g.raw("  .amdhsa_user_sgpr_kernarg_segment_ptr 1")
        g.raw("  .amdhsa_system_sgpr_workgroup_id_x 1")
        g.raw("  .amdhsa_float_denorm_mode_32 3")
        g.raw(".end_amdhsa_kernel")

header()
main_kernel()
st = dict(g.stats)
reduce_kernel()
descriptors()
open(sys.argv[1], "w").write(g.text())
print("main stats", st)
```

```python
import re

REG_RE = re.compile(r'\b([vas])(\d+)\b|\b([vas])\[(\d+):(\d+)\]')

def regs_of(tok):
    out = []
    tok = tok.strip()
    m = re.fullmatch(r'-?(?:abs\()?([vas])(\d+)\)?', tok)
    if m:
        return [(m.group(1), int(m.group(2)))]
    m = re.fullmatch(r'-?([vas])\[(\d+):(\d+)\]', tok)
    if m:
        return [(m.group(1), i) for i in range(int(m.group(2)), int(m.group(3)) + 1)]
    if tok in ('vcc',):
        return [('s', 106), ('s', 107)]
    if tok == 'm0':
        return [('s', 124)]
    if tok == 'exec':
        return [('s', 126), ('s', 127)]
    return out

TRANS = ('v_exp_f32', 'v_log_f32', 'v_rcp_f32', 'v_rsq_f32', 'v_sqrt_f32')

class Gen:
    def __init__(self):
        self.lines = []
        self.n = 0
        self.lgkm = []
        self.vm = []
        self.valu_w = {}
        self.trans_w = {}
        self.mfma_w = {}
        self.mfma_c = {}
        self.salu_m0 = -100
        self.mfma_op = {}
        self.valu_sw = {}
        self.store_r = {}
        self.smem_pending = False
        self.stats = {'nop': 0, 'wait': 0, 'mfma': 0, 'ins': 0}

    def raw(self, text):
        self.lines.append(text)

    def comment(self, text):
        self.lines.append('    ; ' + text)

    def _emit(self, text, slots=1):
        self.lines.append('    ' + text)
        self.n += slots
        self.stats['ins'] += 1

    def nop(self, k):
        while k > 0:
            c = min(k, 16)
            self._emit(f's_nop {c-1}', c)
            self.stats['nop'] += c
            k -= c

    def _wait(self, vm=None, lg=None):
        parts = []
        if vm is not None:
            vm = min(vm, 63)
            if vm < len(self.vm):
                parts.append(f'vmcnt({vm})')
                self.vm = self.vm[len(self.vm) - vm:] if vm else []
        if lg is not None:
            lg = min(lg, 15)
            if lg < len(self.lgkm):
                parts.append(f'lgkmcnt({lg})')
                self.lgkm = self.lgkm[len(self.lgkm) - lg:] if lg else []
        if parts:
            self._emit('s_waitcnt ' + ' '.join(parts))
            self.stats['wait'] += 1

    def wait_tag(self, tag, lg=None):
        tags = tag if isinstance(tag, (list, tuple, set)) else [tag]
        idx = [i for i, (d, t) in enumerate(self.vm) if t in tags]
        vm = (len(self.vm) - 1 - idx[-1]) if idx else None
        self._wait(vm=vm, lg=lg)

    def wait_all(self, vm=True, lg=True):
        self._wait(vm=0 if vm else None, lg=0 if lg else None)

    def smem_wait(self):
        self._emit('s_waitcnt lgkmcnt(0)')
        self.lgkm = []

    def barrier(self):
        self._emit('s_barrier')

    def __call__(self, text, tag=None, nodst=False):
        text = text.strip()
        op, _, rest = text.partition(' ')
        toks = [t.strip() for t in rest.split(',')] if rest else []
        mods = ''
        if toks:
            parts = toks[-1].split()
            toks[-1] = parts[0]
            mods = ' '.join(parts[1:])
        rd, wr = [], []
        kind = None
        if op.startswith('v_mfma'):
            kind = 'mfma'
            wr = regs_of(toks[0]); a = regs_of(toks[1]); b = regs_of(toks[2]); c = regs_of(toks[3])
            rd = a + b + c
        elif op.startswith('ds_read'):
            kind = 'dsr'; wr = regs_of(toks[0]); rd = regs_of(toks[1])
        elif op.startswith('ds_write'):
            kind = 'dsw'; rd = sum((regs_of(t) for t in toks), [])
        elif op.startswith('buffer_load') or op.startswith('global_load'):
            kind = 'vml'
            if 'lds' in mods.split():
                kind = 'dma'; rd = sum((regs_of(t) for t in toks), [])
            else:
                wr = regs_of(toks[0]); rd = sum((regs_of(t) for t in toks[1:]), [])
        elif op.startswith('buffer_store') or op.startswith('global_store') or op.startswith('buffer_atomic') or op.startswith('global_atomic'):
            kind = 'vms'; rd = sum((regs_of(t) for t in toks), [])
        elif op.startswith('v_permlane'):
            kind = 'valu'; wr = regs_of(toks[0]) + regs_of(toks[1]); rd = list(wr)
        elif op.startswith('v_'):
            kind = 'valu'
            wr = regs_of(toks[0]); rd = sum((regs_of(t) for t in toks[1:]), [])
            if op.startswith('v_fmac') or op.startswith('v_pk_fmac'):
                rd += wr
        elif op.startswith('s_load') or op.startswith('s_memtime') or op.startswith('s_memrealtime'):
            kind = 'smem'; wr = regs_of(toks[0]); rd = sum((regs_of(t) for t in toks[1:]), [])
        elif op.startswith('s_'):
            kind = 'salu'
            if op.startswith('s_cmp') or op.startswith('s_cbranch') or op.startswith('s_branch') or op in ('s_endpgm', 's_setprio', 's_sleep', 's_nop'):
                rd = sum((regs_of(t) for t in toks), [])
            else:
                wr = regs_of(toks[0]); rd = sum((regs_of(t) for t in toks[1:]), [])
        else:
            raise ValueError('unknown op ' + text)
        if nodst: wr = []
        srd, swr = set(rd), set(wr)
        touch = srd | swr
        need_lg = None
        for i, d in enumerate(self.lgkm):
            if d & touch:
                need_lg = len(self.lgkm) - 1 - i
        need_vm = None
        for i, (d, t) in enumerate(self.vm):
            if d & touch:
                need_vm = len(self.vm) - 1 - i
        if need_lg is not None or need_vm is not None:
            self._wait(vm=need_vm, lg=need_lg)
        need = 0
        def req(slot, k):
            nonlocal need
            gap = self.n - slot - 1
            if gap < k:
                need = max(need, k - gap)
        if kind == 'mfma':
            passes = 8 if '32x32' in op else 4
            for r in srd:
                if r in self.valu_w: req(self.valu_w[r], 2)
            ab = set(regs_of(toks[1]) + regs_of(toks[2]))
            cset = tuple(regs_of(toks[3]))
            for r in ab:
                if r in self.mfma_w:
                    s, d, p = self.mfma_w[r]; req(s, {4: 8, 8: 12}[p])
            for r in cset:
                if r in self.mfma_w:
                    s, d, p = self.mfma_w[r]
                    if d != cset or p != passes or self.mfma_op.get(r) != op: req(s, {4: 6, 8: 10}[p])
            for r in swr:
                if r in self.mfma_w:
                    s, d, p = self.mfma_w[r]
                    if d != tuple(wr): req(s, {4: 6, 8: 10}[p])
        else:
            chk = touch if kind in ('valu', 'dsr', 'vml') else srd
            for r in chk:
                if r in self.mfma_w:
                    s, d, p = self.mfma_w[r]; req(s, {4: 8, 8: 12}[p])
            if kind in ('valu', 'dsr', 'vml'):
                for r in swr:
                    if r in self.mfma_c:
                        s, p = self.mfma_c[r]; req(s, {4: 3, 8: 7}[p])
                    if r in self.store_r: req(self.store_r[r], 2)
        if kind == 'valu':
            if op not in TRANS and not any(op.startswith(t) for t in TRANS):
                for r in srd:
                    if r in self.trans_w: req(self.trans_w[r], 1)
            if op.startswith('v_permlane'):
                for r in srd:
                    if r in self.valu_w: req(self.valu_w[r], 2)
            if op.startswith('v_readfirstlane') or op.startswith('v_readlane'):
                for r in srd:
                    if r in self.valu_w: req(self.valu_w[r], 1)
            if 'dpp' in mods or 'row_' in mods or 'quad_perm' in mods:
                for r in srd:
                    if r in self.valu_w: req(self.valu_w[r], 2)
            for r in srd:
                if r[0] == 's' and r in self.valu_sw: req(self.valu_sw[r], 2)
        if kind in ('mfma',):
            for r in srd:
                if r in self.trans_w: req(self.trans_w[r], 2)
        if kind in ('vml', 'vms', 'dma'):
            for r in srd:
                if r[0] == 's' and r in self.valu_sw: req(self.valu_sw[r], 5)
        if kind == 'salu' or kind == 'smem':
            for r in srd:
                if r in self.valu_sw: req(self.valu_sw[r], 4)
        if kind == 'dma':
            req(self.salu_m0, 1)
        if need:
            self.nop(need)
        slot = self.n
        self._emit(text)
        if kind == 'mfma':
            self.stats['mfma'] += 1
            passes = 8 if '32x32' in op else 4
            for r in swr:
                self.mfma_w[r] = (slot, tuple(wr), passes); self.valu_w.pop(r, None); self.trans_w.pop(r, None)
                self.mfma_op[r] = op
            for r in regs_of(toks[3]):
                self.mfma_c[r] = (slot, passes)
        elif kind == 'valu':
            for r in swr:
                if r[0] == 's':
                    self.valu_sw[r] = slot
                else:
                    self.valu_w[r] = slot; self.mfma_w.pop(r, None)
                    if any(op.startswith(t) for t in TRANS): self.trans_w[r] = slot
                    else: self.trans_w.pop(r, None)
        elif kind in ('dsr', 'dsw'):
            self.lgkm.append(swr)
            for r in swr:
                self.mfma_w.pop(r, None); self.valu_w.pop(r, None); self.trans_w.pop(r, None)
        elif kind in ('vml', 'vms', 'dma'):
            self.vm.append((swr, tag))
            for r in swr:
                self.mfma_w.pop(r, None); self.valu_w.pop(r, None); self.trans_w.pop(r, None)
            if kind == 'vms' and ('x4' in op or 'x3' in op):
                for r in regs_of(toks[0]):
                    self.store_r[r] = slot
        elif kind == 'salu':
            for r in swr:
                self.valu_sw.pop(r, None)
                if r == ('s', 124): self.salu_m0 = slot

    def text(self):
        return '\n'.join(self.lines) + '\n'
```

```python
import sys, struct
from asmgen import Gen

NAME = "concat_heads__mha_block_cached__gqa_block_cached__near_ridge"
MAIN = NAME + "_kernel"
RED = "reduce_partials_kernel"

OPT = dict(bar_group=10, D=7, stamps=0, code_pf=1, touch=1, nok=0, nox=0, nov=0, now=0, tv0=0, tv1=1, two=3)
for a in sys.argv[2:]:
    k, v = a.split('=')
    OPT[k] = int(v)

SLOT = 32768
VB = 3 * SLOT
XU = 12288
KA = VB + 65536 - 4 * 8320
PB = VB + 49152
LDS_BYTES = 163840

S_X, S_K, S_V, S_WQ, S_WO, S_WS = 8, 12, 16, 20, 24, 28
sW, sBSEL, sJ, sBR, sH0, sB0, sB = 32, 33, 34, 35, 36, 37, 38
sXB = 40
sXM = 41
sKB = 42
sKM = 43
sXO = 44
sKO = 45
sWQO = 46
sWOO = 47
sWOO2 = 48
sVO = 49
sM = 50
sVM = 51
sST = 52
sC = 53
sT0, sT1, sT2, sT3 = 54, 55, 56, 57
sVBASE = 58
sWOBASE = 59
sPC = 60
sTV = 62
sSTAMP = 64

def QACC(T, t): return (((T // 2) * 3 + t) * 4) + (96 if T & 1 else 0)
def QFRAG(s, t): return (s * 3 + t) * 4
SACC = 192
vWQR = 192
vWQD = 208
vXR = 216
vXD = 218
vKR = 219
vKD = 223
vTW = 224
vWOD = 228
vVD = 232
vVR = 233
vWOR = 241
vSTO = 249
vPW = 250
vPW2 = 251
vOW = 252
vOR = 253
vDUM = 254
vTV = 255
vPOWN = 96
vPCUR = 114
vSM = 132
vEP = 144
def OACC(T, t): return (((T // 2) * 3 + t) * 4) + (48 if T & 1 else 0)
def OFRAG(sl, t): return (sl * 3 + t) * 4
aFR = 0
aK = 32
aX = 128
XRING = 10
aOUT = 32
def OUTACC(c, T, t): return aOUT + ((c * 2 + T) * 3 + t) * 4

def vr(b, n=4): return f"v[{b}:{b+n-1}]"
def ar(b, n=4): return f"a[{b}:{b+n-1}]"
def sr(b, n=4): return f"s[{b}:{b+n-1}]"

g = Gen()
nstamp = 0
def stamp(real=False):
    global nstamp
    if OPT['stamps']:
        g(f"{'s_memrealtime' if real else 's_memtime'} s[{sSTAMP+24+2*0 if False else STB+2*nstamp}:{STB+2*nstamp+1}]")
        nstamp += 1
STB = 64

def header():
    g.raw("; fused attention block: launch 1 computes per-head-pair partial outputs, launch 2 sums them")
    g.raw(f"; @launch kernel={MAIN} grid=(256,1,1) block=(256,1,1) lds={LDS_BYTES}")
    g.raw(f"; @launch kernel={RED} grid=(448,1,1) block=(384,1,1) lds=0")
    g.raw('.amdgcn_target "amdgcn-amd-amdhsa--gfx950"')
    g.raw(".text")

def kernel_open(name):
    g.raw(f".globl {name}")
    g.raw(".p2align 8")
    g.raw(f".type {name},@function")
    g.raw(f"{name}:")

def srd(dst, lo, hi, nbytes):
    g(f"s_mov_b32 s{dst}, s{lo}")
    g(f"s_and_b32 s{dst+1}, s{hi}, 0xffff")
    g(f"s_mov_b32 s{dst+2}, {nbytes}")
    g(f"s_mov_b32 s{dst+3}, 0x20000")

def wq_dma(R):
    slot = (R % 3) * SLOT
    out = [(f"s_add_u32 s{sWQO}, s{sT3}, {R*262144}", None)]
    for i in range(8):
        if i % 4 == 0:
            out.append((f"s_add_u32 m0, s{sM}, {slot + (i//4)*4096}", None))
        out.append((f"buffer_load_dwordx4 v{vWQD+i}, {sr(S_WQ)}, s{sWQO} offen offset:{(i%4)*1024} lds", f"R{R}"))
    return out

def wo_dma(R):
    hh, c = divmod(R - 14, 7)
    slot = (R % 3) * SLOT
    out = [(f"s_add_u32 s{sWOO}, s{sWOBASE}, {hh*229376 + c*128}", None),
           (f"s_add_u32 s{sWOO2}, s{sWOBASE}, {hh*229376 + c*128 + 28672}", None)]
    for i in range(8):
        if i % 4 == 0:
            out.append((f"s_add_u32 m0, s{sM}, {slot + (i//4)*4096}", None))
        so = sWOO if i < 4 else sWOO2
        out.append((f"buffer_load_dwordx4 v{vWOD+(i%4)}, {sr(S_WO)}, s{so} offen offset:{(i%4)*1024} lds", f"R{R}"))
    return out

def ring_dma(R):
    if OPT['now'] and R > 2: return []
    if R < 14: return wq_dma(R)
    if R < 28: return wo_dma(R)
    return []

def x_dma(p, tag):
    if OPT['nox'] and p > 1: return []
    out = []
    for k in range(3):
        out.append((f"s_add_u32 s{sXO}, s{sXB}, {p*128 + k*28672}", None))
        out.append((f"s_add_u32 m0, s{sXM}, {(p % 2)*XU + k*4096}", None))
        out.append((f"buffer_load_dwordx4 v{vXD}, {sr(S_X)}, s{sXO} offen lds", tag))
    return out

def x_reads(p):
    out = []
    for s2 in range(2):
        s = 2 * p + s2
        for t in range(3):
            d = aX + (s % XRING) * 12 + t * 4
            out.append((f"ds_read_b128 {ar(d)}, v{vXR+s2} offset:{(p % 2)*XU + t*2048}", None))
    return out

def k_dma(n, tag):
    if OPT['nok']: return []
    u, dh = divmod(n, 2)
    out = [(f"s_add_u32 m0, s{sKM}, {(n % 2)*4160}", None)]
    for j in range(4):
        out.append((f"s_add_u32 s{sKO}, s{sKB}, {u*8192 + dh*256 + j*(2048-1040)}", None))
        out.append((f"buffer_load_dwordx4 v{vKD}, {sr(S_K)}, s{sKO} offen offset:{j*1040} lds", tag))
    return out

def k_reads(n):
    u, dh = divmod(n, 2)
    out = []
    for s4 in range(4):
        for p in range(2):
            d = aK + (u * 8 + dh * 4 + s4) * 4 + 2 * p
            out.append((f"ds_read_b64 {ar(d,2)}, v{vKR+s4} offset:{(n % 2)*4160 + 32*p}", None))
    return out

def v_dma(hh, bb, ms):
    if OPT['nov']: return []
    out = []
    for m in ms:
        out.append((f"s_add_u32 s{sVO}, s{sVBASE}, {hh*24576 + bb*393216 + m*4096}", None))
        out.append((f"s_add_u32 m0, s{sVM}, {bb*24576 + m*4096}", None))
        out.append((f"buffer_load_dwordx4 v{vVD}, {sr(S_V)}, s{sVO} offen lds", f"V{hh}"))
    return out

def v_touch(hh):
    if OPT['nov'] or not OPT['touch']: return []
    out = []
    for k in range(2):
        out.append((f"s_add_u32 s{sVO}, s{sTV}, {hh*24576 + k*4096}", None))
        out.append((f"buffer_load_dword v{vDUM}, v{vTV}, {sr(S_V)}, s{sVO} offen", None, True))
    return out

class FillQ:
    def __init__(self): self.q = []
    def add(self, items): self.q.extend(items)
    def pop(self):
        it = self.q.pop(0)
        g(it[0], tag=it[1], nodst=(len(it) > 2))
    def __len__(self): return len(self.q)
    def drain(self):
        while self.q: self.pop()
fq = FillQ()
def emit_list(l):
    for it in l: g(it[0], tag=it[1], nodst=(len(it) > 2))

def run_stages(groups, after_barrier, tail_barrier=None, ring=8, nreg=4):
    D = min(OPT['D'], ring - 1)
    open_stage = groups[0]['stage']
    pend = []
    for n, gr in enumerate(groups):
        d = aFR + (n % ring) * nreg
        for k, rt in enumerate(gr['reads']):
            pend.append((n, rt.format(d=ar(d + 2 * k, 2))))
    rp = 0
    def can_read(n_cur):
        if rp >= len(pend): return False
        n, _ = pend[rp]
        if groups[n]['stage'] > open_stage: return False
        return n <= n_cur + D
    while rp < len(pend) and pend[rp][0] < D and groups[pend[rp][0]]['stage'] <= open_stage:
        g(pend[rp][1]); rp += 1
    idx_in_stage = 0
    for n, gr in enumerate(groups):
        if n > 0 and groups[n-1]['stage'] != gr['stage']:
            idx_in_stage = 0
        d = aFR + (n % ring) * nreg
        while rp < len(pend) and pend[rp][0] <= n:
            assert groups[pend[rp][0]]['stage'] <= open_stage
            g(pend[rp][1]); rp += 1
        for k, mt in enumerate(gr['mfmas']):
            g(mt.format(a=ar(d)))
            budget = 2
            while budget:
                if can_read(n):
                    g(pend[rp][1]); rp += 1; budget -= 1
                elif len(fq):
                    fq.pop(); budget -= 1
                else:
                    break
        R = gr['stage']
        last_stage = groups[-1]['stage']
        if idx_in_stage == OPT['bar_group'] and (R < last_stage or tail_barrier):
            while rp < len(pend) and groups[pend[rp][0]]['stage'] <= R:
                g(pend[rp][1]); rp += 1
            fq.drain()
            g.wait_tag(f"R{R+1}", lg=0)
            g.barrier()
            open_stage = R + 1
            fq.add(after_barrier(R + 1))
        idx_in_stage += 1

def interleave(mf, fill, per=2):
    fill = list(fill)
    for m in mf:
        g(m)
        for _ in range(per):
            if fill: g(fill.pop(0))
            elif len(fq): fq.pop()
    for f in fill: g(f)

def softmax_ops(t):
    S = [SACC + 12 * t + k for k in range(12)]
    m, x = vSM + 4 * t, vSM + 4 * t + 1
    o = []
    o.append(f"v_max3_f32 v{m}, v{S[0]}, v{S[1]}, v{S[2]}")
    o.append(f"v_max3_f32 v{x}, v{S[3]}, v{S[4]}, v{S[5]}")
    o.append(f"v_max3_f32 v{m}, v{m}, v{S[6]}, v{S[7]}")
    o.append(f"v_max3_f32 v{x}, v{x}, v{S[8]}, v{S[9]}")
    o.append(f"v_max3_f32 v{m}, v{m}, v{S[10]}, v{S[11]}")
    o.append(f"v_max_f32 v{m}, v{m}, v{x}")
    for sw in ("v_permlane32_swap_b32", "v_permlane16_swap_b32"):
        o.append(f"v_mov_b32 v{x}, v{m}")
        o.append(f"{sw} v{m}, v{x}")
        o.append(f"v_max_f32 v{m}, v{m}, v{x}")
    o.append(f"v_mul_f32 v{m}, s{sC}, v{m}")
    for k in range(12):
        o.append(f"v_fma_f32 v{S[k]}, v{S[k]}, s{sC}, -v{m}")
    for k in range(12):
        o.append(f"v_exp_f32 v{S[k]}, v{S[k]}")
    o.append(f"v_add_f32 v{m}, v{S[0]}, v{S[1]}")
    o.append(f"v_add_f32 v{x}, v{S[2]}, v{S[3]}")
    for k in range(4, 12, 2):
        o.append(f"v_add_f32 v{m}, v{m}, v{S[k]}")
        o.append(f"v_add_f32 v{x}, v{x}, v{S[k+1]}")
    o.append(f"v_add_f32 v{m}, v{m}, v{x}")
    for sw in ("v_permlane32_swap_b32", "v_permlane16_swap_b32"):
        o.append(f"v_mov_b32 v{x}, v{m}")
        o.append(f"{sw} v{m}, v{x}")
        o.append(f"v_add_f32 v{m}, v{m}, v{x}")
    o.append(f"v_rcp_f32 v{m}, v{m}")
    for k in range(12):
        o.append(f"v_mul_f32 v{S[k]}, v{S[k]}, v{m}")
    for k in range(6):
        o.append(f"v_cvt_pk_bf16_f32 v{vPOWN + 6*t + k}, v{S[2*k]}, v{S[2*k+1]}")
    return o

def merge(*lists):
    out = []
    n = max(len(l) for l in lists)
    for i in range(n):
        for l in lists:
            if i < len(l): out.append(l[i])
    return out

def cvt_pairs(acc, s_list, t):
    o = []
    for s in s_list:
        b, b2 = acc(2 * s, t), acc(2 * s + 1, t)
        o.append(f"v_cvt_pk_bf16_f32 v{b}, v{b}, v{b+1}")
        o.append(f"v_cvt_pk_bf16_f32 v{b+1}, v{b+2}, v{b+3}")
        o.append(f"v_cvt_pk_bf16_f32 v{b+2}, v{b2}, v{b2+1}")
        o.append(f"v_cvt_pk_bf16_f32 v{b+3}, v{b2+2}, v{b2+3}")
    return o

def p_write(which, lbl):
    g.wait_all(vm=False, lg=True)
    g(f"s_cmp_lg_u32 s{sJ}, {which}")
    g(f"s_cbranch_scc1 {lbl}")
    n0 = g.n
    for t in range(3):
        g(f"ds_write_b128 v{vPW}, {vr(vPOWN+6*t)} offset:{t*1536}")
        g(f"ds_write_b64 v{vPW2}, {vr(vPOWN+6*t+4,2)} offset:{t*1536}")
    g.wait_all(vm=False, lg=True)
    g.raw(f"{lbl}:")
    g.n = n0

def p_read():
    for t in range(3):
        g(f"ds_read_b128 {vr(vPCUR+6*t)}, v{vPW} offset:{t*1536}")
        g(f"ds_read_b64 {vr(vPCUR+6*t+4,2)}, v{vPW2} offset:{t*1536}")

def pv_phase():
    reads = []
    for T in range(8):
        d = aFR + (T % 4) * 8
        reads.append([f"ds_read_b64_tr_b16 {ar(d+2*u,2)}, v{vVR+T} offset:{u*8192}" for u in range(3)])
    for T in range(3):
        for r in reads[T]: g(r)
    def cw(sl):
        o = []
        for t in range(3):
            o += cvt_pairs(OACC, [sl], t)
        return o
    for T in range(9):
        d = aFR + (T % 4) * 8
        dp = aFR + ((T - 1) % 4) * 8
        mf = []
        if T < 8:
            mf += [f"v_mfma_f32_16x16x32_bf16 {vr(OACC(T,t))}, {ar(d)}, {vr(vPCUR+6*t)}, 0" for t in range(3)]
        if T > 0:
            mf += [f"v_mfma_f32_16x16x16_bf16 {vr(OACC(T-1,t))}, {ar(dp+4,2)}, {vr(vPCUR+6*t+4,2)}, {vr(OACC(T-1,t))}" for t in range(3)]
        fill = []
        if T >= 4 and T % 2 == 0: fill = cw((T - 4) // 2)
        interleave(mf, fill, per=2)
        if T + 3 < 8:
            for r in reads[T + 3]: g(r)
    for ins in cw(3): g(ins)
    for sl in range(4):
        for t in range(3):
            g(f"ds_write_b128 v{vOW}, {vr(OFRAG(sl,t))} offset:{(3*sl+t)*2048}")
    g.wait_all(vm=False, lg=True)
    g.barrier()
    for sl in range(4):
        for t in range(3):
            g(f"ds_read_b128 {vr(OFRAG(4+sl,t))}, v{vOR} offset:{(3*sl+t)*2048}")

def q_groups():
    gs = []
    for s in range(14):
        slot = s % 3
        win, base = (1, 0) if slot == 2 else (0, slot * SLOT)
        for T in range(16):
            reads = [f"ds_read_b64_tr_b16 {{d}}, v{vWQR + win*8 + (T & 7)} offset:{base + rd*16384 + (T>>3)*256}" for rd in range(2)]
            mf = []
            for t in range(3):
                acc = vr(QACC(T, t))
                xb = ar(aX + (s % XRING) * 12 + t * 4)
                mf.append(f"v_mfma_f32_16x16x32_bf16 {acc}, {{a}}, {xb}, {acc if s else 0}")
            gs.append(dict(stage=s, reads=reads, mfmas=mf))
    return gs

def o_groups(hh):
    gs = []
    for c in range(7):
        R = 14 + hh * 7 + c
        slot = R % 3
        win, base = (1, 0) if slot == 2 else (0, slot * SLOT)
        for sl in range(8):
            for T in range(2):
                areg = vWOR + win * 4 + (sl // 4) * 2 + T
                reads = [f"ds_read_b64_tr_b16 {{d}}, v{areg} offset:{base + (sl & 3)*4096 + rd*2048}" for rd in range(2)]
                mf = []
                for t in range(3):
                    acc = ar(OUTACC(c, T, t))
                    first = (hh == 0 and sl == 0)
                    mf.append(f"v_mfma_f32_16x16x32_bf16 {acc}, {{a}}, {vr(OFRAG(sl,t))}, {0 if first else acc}")
                gs.append(dict(stage=R, reads=reads, mfmas=mf))
    return gs

def epilogue_ops(c):
    o = [(f"s_add_u32 s{sT0}, s{sST}, {c*6144}", None)]
    for t in range(3):
        tb = vEP + t * 8
        for T in range(2):
            for r in range(4):
                o.append((f"v_accvgpr_read_b32 v{tb + T*4 + r}, a{OUTACC(c,T,t)+r}", None))
        for k in range(4):
            o.append((f"v_cvt_pk_bf16_f32 v{tb+k}, v{tb+2*k}, v{tb+2*k+1}", None))
        o.append((f"buffer_store_dwordx4 {vr(tb)}, v{vSTO}, {sr(S_WS)}, s{sT0} offen offset:{t*1024}", None))
    return o

def main_kernel():
    global STB
    kernel_open(MAIN)
    g(f"s_cmp_ge_u32 s2, 256")
    g(f"s_cbranch_scc1 L_main_end")
    if OPT['stamps']:
        g("s_memrealtime s[96:97]")
        g("s_memtime s[98:99]")
    g("s_load_dwordx8 s[64:71], s[0:1], 0")
    g("s_load_dwordx2 s[72:73], s[0:1], 32")
    g("s_load_dwordx8 s[76:83], s[0:1], 40")
    g("s_load_dwordx2 s[84:85], s[0:1], 72")
    g("s_load_dwordx2 s[86:87], s[0:1], 96")
    g(f"s_getpc_b64 s[{sPC}:{sPC+1}]")
    g.raw("L_pc:")
    L = 1
    t0, t1, t2, t3, t4, t5 = 2, 3, 4, 5, 6, 7
    g(f"v_lshrrev_b32 v{t0}, 6, v0")
    g(f"v_and_b32 v{L}, 63, v0")
    g(f"v_readfirstlane_b32 s{sW}, v{t0}")
    g(f"s_and_b32 s{sT0}, s2, 7")
    g(f"s_lshr_b32 s{sT1}, s2, 3")
    g(f"s_lshr_b32 s{sBR}, s{sT0}, 2")
    g(f"s_and_b32 s88, s{sT0}, 3")
    g(f"s_lshl_b32 s{sT0}, s88, 2")
    g(f"s_and_b32 s89, s{sT1}, 1")
    g(f"s_lshl_b32 s{sT2}, s89, 1")
    g(f"s_add_u32 s{sH0}, s{sT0}, s{sT2}")
    g(f"s_lshr_b32 s{sB0}, s{sT1}, 1")
    g(f"s_lshl_b32 s{sB0}, s{sB0}, 1")
    g(f"s_lshl_b32 s90, s{sT1}, 2")
    g(f"s_add_u32 s90, s90, s{sW}")
    g(f"s_and_b32 s{sBSEL}, s{sW}, 1")
    g(f"s_lshr_b32 s{sJ}, s{sW}, 1")
    g(f"s_add_u32 s{sB}, s{sB0}, s{sBSEL}")
    g(f"s_lshl_b32 s{sM}, s{sW}, 13")
    g(f"s_lshl_b32 s{sVM}, s{sW}, 10")
    g(f"s_add_u32 s{sVM}, s{sVM}, {VB}")
    g(f"s_mov_b32 s{sXM}, s{sVM}")
    g(f"s_lshl_b32 s{sT3}, s{sH0}, 9")
    g(f"s_mul_i32 s{sXB}, s{sB0}, 43008")
    g(f"s_lshl_b32 s{sT0}, s{sBSEL}, 4")
    g(f"s_lshl_b32 s{sT1}, s{sJ}, 2")
    g(f"s_add_u32 s{sT0}, s{sT0}, s{sT1}")
    g(f"s_lshl_b32 s{sT0}, s{sT0}, 13")
    for i in range(8):
        g(f"v_xor_b32 v{t0}, {2*i}, v{L}")
        g(f"v_lshlrev_b32 v{t0}, 4, v{t0}")
        const = (8 * (i >> 2) + (i & 3)) * 8192 - (i & 3) * 1024
        g(f"v_add_u32 v{t0}, {const}, v{t0}")
        g(f"v_add_u32 v{vWQD+i}, s{sT0}, v{t0}")
    g(f"v_lshrrev_b32 v{t0}, 3, v{L}")
    g(f"v_mul_u32_u24 v{t0}, 896, v{t0}")
    g(f"v_lshrrev_b32 v{t1}, 4, v{L}")
    g(f"s_lshl_b32 s{sT0}, s{sBSEL}, 2")
    g(f"v_add_u32 v{t1}, s{sT0}, v{t1}")
    g(f"v_and_b32 v{t2}, 7, v{L}")
    g(f"v_xor_b32 v{t1}, v{t1}, v{t2}")
    g(f"v_lshl_add_u32 v{t0}, v{t1}, 4, v{t0}")
    g(f"s_mul_i32 s{sT0}, s{sW}, 7168")
    g(f"v_add_u32 v{vXD}, s{sT0}, v{t0}")
    g.smem_wait()
    g(f"s_cmp_eq_u32 s{sBR}, 0")
    for k in range(5):
        g(f"s_cselect_b64 s[{64+2*k}:{65+2*k}], s[{64+2*k}:{65+2*k}], s[{76+2*k}:{77+2*k}]")
    srd(S_WQ, 70, 71, 3670016)
    srd(S_X, 64, 65, 1376256)
    emit_list(x_dma(0, "R0"))
    emit_list(ring_dma(0))
    emit_list(x_dma(1, "R1"))
    emit_list(ring_dma(1))
    g(f"v_lshlrev_b32 v{vTV}, 7, v{L}")
    if OPT['code_pf']:
        g(f"s_and_b32 s{sT0}, s90, 63")
        g(f"s_min_u32 s{sT0}, s{sT0}, (L_main_end-L_pc)/1024-1")
        g(f"s_lshl_b32 s{sT0}, s{sT0}, 10")
        g(f"v_lshl_add_u32 v{t0}, v{L}, 4, s{sT0}")
        g(f"global_load_dword v{vDUM}, v{t0}, s[{sPC}:{sPC+1}]", nodst=True)
    emit_list(ring_dma(2))
    if OPT['touch']:
        g(f"v_lshrrev_b32 v{t0}, 4, v{L}")
        g(f"v_lshlrev_b32 v{t0}, 13, v{t0}")
        g(f"v_and_b32 v{t1}, 15, v{L}")
        g(f"v_lshl_add_u32 v{t0}, v{t1}, 7, v{t0}")
        g(f"s_min_u32 s91, s90, 111")
        g(f"s_lshl_b32 s{sT0}, s91, 15")
        g(f"s_lshl_b32 s{sT1}, s88, 11")
        g(f"s_add_u32 s{sT0}, s{sT0}, s{sT1}")
        g(f"buffer_load_dword v{vDUM}, v{t0}, {sr(S_WQ)}, s{sT0} offen", nodst=True)
        g(f"s_lshl_b32 s{sT0}, s89, 2")
        g(f"s_add_u32 s{sT0}, s{sT0}, s{sW}")
        g(f"s_mul_i32 s{sT0}, s{sT0}, 60")
        g(f"v_add_u32 v{t0}, s{sT0}, v{L}")
        g(f"v_mul_u32_u24 v{t1}, 52429, v{t0}")
        g(f"v_lshrrev_b32 v{t1}, 18, v{t1}")
        g(f"v_mul_u32_u24 v{t2}, 5, v{t1}")
        g(f"v_sub_u32 v{t0}, v{t0}, v{t2}")
        g(f"v_mul_u32_u24 v{t1}, 896, v{t1}")
        g(f"v_lshl_add_u32 v{t0}, v{t0}, 7, v{t1}")
        g(f"buffer_load_dword v{vDUM}, v{t0}, {sr(S_X)}, s{sXB} offen offset:256", nodst=True)
    srd(S_K, 66, 67, 12582912)
    srd(S_V, 68, 69, 12582912)
    srd(S_WO, 72, 73, 3670016)
    srd(S_WS, 86, 87, 22020096)
    g(f"s_lshl_b32 s{sT0}, s{sB}, 4")
    g(f"s_add_u32 s{sT0}, s{sT0}, s{sH0}")
    g(f"s_add_u32 s{sT0}, s{sT0}, s{sJ}")
    g(f"s_mul_i32 s{sKB}, s{sT0}, 24576")
    g(f"s_mul_i32 s{sKM}, s{sW}, 8320")
    g(f"s_add_u32 s{sKM}, s{sKM}, {KA}")
    g(f"v_lshrrev_b32 v{t0}, 4, v{L}")
    g(f"v_lshlrev_b32 v{t1}, 2, v{t0}")
    g(f"v_and_b32 v{t2}, 15, v{L}")
    g(f"v_xor_b32 v{t1}, v{t1}, v{t2}")
    g(f"v_lshlrev_b32 v{t1}, 4, v{t1}")
    g(f"v_lshl_add_u32 v{vKD}, v{t0}, 9, v{t1}")
    emit_list(k_dma(0, "R3"))
    g(f"s_mul_i32 s{sWOBASE}, s{sH0}, 229376")
    g(f"s_lshl_b32 s{sT0}, s{sB0}, 4")
    g(f"s_add_u32 s{sT0}, s{sT0}, s{sH0}")
    g(f"s_mul_i32 s{sVBASE}, s{sT0}, 24576")
    g(f"s_mul_i32 s{sT0}, s{sBSEL}, 393216")
    g(f"s_mul_i32 s{sT1}, s{sJ}, 12288")
    g(f"s_add_u32 s{sTV}, s{sVBASE}, s{sT0}")
    g(f"s_add_u32 s{sTV}, s{sTV}, s{sT1}")
    g(f"s_add_u32 s{sT0}, s{sH0}, s{sBR}")
    g(f"s_lshl_b32 s{sT0}, s{sT0}, 5")
    g(f"s_add_u32 s{sT0}, s{sT0}, s{sB}")
    g(f"s_mul_i32 s{sST}, s{sT0}, 43008")
    g(f"s_mul_i32 s{sT0}, s{sJ}, 3072")
    g(f"s_add_u32 s{sST}, s{sST}, s{sT0}")
    g(f"s_mov_b32 s{sC}, 0x{struct.unpack('<I', struct.pack('<f', 1.4426950408889634/16.0))[0]:08x}")
    g(f"s_mul_i32 s{sT0}, s88, 917504")
    g(f"s_min_u32 s91, s90, 111")
    g(f"s_lshl_b32 s{sT1}, s91, 13")
    g(f"s_add_u32 s{sT0}, s{sT0}, s{sT1}")
    g(f"v_add_u32 v{vTW}, s{sT0}, v{vTV}")
    g(f"v_and_b32 v{t0}, 15, v{L}")
    g(f"v_lshrrev_b32 v{t1}, 4, v{L}")
    g(f"v_lshrrev_b32 v{t2}, 1, v{t0}")
    g(f"v_xor_b32 v{t2}, v{t2}, v{t1}")
    g(f"v_lshlrev_b32 v{t2}, 4, v{t2}")
    g(f"v_lshl_add_u32 v{t2}, v{t0}, 7, v{t2}")
    g(f"s_mul_i32 s{sT0}, s{sBSEL}, 6144")
    g(f"s_add_u32 s{sT0}, s{sT0}, {VB}")
    g(f"v_add_u32 v{vXR}, s{sT0}, v{t2}")
    g(f"v_xor_b32 v{vXR+1}, 64, v{vXR}")
    g(f"v_lshrrev_b32 v{t2}, 2, v{t0}")
    g(f"v_mul_u32_u24 v{t2}, 1040, v{t2}")
    g(f"v_and_b32 v{t3}, 3, v{t0}")
    g(f"v_lshl_add_u32 v{t2}, v{t3}, 8, v{t2}")
    g(f"v_lshl_add_u32 v{t2}, v{t1}, 3, v{t2}")
    g(f"v_add_u32 v{t2}, s{sKM}, v{t2}")
    for s4 in range(4):
        g(f"v_xor_b32 v{t4}, {s4}, v{t3}")
        g(f"v_lshl_add_u32 v{vKR+s4}, v{t4}, 6, v{t2}")
    g(f"v_lshrrev_b32 v{t0}, 2, v{L}")
    g(f"v_and_b32 v{t1}, 7, v{t0}")
    g(f"v_and_b32 v{t2}, 3, v{L}")
    g(f"v_lshlrev_b32 v{t2}, 3, v{t2}")
    g(f"s_lshl_b32 s{sT0}, s{sJ}, 9")
    g(f"v_lshl_add_u32 v{t3}, v{t0}, 10, v{t2}")
    g(f"v_add_u32 v{t3}, s{sT0}, v{t3}")
    for T in range(8):
        g(f"v_xor_b32 v{t4}, {T}, v{t1}")
        g(f"v_lshl_add_u32 v{vWQR+T}, v{t4}, 5, v{t3}")
        g(f"v_add_u32 v{vWQR+8+T}, 0x10000, v{vWQR+T}")
    g(f"s_mul_i32 s{sT0}, s{sBSEL}, 24576")
    g(f"s_lshl_b32 s{sT1}, s{sJ}, 8")
    g(f"s_add_u32 s{sT0}, s{sT0}, s{sT1}")
    g(f"s_add_u32 s{sT0}, s{sT0}, {VB}")
    g(f"v_lshl_add_u32 v{t3}, v{t0}, 9, v{t2}")
    g(f"v_add_u32 v{t3}, s{sT0}, v{t3}")
    for T in range(8):
        g(f"v_xor_b32 v{t4}, {T}, v{t1}")
        g(f"v_lshl_add_u32 v{vVR+T}, v{t4}, 5, v{t3}")
    g(f"v_lshrrev_b32 v{t3}, 4, v{L}")
    g(f"v_lshlrev_b32 v{t3}, 9, v{t3}")
    g(f"v_and_b32 v{t4}, 15, v{L}")
    g(f"v_lshl_add_u32 v{t3}, v{t4}, 4, v{t3}")
    g(f"v_add_u32 v{vOW}, s{sT0}, v{t3}")
    g(f"v_xor_b32 v{vOR}, 0x100, v{vOW}")
    g(f"v_lshl_add_u32 v{t3}, v{t0}, 7, v{t2}")
    g(f"v_bfe_u32 v{t1}, v{L}, 3, 2")
    g(f"s_lshl_b32 s{sT0}, s{sJ}, 1")
    g(f"s_lshl_b32 s{sT1}, s{sJ}, 14")
    g(f"s_xor_b32 s{sT2}, s{sT1}, 0x4000")
    for T in range(2):
        g(f"s_add_u32 s{sWOO}, s{sT0}, {T}")
        g(f"v_xor_b32 v{t4}, s{sWOO}, v{t1}")
        g(f"v_lshl_add_u32 v{t4}, v{t4}, 5, v{t3}")
        g(f"v_add_u32 v{vWOR+T}, s{sT1}, v{t4}")
        g(f"v_add_u32 v{vWOR+2+T}, s{sT2}, v{t4}")
        g(f"v_add_u32 v{vWOR+4+T}, 0x10000, v{vWOR+T}")
        g(f"v_add_u32 v{vWOR+6+T}, 0x10000, v{vWOR+2+T}")
    g(f"v_lshrrev_b32 v{t0}, 3, v{L}")
    g(f"v_mul_u32_u24 v{t0}, 896, v{t0}")
    g(f"v_lshrrev_b32 v{t1}, 4, v{L}")
    g(f"v_lshlrev_b32 v{t1}, 1, v{t1}")
    g(f"v_and_b32 v{t2}, 7, v{L}")
    g(f"v_xor_b32 v{t1}, v{t1}, v{t2}")
    g(f"v_lshl_add_u32 v{t0}, v{t1}, 4, v{t0}")
    g(f"s_mul_i32 s{sT0}, s{sW}, 57344")
    g(f"v_add_u32 v{vWOD}, s{sT0}, v{t0}")
    for k in range(1, 4):
        g(f"v_add_u32 v{vWOD+k}, {k*6144}, v{vWOD}")
    g(f"v_lshrrev_b32 v{t0}, 5, v{L}")
    g(f"s_lshl_b32 s{sT0}, s{sW}, 2")
    g(f"v_lshl_add_u32 v{t1}, v{t0}, 1, s{sT0}")
    g(f"v_and_b32 v{t2}, 31, v{L}")
    g(f"v_xor_b32 v{t1}, v{t1}, v{t2}")
    g(f"v_lshlrev_b32 v{t1}, 4, v{t1}")
    g(f"v_lshl_add_u32 v{t1}, v{t0}, 9, v{t1}")
    g(f"s_lshl_b32 s{sT0}, s{sW}, 10")
    g(f"v_add_u32 v{vVD}, s{sT0}, v{t1}")
    g(f"v_lshlrev_b32 v{vSTO}, 4, v{L}")
    g(f"s_mul_i32 s{sT0}, s{sBSEL}, 4608")
    g(f"s_add_u32 s{sT0}, s{sT0}, {PB}")
    g(f"v_add_u32 v{vPW}, s{sT0}, v{vSTO}")
    g(f"s_add_u32 s{sT0}, s{sT0}, 1024")
    g(f"v_lshl_add_u32 v{vPW2}, v{L}, 3, s{sT0}")
    stamp()
    g.wait_tag("R0")
    g.barrier()
    stamp()
    emit_list(x_reads(0))
    x_issue = {1: (2, "R3"), 2: (3, "R4"), 4: (4, "R6"), 5: (5, "R7"), 7: (6, "R9")}
    x_read = {1: 1, 3: 2, 4: 3, 6: 4, 7: 5, 9: 6}
    k_issue = {1: (1, "R4"), 4: (2, "R7"), 5: (3, "R8"), 8: (4, "R11"), 9: (5, "R12")}
    k_read = {3: 0, 4: 1, 7: 2, 8: 3, 11: 4, 12: 5}
    def after1(R):
        out = []
        if R in x_read: out += x_reads(x_read[R])
        if R in k_read: out += k_reads(k_read[R])
        out += ring_dma(R + 2)
        if R in x_issue: out += x_dma(*x_issue[R])
        if R in k_issue: out += k_dma(*k_issue[R])
        if R == OPT['two'] and OPT['touch']:
            out.append((f"buffer_load_dword v{vDUM}, v{vTW}, {sr(S_WO)}, 0 offen", None, True))
        if R == OPT['tv0']: out += v_touch(0)
        if R == 6: out += v_dma(0, 1, [0])
        if R == 8: out += v_dma(0, 0, [3, 4, 5])
        if R == 10: out += v_dma(0, 0, [0, 1, 2])
        if R == 13: out += v_dma(0, 1, [1, 2, 3, 4, 5])
        if R == 14 and OPT['tv1']: out += v_touch(1)
        return out
    run_stages(q_groups(), after1, tail_barrier=True)
    stamp()
    def s_mf(t):
        return [f"v_mfma_f32_16x16x32_bf16 {vr(SACC+(t*3+u)*4)}, {ar(aK+(u*8+s)*4)}, {vr(QFRAG(s,t))}, {vr(SACC+(t*3+u)*4) if s else 0}"
                for s in range(8) for u in range(3)]
    fq.drain()
    for ins in cvt_pairs(QACC, range(8), 0): g(ins)
    interleave(s_mf(0), cvt_pairs(QACC, range(8), 1))
    interleave(s_mf(1), cvt_pairs(QACC, range(8), 2))
    sm0 = softmax_ops(0)
    interleave(s_mf(2), sm0[:40])
    for ins in merge(sm0[40:], softmax_ops(1), softmax_ops(2)): g(ins)
    stamp()
    p_write(0, "L_pw0")
    g.wait_tag("V0", lg=0)
    g.barrier()
    p_read()
    pv_phase()
    stamp()
    def after2(R):
        out = ring_dma(R + 2)
        if 15 <= R <= 18: out += v_dma(1, (R - 15) // 2, [0, 1, 2] if (R - 15) % 2 == 0 else [3, 4, 5])
        return out
    run_stages(o_groups(0), after2, tail_barrier=True)
    fq.drain()
    stamp()
    p_write(1, "L_pw1")
    g.wait_tag("V1", lg=0)
    g.barrier()
    p_read()
    pv_phase()
    stamp()
    def after3(R):
        out = ring_dma(R + 2)
        c = R - 23
        if c >= 0: out += epilogue_ops(c)
        return out
    run_stages(o_groups(1), after3, tail_barrier=False)
    fq.drain()
    for c in (5, 6):
        fq.add(epilogue_ops(c))
    fq.drain()
    stamp()
    if OPT['stamps']:
        g.wait_all()
        stamp()
        stamp(real=True)
        g.smem_wait()
        g(f"s_lshl_b32 s{sT0}, s2, 2")
        g(f"s_add_u32 s{sT0}, s{sT0}, s{sW}")
        g(f"s_lshl_b32 s{sT0}, s{sT0}, 6")
        g(f"s_add_u32 s{sT0}, s{sT0}, {24<<20}")
        g(f"s_mov_b32 s{S_WS+2}, 0x10000000")
        g("v_mov_b32 v1, 0")
        regs = [98] + [STB + 2 * k for k in range(nstamp)] + [96]
        for k, r in enumerate(regs):
            g(f"v_mov_b32 v2, s{r}")
            g(f"buffer_store_dword v2, v1, {sr(S_WS)}, s{sT0} offen offset:{4*k}")
    g.raw("L_main_end:")
    g("s_endpgm")

def reduce_kernel():
    global g
    lines = g.lines
    g = Gen(); g.lines = lines
    kernel_open(RED)
    g("s_cmp_ge_u32 s2, 448")
    g("s_cbranch_scc1 L_red_end")
    g("s_load_dwordx2 s[4:5], s[0:1], 80")
    g("s_load_dwordx2 s[6:7], s[0:1], 96")
    g("s_mov_b32 s16, 0x24924925")
    g("s_mul_hi_u32 s17, s2, s16")
    g("s_mul_i32 s18, s17, 7")
    g("s_sub_u32 s18, s2, s18")
    g("s_mul_i32 s19, s17, 43008")
    g("s_mul_i32 s20, s18, 6144")
    g("s_add_u32 s19, s19, s20")
    g("v_lshlrev_b32 v1, 4, v0")
    g("v_lshrrev_b32 v2, 6, v0")
    g("v_and_b32 v3, 63, v0")
    g("v_readfirstlane_b32 s21, v2")
    g("s_cmp_ge_u32 s21, 3")
    g("s_cselect_b32 s22, 1, 0")
    g("s_mul_i32 s23, s22, 3")
    g("s_sub_u32 s23, s21, s23")
    g("s_and_b32 s24, s17, 31")
    g("s_lshr_b32 s25, s17, 5")
    g("s_mul_i32 s24, s24, 48")
    g("s_lshl_b32 s23, s23, 4")
    g("s_add_u32 s24, s24, s23")
    g("s_mul_i32 s24, s24, 1792")
    g("s_mul_i32 s25, s25, 896")
    g("s_add_u32 s24, s24, s25")
    g("s_lshl_b32 s26, s18, 7")
    g("s_add_u32 s24, s24, s26")
    g("s_lshl_b32 s26, s22, 6")
    g("s_add_u32 s24, s24, s26")
    g("v_and_b32 v4, 15, v3")
    g("v_mul_u32_u24 v4, 1792, v4")
    g("v_lshrrev_b32 v5, 4, v3")
    g("v_lshl_add_u32 v4, v5, 4, v4")
    g.smem_wait()
    srd(8, 6, 7, 22020096)
    srd(12, 4, 5, 2752512)
    for p in range(8):
        if p:
            g(f"s_add_u32 s19, s19, {64*43008}")
        g(f"buffer_load_dwordx4 {vr(8+4*p)}, v1, s[8:11], s19 offen")
    for p in range(8):
        for k in range(4):
            src = 8 + 4 * p + k
            if p == 0:
                g(f"v_lshlrev_b32 v{40+2*k}, 16, v{src}")
                g(f"v_and_b32 v{41+2*k}, 0xffff0000, v{src}")
            else:
                g(f"v_lshlrev_b32 v{48+2*k}, 16, v{src}")
                g(f"v_and_b32 v{49+2*k}, 0xffff0000, v{src}")
        if p:
            for k in range(8):
                g(f"v_add_f32 v{40+k}, v{40+k}, v{48+k}")
    for k in range(4):
        g(f"v_cvt_pk_bf16_f32 v{56+k}, v{40+2*k}, v{41+2*k}")
    g("v_permlane32_swap_b32 v56, v58")
    g("v_permlane32_swap_b32 v57, v59")
    g("v_permlane16_swap_b32 v56, v58")
    g("v_permlane16_swap_b32 v57, v59")
    g("buffer_store_dwordx4 v[56:59], v4, s[12:15], s24 offen")
    g.raw("L_red_end:")
    g("s_endpgm")

def descriptors():
    g.raw('.section .rodata,"a"')
    for name, nv, acc in ((MAIN, 512, 256), (RED, 64, 64)):
        g.raw(".p2align 6")
        g.raw(f".amdhsa_kernel {name}")
        g.raw(f"  .amdhsa_next_free_vgpr {nv}")
        g.raw("  .amdhsa_next_free_sgpr 102")
        g.raw(f"  .amdhsa_accum_offset {acc}")
        g.raw("  .amdhsa_group_segment_fixed_size 0")
        g.raw("  .amdhsa_kernarg_size 104")
        g.raw("  .amdhsa_user_sgpr_count 2")
        g.raw("  .amdhsa_user_sgpr_kernarg_segment_ptr 1")
        g.raw("  .amdhsa_system_sgpr_workgroup_id_x 1")
        g.raw("  .amdhsa_float_denorm_mode_32 3")
        g.raw(".end_amdhsa_kernel")

header()
main_kernel()
st = dict(g.stats)
reduce_kernel()
descriptors()
open(sys.argv[1], "w").write(g.text())
print("main stats", st)
```

```python
import re

REG_RE = re.compile(r'\b([vas])(\d+)\b|\b([vas])\[(\d+):(\d+)\]')

def regs_of(tok):
    out = []
    tok = tok.strip()
    m = re.fullmatch(r'-?(?:abs\()?([vas])(\d+)\)?', tok)
    if m:
        return [(m.group(1), int(m.group(2)))]
    m = re.fullmatch(r'-?([vas])\[(\d+):(\d+)\]', tok)
    if m:
        return [(m.group(1), i) for i in range(int(m.group(2)), int(m.group(3)) + 1)]
    if tok in ('vcc',):
        return [('s', 106), ('s', 107)]
    if tok == 'm0':
        return [('s', 124)]
    if tok == 'exec':
        return [('s', 126), ('s', 127)]
    return out

TRANS = ('v_exp_f32', 'v_log_f32', 'v_rcp_f32', 'v_rsq_f32', 'v_sqrt_f32')

def classify(text):
    text = text.strip()
    op, _, rest = text.partition(' ')
    toks = [t.strip() for t in rest.split(',')] if rest else []
    mods = ''
    if toks:
        parts = toks[-1].split()
        toks[-1] = parts[0]
        mods = ' '.join(parts[1:])
    rd, wr = [], []
    kind = None
    if op.startswith('v_mfma'):
        kind = 'mfma'
        wr = regs_of(toks[0]); a = regs_of(toks[1]); b = regs_of(toks[2]); c = regs_of(toks[3])
        rd = a + b + c
    elif op.startswith('ds_read'):
        kind = 'dsr'; wr = regs_of(toks[0]); rd = regs_of(toks[1])
    elif op.startswith('ds_write'):
        kind = 'dsw'; rd = sum((regs_of(t) for t in toks), [])
    elif op.startswith('buffer_load') or op.startswith('global_load'):
        kind = 'vml'
        if 'lds' in mods.split():
            kind = 'dma'; rd = sum((regs_of(t) for t in toks), [])
        else:
            wr = regs_of(toks[0]); rd = sum((regs_of(t) for t in toks[1:]), [])
    elif op.startswith('buffer_store') or op.startswith('global_store') or op.startswith('buffer_atomic') or op.startswith('global_atomic'):
        kind = 'vms'; rd = sum((regs_of(t) for t in toks), [])
    elif op.startswith('v_permlane'):
        kind = 'valu'; wr = regs_of(toks[0]) + regs_of(toks[1]); rd = list(wr)
    elif op.startswith('v_'):
        kind = 'valu'
        wr = regs_of(toks[0]); rd = sum((regs_of(t) for t in toks[1:]), [])
        if op.startswith('v_fmac') or op.startswith('v_pk_fmac'):
            rd += wr
    elif op.startswith('s_load') or op.startswith('s_memtime') or op.startswith('s_memrealtime'):
        kind = 'smem'; wr = regs_of(toks[0]); rd = sum((regs_of(t) for t in toks[1:]), [])
    elif op.startswith('s_'):
        kind = 'salu'
        if op.startswith('s_cmp') or op.startswith('s_cbranch') or op.startswith('s_branch') or op in ('s_endpgm', 's_setprio', 's_sleep', 's_nop'):
            rd = sum((regs_of(t) for t in toks), [])
        else:
            wr = regs_of(toks[0]); rd = sum((regs_of(t) for t in toks[1:]), [])
    else:
        raise ValueError('unknown op ' + text)
    return op, toks, mods, kind, rd, wr

class Gen:
    def __init__(self):
        self.lines = []
        self.n = 0
        self.lgkm = []
        self.vm = []
        self.valu_w = {}
        self.trans_w = {}
        self.mfma_w = {}
        self.mfma_c = {}
        self.salu_m0 = -100
        self.mfma_op = {}
        self.valu_sw = {}
        self.store_r = {}
        self.smem_pending = False
        self.stats = {'nop': 0, 'wait': 0, 'mfma': 0, 'ins': 0}

    def raw(self, text):
        self.lines.append(text)

    def comment(self, text):
        self.lines.append('    ; ' + text)

    def _emit(self, text, slots=1):
        self.lines.append('    ' + text)
        self.n += slots
        self.stats['ins'] += 1

    def nop(self, k):
        while k > 0:
            c = min(k, 16)
            self._emit(f's_nop {c-1}', c)
            self.stats['nop'] += c
            k -= c

    def _wait(self, vm=None, lg=None):
        parts = []
        if vm is not None:
            vm = min(vm, 63)
            if vm < len(self.vm):
                parts.append(f'vmcnt({vm})')
                self.vm = self.vm[len(self.vm) - vm:] if vm else []
        if lg is not None:
            lg = min(lg, 15)
            if lg < len(self.lgkm):
                parts.append(f'lgkmcnt({lg})')
                self.lgkm = self.lgkm[len(self.lgkm) - lg:] if lg else []
        if parts:
            self._emit('s_waitcnt ' + ' '.join(parts))
            self.stats['wait'] += 1

    def wait_tag(self, tag, lg=None):
        tags = tag if isinstance(tag, (list, tuple, set)) else [tag]
        idx = [i for i, (d, t) in enumerate(self.vm) if t in tags]
        vm = (len(self.vm) - 1 - idx[-1]) if idx else None
        self._wait(vm=vm, lg=lg)

    def wait_all(self, vm=True, lg=True):
        self._wait(vm=0 if vm else None, lg=0 if lg else None)

    def smem_wait(self):
        self._emit('s_waitcnt lgkmcnt(0)')
        self.lgkm = []

    def barrier(self):
        self._emit('s_barrier')

    def __call__(self, text, tag=None, nodst=False):
        text = text.strip()
        op, toks, mods, kind, rd, wr = classify(text)
        if nodst: wr = []
        srd, swr = set(rd), set(wr)
        touch = srd | swr
        need_lg = None
        for i, d in enumerate(self.lgkm):
            if d & touch:
                need_lg = len(self.lgkm) - 1 - i
        need_vm = None
        for i, (d, t) in enumerate(self.vm):
            if d & touch:
                need_vm = len(self.vm) - 1 - i
        if need_lg is not None or need_vm is not None:
            self._wait(vm=need_vm, lg=need_lg)
        need = 0
        def req(slot, k):
            nonlocal need
            gap = self.n - slot - 1
            if gap < k:
                need = max(need, k - gap)
        if kind == 'mfma':
            passes = 8 if '32x32' in op else 4
            for r in srd:
                if r in self.valu_w: req(self.valu_w[r], 2)
            ab = set(regs_of(toks[1]) + regs_of(toks[2]))
            cset = tuple(regs_of(toks[3]))
            for r in ab:
                if r in self.mfma_w:
                    s, d, p = self.mfma_w[r]; req(s, {4: 8, 8: 12}[p])
            for r in cset:
                if r in self.mfma_w:
                    s, d, p = self.mfma_w[r]
                    if d != cset or p != passes or self.mfma_op.get(r) != op: req(s, {4: 6, 8: 10}[p])
            for r in swr:
                if r in self.mfma_w:
                    s, d, p = self.mfma_w[r]
                    if d != tuple(wr): req(s, {4: 6, 8: 10}[p])
        else:
            chk = touch if kind in ('valu', 'dsr', 'vml') else srd
            for r in chk:
                if r in self.mfma_w:
                    s, d, p = self.mfma_w[r]; req(s, {4: 8, 8: 12}[p])
            if kind in ('valu', 'dsr', 'vml'):
                for r in swr:
                    if r in self.mfma_c:
                        s, p = self.mfma_c[r]; req(s, {4: 3, 8: 7}[p])
                    if r in self.store_r: req(self.store_r[r], 2)
        if kind == 'valu':
            if op not in TRANS and not any(op.startswith(t) for t in TRANS):
                for r in srd:
                    if r in self.trans_w: req(self.trans_w[r], 1)
            if op.startswith('v_permlane'):
                for r in srd:
                    if r in self.valu_w: req(self.valu_w[r], 2)
            if op.startswith('v_readfirstlane') or op.startswith('v_readlane'):
                for r in srd:
                    if r in self.valu_w: req(self.valu_w[r], 1)
            if 'dpp' in mods or 'row_' in mods or 'quad_perm' in mods:
                for r in srd:
                    if r in self.valu_w: req(self.valu_w[r], 2)
            for r in srd:
                if r[0] == 's' and r in self.valu_sw: req(self.valu_sw[r], 2)
        if kind in ('mfma',):
            for r in srd:
                if r in self.trans_w: req(self.trans_w[r], 2)
        if kind in ('vml', 'vms', 'dma'):
            for r in srd:
                if r[0] == 's' and r in self.valu_sw: req(self.valu_sw[r], 5)
        if kind == 'salu' or kind == 'smem':
            for r in srd:
                if r in self.valu_sw: req(self.valu_sw[r], 4)
        if kind == 'dma':
            req(self.salu_m0, 1)
        if need:
            self.nop(need)
        slot = self.n
        self._emit(text)
        if kind == 'mfma':
            self.stats['mfma'] += 1
            passes = 8 if '32x32' in op else 4
            for r in swr:
                self.mfma_w[r] = (slot, tuple(wr), passes); self.valu_w.pop(r, None); self.trans_w.pop(r, None)
                self.mfma_op[r] = op
            for r in regs_of(toks[3]):
                self.mfma_c[r] = (slot, passes)
        elif kind == 'valu':
            for r in swr:
                if r[0] == 's':
                    self.valu_sw[r] = slot
                else:
                    self.valu_w[r] = slot; self.mfma_w.pop(r, None)
                    if any(op.startswith(t) for t in TRANS): self.trans_w[r] = slot
                    else: self.trans_w.pop(r, None)
        elif kind in ('dsr', 'dsw'):
            self.lgkm.append(swr)
            for r in swr:
                self.mfma_w.pop(r, None); self.valu_w.pop(r, None); self.trans_w.pop(r, None)
        elif kind in ('vml', 'vms', 'dma'):
            self.vm.append((swr, tag))
            for r in swr:
                self.mfma_w.pop(r, None); self.valu_w.pop(r, None); self.trans_w.pop(r, None)
            if kind == 'vms' and ('x4' in op or 'x3' in op):
                for r in regs_of(toks[0]):
                    self.store_r[r] = slot
        elif kind == 'salu':
            for r in swr:
                self.valu_sw.pop(r, None)
                if r == ('s', 124): self.salu_m0 = slot

    def text(self):
        return '\n'.join(self.lines) + '\n'
```

```python
import sys, struct, json
from asmgen import Gen, classify

NAME = "concat_heads__mha_block_cached__gqa_block_cached__near_ridge"
MAIN = NAME + "_kernel"
RED = "reduce_partials_kernel"

OPT = dict(bar_group=10, D=7, stamps=0, code_pf=1, touch=1, ntk=1, ntv=1, nttw=0, nttx=0,
           k0=1, k1=5, k2=9, kw=3, t_wo0=9, t_wo1=14, v1=15, p1=17, early2=0, early1=1, ntfirst=1, pace=1, diag=0, nok=0, nov=0, now=0, nost=0, nox=0)
for a in sys.argv[2:]:
    k, v = a.split('=')
    assert k in OPT, k
    OPT[k] = int(v)
def NT(k): return ' nt' if OPT[k] else ''

SLOT = 32768
VB = 3 * SLOT
XU = 12288
KA = VB + 65536 - 4 * 8320
PB = VB + 49152
LDS_BYTES = 163840
BIG = 0x7ffff000

S_X, S_K, S_V, S_WQ, S_WO, S_WS = 8, 12, 16, 20, 24, 28
sW, sBSEL, sJ, sBR, sH0, sB0, sB = 32, 33, 34, 35, 36, 37, 38
sWQB = 39
sXB, sXM, sKB, sKM, sXO, sKO, sWQO, sWOO, sWOO2, sVO = 40, 41, 42, 43, 44, 45, 46, 47, 48, 49
sM, sVM, sST, sC = 50, 51, 52, 53
sT0, sT1, sT2, sT3 = 54, 55, 56, 57
sVBASE, sWOBASE = 58, 59
sPC = 60
sTWQ = 63
sHG, sHP, sWI, sTWO = 88, 89, 90, 91
STB = 64

def QACC(T, t): return (((T // 2) * 3 + t) * 4) + (96 if T & 1 else 0)
def QFRAG(s, t): return (s * 3 + t) * 4
SACC = 192
vWQR = 192
vWQD = 208
vXR = 216
vXD = 218
vKR = 219
vKD = 223
vWOD = 228
vVD = 232
vVR = 233
vWOR = 237
vSTO = 241
vPW = 242
vPW2 = 243
vT32 = 244
vDUM = 245
vSM = 246
def VFRAG(u, s): return (u * 8 + s) * 4
vPOWN = 96
vP = [114, 132]
vVWB = 150
vEP = 96
def VWACC(par, T, u): return 180 + par * 24 + (T * 3 + u) * 4
aFR, aK, aX, XRING, aOUT = 0, 32, 128, 10, 32
def OUTACC(c, T, t): return aOUT + ((c * 2 + T) * 3 + t) * 4

def vr(b, n=4): return f"v[{b}:{b+n-1}]"
def ar(b, n=4): return f"a[{b}:{b+n-1}]"
def sr(b, n=4): return f"s[{b}:{b+n-1}]"

g = Gen()
nstamp = 0
def stamp(real=False):
    global nstamp
    if OPT['stamps']:
        g(f"{'s_memrealtime' if real else 's_memtime'} s[{STB+2*nstamp}:{STB+2*nstamp+1}]")
        nstamp += 1

def header():
    g.raw("; fused attention block: launch 1 computes per-head-pair partial outputs, launch 2 sums them")
    g.raw(f"; @launch kernel={MAIN} grid=(256,1,1) block=(256,1,1) lds={LDS_BYTES}")
    g.raw(f"; @launch kernel={RED} grid=(448,1,1) block=(384,1,1) lds=0")
    g.raw('.amdgcn_target "amdgcn-amd-amdhsa--gfx950"')
    g.raw(".text")

def kernel_open(name):
    g.raw(f".globl {name}")
    g.raw(".p2align 8")
    g.raw(f".type {name},@function")
    g.raw(f"{name}:")

def srd(dst, lo, hi, nbytes):
    g(f"s_mov_b32 s{dst}, s{lo}")
    g(f"s_and_b32 s{dst+1}, s{hi}, 0xffff")
    g(f"s_mov_b32 s{dst+2}, {nbytes}")
    g(f"s_mov_b32 s{dst+3}, 0x20000")

def wq_dma(R):
    slot = (R % 3) * SLOT
    out = [(f"s_add_u32 s{sWQO}, s{sWQB}, {R*262144}", None)]
    for i in range(8):
        if i % 4 == 0:
            out.append((f"s_add_u32 m0, s{sM}, {slot + (i//4)*4096}", None))
        out.append((f"buffer_load_dwordx4 v{vWQD+i}, {sr(S_WQ)}, s{sWQO} offen offset:{(i%4)*1024}{NT('ntfirst') if R < 2 else ''} lds", f"R{R}"))
    return out

def wo_dma(R):
    hh, c = divmod(R - 14, 7)
    slot = (R % 3) * SLOT
    out = [(f"s_add_u32 s{sWOO}, s{sWOBASE}, {hh*229376 + c*128}", None),
           (f"s_add_u32 s{sWOO2}, s{sWOBASE}, {hh*229376 + c*128 + 28672}", None)]
    for i in range(8):
        if i % 4 == 0:
            out.append((f"s_add_u32 m0, s{sM}, {slot + (i//4)*4096}", None))
        so = sWOO if i < 4 else sWOO2
        out.append((f"buffer_load_dwordx4 v{vWOD+(i%4)}, {sr(S_WO)}, s{so} offen offset:{(i%4)*1024} lds", f"R{R}"))
    return out

def ring_dma(R):
    if OPT['now'] and R > 2: return []
    if R < 14: return wq_dma(R)
    if R < 28: return wo_dma(R)
    return []

def x_dma(p, tag):
    out = []
    if OPT['nox'] and p > 1: return out
    for k in range(3):
        out.append((f"s_add_u32 s{sXO}, s{sXB}, {p*128 + k*28672}", None))
        out.append((f"s_add_u32 m0, s{sXM}, {(p % 2)*XU + k*4096}", None))
        out.append((f"buffer_load_dwordx4 v{vXD}, {sr(S_X)}, s{sXO} offen{NT('ntfirst') if p < 2 else ''} lds", tag))
    return out

def x_reads(p):
    out = []
    for s2 in range(2):
        s = 2 * p + s2
        for t in range(3):
            d = aX + (s % XRING) * 12 + t * 4
            out.append((f"ds_read_b128 {ar(d)}, v{vXR+s2} offset:{(p % 2)*XU + t*2048}", None))
    return out

def k_dma(u, tag):
    out = []
    if OPT['nok']: return out
    for dh in range(2):
        out.append((f"s_add_u32 m0, s{sKM}, {dh*4160}", None))
        for j in range(4):
            out.append((f"s_add_u32 s{sKO}, s{sKB}, {u*8192 + dh*256 + j*(2048-1040)}", None))
            out.append((f"buffer_load_dwordx4 v{vKD}, {sr(S_K)}, s{sKO} offen offset:{j*1040}{NT('ntk')} lds", tag))
    return out

def k_reads(u):
    out = []
    for dh in range(2):
        for s4 in range(4):
            for p in range(2):
                d = aK + (u * 8 + dh * 4 + s4) * 4 + 2 * p
                out.append((f"ds_read_b64 {ar(d,2)}, v{vKR+s4} offset:{dh*4160 + 32*p}", None))
    return out

def v_dma(hh, subs):
    out = []
    if OPT['nov']: return out
    for sub in subs:
        bb, r = divmod(sub, 6); u, dh = divmod(r, 2)
        out.append((f"s_add_u32 s{sVO}, s{sVBASE}, {hh*24576 + bb*393216 + u*8192 + dh*256}", None))
        out.append((f"s_add_u32 m0, s{sVM}, {sub*4096}", None))
        out.append((f"buffer_load_dwordx4 v{vVD}, {sr(S_V)}, s{sVO} offen{NT('ntv')} lds", f"V{hh}"))
    return out

def v_read(u, s):
    dh, s4 = divmod(s, 4)
    return (f"ds_read_b128 {vr(VFRAG(u,s))}, v{vVR+s4} offset:{(u*2+dh)*4096}", None)

def touch(vaddr, srd_, sbase, add):
    key = {S_WQ: 'nttw', S_WO: 'nttw', S_X: 'nttx'}[srd_]
    if not OPT['touch']: return []
    return [(f"s_add_u32 s{sT1}, s{sbase}, {add}", None),
            (f"buffer_load_dword v{vDUM}, v{vaddr}, {sr(srd_)}, s{sT1} offen{NT(key)}", None, True)]

class FillQ:
    def __init__(self): self.q = []
    def add(self, items): self.q.extend(items)
    def pop(self):
        it = self.q.pop(0)
        if callable(it): it()
        else: g(it[0], tag=it[1], nodst=(len(it) > 2))
    def __len__(self): return len(self.q)
    def is_vm(self, it):
        return (not callable(it)) and it[0].startswith(('buffer_', 'global_'))
    def nvm(self): return sum(1 for it in self.q if self.is_vm(it))
    def drain(self):
        while self.q: self.pop()
    def guard(self, text):
        _, _, _, _, rd, wr = classify(text)
        rd = {r for r in rd if r[0] != 's'}; wr = {r for r in wr if r[0] != 's'}
        last = -1
        for i, it in enumerate(self.q):
            if callable(it): continue
            _, _, _, _, frd, fwr = classify(it[0])
            if len(it) > 2: fwr = []
            if (set(fwr) & (rd | wr)) or (set(frd) & wr): last = i
        if last >= 0: self.forced += last + 1
        for _ in range(last + 1): self.pop()
    forced = 0
fq = FillQ()
def emit_list(l):
    for it in l: g(it[0], tag=it[1], nodst=(len(it) > 2))

def run_stages(groups, after_barrier, wait_tags, tail_barrier=None, ring=8, nreg=4):
    D = min(OPT['D'], ring - 1)
    open_stage = groups[0]['stage']
    pend = []
    fr = 0
    for n, gr in enumerate(groups):
        gr['fr'] = fr
        if gr['reads']:
            d = aFR + (fr % ring) * nreg
            for k, rt in enumerate(gr['reads']):
                pend.append((fr, gr['stage'], rt.format(d=ar(d + 2 * k, 2))))
            fr += 1
    rp = 0
    def can_read(f_cur):
        if rp >= len(pend): return False
        f, st, _ = pend[rp]
        return st <= open_stage and f <= f_cur + D
    while rp < len(pend) and pend[rp][0] < D and pend[rp][1] <= open_stage:
        g(pend[rp][2]); rp += 1
    last_stage = groups[-1]['stage']
    left = [0] * len(groups)
    acc = 0
    for n in range(len(groups) - 1, -1, -1):
        if groups[n].get('idx') == OPT['bar_group']: acc = 0
        acc += len(groups[n]['mfmas'])
        left[n] = acc
    since_vm = 1000
    for n, gr in enumerate(groups):
        f = gr['fr']
        d = aFR + (f % ring) * nreg
        if gr['reads']:
            while rp < len(pend) and pend[rp][0] <= f:
                assert pend[rp][1] <= open_stage
                g(pend[rp][2]); rp += 1
        fcur = f if gr['reads'] else f - 1
        R = gr['stage']
        for it in gr.get('pre', []): fq.q.insert(0, it) if False else None
        if gr.get('front'):
            fq.q[0:0] = gr['front']
        for k, mt in enumerate(gr['mfmas']):
            fq.guard(mt.format(a=ar(d)))
            g(mt.format(a=ar(d)))
            budget = 2
            since_vm += 1
            rem = left[n] - k - 1
            while budget:
                if can_read(fcur):
                    g(pend[rp][2]); rp += 1; budget -= 1
                elif len(fq):
                    j = None
                    if fq.is_vm(fq.q[0]) and OPT['pace']:
                        gap = max(1, (rem - 2) // max(1, fq.nvm()))
                        if since_vm >= min(gap, OPT['pace'] * 6): j = 0
                        else:
                            for i, it in enumerate(fq.q):
                                if callable(it): break
                                if fq.is_vm(it) or it[0].startswith('s_'): continue
                                _, _, _, _, rd_, wr_ = classify(it[0])
                                clash = False
                                for e in fq.q[:i]:
                                    _, _, _, _, erd, ewr = classify(e[0])
                                    if (set(erd) | set(ewr)) & set(wr_) or set(ewr) & set(rd_): clash = True
                                if not clash: j = i
                                break
                    else:
                        j = 0
                    if j is None: break
                    if j == 0:
                        if fq.is_vm(fq.q[0]): since_vm = 0
                        fq.pop()
                    else:
                        it = fq.q.pop(j); g(it[0], tag=it[1], nodst=(len(it) > 2))
                    budget -= 1
                else:
                    break
        for it in gr.get('post', []):
            fq.add([it])
        if gr.get('idx') == OPT['bar_group'] and (R < last_stage or tail_barrier):
            while rp < len(pend) and pend[rp][1] <= R:
                g(pend[rp][2]); rp += 1
            fq.drain()
            g.wait_tag(wait_tags(R + 1), lg=0)
            g.barrier()
            open_stage = R + 1
            fq.add(after_barrier(R + 1))

def interleave(mf, fill, per=2):
    fill = list(fill)
    for m in mf:
        g(m)
        for _ in range(per):
            if fill: g(fill.pop(0))
            elif len(fq): fq.pop()
    for f in fill: g(f)

def softmax_ops(t):
    S = [SACC + 12 * t + k for k in range(12)]
    m, x = vSM + 2 * t, vSM + 2 * t + 1
    o = []
    o.append(f"v_max3_f32 v{m}, v{S[0]}, v{S[1]}, v{S[2]}")
    o.append(f"v_max3_f32 v{x}, v{S[3]}, v{S[4]}, v{S[5]}")
    o.append(f"v_max3_f32 v{m}, v{m}, v{S[6]}, v{S[7]}")
    o.append(f"v_max3_f32 v{x}, v{x}, v{S[8]}, v{S[9]}")
    o.append(f"v_max3_f32 v{m}, v{m}, v{S[10]}, v{S[11]}")
    o.append(f"v_max_f32 v{m}, v{m}, v{x}")
    for sw in ("v_permlane32_swap_b32", "v_permlane16_swap_b32"):
        o.append(f"v_mov_b32 v{x}, v{m}")
        o.append(f"{sw} v{m}, v{x}")
        o.append(f"v_max_f32 v{m}, v{m}, v{x}")
    o.append(f"v_mul_f32 v{m}, s{sC}, v{m}")
    for k in range(12):
        o.append(f"v_fma_f32 v{S[k]}, v{S[k]}, s{sC}, -v{m}")
    for k in range(12):
        o.append(f"v_exp_f32 v{S[k]}, v{S[k]}")
    o.append(f"v_add_f32 v{m}, v{S[0]}, v{S[1]}")
    o.append(f"v_add_f32 v{x}, v{S[2]}, v{S[3]}")
    for k in range(4, 12, 2):
        o.append(f"v_add_f32 v{m}, v{m}, v{S[k]}")
        o.append(f"v_add_f32 v{x}, v{x}, v{S[k+1]}")
    o.append(f"v_add_f32 v{m}, v{m}, v{x}")
    for sw in ("v_permlane32_swap_b32", "v_permlane16_swap_b32"):
        o.append(f"v_mov_b32 v{x}, v{m}")
        o.append(f"{sw} v{m}, v{x}")
        o.append(f"v_add_f32 v{m}, v{m}, v{x}")
    o.append(f"v_rcp_f32 v{m}, v{m}")
    for k in range(12):
        o.append(f"v_mul_f32 v{S[k]}, v{S[k]}, v{m}")
    for k in range(6):
        o.append(f"v_cvt_pk_bf16_f32 v{vPOWN + 6*t + k}, v{S[2*k]}, v{S[2*k+1]}")
    return o

def merge(*lists):
    out = []
    n = max(len(l) for l in lists)
    for i in range(n):
        for l in lists:
            if i < len(l): out.append(l[i])
    return out

def cvt_pairs(acc, s_list, t):
    o = []
    for s in s_list:
        b, b2 = acc(2 * s, t), acc(2 * s + 1, t)
        o.append(f"v_cvt_pk_bf16_f32 v{b}, v{b}, v{b+1}")
        o.append(f"v_cvt_pk_bf16_f32 v{b+1}, v{b+2}, v{b+3}")
        o.append(f"v_cvt_pk_bf16_f32 v{b+2}, v{b2}, v{b2+1}")
        o.append(f"v_cvt_pk_bf16_f32 v{b+3}, v{b2+2}, v{b2+3}")
    return o

def p_write(which, lbl):
    g.wait_all(vm=False, lg=True)
    g(f"s_cmp_lg_u32 s{sJ}, {which}")
    g(f"s_cbranch_scc1 {lbl}")
    n0 = g.n
    for t in range(3):
        g(f"ds_write_b128 v{vPW}, {vr(vPOWN+6*t)} offset:{t*1536}")
        g(f"ds_write_b64 v{vPW2}, {vr(vPOWN+6*t+4,2)} offset:{t*1536}")
    g.wait_all(vm=False, lg=True)
    g.raw(f"{lbl}:")
    g.n = n0

def p_reads(hh):
    o = []
    for t in range(3):
        o.append((f"ds_read_b128 {vr(vP[hh]+6*t)}, v{vPW} offset:{t*1536}", None))
        o.append((f"ds_read_b64 {vr(vP[hh]+6*t+4,2)}, v{vPW2} offset:{t*1536}", None))
    return o

def q_groups():
    gs = []
    for s in range(14):
        slot = s % 3
        win, base = (1, 0) if slot == 2 else (0, slot * SLOT)
        for T in range(16):
            reads = [f"ds_read_b64_tr_b16 {{d}}, v{vWQR + win*8 + (T & 7)} offset:{base + rd*16384 + (T>>3)*256}" for rd in range(2)]
            mf = []
            for t in range(3):
                acc = vr(QACC(T, t))
                xb = ar(aX + (s % XRING) * 12 + t * 4)
                mf.append(f"v_mfma_f32_16x16x32_bf16 {acc}, {{a}}, {xb}, {acc if s else 0}")
            gs.append(dict(stage=s, reads=reads, mfmas=mf, idx=T))
    return gs

def vw_cvt(R):
    par = R % 2
    o = []
    for T in range(2):
        for u in range(3):
            b = VWACC(par, T, u)
            o.append((f"v_cvt_pk_bf16_f32 v{vVWB+6*T+2*u}, v{b}, v{b+1}", None))
            o.append((f"v_cvt_pk_bf16_f32 v{vVWB+6*T+2*u+1}, v{b+2}, v{b+3}", None))
    return o

def final_groups(R, stage):
    hh, c = divmod(R - 14, 7)
    a, b = [], []
    for T in range(2):
        for t in range(3):
            acc = ar(OUTACC(c, T, t))
            a.append(f"v_mfma_f32_16x16x32_bf16 {acc}, {vr(vVWB+6*T)}, {vr(vP[hh]+6*t)}, {acc if hh else 0}")
            b.append(f"v_mfma_f32_16x16x16_bf16 {acc}, {vr(vVWB+6*T+4,2)}, {vr(vP[hh]+6*t+4,2)}, {acc}")
    return dict(stage=stage, reads=[], mfmas=a), dict(stage=stage, reads=[], mfmas=b)

def epilogue_ops(c):
    o = [(f"s_add_u32 s{sT0}, s{sST}, {c*6144}", None)]
    for t in range(3):
        tb = vEP + t * 8
        for T in range(2):
            for r in range(4):
                o.append((f"v_accvgpr_read_b32 v{tb + T*4 + r}, a{OUTACC(c,T,t)+r}", None))
        for k in range(4):
            o.append((f"v_cvt_pk_bf16_f32 v{tb+k}, v{tb+2*k}, v{tb+2*k+1}", None))
        if not OPT['nost']: o.append((f"buffer_store_dwordx4 {vr(tb)}, v{vSTO}, {sr(S_WS)}, s{sT0} offen offset:{t*1024}", None))
    return o

def o_groups():
    gs = []
    for R in range(14, 28):
        hh, c = divmod(R - 14, 7)
        slot = R % 3
        win, base = (1, 0) if slot == 2 else (0, slot * SLOT)
        for s in range(8):
            for T in range(2):
                idx = 2 * s + T
                reads = [f"ds_read_b64_tr_b16 {{d}}, v{vWOR + win*2 + T} offset:{base + s*4096 + rd*2048}" for rd in range(2)]
                mf = []
                for u in range(3):
                    acc = vr(VWACC(R % 2, T, u))
                    mf.append(f"v_mfma_f32_16x16x32_bf16 {acc}, {vr(VFRAG(u,s))}, {{a}}, {acc if s else 0}")
                gr = dict(stage=R, reads=reads, mfmas=mf, idx=idx)
                if R > 14 and idx == 2: gr['front'] = vw_cvt(R - 1)
                if R == 20 and T == 1:
                    gr['post'] = [v_read(u, s) for u in range(3)]
                gs.append(gr)
                if R > 14 and idx == 5: gs.append(final_groups(R - 1, R)[0])
                if R > 14 and idx == 7:
                    gb = final_groups(R - 1, R)[1]
                    gs.append(gb)
                if R > 21 and idx == 11: gs[-1]['post'] = epilogue_ops(R - 22)
    return gs

def finish_stamps():
    if OPT['stamps']:
        stamp(real=True)
        g.smem_wait()
        g(f"s_lshl_b32 s{sT0}, s2, 2")
        g(f"s_add_u32 s{sT0}, s{sT0}, s{sW}")
        g(f"s_lshl_b32 s{sT0}, s{sT0}, 6")
        g(f"s_add_u32 s{sT0}, s{sT0}, {24<<20}")
        g(f"s_mov_b32 s{S_WS+2}, 0x10000000")
        g("v_mov_b32 v1, 0")
        regs = [98] + [STB + 2 * k for k in range(nstamp)] + [96]
        for k, r in enumerate(regs):
            g(f"v_mov_b32 v2, s{r}")
            g(f"buffer_store_dword v2, v1, {sr(S_WS)}, s{sT0} offen offset:{4*k}")
    g.raw("L_main_end:")
    g("s_endpgm")

def main_kernel():
    kernel_open(MAIN)
    g(f"s_cmp_ge_u32 s2, 256")
    g(f"s_cbranch_scc1 L_main_end")
    if OPT['stamps']:
        g("s_memrealtime s[96:97]")
        g("s_memtime s[98:99]")
    g("s_load_dwordx8 s[64:71], s[0:1], 0")
    g("s_load_dwordx2 s[72:73], s[0:1], 32")
    g("s_load_dwordx8 s[76:83], s[0:1], 40")
    g("s_load_dwordx2 s[84:85], s[0:1], 72")
    g("s_load_dwordx2 s[86:87], s[0:1], 96")
    g(f"s_getpc_b64 s[{sPC}:{sPC+1}]")
    g.raw("L_pc:")
    L = 1
    t0, t1, t2, t3, t4, t5 = 2, 3, 4, 5, 6, 7
    g(f"v_lshrrev_b32 v{t0}, 6, v0")
    g(f"v_and_b32 v{L}, 63, v0")
    g(f"v_readfirstlane_b32 s{sW}, v{t0}")
    g(f"s_and_b32 s{sT0}, s2, 7")
    g(f"s_lshr_b32 s{sT1}, s2, 3")
    g(f"s_lshr_b32 s{sBR}, s{sT0}, 2")
    g(f"s_and_b32 s{sHG}, s{sT0}, 3")
    g(f"s_lshl_b32 s{sT0}, s{sHG}, 2")
    g(f"s_and_b32 s{sHP}, s{sT1}, 1")
    g(f"s_lshl_b32 s{sT2}, s{sHP}, 1")
    g(f"s_add_u32 s{sH0}, s{sT0}, s{sT2}")
    g(f"s_lshr_b32 s{sB0}, s{sT1}, 1")
    g(f"s_lshl_b32 s{sB0}, s{sB0}, 1")
    g(f"s_lshl_b32 s{sWI}, s{sT1}, 2")
    g(f"s_add_u32 s{sWI}, s{sWI}, s{sW}")
    g(f"s_and_b32 s{sBSEL}, s{sW}, 1")
    g(f"s_lshr_b32 s{sJ}, s{sW}, 1")
    g(f"s_add_u32 s{sB}, s{sB0}, s{sBSEL}")
    g(f"s_lshl_b32 s{sM}, s{sW}, 13")
    g(f"s_lshl_b32 s{sVM}, s{sW}, 10")
    g(f"s_add_u32 s{sVM}, s{sVM}, {VB}")
    g(f"s_mov_b32 s{sXM}, s{sVM}")
    g(f"s_lshl_b32 s{sWQB}, s{sH0}, 9")
    g(f"s_mul_i32 s{sXB}, s{sB0}, 43008")
    g(f"s_lshl_b32 s{sT0}, s{sBSEL}, 4")
    g(f"s_lshl_b32 s{sT1}, s{sJ}, 2")
    g(f"s_add_u32 s{sT0}, s{sT0}, s{sT1}")
    g(f"s_lshl_b32 s{sT0}, s{sT0}, 13")
    g(f"v_lshlrev_b32 v{vSTO}, 4, v{L}")
    g(f"v_add_u32 v{t1}, s{sT0}, v{vSTO}")
    for i in range(8):
        const = (8 * (i >> 2) + (i & 3)) * 8192 - (i & 3) * 1024
        g(f"v_xor_b32 v{t0}, {32*i}, v{t1}")
        g(f"v_add_u32 v{vWQD+i}, {const}, v{t0}")
    g(f"v_lshrrev_b32 v{t0}, 3, v{L}")
    g(f"v_mul_u32_u24 v{t0}, 896, v{t0}")
    g(f"v_lshrrev_b32 v{t1}, 4, v{L}")
    g(f"s_lshl_b32 s{sT0}, s{sBSEL}, 2")
    g(f"v_add_u32 v{t1}, s{sT0}, v{t1}")
    g(f"v_and_b32 v{t2}, 7, v{L}")
    g(f"v_xor_b32 v{t1}, v{t1}, v{t2}")
    g(f"v_lshl_add_u32 v{t0}, v{t1}, 4, v{t0}")
    g(f"s_mul_i32 s{sT0}, s{sW}, 7168")
    g(f"v_add_u32 v{vXD}, s{sT0}, v{t0}")
    g(f"v_and_b32 v{t0}, 15, v{L}")
    g(f"v_lshrrev_b32 v{t1}, 4, v{L}")
    g(f"v_mov_b32 v{t5}, {BIG}")
    g(f"v_lshlrev_b32 v{t2}, 13, v{t1}")
    g(f"v_lshl_add_u32 v{t2}, v{t0}, 7, v{t2}")
    g(f"v_cmp_gt_u32 vcc, 48, v{L}")
    g(f"s_mul_i32 s{sTWQ}, s{sWI}, 24576")
    g(f"s_lshl_b32 s{sT0}, s{sHG}, 11")
    g(f"v_cndmask_b32 v9, v{t5}, v{t2}, vcc")
    g(f"s_add_u32 s{sTWQ}, s{sTWQ}, s{sT0}")
    g(f"s_lshl_b32 s{sT0}, s{sHP}, 2")
    g(f"s_add_u32 s{sT0}, s{sT0}, s{sW}")
    g(f"s_mul_i32 s{sT1}, s{sT0}, 60")
    g(f"v_add_u32 v{t2}, s{sT1}, v{L}")
    g(f"v_mul_u32_u24 v{t3}, 52429, v{t2}")
    g(f"v_lshrrev_b32 v{t3}, 18, v{t3}")
    g(f"v_mul_u32_u24 v{t4}, 5, v{t3}")
    g(f"v_sub_u32 v{t2}, v{t2}, v{t4}")
    g(f"v_mul_u32_u24 v{t3}, 896, v{t3}")
    g(f"v_lshl_add_u32 v{t2}, v{t2}, 7, v{t3}")
    g(f"v_cmp_gt_u32 vcc, 60, v{L}")
    g(f"v_cndmask_b32 v8, v{t5}, v{t2}, vcc")
    g.smem_wait()
    g(f"s_cmp_eq_u32 s{sBR}, 0")
    for k in (0, 3, 1, 2, 4):
        g(f"s_cselect_b64 s[{64+2*k}:{65+2*k}], s[{64+2*k}:{65+2*k}], s[{76+2*k}:{77+2*k}]")
    srd(S_X, 64, 65, 1376256)
    srd(S_WQ, 70, 71, 3670016)
    if OPT['diag']:
        srd(S_WS, 86, 87, 22020096)
        stamp()
        emit_list(x_dma(0, "R0")); emit_list(ring_dma(0)); stamp(); g.wait_all(); stamp()
        emit_list(touch(9, S_WQ, sTWQ, 64 * 8192)); g.wait_all(); stamp()
        emit_list(touch(8, S_X, sXB, 256)); g.wait_all(); stamp()
        emit_list(x_dma(1, "R1")); emit_list(ring_dma(1)); g.wait_all(); stamp()
        emit_list(ring_dma(2)); g.wait_all(); stamp()
        emit_list(ring_dma(3)); g.wait_all(); stamp()
        emit_list(ring_dma(4)); g.wait_all(); stamp()
        finish_stamps()
        return
    emit_list(x_dma(0, "R0"))
    emit_list(ring_dma(0))
    if OPT['code_pf']:
        g(f"s_and_b32 s{sT0}, s{sWI}, 63")
        g(f"s_min_u32 s{sT0}, s{sT0}, (L_main_end-L_pc)/1024-1")
        g(f"s_lshl_b32 s{sT0}, s{sT0}, 10")
        g(f"v_add_u32 v{t2}, s{sT0}, v{vSTO}")
        g(f"global_load_dword v{vDUM}, v{t2}, s[{sPC}:{sPC+1}]", nodst=True)
    emit_list(touch(9, S_WQ, sTWQ, 64 * 8192))
    emit_list(touch(8, S_X, sXB, 256))
    if OPT['early1']:
        emit_list(x_dma(1, "R1"))
        emit_list(ring_dma(1))
    g(f"v_lshrrev_b32 v{t2}, 1, v{t0}")
    g(f"v_xor_b32 v{t2}, v{t2}, v{t1}")
    g(f"v_lshlrev_b32 v{t2}, 4, v{t2}")
    g(f"v_lshl_add_u32 v{t2}, v{t0}, 7, v{t2}")
    g(f"s_mul_i32 s{sT0}, s{sBSEL}, 6144")
    g(f"s_add_u32 s{sT0}, s{sT0}, {VB}")
    g(f"v_add_u32 v{vXR}, s{sT0}, v{t2}")
    g(f"v_xor_b32 v{vXR+1}, 64, v{vXR}")
    g(f"v_lshlrev_b32 v{t2}, 7, v{L}")
    g(f"v_cmp_gt_u32 vcc, 32, v{L}")
    srd(S_K, 66, 67, 12582912)
    g(f"v_cndmask_b32 v{vT32}, v{t5}, v{t2}, vcc")
    srd(S_V, 68, 69, 12582912)
    srd(S_WO, 72, 73, 3670016)
    srd(S_WS, 86, 87, 22020096)
    u0, u1, u2 = 10, 11, 12
    g(f"v_lshrrev_b32 v{u0}, 2, v{L}")
    g(f"v_and_b32 v{u1}, 7, v{u0}")
    g(f"v_and_b32 v{u2}, 3, v{L}")
    g(f"v_lshlrev_b32 v{u2}, 3, v{u2}")
    g(f"s_lshl_b32 s{sT0}, s{sJ}, 9")
    g(f"v_lshl_add_u32 v{t3}, v{u0}, 10, v{u2}")
    g(f"v_add_u32 v{t3}, s{sT0}, v{t3}")
    for T in range(8):
        g(f"v_xor_b32 v{t4}, {T}, v{u1}")
        g(f"v_lshl_add_u32 v{vWQR+T}, v{t4}, 5, v{t3}")
        g(f"v_add_u32 v{vWQR+8+T}, 0x10000, v{vWQR+T}")
    g(f"s_lshl_b32 s{sT0}, s{sB}, 4")
    g(f"s_add_u32 s{sT0}, s{sT0}, s{sH0}")
    g(f"s_add_u32 s{sT0}, s{sT0}, s{sJ}")
    g(f"s_mul_i32 s{sKB}, s{sT0}, 24576")
    g(f"s_mul_i32 s{sKM}, s{sW}, 8320")
    g(f"s_add_u32 s{sKM}, s{sKM}, {KA}")
    g(f"v_lshlrev_b32 v{t2}, 2, v{t1}")
    g(f"v_xor_b32 v{t2}, v{t2}, v{t0}")
    g(f"v_lshlrev_b32 v{t2}, 4, v{t2}")
    g(f"v_lshl_add_u32 v{vKD}, v{t1}, 9, v{t2}")
    g(f"v_lshrrev_b32 v{t2}, 2, v{t0}")
    g(f"v_mul_u32_u24 v{t2}, 1040, v{t2}")
    g(f"v_and_b32 v{t3}, 3, v{t0}")
    g(f"v_lshl_add_u32 v{t2}, v{t3}, 8, v{t2}")
    g(f"v_lshl_add_u32 v{t2}, v{t1}, 3, v{t2}")
    g(f"v_add_u32 v{t2}, s{sKM}, v{t2}")
    for s4 in range(4):
        g(f"v_xor_b32 v{t4}, {s4}, v{t3}")
        g(f"v_lshl_add_u32 v{vKR+s4}, v{t4}, 6, v{t2}")
    g(f"s_mul_i32 s{sWOBASE}, s{sH0}, 229376")
    g(f"s_lshl_b32 s{sT0}, s{sB0}, 4")
    g(f"s_add_u32 s{sT0}, s{sT0}, s{sH0}")
    g(f"s_mul_i32 s{sVBASE}, s{sT0}, 24576")
    g(f"s_add_u32 s{sT0}, s{sH0}, s{sBR}")
    g(f"s_lshl_b32 s{sT0}, s{sT0}, 5")
    g(f"s_add_u32 s{sT0}, s{sT0}, s{sB}")
    g(f"s_mul_i32 s{sST}, s{sT0}, 43008")
    g(f"s_mul_i32 s{sT0}, s{sJ}, 3072")
    g(f"s_add_u32 s{sST}, s{sST}, s{sT0}")
    g(f"s_mov_b32 s{sC}, 0x{struct.unpack('<I', struct.pack('<f', 1.4426950408889634/16.0))[0]:08x}")
    g(f"s_lshr_b32 s{sT0}, s{sWI}, 6")
    g(f"s_lshl_b32 s{sT1}, s{sHG}, 1")
    g(f"s_add_u32 s{sT0}, s{sT0}, s{sT1}")
    g(f"s_mul_i32 s{sTWO}, s{sT0}, 458752")
    g(f"s_and_b32 s{sT0}, s{sWI}, 63")
    g(f"s_mul_i32 s{sT0}, s{sT0}, 3584")
    g(f"s_add_u32 s{sTWO}, s{sTWO}, s{sT0}")
    g(f"s_mul_i32 s{sT0}, s{sBSEL}, 24576")
    g(f"s_add_u32 s{sT0}, s{sT0}, {VB}")
    g(f"v_xor_b32 v{t3}, v{t1}, v{t0}")
    g(f"v_lshlrev_b32 v{t3}, 4, v{t3}")
    g(f"v_lshl_add_u32 v{t3}, v{t0}, 8, v{t3}")
    g(f"v_add_u32 v{vVR}, s{sT0}, v{t3}")
    for s4 in range(1, 4):
        g(f"v_xor_b32 v{vVR+s4}, {64*s4}, v{vVR}")
    g(f"s_lshl_b32 s{sT0}, s{sW}, 2")
    g(f"v_add_u32 v{t3}, s{sT0}, v{t1}")
    g(f"v_xor_b32 v{t3}, v{t3}, v{t0}")
    g(f"v_lshlrev_b32 v{t3}, 4, v{t3}")
    g(f"v_lshl_add_u32 v{t3}, v{t1}, 9, v{t3}")
    g(f"s_lshl_b32 s{sT0}, s{sW}, 11")
    g(f"v_add_u32 v{vVD}, s{sT0}, v{t3}")
    g(f"v_lshl_add_u32 v{t3}, v{u0}, 7, v{u2}")
    g(f"v_bfe_u32 v{t2}, v{L}, 3, 2")
    g(f"s_lshl_b32 s{sT0}, s{sJ}, 1")
    for T in range(2):
        g(f"s_add_u32 s{sT3}, s{sT0}, {T}")
        g(f"v_xor_b32 v{t4}, s{sT3}, v{t2}")
        g(f"v_lshl_add_u32 v{vWOR+T}, v{t4}, 5, v{t3}")
        g(f"v_add_u32 v{vWOR+2+T}, 0x10000, v{vWOR+T}")
    g(f"v_lshrrev_b32 v{t3}, 5, v{L}")
    g(f"v_lshl_add_u32 v{t2}, v{t3}, 3, v{t2}")
    g(f"v_mul_u32_u24 v{t2}, 896, v{t2}")
    g(f"v_lshlrev_b32 v{t3}, 1, v{t1}")
    g(f"v_and_b32 v{t4}, 7, v{L}")
    g(f"v_xor_b32 v{t3}, v{t3}, v{t4}")
    g(f"v_lshl_add_u32 v{t2}, v{t3}, 4, v{t2}")
    g(f"s_mul_i32 s{sT0}, s{sW}, 57344")
    g(f"v_add_u32 v{vWOD}, s{sT0}, v{t2}")
    for k in range(1, 4):
        g(f"v_add_u32 v{vWOD+k}, {(16*(k&1) + 4*(k>>1))*896 - k*1024}, v{vWOD}")
    g(f"s_mul_i32 s{sT0}, s{sBSEL}, 4608")
    g(f"s_add_u32 s{sT0}, s{sT0}, {PB}")
    g(f"v_add_u32 v{vPW}, s{sT0}, v{vSTO}")
    g(f"s_add_u32 s{sT0}, s{sT0}, 1024")
    g(f"v_lshl_add_u32 v{vPW2}, v{L}, 3, s{sT0}")
    if OPT['early2']:
        emit_list(ring_dma(2))
    stamp()
    g.wait_tag("R0")
    g.barrier()
    stamp()
    emit_list(x_reads(0))
    if not OPT['early1']:
        fq.add(x_dma(1, "R1") + ring_dma(1))
    if not OPT['early2']:
        fq.add(ring_dma(2))
    x_issue = {1: (2, "R3"), 2: (3, "R4"), 4: (4, "R6"), 5: (5, "R7"), 7: (6, "R9")}
    x_read = {1: 1, 3: 2, 4: 3, 6: 4, 7: 5, 9: 6}
    k_issue = {OPT[f'k{u}']: u for u in range(3)}
    k_read = {OPT[f'k{u}'] + OPT['kw']: u for u in range(3)}
    assert max(k_read) <= 13
    for u in range(2): assert OPT[f'k{u+1}'] > OPT[f'k{u}'] + OPT['kw']
    if 0 in k_issue: fq.add(k_dma(k_issue[0], f"R{OPT['kw']}"))
    def after1(R):
        out = []
        if R in x_read: out += x_reads(x_read[R])
        if R in k_read: out += k_reads(k_read[R])
        out += ring_dma(R + 2)
        if R in x_issue: out += x_dma(*x_issue[R])
        if R in k_issue: out += k_dma(k_issue[R], f"R{R+OPT['kw']}")
        if R == OPT['t_wo0']: out += touch(vT32, S_WO, sTWO, 0)
        if R == 14: out += v_dma(0, range(12))
        if R == OPT['t_wo1']: out += touch(vT32, S_WO, sTWO, 229376)
        return out
    run_stages(q_groups(), after1, lambda R: f"R{R}" if R < 14 else "none", tail_barrier=True)
    stamp()
    def s_mf(t):
        return [f"v_mfma_f32_16x16x32_bf16 {vr(SACC+(t*3+u)*4)}, {ar(aK+(u*8+s)*4)}, {vr(QFRAG(s,t))}, {vr(SACC+(t*3+u)*4) if s else 0}"
                for s in range(8) for u in range(3)]
    fq.drain()
    for ins in cvt_pairs(QACC, range(8), 0): g(ins)
    interleave(s_mf(0), cvt_pairs(QACC, range(8), 1))
    interleave(s_mf(1), cvt_pairs(QACC, range(8), 2))
    sm0 = softmax_ops(0)
    interleave(s_mf(2), sm0[:40])
    for ins in merge(sm0[40:], softmax_ops(1), softmax_ops(2)): g(ins)
    stamp()
    p_write(0, "L_pw0")
    g.wait_tag(["V0", "R14"], lg=0)
    g.barrier()
    stamp()
    for u in range(3): emit_list([v_read(u, 0)])
    for s in range(1, 8):
        fq.add([v_read(u, s) for u in range(3)])
    fq.add(p_reads(0))
    def after2(R):
        out = []
        if R == OPT['p1'] + 1: out += p_reads(1)
        out += ring_dma(R + 2)
        if R == OPT['v1']: out += v_dma(1, range(12))
        if R == OPT['t_wo1']: out += touch(vT32, S_WO, sTWO, 229376)
        if R == OPT['p1']: out.append(lambda: p_write(1, "L_pw1"))
        return out
    def wt(R):
        return [f"R{R}", "V1"] if R == 20 else f"R{R}"
    run_stages(o_groups(), after2, wt, tail_barrier=False)
    fq.drain()
    stamp()
    emit_list(vw_cvt(27))
    fa, fb = final_groups(27, 27)
    for m in fa['mfmas'] + fb['mfmas']: g(m)
    emit_list(epilogue_ops(6))
    stamp()
    if OPT['stamps']:
        g.wait_all()
        stamp()
        stamp()
    finish_stamps()

def reduce_kernel():
    global g
    lines = g.lines
    g = Gen(); g.lines = lines
    kernel_open(RED)
    g("s_cmp_ge_u32 s2, 448")
    g("s_cbranch_scc1 L_red_end")
    g("s_load_dwordx2 s[4:5], s[0:1], 80")
    g("s_load_dwordx2 s[6:7], s[0:1], 96")
    g("s_mov_b32 s16, 0x24924925")
    g("s_mul_hi_u32 s17, s2, s16")
    g("s_mul_i32 s18, s17, 7")
    g("s_sub_u32 s18, s2, s18")
    g("s_mul_i32 s19, s17, 43008")
    g("s_mul_i32 s20, s18, 6144")
    g("s_add_u32 s19, s19, s20")
    g("v_lshlrev_b32 v1, 4, v0")
    g("v_lshrrev_b32 v2, 6, v0")
    g("v_and_b32 v3, 63, v0")
    g("v_readfirstlane_b32 s21, v2")
    g("s_cmp_ge_u32 s21, 3")
    g("s_cselect_b32 s22, 1, 0")
    g("s_mul_i32 s23, s22, 3")
    g("s_sub_u32 s23, s21, s23")
    g("s_and_b32 s24, s17, 31")
    g("s_lshr_b32 s25, s17, 5")
    g("s_mul_i32 s24, s24, 48")
    g("s_lshl_b32 s23, s23, 4")
    g("s_add_u32 s24, s24, s23")
    g("s_mul_i32 s24, s24, 1792")
    g("s_mul_i32 s25, s25, 896")
    g("s_add_u32 s24, s24, s25")
    g("s_lshl_b32 s26, s18, 7")
    g("s_add_u32 s24, s24, s26")
    g("s_lshl_b32 s26, s22, 6")
    g("s_add_u32 s24, s24, s26")
    g("v_and_b32 v4, 15, v3")
    g("v_mul_u32_u24 v4, 1792, v4")
    g("v_lshrrev_b32 v5, 4, v3")
    g("v_lshl_add_u32 v4, v5, 4, v4")
    g.smem_wait()
    srd(8, 6, 7, 22020096)
    srd(12, 4, 5, 2752512)
    for p in range(8):
        if p:
            g(f"s_add_u32 s19, s19, {64*43008}")
        g(f"buffer_load_dwordx4 {vr(8+4*p)}, v1, s[8:11], s19 offen")
    for p in range(8):
        for k in range(4):
            src = 8 + 4 * p + k
            if p == 0:
                g(f"v_lshlrev_b32 v{40+2*k}, 16, v{src}")
                g(f"v_and_b32 v{41+2*k}, 0xffff0000, v{src}")
            else:
                g(f"v_lshlrev_b32 v{48+2*k}, 16, v{src}")
                g(f"v_and_b32 v{49+2*k}, 0xffff0000, v{src}")
        if p:
            for k in range(8):
                g(f"v_add_f32 v{40+k}, v{40+k}, v{48+k}")
    for k in range(4):
        g(f"v_cvt_pk_bf16_f32 v{56+k}, v{40+2*k}, v{41+2*k}")
    g("v_permlane32_swap_b32 v56, v58")
    g("v_permlane32_swap_b32 v57, v59")
    g("v_permlane16_swap_b32 v56, v58")
    g("v_permlane16_swap_b32 v57, v59")
    g("buffer_store_dwordx4 v[56:59], v4, s[12:15], s24 offen")
    g.raw("L_red_end:")
    g("s_endpgm")

def descriptors():
    g.raw('.section .rodata,"a"')
    for name, nv, acc in ((MAIN, 512, 256), (RED, 64, 64)):
        g.raw(".p2align 6")
        g.raw(f".amdhsa_kernel {name}")
        g.raw(f"  .amdhsa_next_free_vgpr {nv}")
        g.raw("  .amdhsa_next_free_sgpr 102")
        g.raw(f"  .amdhsa_accum_offset {acc}")
        g.raw("  .amdhsa_group_segment_fixed_size 0")
        g.raw("  .amdhsa_kernarg_size 104")
        g.raw("  .amdhsa_user_sgpr_count 2")
        g.raw("  .amdhsa_user_sgpr_kernarg_segment_ptr 1")
        g.raw("  .amdhsa_system_sgpr_workgroup_id_x 1")
        g.raw("  .amdhsa_float_denorm_mode_32 3")
        g.raw(".end_amdhsa_kernel")

header()
main_kernel()
st = dict(g.stats)
reduce_kernel()
descriptors()
open(sys.argv[1], "w").write(g.text())
print("main stats", st, "forced", fq.forced)
```

```python
import sys, struct, json
from asmgen import Gen, classify

NAME = "concat_heads__mha_block_cached__gqa_block_cached__near_ridge"
MAIN = NAME + "_kernel"
RED = "reduce_partials_kernel"

OPT = dict(bar_group=10, D=7, stamps=0, code_pf=1, touch=1, ntk=1, ntv=1, nttw=0, nttx=0,
           k0=1, k1=5, k2=9, kw=3, t_wo0=9, t_wo1=14, v1=15, p1=17, early2=0, early1=1, ntfirst=1, pace=1, diag=0, nok=0, nov=0, now=0, nost=0, nox=0, dbg=0)
for a in sys.argv[2:]:
    k, v = a.split('=')
    assert k in OPT, k
    OPT[k] = int(v)
def NT(k): return ' nt' if OPT[k] else ''

SLOT = 32768
VB = 3 * SLOT
XU = 12288
KA = VB + 65536 - 4 * 8320
PB = VB + 49152
LDS_BYTES = 163840
BIG = 0x7ffff000

S_X, S_K, S_V, S_WQ, S_WO, S_WS = 8, 12, 16, 20, 24, 28
sW, sBSEL, sJ, sBR, sH0, sB0, sB = 32, 33, 34, 35, 36, 37, 38
sWQB = 39
sXB, sXM, sKB, sKM, sXO, sKO, sWQO, sWOO, sWOO2, sVO = 40, 41, 42, 43, 44, 45, 46, 47, 48, 49
sM, sVM, sST, sC = 50, 51, 52, 53
sT0, sT1, sT2, sT3 = 54, 55, 56, 57
sVBASE, sWOBASE = 58, 59
sPC = 60
sTWQ = 63
sHG, sHP, sWI, sTWO = 88, 89, 90, 91
STB = 64

def QACC(T, t): return (((T // 2) * 3 + t) * 4) + (96 if T & 1 else 0)
def QFRAG(s, t): return (s * 3 + t) * 4
SACC = 192
vWQR = 192
vWQD = 208
vXR = 216
vXD = 218
vKR = 219
vKD = 223
vWOD = 228
vVD = 232
vVR = 233
vWOR = 237
vSTO = 241
vPW = 242
vPW2 = 243
vT32 = 244
vDUM = 245
vSM = 246
def VFRAG(u, s): return (u * 8 + s) * 4
vPOWN = 96
vP = [114, 132]
vVWB = 150
vEP = 96
def VWACC(par, T, u): return 180 + par * 24 + (T * 3 + u) * 4
aFR, aK, aX, XRING, aOUT = 0, 32, 128, 10, 32
def OUTACC(c, T, t): return aOUT + ((c * 2 + T) * 3 + t) * 4

def vr(b, n=4): return f"v[{b}:{b+n-1}]"
def ar(b, n=4): return f"a[{b}:{b+n-1}]"
def sr(b, n=4): return f"s[{b}:{b+n-1}]"

g = Gen()
nstamp = 0
def stamp(real=False):
    global nstamp
    if OPT['stamps']:
        g(f"{'s_memrealtime' if real else 's_memtime'} s[{STB+2*nstamp}:{STB+2*nstamp+1}]")
        nstamp += 1

def header():
    g.raw("; fused attention block: launch 1 computes per-head-pair partial outputs, launch 2 sums them")
    g.raw(f"; @launch kernel={MAIN} grid=(256,1,1) block=(256,1,1) lds={LDS_BYTES}")
    g.raw(f"; @launch kernel={RED} grid=(448,1,1) block=(384,1,1) lds=0")
    g.raw('.amdgcn_target "amdgcn-amd-amdhsa--gfx950"')
    g.raw(".text")

def kernel_open(name):
    g.raw(f".globl {name}")
    g.raw(".p2align 8")
    g.raw(f".type {name},@function")
    g.raw(f"{name}:")

def srd(dst, lo, hi, nbytes):
    g(f"s_mov_b32 s{dst}, s{lo}")
    g(f"s_and_b32 s{dst+1}, s{hi}, 0xffff")
    g(f"s_mov_b32 s{dst+2}, {nbytes}")
    g(f"s_mov_b32 s{dst+3}, 0x20000")

def wq_dma(R):
    slot = (R % 3) * SLOT
    out = [(f"s_add_u32 s{sWQO}, s{sWQB}, {R*262144}", None)]
    for i in range(8):
        if i % 4 == 0:
            out.append((f"s_add_u32 m0, s{sM}, {slot + (i//4)*4096}", None))
        out.append((f"buffer_load_dwordx4 v{vWQD+i}, {sr(S_WQ)}, s{sWQO} offen offset:{(i%4)*1024}{NT('ntfirst') if R < 2 else ''} lds", f"R{R}"))
    return out

def wo_dma(R):
    hh, c = divmod(R - 14, 7)
    slot = (R % 3) * SLOT
    out = [(f"s_add_u32 s{sWOO}, s{sWOBASE}, {hh*229376 + c*128}", None),
           (f"s_add_u32 s{sWOO2}, s{sWOBASE}, {hh*229376 + c*128 + 28672}", None)]
    for i in range(8):
        if i % 4 == 0:
            out.append((f"s_add_u32 m0, s{sM}, {slot + (i//4)*4096}", None))
        so = sWOO if i < 4 else sWOO2
        out.append((f"buffer_load_dwordx4 v{vWOD+(i%4)}, {sr(S_WO)}, s{so} offen offset:{(i%4)*1024} lds", f"R{R}"))
    return out

def ring_dma(R):
    if OPT['now'] and R > 2: return []
    if R < 14: return wq_dma(R)
    if R < 28: return wo_dma(R)
    return []

def x_dma(p, tag):
    out = []
    if OPT['nox'] and p > 1: return out
    for k in range(3):
        out.append((f"s_add_u32 s{sXO}, s{sXB}, {p*128 + k*28672}", None))
        out.append((f"s_add_u32 m0, s{sXM}, {(p % 2)*XU + k*4096}", None))
        out.append((f"buffer_load_dwordx4 v{vXD}, {sr(S_X)}, s{sXO} offen{NT('ntfirst') if p < 2 else ''} lds", tag))
    return out

def x_reads(p):
    out = []
    for s2 in range(2):
        s = 2 * p + s2
        for t in range(3):
            d = aX + (s % XRING) * 12 + t * 4
            out.append((f"ds_read_b128 {ar(d)}, v{vXR+s2} offset:{(p % 2)*XU + t*2048}", None))
    return out

def k_dma(u, tag):
    out = []
    if OPT['nok']: return out
    for dh in range(2):
        out.append((f"s_add_u32 m0, s{sKM}, {dh*4160}", None))
        for j in range(4):
            out.append((f"s_add_u32 s{sKO}, s{sKB}, {u*8192 + dh*256 + j*(2048-1040)}", None))
            out.append((f"buffer_load_dwordx4 v{vKD}, {sr(S_K)}, s{sKO} offen offset:{j*1040}{NT('ntk')} lds", tag))
    return out

def k_reads(u):
    out = []
    for dh in range(2):
        for s4 in range(4):
            for p in range(2):
                d = aK + (u * 8 + dh * 4 + s4) * 4 + 2 * p
                out.append((f"ds_read_b64 {ar(d,2)}, v{vKR+s4} offset:{dh*4160 + 32*p}", None))
    return out

def v_dma(hh, subs):
    out = []
    if OPT['nov']: return out
    for sub in subs:
        bb, r = divmod(sub, 6); u, dh = divmod(r, 2)
        out.append((f"s_add_u32 s{sVO}, s{sVBASE}, {hh*24576 + bb*393216 + u*8192 + dh*256}", None))
        out.append((f"s_add_u32 m0, s{sVM}, {sub*4096}", None))
        out.append((f"buffer_load_dwordx4 v{vVD}, {sr(S_V)}, s{sVO} offen{NT('ntv')} lds", f"V{hh}"))
    return out

def v_read(u, s):
    dh, s4 = divmod(s, 4)
    return (f"ds_read_b128 {vr(VFRAG(u,s))}, v{vVR+s4} offset:{(u*2+dh)*4096}", None)

def touch(vaddr, srd_, sbase, add):
    key = {S_WQ: 'nttw', S_WO: 'nttw', S_X: 'nttx'}[srd_]
    if not OPT['touch']: return []
    return [(f"s_add_u32 s{sT1}, s{sbase}, {add}", None),
            (f"buffer_load_dword v{vDUM}, v{vaddr}, {sr(srd_)}, s{sT1} offen{NT(key)}", None, True)]

class FillQ:
    def __init__(self): self.q = []
    def add(self, items): self.q.extend(items)
    def pop(self):
        it = self.q.pop(0)
        if callable(it): it()
        else: g(it[0], tag=it[1], nodst=(len(it) > 2))
    def __len__(self): return len(self.q)
    def is_vm(self, it):
        return (not callable(it)) and it[0].startswith(('buffer_', 'global_'))
    def nvm(self): return sum(1 for it in self.q if self.is_vm(it))
    def drain(self):
        while self.q: self.pop()
    def guard(self, text):
        _, _, _, _, rd, wr = classify(text)
        rd = {r for r in rd if r[0] != 's'}; wr = {r for r in wr if r[0] != 's'}
        last = -1
        for i, it in enumerate(self.q):
            if callable(it): continue
            _, _, _, _, frd, fwr = classify(it[0])
            if len(it) > 2: fwr = []
            if (set(fwr) & (rd | wr)) or (set(frd) & wr): last = i
        if last >= 0: self.forced += last + 1
        for _ in range(last + 1): self.pop()
    forced = 0
fq = FillQ()
def emit_list(l):
    for it in l: g(it[0], tag=it[1], nodst=(len(it) > 2))

def run_stages(groups, after_barrier, wait_tags, tail_barrier=None, ring=8, nreg=4):
    D = min(OPT['D'], ring - 1)
    open_stage = groups[0]['stage']
    pend = []
    fr = 0
    for n, gr in enumerate(groups):
        gr['fr'] = fr
        if gr['reads']:
            d = aFR + (fr % ring) * nreg
            for k, rt in enumerate(gr['reads']):
                pend.append((fr, gr['stage'], rt.format(d=ar(d + 2 * k, 2))))
            fr += 1
    rp = 0
    def can_read(f_cur):
        if rp >= len(pend): return False
        f, st, _ = pend[rp]
        return st <= open_stage and f <= f_cur + D
    while rp < len(pend) and pend[rp][0] < D and pend[rp][1] <= open_stage:
        g(pend[rp][2]); rp += 1
    last_stage = groups[-1]['stage']
    left = [0] * len(groups)
    acc = 0
    for n in range(len(groups) - 1, -1, -1):
        if groups[n].get('idx') == OPT['bar_group']: acc = 0
        acc += len(groups[n]['mfmas'])
        left[n] = acc
    since_vm = 1000
    for n, gr in enumerate(groups):
        f = gr['fr']
        d = aFR + (f % ring) * nreg
        if gr['reads']:
            while rp < len(pend) and pend[rp][0] <= f:
                assert pend[rp][1] <= open_stage
                g(pend[rp][2]); rp += 1
        fcur = f if gr['reads'] else f - 1
        R = gr['stage']
        for it in gr.get('pre', []): fq.q.insert(0, it) if False else None
        if gr.get('front'):
            fq.q[0:0] = gr['front']
        for k, mt in enumerate(gr['mfmas']):
            fq.guard(mt.format(a=ar(d)))
            g(mt.format(a=ar(d)))
            budget = 2
            since_vm += 1
            rem = left[n] - k - 1
            while budget:
                if can_read(fcur):
                    g(pend[rp][2]); rp += 1; budget -= 1
                elif len(fq):
                    j = None
                    if fq.is_vm(fq.q[0]) and OPT['pace']:
                        gap = max(1, (rem - 2) // max(1, fq.nvm()))
                        if since_vm >= min(gap, OPT['pace'] * 6): j = 0
                        else:
                            for i, it in enumerate(fq.q):
                                if callable(it): break
                                if fq.is_vm(it) or it[0].startswith('s_'): continue
                                _, _, _, _, rd_, wr_ = classify(it[0])
                                clash = False
                                for e in fq.q[:i]:
                                    _, _, _, _, erd, ewr = classify(e[0])
                                    if (set(erd) | set(ewr)) & set(wr_) or set(ewr) & set(rd_): clash = True
                                if not clash: j = i
                                break
                    else:
                        j = 0
                    if j is None: break
                    if j == 0:
                        if fq.is_vm(fq.q[0]): since_vm = 0
                        fq.pop()
                    else:
                        it = fq.q.pop(j); g(it[0], tag=it[1], nodst=(len(it) > 2))
                    budget -= 1
                else:
                    break
        for it in gr.get('post', []):
            fq.add([it])
        if gr.get('idx') == OPT['bar_group'] and (R < last_stage or tail_barrier):
            while rp < len(pend) and pend[rp][1] <= R:
                g(pend[rp][2]); rp += 1
            fq.drain()
            g.wait_tag(wait_tags(R + 1), lg=0)
            g.barrier()
            open_stage = R + 1
            fq.add(after_barrier(R + 1))

def interleave(mf, fill, per=2):
    fill = list(fill)
    for m in mf:
        g(m)
        for _ in range(per):
            if fill: g(fill.pop(0))
            elif len(fq): fq.pop()
    for f in fill: g(f)

def softmax_ops(t):
    S = [SACC + 12 * t + k for k in range(12)]
    m, x = vSM + 2 * t, vSM + 2 * t + 1
    o = []
    o.append(f"v_max3_f32 v{m}, v{S[0]}, v{S[1]}, v{S[2]}")
    o.append(f"v_max3_f32 v{x}, v{S[3]}, v{S[4]}, v{S[5]}")
    o.append(f"v_max3_f32 v{m}, v{m}, v{S[6]}, v{S[7]}")
    o.append(f"v_max3_f32 v{x}, v{x}, v{S[8]}, v{S[9]}")
    o.append(f"v_max3_f32 v{m}, v{m}, v{S[10]}, v{S[11]}")
    o.append(f"v_max_f32 v{m}, v{m}, v{x}")
    for sw in ("v_permlane32_swap_b32", "v_permlane16_swap_b32"):
        o.append(f"v_mov_b32 v{x}, v{m}")
        o.append(f"{sw} v{m}, v{x}")
        o.append(f"v_max_f32 v{m}, v{m}, v{x}")
    o.append(f"v_mul_f32 v{m}, s{sC}, v{m}")
    for k in range(12):
        o.append(f"v_fma_f32 v{S[k]}, v{S[k]}, s{sC}, -v{m}")
    for k in range(12):
        o.append(f"v_exp_f32 v{S[k]}, v{S[k]}")
    o.append(f"v_add_f32 v{m}, v{S[0]}, v{S[1]}")
    o.append(f"v_add_f32 v{x}, v{S[2]}, v{S[3]}")
    for k in range(4, 12, 2):
        o.append(f"v_add_f32 v{m}, v{m}, v{S[k]}")
        o.append(f"v_add_f32 v{x}, v{x}, v{S[k+1]}")
    o.append(f"v_add_f32 v{m}, v{m}, v{x}")
    for sw in ("v_permlane32_swap_b32", "v_permlane16_swap_b32"):
        o.append(f"v_mov_b32 v{x}, v{m}")
        o.append(f"{sw} v{m}, v{x}")
        o.append(f"v_add_f32 v{m}, v{m}, v{x}")
    o.append(f"v_rcp_f32 v{m}, v{m}")
    for k in range(12):
        o.append(f"v_mul_f32 v{S[k]}, v{S[k]}, v{m}")
    for k in range(6):
        o.append(f"v_cvt_pk_bf16_f32 v{vPOWN + 6*t + k}, v{S[2*k]}, v{S[2*k+1]}")
    return o

def merge(*lists):
    out = []
    n = max(len(l) for l in lists)
    for i in range(n):
        for l in lists:
            if i < len(l): out.append(l[i])
    return out

def cvt_pairs(acc, s_list, t):
    o = []
    for s in s_list:
        b, b2 = acc(2 * s, t), acc(2 * s + 1, t)
        o.append(f"v_cvt_pk_bf16_f32 v{b}, v{b}, v{b+1}")
        o.append(f"v_cvt_pk_bf16_f32 v{b+1}, v{b+2}, v{b+3}")
        o.append(f"v_cvt_pk_bf16_f32 v{b+2}, v{b2}, v{b2+1}")
        o.append(f"v_cvt_pk_bf16_f32 v{b+3}, v{b2+2}, v{b2+3}")
    return o

def p_write(which, lbl):
    g.wait_all(vm=False, lg=True)
    g(f"s_cmp_lg_u32 s{sJ}, {which}")
    g(f"s_cbranch_scc1 {lbl}")
    n0 = g.n
    for t in range(3):
        g(f"ds_write_b128 v{vPW}, {vr(vPOWN+6*t)} offset:{t*1536}")
        g(f"ds_write_b64 v{vPW2}, {vr(vPOWN+6*t+4,2)} offset:{t*1536}")
    g.wait_all(vm=False, lg=True)
    g.raw(f"{lbl}:")
    g.n = n0

def p_reads(hh):
    o = []
    for t in range(3):
        o.append((f"ds_read_b128 {vr(vP[hh]+6*t)}, v{vPW} offset:{t*1536}", None))
        o.append((f"ds_read_b64 {vr(vP[hh]+6*t+4,2)}, v{vPW2} offset:{t*1536}", None))
    return o

def q_groups():
    gs = []
    for s in range(14):
        slot = s % 3
        win, base = (1, 0) if slot == 2 else (0, slot * SLOT)
        for T in range(16):
            reads = [f"ds_read_b64_tr_b16 {{d}}, v{vWQR + win*8 + (T & 7)} offset:{base + rd*16384 + (T>>3)*256}" for rd in range(2)]
            mf = []
            for t in range(3):
                acc = vr(QACC(T, t))
                xb = ar(aX + (s % XRING) * 12 + t * 4)
                mf.append(f"v_mfma_f32_16x16x32_bf16 {acc}, {{a}}, {xb}, {acc if s else 0}")
            gs.append(dict(stage=s, reads=reads, mfmas=mf, idx=T))
    return gs

def vw_cvt(R):
    par = R % 2
    o = []
    for T in range(2):
        for u in range(3):
            b = VWACC(par, T, u)
            o.append((f"v_cvt_pk_bf16_f32 v{vVWB+6*T+2*u}, v{b}, v{b+1}", None))
            o.append((f"v_cvt_pk_bf16_f32 v{vVWB+6*T+2*u+1}, v{b+2}, v{b+3}", None))
    return o

def final_groups(R, stage):
    hh, c = divmod(R - 14, 7)
    a, b = [], []
    for T in range(2):
        for t in range(3):
            acc = ar(OUTACC(c, T, t))
            a.append(f"v_mfma_f32_16x16x32_bf16 {acc}, {vr(vVWB+6*T)}, {vr(vP[hh]+6*t)}, {acc if hh else 0}")
            b.append(f"v_mfma_f32_16x16x16_bf16 {acc}, {vr(vVWB+6*T+4,2)}, {vr(vP[hh]+6*t+4,2)}, {acc}")
    return dict(stage=stage, reads=[], mfmas=a), dict(stage=stage, reads=[], mfmas=b)

def epilogue_ops(c):
    o = [(f"s_add_u32 s{sT0}, s{sST}, {c*6144}", None)]
    for t in range(3):
        tb = vEP + t * 8
        for T in range(2):
            for r in range(4):
                o.append((f"v_accvgpr_read_b32 v{tb + T*4 + r}, a{OUTACC(c,T,t)+r}", None))
        for k in range(4):
            o.append((f"v_cvt_pk_bf16_f32 v{tb+k}, v{tb+2*k}, v{tb+2*k+1}", None))
        if not OPT['nost']: o.append((f"buffer_store_dwordx4 {vr(tb)}, v{vSTO}, {sr(S_WS)}, s{sT0} offen offset:{t*1024}", None))
    return o

def o_groups():
    gs = []
    for R in range(14, 28):
        hh, c = divmod(R - 14, 7)
        slot = R % 3
        win, base = (1, 0) if slot == 2 else (0, slot * SLOT)
        for s in range(8):
            for T in range(2):
                idx = 2 * s + T
                reads = [f"ds_read_b64_tr_b16 {{d}}, v{vWOR + win*2 + T} offset:{base + s*4096 + rd*2048}" for rd in range(2)]
                mf = []
                for u in range(3):
                    acc = vr(VWACC(R % 2, T, u))
                    mf.append(f"v_mfma_f32_16x16x32_bf16 {acc}, {vr(VFRAG(u,s))}, {{a}}, {acc if s else 0}")
                gr = dict(stage=R, reads=reads, mfmas=mf, idx=idx)
                if R > 14 and idx == 2: gr['front'] = vw_cvt(R - 1)
                if R == 20 and T == 1:
                    gr['post'] = [v_read(u, s) for u in range(3)]
                gs.append(gr)
                if R > 14 and idx == 5: gs.append(final_groups(R - 1, R)[0])
                if R > 14 and idx == 7:
                    gb = final_groups(R - 1, R)[1]
                    gs.append(gb)
                if R > 21 and idx == 11: gs[-1]['post'] = epilogue_ops(R - 22)
    return gs

def finish_stamps():
    if OPT['stamps']:
        stamp(real=True)
        if OPT['dbg']:
            g("s_load_dwordx2 s[92:93], s[0:1], 88")
        g.smem_wait()
        if OPT['dbg']:
            srd(S_K, 92, 93, 256)
            g("v_mov_b32 v1, 0")
            g("s_mov_b64 exec, 1")
            g(f"s_sub_u32 s{sT0}, 0, s96")
            g(f"v_mov_b32 v2, s{sT0}")
            g(f"buffer_atomic_umax v2, v1, {sr(S_K)}, 0 offen")
            g(f"v_mov_b32 v3, s{STB + 2*(nstamp-1)}")
            g(f"buffer_atomic_umax v3, v1, {sr(S_K)}, 0 offen offset:4")
            regs = [98] + [STB + 2 * k for k in range(nstamp - 1)]
            for k in range(len(regs) - 1):
                g(f"s_sub_u32 s{sT0}, s{regs[k+1]}, s{regs[k]}")
                g(f"s_lshr_b32 s{sT0}, s{sT0}, 4")
                g(f"v_mov_b32 v{4+k}, s{sT0}")
                g(f"buffer_atomic_add v{4+k}, v1, {sr(S_K)}, 0 offen offset:{8+4*k}")
            g("s_endpgm")
        g(f"s_lshl_b32 s{sT0}, s2, 2")
        g(f"s_add_u32 s{sT0}, s{sT0}, s{sW}")
        g(f"s_lshl_b32 s{sT0}, s{sT0}, 6")
        g(f"s_add_u32 s{sT0}, s{sT0}, {24<<20}")
        g(f"s_mov_b32 s{S_WS+2}, 0x10000000")
        g("v_mov_b32 v1, 0")
        regs = [98] + [STB + 2 * k for k in range(nstamp)] + [96]
        for k, r in enumerate(regs):
            g(f"v_mov_b32 v2, s{r}")
            g(f"buffer_store_dword v2, v1, {sr(S_WS)}, s{sT0} offen offset:{4*k}")
    g.raw("L_main_end:")
    g("s_endpgm")

def main_kernel():
    kernel_open(MAIN)
    g(f"s_cmp_ge_u32 s2, 256")
    g(f"s_cbranch_scc1 L_main_end")
    if OPT['stamps']:
        g("s_memrealtime s[96:97]")
        g("s_memtime s[98:99]")
    g("s_load_dwordx8 s[64:71], s[0:1], 0")
    g("s_load_dwordx2 s[72:73], s[0:1], 32")
    g("s_load_dwordx8 s[76:83], s[0:1], 40")
    g("s_load_dwordx2 s[84:85], s[0:1], 72")
    g("s_load_dwordx2 s[86:87], s[0:1], 96")
    g(f"s_getpc_b64 s[{sPC}:{sPC+1}]")
    g.raw("L_pc:")
    L = 1
    t0, t1, t2, t3, t4, t5 = 2, 3, 4, 5, 6, 7
    g(f"v_lshrrev_b32 v{t0}, 6, v0")
    g(f"v_and_b32 v{L}, 63, v0")
    g(f"v_readfirstlane_b32 s{sW}, v{t0}")
    g(f"s_and_b32 s{sT0}, s2, 7")
    g(f"s_lshr_b32 s{sT1}, s2, 3")
    g(f"s_lshr_b32 s{sBR}, s{sT0}, 2")
    g(f"s_and_b32 s{sHG}, s{sT0}, 3")
    g(f"s_lshl_b32 s{sT0}, s{sHG}, 2")
    g(f"s_and_b32 s{sHP}, s{sT1}, 1")
    g(f"s_lshl_b32 s{sT2}, s{sHP}, 1")
    g(f"s_add_u32 s{sH0}, s{sT0}, s{sT2}")
    g(f"s_lshr_b32 s{sB0}, s{sT1}, 1")
    g(f"s_lshl_b32 s{sB0}, s{sB0}, 1")
    g(f"s_lshl_b32 s{sWI}, s{sT1}, 2")
    g(f"s_add_u32 s{sWI}, s{sWI}, s{sW}")
    g(f"s_and_b32 s{sBSEL}, s{sW}, 1")
    g(f"s_lshr_b32 s{sJ}, s{sW}, 1")
    g(f"s_add_u32 s{sB}, s{sB0}, s{sBSEL}")
    g(f"s_lshl_b32 s{sM}, s{sW}, 13")
    g(f"s_lshl_b32 s{sVM}, s{sW}, 10")
    g(f"s_add_u32 s{sVM}, s{sVM}, {VB}")
    g(f"s_mov_b32 s{sXM}, s{sVM}")
    g(f"s_lshl_b32 s{sWQB}, s{sH0}, 9")
    g(f"s_mul_i32 s{sXB}, s{sB0}, 43008")
    g(f"s_lshl_b32 s{sT0}, s{sBSEL}, 4")
    g(f"s_lshl_b32 s{sT1}, s{sJ}, 2")
    g(f"s_add_u32 s{sT0}, s{sT0}, s{sT1}")
    g(f"s_lshl_b32 s{sT0}, s{sT0}, 13")
    g(f"v_lshlrev_b32 v{vSTO}, 4, v{L}")
    g(f"v_add_u32 v{t1}, s{sT0}, v{vSTO}")
    for i in range(8):
        const = (8 * (i >> 2) + (i & 3)) * 8192 - (i & 3) * 1024
        g(f"v_xor_b32 v{t0}, {32*i}, v{t1}")
        g(f"v_add_u32 v{vWQD+i}, {const}, v{t0}")
    g(f"v_lshrrev_b32 v{t0}, 3, v{L}")
    g(f"v_mul_u32_u24 v{t0}, 896, v{t0}")
    g(f"v_lshrrev_b32 v{t1}, 4, v{L}")
    g(f"s_lshl_b32 s{sT0}, s{sBSEL}, 2")
    g(f"v_add_u32 v{t1}, s{sT0}, v{t1}")
    g(f"v_and_b32 v{t2}, 7, v{L}")
    g(f"v_xor_b32 v{t1}, v{t1}, v{t2}")
    g(f"v_lshl_add_u32 v{t0}, v{t1}, 4, v{t0}")
    g(f"s_mul_i32 s{sT0}, s{sW}, 7168")
    g(f"v_add_u32 v{vXD}, s{sT0}, v{t0}")
    g(f"v_and_b32 v{t0}, 15, v{L}")
    g(f"v_lshrrev_b32 v{t1}, 4, v{L}")
    g(f"v_mov_b32 v{t5}, {BIG}")
    g(f"v_lshlrev_b32 v{t2}, 13, v{t1}")
    g(f"v_lshl_add_u32 v{t2}, v{t0}, 7, v{t2}")
    g(f"v_cmp_gt_u32 vcc, 48, v{L}")
    g(f"s_mul_i32 s{sTWQ}, s{sWI}, 24576")
    g(f"s_lshl_b32 s{sT0}, s{sHG}, 11")
    g(f"v_cndmask_b32 v9, v{t5}, v{t2}, vcc")
    g(f"s_add_u32 s{sTWQ}, s{sTWQ}, s{sT0}")
    g(f"s_lshl_b32 s{sT0}, s{sHP}, 2")
    g(f"s_add_u32 s{sT0}, s{sT0}, s{sW}")
    g(f"s_mul_i32 s{sT1}, s{sT0}, 60")
    g(f"v_add_u32 v{t2}, s{sT1}, v{L}")
    g(f"v_mul_u32_u24 v{t3}, 52429, v{t2}")
    g(f"v_lshrrev_b32 v{t3}, 18, v{t3}")
    g(f"v_mul_u32_u24 v{t4}, 5, v{t3}")
    g(f"v_sub_u32 v{t2}, v{t2}, v{t4}")
    g(f"v_mul_u32_u24 v{t3}, 896, v{t3}")
    g(f"v_lshl_add_u32 v{t2}, v{t2}, 7, v{t3}")
    g(f"v_cmp_gt_u32 vcc, 60, v{L}")
    g(f"v_cndmask_b32 v8, v{t5}, v{t2}, vcc")
    g.smem_wait()
    g(f"s_cmp_eq_u32 s{sBR}, 0")
    for k in (0, 3, 1, 2, 4):
        g(f"s_cselect_b64 s[{64+2*k}:{65+2*k}], s[{64+2*k}:{65+2*k}], s[{76+2*k}:{77+2*k}]")
    srd(S_X, 64, 65, 1376256)
    srd(S_WQ, 70, 71, 3670016)
    if OPT['diag']:
        srd(S_WS, 86, 87, 22020096)
        stamp()
        emit_list(x_dma(0, "R0")); emit_list(ring_dma(0)); stamp(); g.wait_all(); stamp()
        emit_list(touch(9, S_WQ, sTWQ, 64 * 8192)); g.wait_all(); stamp()
        emit_list(touch(8, S_X, sXB, 256)); g.wait_all(); stamp()
        emit_list(x_dma(1, "R1")); emit_list(ring_dma(1)); g.wait_all(); stamp()
        emit_list(ring_dma(2)); g.wait_all(); stamp()
        emit_list(ring_dma(3)); g.wait_all(); stamp()
        emit_list(ring_dma(4)); g.wait_all(); stamp()
        finish_stamps()
        return
    emit_list(x_dma(0, "R0"))
    emit_list(ring_dma(0))
    if OPT['code_pf']:
        g(f"s_and_b32 s{sT0}, s{sWI}, 63")
        g(f"s_min_u32 s{sT0}, s{sT0}, (L_main_end-L_pc)/1024-1")
        g(f"s_lshl_b32 s{sT0}, s{sT0}, 10")
        g(f"v_add_u32 v{t2}, s{sT0}, v{vSTO}")
        g(f"global_load_dword v{vDUM}, v{t2}, s[{sPC}:{sPC+1}]", nodst=True)
    emit_list(touch(9, S_WQ, sTWQ, 64 * 8192))
    emit_list(touch(8, S_X, sXB, 256))
    if OPT['early1']:
        emit_list(x_dma(1, "R1"))
        emit_list(ring_dma(1))
    g(f"v_lshrrev_b32 v{t2}, 1, v{t0}")
    g(f"v_xor_b32 v{t2}, v{t2}, v{t1}")
    g(f"v_lshlrev_b32 v{t2}, 4, v{t2}")
    g(f"v_lshl_add_u32 v{t2}, v{t0}, 7, v{t2}")
    g(f"s_mul_i32 s{sT0}, s{sBSEL}, 6144")
    g(f"s_add_u32 s{sT0}, s{sT0}, {VB}")
    g(f"v_add_u32 v{vXR}, s{sT0}, v{t2}")
    g(f"v_xor_b32 v{vXR+1}, 64, v{vXR}")
    g(f"v_lshlrev_b32 v{t2}, 7, v{L}")
    g(f"v_cmp_gt_u32 vcc, 32, v{L}")
    srd(S_K, 66, 67, 12582912)
    g(f"v_cndmask_b32 v{vT32}, v{t5}, v{t2}, vcc")
    srd(S_V, 68, 69, 12582912)
    srd(S_WO, 72, 73, 3670016)
    srd(S_WS, 86, 87, 22020096)
    u0, u1, u2 = 10, 11, 12
    g(f"v_lshrrev_b32 v{u0}, 2, v{L}")
    g(f"v_and_b32 v{u1}, 7, v{u0}")
    g(f"v_and_b32 v{u2}, 3, v{L}")
    g(f"v_lshlrev_b32 v{u2}, 3, v{u2}")
    g(f"s_lshl_b32 s{sT0}, s{sJ}, 9")
    g(f"v_lshl_add_u32 v{t3}, v{u0}, 10, v{u2}")
    g(f"v_add_u32 v{t3}, s{sT0}, v{t3}")
    for T in range(8):
        g(f"v_xor_b32 v{t4}, {T}, v{u1}")
        g(f"v_lshl_add_u32 v{vWQR+T}, v{t4}, 5, v{t3}")
        g(f"v_add_u32 v{vWQR+8+T}, 0x10000, v{vWQR+T}")
    g(f"s_lshl_b32 s{sT0}, s{sB}, 4")
    g(f"s_add_u32 s{sT0}, s{sT0}, s{sH0}")
    g(f"s_add_u32 s{sT0}, s{sT0}, s{sJ}")
    g(f"s_mul_i32 s{sKB}, s{sT0}, 24576")
    g(f"s_mul_i32 s{sKM}, s{sW}, 8320")
    g(f"s_add_u32 s{sKM}, s{sKM}, {KA}")
    g(f"v_lshlrev_b32 v{t2}, 2, v{t1}")
    g(f"v_xor_b32 v{t2}, v{t2}, v{t0}")
    g(f"v_lshlrev_b32 v{t2}, 4, v{t2}")
    g(f"v_lshl_add_u32 v{vKD}, v{t1}, 9, v{t2}")
    g(f"v_lshrrev_b32 v{t2}, 2, v{t0}")
    g(f"v_mul_u32_u24 v{t2}, 1040, v{t2}")
    g(f"v_and_b32 v{t3}, 3, v{t0}")
    g(f"v_lshl_add_u32 v{t2}, v{t3}, 8, v{t2}")
    g(f"v_lshl_add_u32 v{t2}, v{t1}, 3, v{t2}")
    g(f"v_add_u32 v{t2}, s{sKM}, v{t2}")
    for s4 in range(4):
        g(f"v_xor_b32 v{t4}, {s4}, v{t3}")
        g(f"v_lshl_add_u32 v{vKR+s4}, v{t4}, 6, v{t2}")
    g(f"s_mul_i32 s{sWOBASE}, s{sH0}, 229376")
    g(f"s_lshl_b32 s{sT0}, s{sB0}, 4")
    g(f"s_add_u32 s{sT0}, s{sT0}, s{sH0}")
    g(f"s_mul_i32 s{sVBASE}, s{sT0}, 24576")
    g(f"s_add_u32 s{sT0}, s{sH0}, s{sBR}")
    g(f"s_lshl_b32 s{sT0}, s{sT0}, 5")
    g(f"s_add_u32 s{sT0}, s{sT0}, s{sB}")
    g(f"s_mul_i32 s{sST}, s{sT0}, 43008")
    g(f"s_mul_i32 s{sT0}, s{sJ}, 3072")
    g(f"s_add_u32 s{sST}, s{sST}, s{sT0}")
    g(f"s_mov_b32 s{sC}, 0x{struct.unpack('<I', struct.pack('<f', 1.4426950408889634/16.0))[0]:08x}")
    g(f"s_lshr_b32 s{sT0}, s{sWI}, 6")
    g(f"s_lshl_b32 s{sT1}, s{sHG}, 1")
    g(f"s_add_u32 s{sT0}, s{sT0}, s{sT1}")
    g(f"s_mul_i32 s{sTWO}, s{sT0}, 458752")
    g(f"s_and_b32 s{sT0}, s{sWI}, 63")
    g(f"s_mul_i32 s{sT0}, s{sT0}, 3584")
    g(f"s_add_u32 s{sTWO}, s{sTWO}, s{sT0}")
    g(f"s_mul_i32 s{sT0}, s{sBSEL}, 24576")
    g(f"s_add_u32 s{sT0}, s{sT0}, {VB}")
    g(f"v_xor_b32 v{t3}, v{t1}, v{t0}")
    g(f"v_lshlrev_b32 v{t3}, 4, v{t3}")
    g(f"v_lshl_add_u32 v{t3}, v{t0}, 8, v{t3}")
    g(f"v_add_u32 v{vVR}, s{sT0}, v{t3}")
    for s4 in range(1, 4):
        g(f"v_xor_b32 v{vVR+s4}, {64*s4}, v{vVR}")
    g(f"s_lshl_b32 s{sT0}, s{sW}, 2")
    g(f"v_add_u32 v{t3}, s{sT0}, v{t1}")
    g(f"v_xor_b32 v{t3}, v{t3}, v{t0}")
    g(f"v_lshlrev_b32 v{t3}, 4, v{t3}")
    g(f"v_lshl_add_u32 v{t3}, v{t1}, 9, v{t3}")
    g(f"s_lshl_b32 s{sT0}, s{sW}, 11")
    g(f"v_add_u32 v{vVD}, s{sT0}, v{t3}")
    g(f"v_lshl_add_u32 v{t3}, v{u0}, 7, v{u2}")
    g(f"v_bfe_u32 v{t2}, v{L}, 3, 2")
    g(f"s_lshl_b32 s{sT0}, s{sJ}, 1")
    for T in range(2):
        g(f"s_add_u32 s{sT3}, s{sT0}, {T}")
        g(f"v_xor_b32 v{t4}, s{sT3}, v{t2}")
        g(f"v_lshl_add_u32 v{vWOR+T}, v{t4}, 5, v{t3}")
        g(f"v_add_u32 v{vWOR+2+T}, 0x10000, v{vWOR+T}")
    g(f"v_lshrrev_b32 v{t3}, 5, v{L}")
    g(f"v_lshl_add_u32 v{t2}, v{t3}, 3, v{t2}")
    g(f"v_mul_u32_u24 v{t2}, 896, v{t2}")
    g(f"v_lshlrev_b32 v{t3}, 1, v{t1}")
    g(f"v_and_b32 v{t4}, 7, v{L}")
    g(f"v_xor_b32 v{t3}, v{t3}, v{t4}")
    g(f"v_lshl_add_u32 v{t2}, v{t3}, 4, v{t2}")
    g(f"s_mul_i32 s{sT0}, s{sW}, 57344")
    g(f"v_add_u32 v{vWOD}, s{sT0}, v{t2}")
    for k in range(1, 4):
        g(f"v_add_u32 v{vWOD+k}, {(16*(k&1) + 4*(k>>1))*896 - k*1024}, v{vWOD}")
    g(f"s_mul_i32 s{sT0}, s{sBSEL}, 4608")
    g(f"s_add_u32 s{sT0}, s{sT0}, {PB}")
    g(f"v_add_u32 v{vPW}, s{sT0}, v{vSTO}")
    g(f"s_add_u32 s{sT0}, s{sT0}, 1024")
    g(f"v_lshl_add_u32 v{vPW2}, v{L}, 3, s{sT0}")
    if OPT['early2']:
        emit_list(ring_dma(2))
    stamp()
    g.wait_tag("R0")
    g.barrier()
    stamp()
    emit_list(x_reads(0))
    if not OPT['early1']:
        fq.add(x_dma(1, "R1") + ring_dma(1))
    if not OPT['early2']:
        fq.add(ring_dma(2))
    x_issue = {1: (2, "R3"), 2: (3, "R4"), 4: (4, "R6"), 5: (5, "R7"), 7: (6, "R9")}
    x_read = {1: 1, 3: 2, 4: 3, 6: 4, 7: 5, 9: 6}
    k_issue = {OPT[f'k{u}']: u for u in range(3)}
    k_read = {OPT[f'k{u}'] + OPT['kw']: u for u in range(3)}
    assert max(k_read) <= 13
    for u in range(2): assert OPT[f'k{u+1}'] > OPT[f'k{u}'] + OPT['kw']
    if 0 in k_issue: fq.add(k_dma(k_issue[0], f"R{OPT['kw']}"))
    def after1(R):
        out = []
        if R in x_read: out += x_reads(x_read[R])
        if R in k_read: out += k_reads(k_read[R])
        out += ring_dma(R + 2)
        if R in x_issue: out += x_dma(*x_issue[R])
        if R in k_issue: out += k_dma(k_issue[R], f"R{R+OPT['kw']}")
        if R == OPT['t_wo0']: out += touch(vT32, S_WO, sTWO, 0)
        if R == 14: out += v_dma(0, range(12))
        if R == OPT['t_wo1']: out += touch(vT32, S_WO, sTWO, 229376)
        return out
    run_stages(q_groups(), after1, lambda R: f"R{R}" if R < 14 else "none", tail_barrier=True)
    stamp()
    def s_mf(t):
        return [f"v_mfma_f32_16x16x32_bf16 {vr(SACC+(t*3+u)*4)}, {ar(aK+(u*8+s)*4)}, {vr(QFRAG(s,t))}, {vr(SACC+(t*3+u)*4) if s else 0}"
                for s in range(8) for u in range(3)]
    fq.drain()
    for ins in cvt_pairs(QACC, range(8), 0): g(ins)
    interleave(s_mf(0), cvt_pairs(QACC, range(8), 1))
    interleave(s_mf(1), cvt_pairs(QACC, range(8), 2))
    sm0 = softmax_ops(0)
    interleave(s_mf(2), sm0[:40])
    for ins in merge(sm0[40:], softmax_ops(1), softmax_ops(2)): g(ins)
    stamp()
    p_write(0, "L_pw0")
    g.wait_tag(["V0", "R14"], lg=0)
    g.barrier()
    stamp()
    for u in range(3): emit_list([v_read(u, 0)])
    for s in range(1, 8):
        fq.add([v_read(u, s) for u in range(3)])
    fq.add(p_reads(0))
    def after2(R):
        out = []
        if R == OPT['p1'] + 1: out += p_reads(1)
        out += ring_dma(R + 2)
        if R == OPT['v1']: out += v_dma(1, range(12))
        if R == OPT['t_wo1']: out += touch(vT32, S_WO, sTWO, 229376)
        if R == OPT['p1']: out.append(lambda: p_write(1, "L_pw1"))
        return out
    def wt(R):
        return [f"R{R}", "V1"] if R == 20 else f"R{R}"
    run_stages(o_groups(), after2, wt, tail_barrier=False)
    fq.drain()
    stamp()
    emit_list(vw_cvt(27))
    fa, fb = final_groups(27, 27)
    for m in fa['mfmas'] + fb['mfmas']: g(m)
    emit_list(epilogue_ops(6))
    stamp()
    if OPT['stamps']:
        g.wait_all()
        stamp()
        stamp()
    finish_stamps()

def reduce_kernel():
    global g
    lines = g.lines
    g = Gen(); g.lines = lines
    kernel_open(RED)
    g("s_cmp_ge_u32 s2, 448")
    g("s_cbranch_scc1 L_red_end")
    g("s_load_dwordx2 s[4:5], s[0:1], 80")
    g("s_load_dwordx2 s[6:7], s[0:1], 96")
    g("s_mov_b32 s16, 0x24924925")
    g("s_mul_hi_u32 s17, s2, s16")
    g("s_mul_i32 s18, s17, 7")
    g("s_sub_u32 s18, s2, s18")
    g("s_mul_i32 s19, s17, 43008")
    g("s_mul_i32 s20, s18, 6144")
    g("s_add_u32 s19, s19, s20")
    g("v_lshlrev_b32 v1, 4, v0")
    g("v_lshrrev_b32 v2, 6, v0")
    g("v_and_b32 v3, 63, v0")
    g("v_readfirstlane_b32 s21, v2")
    g("s_cmp_ge_u32 s21, 3")
    g("s_cselect_b32 s22, 1, 0")
    g("s_mul_i32 s23, s22, 3")
    g("s_sub_u32 s23, s21, s23")
    g("s_and_b32 s24, s17, 31")
    g("s_lshr_b32 s25, s17, 5")
    g("s_mul_i32 s24, s24, 48")
    g("s_lshl_b32 s23, s23, 4")
    g("s_add_u32 s24, s24, s23")
    g("s_mul_i32 s24, s24, 1792")
    g("s_mul_i32 s25, s25, 896")
    g("s_add_u32 s24, s24, s25")
    g("s_lshl_b32 s26, s18, 7")
    g("s_add_u32 s24, s24, s26")
    g("s_lshl_b32 s26, s22, 6")
    g("s_add_u32 s24, s24, s26")
    g("v_and_b32 v4, 15, v3")
    g("v_mul_u32_u24 v4, 1792, v4")
    g("v_lshrrev_b32 v5, 4, v3")
    g("v_lshl_add_u32 v4, v5, 4, v4")
    g.smem_wait()
    srd(8, 6, 7, 22020096)
    srd(12, 4, 5, 2752512)
    for p in range(8):
        if p:
            g(f"s_add_u32 s19, s19, {64*43008}")
        g(f"buffer_load_dwordx4 {vr(8+4*p)}, v1, s[8:11], s19 offen")
    for p in range(8):
        for k in range(4):
            src = 8 + 4 * p + k
            if p == 0:
                g(f"v_lshlrev_b32 v{40+2*k}, 16, v{src}")
                g(f"v_and_b32 v{41+2*k}, 0xffff0000, v{src}")
            else:
                g(f"v_lshlrev_b32 v{48+2*k}, 16, v{src}")
                g(f"v_and_b32 v{49+2*k}, 0xffff0000, v{src}")
        if p:
            for k in range(8):
                g(f"v_add_f32 v{40+k}, v{40+k}, v{48+k}")
    for k in range(4):
        g(f"v_cvt_pk_bf16_f32 v{56+k}, v{40+2*k}, v{41+2*k}")
    g("v_permlane32_swap_b32 v56, v58")
    g("v_permlane32_swap_b32 v57, v59")
    g("v_permlane16_swap_b32 v56, v58")
    g("v_permlane16_swap_b32 v57, v59")
    g("buffer_store_dwordx4 v[56:59], v4, s[12:15], s24 offen")
    g.raw("L_red_end:")
    g("s_endpgm")

def descriptors():
    g.raw('.section .rodata,"a"')
    for name, nv, acc in ((MAIN, 512, 256), (RED, 64, 64)):
        g.raw(".p2align 6")
        g.raw(f".amdhsa_kernel {name}")
        g.raw(f"  .amdhsa_next_free_vgpr {nv}")
        g.raw("  .amdhsa_next_free_sgpr 102")
        g.raw(f"  .amdhsa_accum_offset {acc}")
        g.raw("  .amdhsa_group_segment_fixed_size 0")
        g.raw("  .amdhsa_kernarg_size 104")
        g.raw("  .amdhsa_user_sgpr_count 2")
        g.raw("  .amdhsa_user_sgpr_kernarg_segment_ptr 1")
        g.raw("  .amdhsa_system_sgpr_workgroup_id_x 1")
        g.raw("  .amdhsa_float_denorm_mode_32 3")
        g.raw(".end_amdhsa_kernel")

header()
main_kernel()
st = dict(g.stats)
reduce_kernel()
descriptors()
open(sys.argv[1], "w").write(g.text())
print("main stats", st, "forced", fq.forced)
```

```python
import sys, struct, json
from asmgen import Gen, classify

NAME = "concat_heads__mha_block_cached__gqa_block_cached__near_ridge"
MAIN = NAME + "_kernel"
RED = "reduce_partials_kernel"

OPT = dict(bar_group=10, D=7, stamps=0, code_pf=1, touch=1, ntk=1, ntv=1, nttw=0, nttx=0,
           k0=1, k1=5, k2=9, kw=3, t_wo0=9, t_wo1=14, v1=15, v1b=18, p1=17, t_a=-1, t_b=1, v0a=14, nc=1, kstep=1, vstep=1, ntfirst=1, pace=1, diag=0, nok=0, nov=0, now=0, nost=0, nox=0, dbg=0)
for a in sys.argv[2:]:
    k, v = a.split('=')
    assert k in OPT, k
    OPT[k] = int(v)
def NT(k): return ' nt' if OPT[k] else ''

SLOT = 32768
VB = 3 * SLOT
XU = 12288
KA = VB + 65536 - 4 * 8320
PB = VB + 49152
LDS_BYTES = 163840
BIG = 0x7ffff000

S_X, S_K, S_V, S_WQ, S_WO, S_WS = 8, 12, 16, 20, 24, 28
sW, sBSEL, sJ, sBR, sH0, sB0, sB = 32, 33, 34, 35, 36, 37, 38
sWQB = 39
sXB, sXM, sKB, sKM, sXO, sKO, sWQO, sWOO, sWOO2, sVO = 40, 41, 42, 43, 44, 45, 46, 47, 48, 49
sM, sVM, sST, sC = 50, 51, 52, 53
sT0, sT1, sT2, sT3 = 54, 55, 56, 57
sVBASE, sWOBASE = 58, 59
sPC = 60
sTWQ = 63
sHG, sHP, sWI, sTWO, sCLS = 88, 89, 90, 91, 94
STB = 64

def QACC(T, t): return (((T // 2) * 3 + t) * 4) + (96 if T & 1 else 0)
def QFRAG(s, t): return (s * 3 + t) * 4
SACC = 192
vWQR = 192
vWQD = 208
vXR = 216
vXD = 218
vKR = 219
vKD = 223
vTWQ = 224
vTXA = 225
vTXB = 226
vT16 = 227
vWOD = 228
vVD = 232
vVR = 233
vWOR = 237
vSTO = 241
vPW = 242
vPW2 = 243
vT32 = 244
vDUM = 245
vSM = 246
def VFRAG(u, s): return (u * 8 + s) * 4
vPOWN = 96
vP = [114, 132]
vVWB = 150
vEP = 96
def VWACC(par, T, u): return 180 + par * 24 + (T * 3 + u) * 4
aFR, aK, aX, XRING, aOUT = 0, 32, 128, 10, 32
def OUTACC(c, T, t): return aOUT + ((c * 2 + T) * 3 + t) * 4

def vr(b, n=4): return f"v[{b}:{b+n-1}]"
def ar(b, n=4): return f"a[{b}:{b+n-1}]"
def sr(b, n=4): return f"s[{b}:{b+n-1}]"

g = Gen()
nstamp = 0
vSTAMP = 255
pending = False
names = []
def stamp_flush():
    global pending
    if pending:
        g(f"v_writelane_b32 v{vSTAMP}, s92, {nstamp-1}")
        pending = False
def stamp(name="", real=False, drained=False):
    global nstamp, pending
    if OPT['stamps']:
        if pending:
            if not drained: g.smem_wait()
            stamp_flush()
        g(f"{'s_memrealtime' if real else 's_memtime'} s[92:93]")
        names.append(name); nstamp += 1; pending = True

def header():
    g.raw("; fused attention block: launch 1 computes per-head-pair partial outputs, launch 2 sums them")
    g.raw(f"; @launch kernel={MAIN} grid=(256,1,1) block=(256,1,1) lds={LDS_BYTES}")
    g.raw(f"; @launch kernel={RED} grid=(448,1,1) block=(384,1,1) lds=0")
    g.raw('.amdgcn_target "amdgcn-amd-amdhsa--gfx950"')
    g.raw(".text")

def kernel_open(name):
    g.raw(f".globl {name}")
    g.raw(".p2align 8")
    g.raw(f".type {name},@function")
    g.raw(f"{name}:")

def srd(dst, lo, hi, nbytes):
    g(f"s_mov_b32 s{dst}, s{lo}")
    g(f"s_and_b32 s{dst+1}, s{hi}, 0xffff")
    g(f"s_mov_b32 s{dst+2}, {nbytes}")
    g(f"s_mov_b32 s{dst+3}, 0x20000")

def wq_dma(R):
    slot = (R % 3) * SLOT
    out = [(f"s_add_u32 s{sWQO}, s{sWQB}, {R*262144}", None)]
    for i in range(8):
        if i % 4 == 0:
            out.append((f"s_add_u32 m0, s{sM}, {slot + (i//4)*4096}", None))
        out.append((f"buffer_load_dwordx4 v{vWQD+i}, {sr(S_WQ)}, s{sWQO} offen offset:{(i%4)*1024} lds", f"R{R}"))
    return out

def wo_dma(R):
    hh, c = divmod(R - 14, 7)
    slot = (R % 3) * SLOT
    out = [(f"s_add_u32 s{sWOO}, s{sWOBASE}, {hh*229376 + c*128}", None),
           (f"s_add_u32 s{sWOO2}, s{sWOBASE}, {hh*229376 + c*128 + 28672}", None)]
    for i in range(8):
        if i % 4 == 0:
            out.append((f"s_add_u32 m0, s{sM}, {slot + (i//4)*4096}", None))
        so = sWOO if i < 4 else sWOO2
        out.append((f"buffer_load_dwordx4 v{vWOD+(i%4)}, {sr(S_WO)}, s{so} offen offset:{(i%4)*1024} lds", f"R{R}"))
    return out

def ring_dma(R):
    if OPT['now'] and R > 2: return []
    if R < 14: return wq_dma(R)
    if R < 28: return wo_dma(R)
    return []

def x_dma(p, tag):
    out = []
    if OPT['nox'] and p > 1: return out
    for k in range(3):
        out.append((f"s_add_u32 s{sXO}, s{sXB}, {p*128 + k*28672}", None))
        out.append((f"s_add_u32 m0, s{sXM}, {(p % 2)*XU + k*4096}", None))
        out.append((f"buffer_load_dwordx4 v{vXD}, {sr(S_X)}, s{sXO} offen{NT('ntfirst') if p < 2 else ''} lds", tag))
    return out

def x_reads(p):
    out = []
    for s2 in range(2):
        s = 2 * p + s2
        for t in range(3):
            d = aX + (s % XRING) * 12 + t * 4
            out.append((f"ds_read_b128 {ar(d)}, v{vXR+s2} offset:{(p % 2)*XU + t*2048}", None))
    return out

def k_dma(u, tag):
    out = []
    if OPT['nok']: return out
    for dh in range(2):
        out.append((f"s_add_u32 m0, s{sKM}, {dh*4160}", None))
        for j in range(4):
            out.append((f"s_add_u32 s{sKO}, s{sKB}, {u*8192 + dh*256 + j*(2048-1040)}", None))
            out.append((f"buffer_load_dwordx4 v{vKD}, {sr(S_K)}, s{sKO} offen offset:{j*1040}{NT('ntk')} lds", tag))
    return out

def k_reads(u):
    out = []
    for dh in range(2):
        for s4 in range(4):
            for p in range(2):
                d = aK + (u * 8 + dh * 4 + s4) * 4 + 2 * p
                out.append((f"ds_read_b64 {ar(d,2)}, v{vKR+s4} offset:{dh*4160 + 32*p}", None))
    return out

def v_dma(hh, subs):
    out = []
    if OPT['nov']: return out
    for sub in subs:
        bb, r = divmod(sub, 6); u, dh = divmod(r, 2)
        out.append((f"s_add_u32 s{sVO}, s{sVBASE}, {hh*24576 + bb*393216 + u*8192 + dh*256}", None))
        out.append((f"s_add_u32 m0, s{sVM}, {sub*4096}", None))
        out.append((f"buffer_load_dwordx4 v{vVD}, {sr(S_V)}, s{sVO} offen{NT('ntv')} lds", f"V{hh}"))
    return out

def v_read(u, s):
    dh, s4 = divmod(s, 4)
    return (f"ds_read_b128 {vr(VFRAG(u,s))}, v{vVR+s4} offset:{(u*2+dh)*4096}", None)

def touch(vaddr, srd_, sbase, add):
    key = {S_WQ: 'nttw', S_WO: 'nttw', S_X: 'nttx'}[srd_]
    if not OPT['touch']: return []
    return [(f"s_add_u32 s{sT1}, s{sbase}, {add}", None),
            (f"buffer_load_dword v{vDUM}, v{vaddr}, {sr(srd_)}, s{sT1} offen{NT(key)}", None, True)]

class FillQ:
    def __init__(self): self.q = []
    def add(self, items): self.q.extend(items)
    def pop(self):
        it = self.q.pop(0)
        if callable(it): it()
        else: g(it[0], tag=it[1], nodst=(len(it) > 2))
    def __len__(self): return len(self.q)
    def is_vm(self, it):
        return (not callable(it)) and it[0].startswith(('buffer_', 'global_'))
    def nvm(self): return sum(1 for it in self.q if self.is_vm(it))
    def drain(self):
        while self.q: self.pop()
    def guard(self, text):
        _, _, _, _, rd, wr = classify(text)
        rd = {r for r in rd if r[0] != 's'}; wr = {r for r in wr if r[0] != 's'}
        last = -1
        for i, it in enumerate(self.q):
            if callable(it): continue
            _, _, _, _, frd, fwr = classify(it[0])
            if len(it) > 2: fwr = []
            if (set(fwr) & (rd | wr)) or (set(frd) & wr): last = i
        if last >= 0: self.forced += last + 1
        for _ in range(last + 1): self.pop()
    forced = 0
fq = FillQ()
def emit_list(l):
    for it in l: g(it[0], tag=it[1], nodst=(len(it) > 2))

def run_stages(groups, after_barrier, wait_tags, tail_barrier=None, ring=8, nreg=4):
    D = min(OPT['D'], ring - 1)
    open_stage = groups[0]['stage']
    pend = []
    fr = 0
    for n, gr in enumerate(groups):
        gr['fr'] = fr
        if gr['reads']:
            d = aFR + (fr % ring) * nreg
            for k, rt in enumerate(gr['reads']):
                pend.append((fr, gr['stage'], rt.format(d=ar(d + 2 * k, 2))))
            fr += 1
    rp = 0
    def can_read(f_cur):
        if rp >= len(pend): return False
        f, st, _ = pend[rp]
        return st <= open_stage and f <= f_cur + D
    while rp < len(pend) and pend[rp][0] < D and pend[rp][1] <= open_stage:
        g(pend[rp][2]); rp += 1
    last_stage = groups[-1]['stage']
    left = [0] * len(groups)
    acc = 0
    for n in range(len(groups) - 1, -1, -1):
        if groups[n].get('idx') == OPT['bar_group']: acc = 0
        acc += len(groups[n]['mfmas'])
        left[n] = acc
    since_vm = 1000
    for n, gr in enumerate(groups):
        f = gr['fr']
        d = aFR + (f % ring) * nreg
        if gr['reads']:
            while rp < len(pend) and pend[rp][0] <= f:
                assert pend[rp][1] <= open_stage
                g(pend[rp][2]); rp += 1
        fcur = f if gr['reads'] else f - 1
        R = gr['stage']
        for it in gr.get('pre', []): fq.q.insert(0, it) if False else None
        if gr.get('front'):
            fq.q[0:0] = gr['front']
        for k, mt in enumerate(gr['mfmas']):
            fq.guard(mt.format(a=ar(d)))
            g(mt.format(a=ar(d)))
            budget = 2
            since_vm += 1
            rem = left[n] - k - 1
            while budget:
                if can_read(fcur):
                    g(pend[rp][2]); rp += 1; budget -= 1
                elif len(fq):
                    j = None
                    if fq.is_vm(fq.q[0]) and OPT['pace']:
                        gap = max(1, (rem - 2) // max(1, fq.nvm()))
                        if since_vm >= min(gap, OPT['pace'] * 6): j = 0
                        else:
                            for i, it in enumerate(fq.q):
                                if callable(it): break
                                if fq.is_vm(it) or it[0].startswith('s_'): continue
                                _, _, _, _, rd_, wr_ = classify(it[0])
                                clash = False
                                for e in fq.q[:i]:
                                    _, _, _, _, erd, ewr = classify(e[0])
                                    if (set(erd) | set(ewr)) & set(wr_) or set(ewr) & set(rd_): clash = True
                                if not clash: j = i
                                break
                    else:
                        j = 0
                    if j is None: break
                    if j == 0:
                        if fq.is_vm(fq.q[0]): since_vm = 0
                        fq.pop()
                    else:
                        it = fq.q.pop(j); g(it[0], tag=it[1], nodst=(len(it) > 2))
                    budget -= 1
                else:
                    break
        for it in gr.get('post', []):
            fq.add([it])
        if gr.get('idx') == OPT['bar_group'] and (R < last_stage or tail_barrier):
            while rp < len(pend) and pend[rp][1] <= R:
                g(pend[rp][2]); rp += 1
            fq.drain()
            g.wait_tag(wait_tags(R + 1), lg=0)
            if OPT['stamps'] > 1: g.smem_wait()
            g.barrier()
            if OPT['stamps'] > 1: stamp(f"b{R+1}", drained=True)
            open_stage = R + 1
            fq.add(after_barrier(R + 1))

def interleave(mf, fill, per=2):
    fill = list(fill)
    for m in mf:
        g(m)
        for _ in range(per):
            if fill: g(fill.pop(0))
            elif len(fq): fq.pop()
    for f in fill: g(f)

def softmax_ops(t):
    S = [SACC + 12 * t + k for k in range(12)]
    m, x = vSM + 2 * t, vSM + 2 * t + 1
    o = []
    o.append(f"v_max3_f32 v{m}, v{S[0]}, v{S[1]}, v{S[2]}")
    o.append(f"v_max3_f32 v{x}, v{S[3]}, v{S[4]}, v{S[5]}")
    o.append(f"v_max3_f32 v{m}, v{m}, v{S[6]}, v{S[7]}")
    o.append(f"v_max3_f32 v{x}, v{x}, v{S[8]}, v{S[9]}")
    o.append(f"v_max3_f32 v{m}, v{m}, v{S[10]}, v{S[11]}")
    o.append(f"v_max_f32 v{m}, v{m}, v{x}")
    for sw in ("v_permlane32_swap_b32", "v_permlane16_swap_b32"):
        o.append(f"v_mov_b32 v{x}, v{m}")
        o.append(f"{sw} v{m}, v{x}")
        o.append(f"v_max_f32 v{m}, v{m}, v{x}")
    o.append(f"v_mul_f32 v{m}, s{sC}, v{m}")
    for k in range(12):
        o.append(f"v_fma_f32 v{S[k]}, v{S[k]}, s{sC}, -v{m}")
    for k in range(12):
        o.append(f"v_exp_f32 v{S[k]}, v{S[k]}")
    o.append(f"v_add_f32 v{m}, v{S[0]}, v{S[1]}")
    o.append(f"v_add_f32 v{x}, v{S[2]}, v{S[3]}")
    for k in range(4, 12, 2):
        o.append(f"v_add_f32 v{m}, v{m}, v{S[k]}")
        o.append(f"v_add_f32 v{x}, v{x}, v{S[k+1]}")
    o.append(f"v_add_f32 v{m}, v{m}, v{x}")
    for sw in ("v_permlane32_swap_b32", "v_permlane16_swap_b32"):
        o.append(f"v_mov_b32 v{x}, v{m}")
        o.append(f"{sw} v{m}, v{x}")
        o.append(f"v_add_f32 v{m}, v{m}, v{x}")
    o.append(f"v_rcp_f32 v{m}, v{m}")
    for k in range(12):
        o.append(f"v_mul_f32 v{S[k]}, v{S[k]}, v{m}")
    for k in range(6):
        o.append(f"v_cvt_pk_bf16_f32 v{vPOWN + 6*t + k}, v{S[2*k]}, v{S[2*k+1]}")
    return o

def merge(*lists):
    out = []
    n = max(len(l) for l in lists)
    for i in range(n):
        for l in lists:
            if i < len(l): out.append(l[i])
    return out

def cvt_pairs(acc, s_list, t):
    o = []
    for s in s_list:
        b, b2 = acc(2 * s, t), acc(2 * s + 1, t)
        o.append(f"v_cvt_pk_bf16_f32 v{b}, v{b}, v{b+1}")
        o.append(f"v_cvt_pk_bf16_f32 v{b+1}, v{b+2}, v{b+3}")
        o.append(f"v_cvt_pk_bf16_f32 v{b+2}, v{b2}, v{b2+1}")
        o.append(f"v_cvt_pk_bf16_f32 v{b+3}, v{b2+2}, v{b2+3}")
    return o

def p_write(which, lbl):
    g.wait_all(vm=False, lg=True)
    g(f"s_cmp_lg_u32 s{sJ}, {which}")
    g(f"s_cbranch_scc1 {lbl}")
    n0 = g.n
    for t in range(3):
        g(f"ds_write_b128 v{vPW}, {vr(vPOWN+6*t)} offset:{t*1536}")
        g(f"ds_write_b64 v{vPW2}, {vr(vPOWN+6*t+4,2)} offset:{t*1536}")
    g.wait_all(vm=False, lg=True)
    g.raw(f"{lbl}:")
    g.n = n0

def p_reads(hh):
    o = []
    for t in range(3):
        o.append((f"ds_read_b128 {vr(vP[hh]+6*t)}, v{vPW} offset:{t*1536}", None))
        o.append((f"ds_read_b64 {vr(vP[hh]+6*t+4,2)}, v{vPW2} offset:{t*1536}", None))
    return o

def q_groups():
    gs = []
    for s in range(14):
        slot = s % 3
        win, base = (1, 0) if slot == 2 else (0, slot * SLOT)
        for T in range(16):
            reads = [f"ds_read_b64_tr_b16 {{d}}, v{vWQR + win*8 + (T & 7)} offset:{base + rd*16384 + (T>>3)*256}" for rd in range(2)]
            mf = []
            for t in range(3):
                acc = vr(QACC(T, t))
                xb = ar(aX + (s % XRING) * 12 + t * 4)
                mf.append(f"v_mfma_f32_16x16x32_bf16 {acc}, {{a}}, {xb}, {acc if s else 0}")
            gs.append(dict(stage=s, reads=reads, mfmas=mf, idx=T))
    return gs

def vw_cvt(R):
    par = R % 2
    o = []
    for T in range(2):
        for u in range(3):
            b = VWACC(par, T, u)
            o.append((f"v_cvt_pk_bf16_f32 v{vVWB+6*T+2*u}, v{b}, v{b+1}", None))
            o.append((f"v_cvt_pk_bf16_f32 v{vVWB+6*T+2*u+1}, v{b+2}, v{b+3}", None))
    return o

def final_groups(R, stage):
    hh, c = divmod(R - 14, 7)
    a, b = [], []
    for T in range(2):
        for t in range(3):
            acc = ar(OUTACC(c, T, t))
            a.append(f"v_mfma_f32_16x16x32_bf16 {acc}, {vr(vVWB+6*T)}, {vr(vP[hh]+6*t)}, {acc if hh else 0}")
            b.append(f"v_mfma_f32_16x16x16_bf16 {acc}, {vr(vVWB+6*T+4,2)}, {vr(vP[hh]+6*t+4,2)}, {acc}")
    return dict(stage=stage, reads=[], mfmas=a), dict(stage=stage, reads=[], mfmas=b)

def epilogue_ops(c):
    o = [(f"s_add_u32 s{sT0}, s{sST}, {c*6144}", None)]
    for t in range(3):
        tb = vEP + t * 8
        for T in range(2):
            for r in range(4):
                o.append((f"v_accvgpr_read_b32 v{tb + T*4 + r}, a{OUTACC(c,T,t)+r}", None))
        for k in range(4):
            o.append((f"v_cvt_pk_bf16_f32 v{tb+k}, v{tb+2*k}, v{tb+2*k+1}", None))
        if not OPT['nost']: o.append((f"buffer_store_dwordx4 {vr(tb)}, v{vSTO}, {sr(S_WS)}, s{sT0} offen offset:{t*1024}", None))
    return o

def o_groups():
    gs = []
    for R in range(14, 28):
        hh, c = divmod(R - 14, 7)
        slot = R % 3
        win, base = (1, 0) if slot == 2 else (0, slot * SLOT)
        for s in range(8):
            for T in range(2):
                idx = 2 * s + T
                reads = [f"ds_read_b64_tr_b16 {{d}}, v{vWOR + win*2 + T} offset:{base + s*4096 + rd*2048}" for rd in range(2)]
                mf = []
                for u in range(3):
                    acc = vr(VWACC(R % 2, T, u))
                    mf.append(f"v_mfma_f32_16x16x32_bf16 {acc}, {vr(VFRAG(u,s))}, {{a}}, {acc if s else 0}")
                gr = dict(stage=R, reads=reads, mfmas=mf, idx=idx)
                if R > 14 and idx == 2: gr['front'] = vw_cvt(R - 1)
                if R == 20 and T == 1:
                    gr['post'] = [v_read(u, s) for u in range(3)]
                gs.append(gr)
                if R > 14 and idx == 5: gs.append(final_groups(R - 1, R)[0])
                if R > 14 and idx == 7:
                    gb = final_groups(R - 1, R)[1]
                    gs.append(gb)
                if R > 21 and idx == 11: gs[-1]['post'] = epilogue_ops(R - 22)
    return gs

def finish_stamps(cls):
    if OPT['stamps']:
        stamp("real_end", real=True)
        g.smem_wait(); stamp_flush()
        g(f"v_writelane_b32 v{vSTAMP}, s98, 62")
        g(f"v_writelane_b32 v{vSTAMP}, s96, 63")
        g(f"s_lshl_b32 s{sT0}, s2, 2")
        g(f"s_add_u32 s{sT0}, s{sT0}, s{sW}")
        g(f"s_lshl_b32 s{sT0}, s{sT0}, 8")
        g(f"s_add_u32 s{sT0}, s{sT0}, {24<<20}")
        g(f"s_mov_b32 s{S_WS+2}, 0x10000000")
        g(f"v_lshrrev_b32 v1, 2, v{vSTO}")
        g(f"buffer_store_dword v{vSTAMP}, v1, {sr(S_WS)}, s{sT0} offen")
        json.dump(names, open(sys.argv[1] + ".names", "w"))
    g("s_endpgm")

def main_kernel():
    kernel_open(MAIN)
    g(f"s_cmp_ge_u32 s2, 256")
    g(f"s_cbranch_scc1 L_main_end")
    if OPT['stamps']:
        g("s_memrealtime s[96:97]")
        g("s_memtime s[98:99]")
    g("s_load_dwordx8 s[64:71], s[0:1], 0")
    g("s_load_dwordx2 s[72:73], s[0:1], 32")
    g("s_load_dwordx8 s[76:83], s[0:1], 40")
    g("s_load_dwordx2 s[84:85], s[0:1], 72")
    g("s_load_dwordx2 s[86:87], s[0:1], 96")
    g(f"s_getpc_b64 s[{sPC}:{sPC+1}]")
    g.raw("L_pc:")
    L = 1
    t0, t1, t2, t3, t4, t5 = 2, 3, 4, 5, 6, 7
    g(f"v_lshrrev_b32 v{t0}, 6, v0")
    g(f"v_and_b32 v{L}, 63, v0")
    g(f"v_readfirstlane_b32 s{sW}, v{t0}")
    g(f"s_and_b32 s{sT0}, s2, 7")
    g(f"s_lshr_b32 s{sT1}, s2, 3")
    g(f"s_lshr_b32 s{sBR}, s{sT0}, 2")
    g(f"s_and_b32 s{sHG}, s{sT0}, 3")
    g(f"s_lshl_b32 s{sT0}, s{sHG}, 2")
    g(f"s_and_b32 s{sHP}, s{sT1}, 1")
    g(f"s_lshl_b32 s{sT2}, s{sHP}, 1")
    g(f"s_add_u32 s{sH0}, s{sT0}, s{sT2}")
    g(f"s_lshr_b32 s{sB0}, s{sT1}, 1")
    if OPT['nc'] == 3:
        g(f"s_mul_i32 s{sCLS}, s{sB0}, 11")
        g(f"s_lshr_b32 s{sCLS}, s{sCLS}, 5")
        g(f"s_mul_i32 s{sCLS}, s{sCLS}, 3")
        g(f"s_sub_u32 s{sCLS}, s{sB0}, s{sCLS}")
    else:
        g(f"s_and_b32 s{sCLS}, s{sB0}, {OPT['nc']-1}")
    g(f"s_lshl_b32 s{sB0}, s{sB0}, 1")
    g(f"s_lshl_b32 s{sWI}, s{sT1}, 2")
    g(f"s_add_u32 s{sWI}, s{sWI}, s{sW}")
    g(f"s_and_b32 s{sBSEL}, s{sW}, 1")
    g(f"s_lshr_b32 s{sJ}, s{sW}, 1")
    g(f"s_add_u32 s{sB}, s{sB0}, s{sBSEL}")
    g(f"s_lshl_b32 s{sM}, s{sW}, 13")
    g(f"s_lshl_b32 s{sVM}, s{sW}, 10")
    g(f"s_add_u32 s{sVM}, s{sVM}, {VB}")
    g(f"s_mov_b32 s{sXM}, s{sVM}")
    g(f"s_lshl_b32 s{sWQB}, s{sH0}, 9")
    g(f"s_mul_i32 s{sXB}, s{sB0}, 43008")
    g(f"s_lshl_b32 s{sT0}, s{sBSEL}, 4")
    g(f"s_lshl_b32 s{sT1}, s{sJ}, 2")
    g(f"s_add_u32 s{sT0}, s{sT0}, s{sT1}")
    g(f"s_lshl_b32 s{sT0}, s{sT0}, 13")
    g(f"v_lshlrev_b32 v{vSTO}, 4, v{L}")
    g(f"v_add_u32 v{t1}, s{sT0}, v{vSTO}")
    for i in range(8):
        const = (8 * (i >> 2) + (i & 3)) * 8192 - (i & 3) * 1024
        g(f"v_xor_b32 v{t0}, {32*i}, v{t1}")
        g(f"v_add_u32 v{vWQD+i}, {const}, v{t0}")
    g(f"v_lshrrev_b32 v{t0}, 3, v{L}")
    g(f"v_mul_u32_u24 v{t0}, 896, v{t0}")
    g(f"v_lshrrev_b32 v{t1}, 4, v{L}")
    g(f"s_lshl_b32 s{sT0}, s{sBSEL}, 2")
    g(f"v_add_u32 v{t1}, s{sT0}, v{t1}")
    g(f"v_and_b32 v{t2}, 7, v{L}")
    g(f"v_xor_b32 v{t1}, v{t1}, v{t2}")
    g(f"v_lshl_add_u32 v{t0}, v{t1}, 4, v{t0}")
    g(f"s_mul_i32 s{sT0}, s{sW}, 7168")
    g(f"v_add_u32 v{vXD}, s{sT0}, v{t0}")
    g(f"v_and_b32 v{t0}, 15, v{L}")
    g(f"v_lshrrev_b32 v{t1}, 4, v{L}")
    g(f"v_mov_b32 v{t5}, {BIG}")
    g(f"v_lshlrev_b32 v{t2}, 7, v{t0}")
    g(f"v_cmp_gt_u32 vcc, 16, v{L}")
    g(f"s_lshl_b32 s{sTWQ}, s{sWI}, 13")
    g(f"s_lshl_b32 s{sT0}, s{sHG}, 11")
    g(f"v_cndmask_b32 v9, v{t5}, v{t2}, vcc")
    g(f"s_add_u32 s{sTWQ}, s{sTWQ}, s{sT0}")
    g(f"v_lshl_add_u32 v{t2}, v{t1}, 20, v{t2}")
    g(f"v_cmp_gt_u32 vcc, 32, v{L}")
    g(f"s_lshl_b32 s{sT0}, s{sHP}, 2")
    g(f"s_add_u32 s{sT0}, s{sT0}, s{sW}")
    g(f"v_cndmask_b32 v{vTWQ}, v{t5}, v{t2}, vcc")
    g(f"s_mul_i32 s{sT1}, s{sT0}, 24")
    g(f"s_mul_i32 s{sT2}, s{sT0}, 36")
    g(f"v_add_u32 v{t2}, s{sT1}, v{L}")
    g(f"v_lshrrev_b32 v{t3}, 1, v{t2}")
    g(f"v_mul_u32_u24 v{t3}, 896, v{t3}")
    g(f"v_and_b32 v{t2}, 1, v{t2}")
    g(f"v_lshl_add_u32 v{t2}, v{t2}, 7, v{t3}")
    g(f"v_cmp_gt_u32 vcc, 24, v{L}")
    g(f"v_add_u32 v{t3}, s{sT2}, v{L}")
    g(f"v_mul_u32_u24 v{t4}, 21846, v{t3}")
    g(f"v_cndmask_b32 v{vTXA}, v{t5}, v{t2}, vcc")
    g(f"v_lshrrev_b32 v{t4}, 16, v{t4}")
    g(f"v_mul_u32_u24 v{t2}, 3, v{t4}")
    g(f"v_sub_u32 v{t3}, v{t3}, v{t2}")
    g(f"v_mul_u32_u24 v{t4}, 896, v{t4}")
    g(f"v_lshl_add_u32 v{t3}, v{t3}, 7, v{t4}")
    g(f"v_cmp_gt_u32 vcc, 36, v{L}")
    g(f"s_nop 1")
    g(f"v_cndmask_b32 v{vTXB}, v{t5}, v{t3}, vcc")
    g.smem_wait()
    g(f"s_cmp_eq_u32 s{sBR}, 0")
    for k in (0, 3, 1, 2, 4):
        g(f"s_cselect_b64 s[{64+2*k}:{65+2*k}], s[{64+2*k}:{65+2*k}], s[{76+2*k}:{77+2*k}]")
    srd(S_X, 64, 65, 1376256)
    srd(S_WQ, 70, 71, 3670016)
    emit_list(touch(9, S_WQ, sTWQ, 0))
    if OPT['code_pf']:
        g(f"s_min_u32 s{sT0}, s{sWI}, (L_main_end-L_pc)/1024-1")
        g(f"s_lshl_b32 s{sT0}, s{sT0}, 10")
        g(f"v_add_u32 v{t2}, s{sT0}, v{vSTO}")
        g(f"global_load_dword v{vDUM}, v{t2}, s[{sPC}:{sPC+1}]", nodst=True)
    emit_list(x_dma(0, "R0"))
    emit_list(x_dma(1, "R0"))
    g(f"v_mov_b32 v{vT16}, v9")
    if OPT['t_a'] < 0:
        emit_list(touch(9, S_WQ, sTWQ, 128 * 8192) + touch(vTXA, S_X, sXB, 256))
    g(f"v_lshrrev_b32 v{t2}, 1, v{t0}")
    g(f"v_xor_b32 v{t2}, v{t2}, v{t1}")
    g(f"v_lshlrev_b32 v{t2}, 4, v{t2}")
    g(f"v_lshl_add_u32 v{t2}, v{t0}, 7, v{t2}")
    g(f"s_mul_i32 s{sT0}, s{sBSEL}, 6144")
    g(f"s_add_u32 s{sT0}, s{sT0}, {VB}")
    g(f"v_add_u32 v{vXR}, s{sT0}, v{t2}")
    g(f"v_xor_b32 v{vXR+1}, 64, v{vXR}")
    g(f"v_lshlrev_b32 v{t2}, 7, v{L}")
    g(f"v_cmp_gt_u32 vcc, 32, v{L}")
    srd(S_K, 66, 67, 12582912)
    g(f"v_cndmask_b32 v{vT32}, v{t5}, v{t2}, vcc")
    srd(S_V, 68, 69, 12582912)
    srd(S_WO, 72, 73, 3670016)
    srd(S_WS, 86, 87, 22020096)
    u0, u1, u2 = 10, 11, 12
    g(f"v_lshrrev_b32 v{u0}, 2, v{L}")
    g(f"v_and_b32 v{u1}, 7, v{u0}")
    g(f"v_and_b32 v{u2}, 3, v{L}")
    g(f"v_lshlrev_b32 v{u2}, 3, v{u2}")
    g(f"s_lshl_b32 s{sT0}, s{sJ}, 9")
    g(f"v_lshl_add_u32 v{t3}, v{u0}, 10, v{u2}")
    g(f"v_add_u32 v{t3}, s{sT0}, v{t3}")
    for T in range(8):
        g(f"v_xor_b32 v{t4}, {T}, v{u1}")
        g(f"v_lshl_add_u32 v{vWQR+T}, v{t4}, 5, v{t3}")
        g(f"v_add_u32 v{vWQR+8+T}, 0x10000, v{vWQR+T}")
    g(f"s_lshl_b32 s{sT0}, s{sB}, 4")
    g(f"s_add_u32 s{sT0}, s{sT0}, s{sH0}")
    g(f"s_add_u32 s{sT0}, s{sT0}, s{sJ}")
    g(f"s_mul_i32 s{sKB}, s{sT0}, 24576")
    g(f"s_mul_i32 s{sKM}, s{sW}, 8320")
    g(f"s_add_u32 s{sKM}, s{sKM}, {KA}")
    g(f"v_lshlrev_b32 v{t2}, 2, v{t1}")
    g(f"v_xor_b32 v{t2}, v{t2}, v{t0}")
    g(f"v_lshlrev_b32 v{t2}, 4, v{t2}")
    g(f"v_lshl_add_u32 v{vKD}, v{t1}, 9, v{t2}")
    g(f"v_lshrrev_b32 v{t2}, 2, v{t0}")
    g(f"v_mul_u32_u24 v{t2}, 1040, v{t2}")
    g(f"v_and_b32 v{t3}, 3, v{t0}")
    g(f"v_lshl_add_u32 v{t2}, v{t3}, 8, v{t2}")
    g(f"v_lshl_add_u32 v{t2}, v{t1}, 3, v{t2}")
    g(f"v_add_u32 v{t2}, s{sKM}, v{t2}")
    for s4 in range(4):
        g(f"v_xor_b32 v{t4}, {s4}, v{t3}")
        g(f"v_lshl_add_u32 v{vKR+s4}, v{t4}, 6, v{t2}")
    g(f"s_mul_i32 s{sWOBASE}, s{sH0}, 229376")
    g(f"s_lshl_b32 s{sT0}, s{sB0}, 4")
    g(f"s_add_u32 s{sT0}, s{sT0}, s{sH0}")
    g(f"s_mul_i32 s{sVBASE}, s{sT0}, 24576")
    g(f"s_add_u32 s{sT0}, s{sH0}, s{sBR}")
    g(f"s_lshl_b32 s{sT0}, s{sT0}, 5")
    g(f"s_add_u32 s{sT0}, s{sT0}, s{sB}")
    g(f"s_mul_i32 s{sST}, s{sT0}, 43008")
    g(f"s_mul_i32 s{sT0}, s{sJ}, 3072")
    g(f"s_add_u32 s{sST}, s{sST}, s{sT0}")
    g(f"s_mov_b32 s{sC}, 0x{struct.unpack('<I', struct.pack('<f', 1.4426950408889634/16.0))[0]:08x}")
    g(f"s_lshr_b32 s{sT0}, s{sWI}, 6")
    g(f"s_lshl_b32 s{sT1}, s{sHG}, 1")
    g(f"s_add_u32 s{sT0}, s{sT0}, s{sT1}")
    g(f"s_mul_i32 s{sTWO}, s{sT0}, 458752")
    g(f"s_and_b32 s{sT0}, s{sWI}, 63")
    g(f"s_mul_i32 s{sT0}, s{sT0}, 3584")
    g(f"s_add_u32 s{sTWO}, s{sTWO}, s{sT0}")
    g(f"s_mul_i32 s{sT0}, s{sBSEL}, 24576")
    g(f"s_add_u32 s{sT0}, s{sT0}, {VB}")
    g(f"v_xor_b32 v{t3}, v{t1}, v{t0}")
    g(f"v_lshlrev_b32 v{t3}, 4, v{t3}")
    g(f"v_lshl_add_u32 v{t3}, v{t0}, 8, v{t3}")
    g(f"v_add_u32 v{vVR}, s{sT0}, v{t3}")
    for s4 in range(1, 4):
        g(f"v_xor_b32 v{vVR+s4}, {64*s4}, v{vVR}")
    g(f"s_lshl_b32 s{sT0}, s{sW}, 2")
    g(f"v_add_u32 v{t3}, s{sT0}, v{t1}")
    g(f"v_xor_b32 v{t3}, v{t3}, v{t0}")
    g(f"v_lshlrev_b32 v{t3}, 4, v{t3}")
    g(f"v_lshl_add_u32 v{t3}, v{t1}, 9, v{t3}")
    g(f"s_lshl_b32 s{sT0}, s{sW}, 11")
    g(f"v_add_u32 v{vVD}, s{sT0}, v{t3}")
    g(f"v_lshl_add_u32 v{t3}, v{u0}, 7, v{u2}")
    g(f"v_bfe_u32 v{t2}, v{L}, 3, 2")
    g(f"s_lshl_b32 s{sT0}, s{sJ}, 1")
    for T in range(2):
        g(f"s_add_u32 s{sT3}, s{sT0}, {T}")
        g(f"v_xor_b32 v{t4}, s{sT3}, v{t2}")
        g(f"v_lshl_add_u32 v{vWOR+T}, v{t4}, 5, v{t3}")
        g(f"v_add_u32 v{vWOR+2+T}, 0x10000, v{vWOR+T}")
    g(f"v_lshrrev_b32 v{t3}, 5, v{L}")
    g(f"v_lshl_add_u32 v{t2}, v{t3}, 3, v{t2}")
    g(f"v_mul_u32_u24 v{t2}, 896, v{t2}")
    g(f"v_lshlrev_b32 v{t3}, 1, v{t1}")
    g(f"v_and_b32 v{t4}, 7, v{L}")
    g(f"v_xor_b32 v{t3}, v{t3}, v{t4}")
    g(f"v_lshl_add_u32 v{t2}, v{t3}, 4, v{t2}")
    g(f"s_mul_i32 s{sT0}, s{sW}, 57344")
    g(f"v_add_u32 v{vWOD}, s{sT0}, v{t2}")
    for k in range(1, 4):
        g(f"v_add_u32 v{vWOD+k}, {(16*(k&1) + 4*(k>>1))*896 - k*1024}, v{vWOD}")
    g(f"s_mul_i32 s{sT0}, s{sBSEL}, 4608")
    g(f"s_add_u32 s{sT0}, s{sT0}, {PB}")
    g(f"v_add_u32 v{vPW}, s{sT0}, v{vSTO}")
    g(f"s_add_u32 s{sT0}, s{sT0}, 1024")
    g(f"v_lshl_add_u32 v{vPW2}, v{L}, 3, s{sT0}")
    emit_list(ring_dma(0))
    stamp('pro')
    g.wait_tag("R0")
    g.barrier()
    stamp('b0')
    import copy
    NC = OPT['nc']
    for cls in range(1, NC):
        g(f"s_cmp_eq_u32 s{sCLS}, {cls}")
        g(f"s_cbranch_scc1 L_body_{cls}")
    saved = copy.deepcopy({k: v for k, v in g.__dict__.items() if k != 'lines'})
    st0 = (nstamp, pending, list(names))
    for cls in range(NC):
        for k, v in copy.deepcopy(saved).items(): setattr(g, k, v)
        globals().update(nstamp=st0[0], pending=st0[1], names=list(st0[2]))
        if cls: g.raw(".p2align 6"); g.raw(f"L_body_{cls}:")
        body(cls)
    g.raw("L_main_end:")
    g("s_endpgm")

def body(cls):
    KS = [OPT[f'k{u}'] + cls * OPT['kstep'] for u in range(3)]
    TWO0 = OPT['t_wo0'] + cls * OPT['kstep']
    TB = OPT['t_b'] + cls * OPT['kstep']
    V1A = OPT['v1'] + (cls * OPT['vstep']) % 3
    V1B = OPT['v1b'] - 3 + (3 + cls * OPT['vstep']) % 3 + (0 if True else 0)
    V1B = min(V1A + (OPT['v1b'] - OPT['v1']), 18)
    emit_list(x_reads(0))
    def early_touches(R):
        o = []
        if R == OPT['t_a']: o += touch(vT16, S_WQ, sTWQ, 128 * 8192) + touch(vTXA, S_X, sXB, 256)
        if R == TB: o += touch(vTWQ, S_WQ, sTWQ, 256 * 8192) + touch(vTXB, S_X, sXB, 512)
        return o
    fq.add(x_reads(1) + ring_dma(1) + ring_dma(2) + early_touches(0))
    x_issue = {1: (2, "R3"), 2: (3, "R4"), 5: (4, "R7"), 6: (5, "R8"), 8: (6, "R10")}
    x_read = {3: 2, 4: 3, 7: 4, 8: 5, 10: 6}
    k_issue = {KS[u]: u for u in range(3)}
    k_read = {KS[u] + OPT['kw']: u for u in range(3)}
    assert max(k_read) <= 13
    for u in range(2): assert KS[u+1] > KS[u] + OPT['kw']
    if 0 in k_issue: fq.add(k_dma(k_issue[0], f"R{OPT['kw']}"))
    def after1(R):
        out = []
        if R in x_read: out += x_reads(x_read[R])
        if R in k_read: out += k_reads(k_read[R])
        out += ring_dma(R + 2)
        if R in x_issue: out += x_dma(*x_issue[R])
        if R in k_issue: out += k_dma(k_issue[R], f"R{R+OPT['kw']}")
        if R == TWO0: out += touch(vT32, S_WO, sTWO, 0)
        out += early_touches(R)
        if R == OPT['v0a']: out += v_dma(0, range(7))
        if R == 14: out += v_dma(0, range(7, 12))
        if R == OPT['t_wo1']: out += touch(vT32, S_WO, sTWO, 229376)
        return out
    run_stages(q_groups(), after1, lambda R: f"R{R}" if R < 14 else "none", tail_barrier=True)
    stamp('G1end')
    def s_mf(t):
        return [f"v_mfma_f32_16x16x32_bf16 {vr(SACC+(t*3+u)*4)}, {ar(aK+(u*8+s)*4)}, {vr(QFRAG(s,t))}, {vr(SACC+(t*3+u)*4) if s else 0}"
                for s in range(8) for u in range(3)]
    def paced(ins_list, every):
        n = 0
        for ins in ins_list:
            g(ins); n += 1
            if n % every == 0:
                while len(fq) and not fq.is_vm(fq.q[0]): fq.pop()
                if len(fq): fq.pop()
    paced(cvt_pairs(QACC, range(8), 0), 8)
    def mix(mf, fill):
        o = []; fill = list(fill)
        for m in mf:
            o.append(m)
            for _ in range(2):
                if fill: o.append(fill.pop(0))
        return o + fill
    paced(mix(s_mf(0), cvt_pairs(QACC, range(8), 1)), 10)
    paced(mix(s_mf(1), cvt_pairs(QACC, range(8), 2)), 10)
    fq.drain()
    sm0 = softmax_ops(0)
    interleave(s_mf(2), sm0[:40])
    for ins in merge(sm0[40:], softmax_ops(1), softmax_ops(2)): g(ins)
    stamp('SM')
    p_write(0, f"L_pw0_{cls}")
    g.wait_tag(["V0", "R14"], lg=0)
    g.barrier()
    stamp('Pbar')
    for u in range(3): emit_list([v_read(u, 0)])
    for s in range(1, 8):
        fq.add([v_read(u, s) for u in range(3)])
    fq.add(p_reads(0))
    def after2(R):
        out = []
        if R == OPT['p1'] + 1: out += p_reads(1)
        out += ring_dma(R + 2)
        if R == V1A: out += v_dma(1, range(6))
        if R == V1B: out += v_dma(1, range(6, 12))
        if R == OPT['t_wo1']: out += touch(vT32, S_WO, sTWO, 229376)
        if R == OPT['p1']: out.append(lambda: p_write(1, f"L_pw1_{cls}"))
        return out
    def wt(R):
        return [f"R{R}", "V1"] if R == 20 else f"R{R}"
    run_stages(o_groups(), after2, wt, tail_barrier=False)
    fq.drain()
    stamp('G2end')
    emit_list(vw_cvt(27))
    fa, fb = final_groups(27, 27)
    for m in fa['mfmas'] + fb['mfmas']: g(m)
    emit_list(epilogue_ops(6))
    stamp('epi')
    if OPT['stamps']:
        g.wait_all()
        stamp('drain')
    finish_stamps(cls)

def reduce_kernel():
    global g
    lines = g.lines
    g = Gen(); g.lines = lines
    kernel_open(RED)
    g("s_cmp_ge_u32 s2, 448")
    g("s_cbranch_scc1 L_red_end")
    g("s_load_dwordx2 s[4:5], s[0:1], 80")
    g("s_load_dwordx2 s[6:7], s[0:1], 96")
    g("s_mov_b32 s16, 0x24924925")
    g("s_mul_hi_u32 s17, s2, s16")
    g("s_mul_i32 s18, s17, 7")
    g("s_sub_u32 s18, s2, s18")
    g("s_mul_i32 s19, s17, 43008")
    g("s_mul_i32 s20, s18, 6144")
    g("s_add_u32 s19, s19, s20")
    g("v_lshlrev_b32 v1, 4, v0")
    g("v_lshrrev_b32 v2, 6, v0")
    g("v_and_b32 v3, 63, v0")
    g("v_readfirstlane_b32 s21, v2")
    g("s_cmp_ge_u32 s21, 3")
    g("s_cselect_b32 s22, 1, 0")
    g("s_mul_i32 s23, s22, 3")
    g("s_sub_u32 s23, s21, s23")
    g("s_and_b32 s24, s17, 31")
    g("s_lshr_b32 s25, s17, 5")
    g("s_mul_i32 s24, s24, 48")
    g("s_lshl_b32 s23, s23, 4")
    g("s_add_u32 s24, s24, s23")
    g("s_mul_i32 s24, s24, 1792")
    g("s_mul_i32 s25, s25, 896")
    g("s_add_u32 s24, s24, s25")
    g("s_lshl_b32 s26, s18, 7")
    g("s_add_u32 s24, s24, s26")
    g("s_lshl_b32 s26, s22, 6")
    g("s_add_u32 s24, s24, s26")
    g("v_and_b32 v4, 15, v3")
    g("v_mul_u32_u24 v4, 1792, v4")
    g("v_lshrrev_b32 v5, 4, v3")
    g("v_lshl_add_u32 v4, v5, 4, v4")
    g.smem_wait()
    srd(8, 6, 7, 22020096)
    srd(12, 4, 5, 2752512)
    for p in range(8):
        if p:
            g(f"s_add_u32 s19, s19, {64*43008}")
        g(f"buffer_load_dwordx4 {vr(8+4*p)}, v1, s[8:11], s19 offen")
    for p in range(8):
        for k in range(4):
            src = 8 + 4 * p + k
            if p == 0:
                g(f"v_lshlrev_b32 v{40+2*k}, 16, v{src}")
                g(f"v_and_b32 v{41+2*k}, 0xffff0000, v{src}")
            else:
                g(f"v_lshlrev_b32 v{48+2*k}, 16, v{src}")
                g(f"v_and_b32 v{49+2*k}, 0xffff0000, v{src}")
        if p:
            for k in range(8):
                g(f"v_add_f32 v{40+k}, v{40+k}, v{48+k}")
    for k in range(4):
        g(f"v_cvt_pk_bf16_f32 v{56+k}, v{40+2*k}, v{41+2*k}")
    g("v_permlane32_swap_b32 v56, v58")
    g("v_permlane32_swap_b32 v57, v59")
    g("v_permlane16_swap_b32 v56, v58")
    g("v_permlane16_swap_b32 v57, v59")
    g("buffer_store_dwordx4 v[56:59], v4, s[12:15], s24 offen")
    g.raw("L_red_end:")
    g("s_endpgm")

def descriptors():
    g.raw('.section .rodata,"a"')
    for name, nv, acc in ((MAIN, 512, 256), (RED, 64, 64)):
        g.raw(".p2align 6")
        g.raw(f".amdhsa_kernel {name}")
        g.raw(f"  .amdhsa_next_free_vgpr {nv}")
        g.raw("  .amdhsa_next_free_sgpr 102")
        g.raw(f"  .amdhsa_accum_offset {acc}")
        g.raw("  .amdhsa_group_segment_fixed_size 0")
        g.raw("  .amdhsa_kernarg_size 104")
        g.raw("  .amdhsa_user_sgpr_count 2")
        g.raw("  .amdhsa_user_sgpr_kernarg_segment_ptr 1")
        g.raw("  .amdhsa_system_sgpr_workgroup_id_x 1")
        g.raw("  .amdhsa_float_denorm_mode_32 3")
        g.raw(".end_amdhsa_kernel")

header()
main_kernel()
st = dict(g.stats)
reduce_kernel()
descriptors()
open(sys.argv[1], "w").write(g.text())
print("main stats", st, "forced", fq.forced)
```

```python
import sys, struct, json
from asmgen import Gen, classify

NAME = "concat_heads__mha_block_cached__gqa_block_cached__near_ridge"
MAIN = NAME + "_kernel"
RED = "reduce_partials_kernel"

OPT = dict(bar_group=10, D=7, stamps=0, code_pf=1, touch=1, ntk=1, ntv=1, nttw=0, nttx=0,
           k0=2, k1=6, k2=10, kw=3, t_wo0=10, t_wo1=14, v1=15, v1b=18, p1=17, t_a=0, t_b=3, v0a=14, nc=1, kstep=1, vstep=1, ntfirst=1, pace=1, diag=0, nok=0, nov=0, now=0, nost=0, nox=0, dbg=0, stf=0, ldf=0, osf=0)
FL = ['', ' sc1', ' sc0 sc1', ' nt', ' sc1 nt', ' sc0 sc1 nt']
for a in sys.argv[2:]:
    k, v = a.split('=')
    assert k in OPT, k
    OPT[k] = int(v)
def NT(k): return ' nt' if OPT[k] else ''

SLOT = 32768
VB = 3 * SLOT
XU = 12288
KA = VB + 65536 - 4 * 8320
PB = VB + 49152
LDS_BYTES = 163840
BIG = 0x7ffff000

S_X, S_K, S_V, S_WQ, S_WO, S_WS = 8, 12, 16, 20, 24, 28
sW, sBSEL, sJ, sBR, sH0, sB0, sB = 32, 33, 34, 35, 36, 37, 38
sWQB = 39
sXB, sXM, sKB, sKM, sXO, sKO, sWQO, sWOO, sWOO2, sVO = 40, 41, 42, 43, 44, 45, 46, 47, 48, 49
sM, sVM, sST, sC = 50, 51, 52, 53
sT0, sT1, sT2, sT3 = 54, 55, 56, 57
sVBASE, sWOBASE = 58, 59
sPC = 60
sTWQ = 63
sHG, sHP, sWI, sTWO, sCLS = 88, 89, 90, 91, 94
STB = 64

def QACC(T, t): return (((T // 2) * 3 + t) * 4) + (96 if T & 1 else 0)
def QFRAG(s, t): return (s * 3 + t) * 4
SACC = 192
vWQR = 192
vWQD = 208
vXR = 216
vXD = 218
vKR = 219
vKD = 223
vTWQ = 224
vTXA = 225
vTXB = 226
vT16 = 227
vWOD = 228
vVD = 232
vVR = 233
vWOR = 237
vSTO = 241
vPW = 242
vPW2 = 243
vT32 = 244
vDUM = 245
vSM = 246
def VFRAG(u, s): return (u * 8 + s) * 4
vPOWN = 96
vP = [114, 132]
vVWB = 150
vEP = 96
def VWACC(par, T, u): return 180 + par * 24 + (T * 3 + u) * 4
aFR, aK, aX, XRING, aOUT = 0, 32, 128, 10, 32
def OUTACC(c, T, t): return aOUT + ((c * 2 + T) * 3 + t) * 4

def vr(b, n=4): return f"v[{b}:{b+n-1}]"
def ar(b, n=4): return f"a[{b}:{b+n-1}]"
def sr(b, n=4): return f"s[{b}:{b+n-1}]"

g = Gen()
nstamp = 0
vSTAMP = 255
pending = False
names = []
def stamp_flush():
    global pending
    if pending:
        g(f"v_writelane_b32 v{vSTAMP}, s92, {nstamp-1}")
        pending = False
def stamp(name="", real=False, drained=False):
    global nstamp, pending
    if OPT['stamps']:
        if pending:
            if not drained: g.smem_wait()
            stamp_flush()
        g(f"{'s_memrealtime' if real else 's_memtime'} s[92:93]")
        names.append(name); nstamp += 1; pending = True

def header():
    g.raw("; fused attention block: launch 1 computes per-head-pair partial outputs, launch 2 sums them")
    g.raw(f"; @launch kernel={MAIN} grid=(256,1,1) block=(256,1,1) lds={LDS_BYTES}")
    g.raw(f"; @launch kernel={RED} grid=(448,1,1) block=(384,1,1) lds=0")
    g.raw('.amdgcn_target "amdgcn-amd-amdhsa--gfx950"')
    g.raw(".text")

def kernel_open(name):
    g.raw(f".globl {name}")
    g.raw(".p2align 8")
    g.raw(f".type {name},@function")
    g.raw(f"{name}:")

def srd(dst, lo, hi, nbytes):
    g(f"s_mov_b32 s{dst}, s{lo}")
    g(f"s_and_b32 s{dst+1}, s{hi}, 0xffff")
    g(f"s_mov_b32 s{dst+2}, {nbytes}")
    g(f"s_mov_b32 s{dst+3}, 0x20000")

def wq_dma(R):
    slot = (R % 3) * SLOT
    out = [(f"s_add_u32 s{sWQO}, s{sWQB}, {R*262144}", None)]
    for i in range(8):
        if i % 4 == 0:
            out.append((f"s_add_u32 m0, s{sM}, {slot + (i//4)*4096}", None))
        out.append((f"buffer_load_dwordx4 v{vWQD+i}, {sr(S_WQ)}, s{sWQO} offen offset:{(i%4)*1024} lds", f"R{R}"))
    return out

def wo_dma(R):
    hh, c = divmod(R - 14, 7)
    slot = (R % 3) * SLOT
    out = [(f"s_add_u32 s{sWOO}, s{sWOBASE}, {hh*229376 + c*128}", None),
           (f"s_add_u32 s{sWOO2}, s{sWOBASE}, {hh*229376 + c*128 + 28672}", None)]
    for i in range(8):
        if i % 4 == 0:
            out.append((f"s_add_u32 m0, s{sM}, {slot + (i//4)*4096}", None))
        so = sWOO if i < 4 else sWOO2
        out.append((f"buffer_load_dwordx4 v{vWOD+(i%4)}, {sr(S_WO)}, s{so} offen offset:{(i%4)*1024} lds", f"R{R}"))
    return out

def ring_dma(R):
    if OPT['now'] and R > 2: return []
    if R < 14: return wq_dma(R)
    if R < 28: return wo_dma(R)
    return []

def x_dma(p, tag):
    out = []
    if OPT['nox'] and p > 1: return out
    for k in range(3):
        out.append((f"s_add_u32 s{sXO}, s{sXB}, {p*128 + k*28672}", None))
        out.append((f"s_add_u32 m0, s{sXM}, {(p % 2)*XU + k*4096}", None))
        out.append((f"buffer_load_dwordx4 v{vXD}, {sr(S_X)}, s{sXO} offen{NT('ntfirst') if p < 2 else ''} lds", tag))
    return out

def x_reads(p):
    out = []
    for s2 in range(2):
        s = 2 * p + s2
        for t in range(3):
            d = aX + (s % XRING) * 12 + t * 4
            out.append((f"ds_read_b128 {ar(d)}, v{vXR+s2} offset:{(p % 2)*XU + t*2048}", None))
    return out

def k_dma(u, tag):
    out = []
    if OPT['nok']: return out
    for dh in range(2):
        out.append((f"s_add_u32 m0, s{sKM}, {dh*4160}", None))
        for j in range(4):
            out.append((f"s_add_u32 s{sKO}, s{sKB}, {u*8192 + dh*256 + j*(2048-1040)}", None))
            out.append((f"buffer_load_dwordx4 v{vKD}, {sr(S_K)}, s{sKO} offen offset:{j*1040}{NT('ntk')} lds", tag))
    return out

def k_reads(u):
    out = []
    for dh in range(2):
        for s4 in range(4):
            for p in range(2):
                d = aK + (u * 8 + dh * 4 + s4) * 4 + 2 * p
                out.append((f"ds_read_b64 {ar(d,2)}, v{vKR+s4} offset:{dh*4160 + 32*p}", None))
    return out

def v_dma(hh, subs):
    out = []
    if OPT['nov']: return out
    for sub in subs:
        bb, r = divmod(sub, 6); u, dh = divmod(r, 2)
        out.append((f"s_add_u32 s{sVO}, s{sVBASE}, {hh*24576 + bb*393216 + u*8192 + dh*256}", None))
        out.append((f"s_add_u32 m0, s{sVM}, {sub*4096}", None))
        out.append((f"buffer_load_dwordx4 v{vVD}, {sr(S_V)}, s{sVO} offen{NT('ntv')} lds", f"V{hh}"))
    return out

def v_read(u, s):
    dh, s4 = divmod(s, 4)
    return (f"ds_read_b128 {vr(VFRAG(u,s))}, v{vVR+s4} offset:{(u*2+dh)*4096}", None)

def touch(vaddr, srd_, sbase, add):
    key = {S_WQ: 'nttw', S_WO: 'nttw', S_X: 'nttx'}[srd_]
    if not OPT['touch']: return []
    return [(f"s_add_u32 s{sT1}, s{sbase}, {add}", None),
            (f"buffer_load_dword v{vDUM}, v{vaddr}, {sr(srd_)}, s{sT1} offen{NT(key)}", None, True)]

class FillQ:
    def __init__(self): self.q = []
    def add(self, items): self.q.extend(items)
    def pop(self):
        it = self.q.pop(0)
        if callable(it): it()
        else: g(it[0], tag=it[1], nodst=(len(it) > 2))
    def __len__(self): return len(self.q)
    def is_vm(self, it):
        return (not callable(it)) and it[0].startswith(('buffer_', 'global_'))
    def nvm(self): return sum(1 for it in self.q if self.is_vm(it))
    def drain(self):
        while self.q: self.pop()
    def guard(self, text):
        _, _, _, _, rd, wr = classify(text)
        rd = {r for r in rd if r[0] != 's'}; wr = {r for r in wr if r[0] != 's'}
        last = -1
        for i, it in enumerate(self.q):
            if callable(it): continue
            _, _, _, _, frd, fwr = classify(it[0])
            if len(it) > 2: fwr = []
            if (set(fwr) & (rd | wr)) or (set(frd) & wr): last = i
        if last >= 0: self.forced += last + 1
        for _ in range(last + 1): self.pop()
    forced = 0
fq = FillQ()
def emit_list(l):
    for it in l: g(it[0], tag=it[1], nodst=(len(it) > 2))

def run_stages(groups, after_barrier, wait_tags, tail_barrier=None, ring=8, nreg=4):
    D = min(OPT['D'], ring - 1)
    open_stage = groups[0]['stage']
    pend = []
    fr = 0
    for n, gr in enumerate(groups):
        gr['fr'] = fr
        if gr['reads']:
            d = aFR + (fr % ring) * nreg
            for k, rt in enumerate(gr['reads']):
                pend.append((fr, gr['stage'], rt.format(d=ar(d + 2 * k, 2))))
            fr += 1
    rp = 0
    def can_read(f_cur):
        if rp >= len(pend): return False
        f, st, _ = pend[rp]
        return st <= open_stage and f <= f_cur + D
    while rp < len(pend) and pend[rp][0] < D and pend[rp][1] <= open_stage:
        g(pend[rp][2]); rp += 1
    last_stage = groups[-1]['stage']
    left = [0] * len(groups)
    acc = 0
    for n in range(len(groups) - 1, -1, -1):
        if groups[n].get('idx') == OPT['bar_group']: acc = 0
        acc += len(groups[n]['mfmas'])
        left[n] = acc
    since_vm = 1000
    for n, gr in enumerate(groups):
        f = gr['fr']
        d = aFR + (f % ring) * nreg
        if gr['reads']:
            while rp < len(pend) and pend[rp][0] <= f:
                assert pend[rp][1] <= open_stage
                g(pend[rp][2]); rp += 1
        fcur = f if gr['reads'] else f - 1
        R = gr['stage']
        for it in gr.get('pre', []): fq.q.insert(0, it) if False else None
        if gr.get('front'):
            fq.q[0:0] = gr['front']
        for k, mt in enumerate(gr['mfmas']):
            fq.guard(mt.format(a=ar(d)))
            g(mt.format(a=ar(d)))
            budget = 2
            since_vm += 1
            rem = left[n] - k - 1
            while budget:
                if can_read(fcur):
                    g(pend[rp][2]); rp += 1; budget -= 1
                elif len(fq):
                    j = None
                    if fq.is_vm(fq.q[0]) and OPT['pace']:
                        gap = max(1, (rem - 2) // max(1, fq.nvm()))
                        if since_vm >= min(gap, OPT['pace'] * 6): j = 0
                        else:
                            for i, it in enumerate(fq.q):
                                if callable(it): break
                                if fq.is_vm(it) or it[0].startswith('s_'): continue
                                _, _, _, _, rd_, wr_ = classify(it[0])
                                clash = False
                                for e in fq.q[:i]:
                                    _, _, _, _, erd, ewr = classify(e[0])
                                    if (set(erd) | set(ewr)) & set(wr_) or set(ewr) & set(rd_): clash = True
                                if not clash: j = i
                                break
                    else:
                        j = 0
                    if j is None: break
                    if j == 0:
                        if fq.is_vm(fq.q[0]): since_vm = 0
                        fq.pop()
                    else:
                        it = fq.q.pop(j); g(it[0], tag=it[1], nodst=(len(it) > 2))
                    budget -= 1
                else:
                    break
        for it in gr.get('post', []):
            fq.add([it])
        if gr.get('idx') == OPT['bar_group'] and (R < last_stage or tail_barrier):
            while rp < len(pend) and pend[rp][1] <= R:
                g(pend[rp][2]); rp += 1
            fq.drain()
            g.wait_tag(wait_tags(R + 1), lg=0)
            if OPT['stamps'] > 1: g.smem_wait()
            g.barrier()
            if OPT['stamps'] > 1: stamp(f"b{R+1}", drained=True)
            open_stage = R + 1
            fq.add(after_barrier(R + 1))

def interleave(mf, fill, per=2):
    fill = list(fill)
    for m in mf:
        g(m)
        for _ in range(per):
            if fill: g(fill.pop(0))
            elif len(fq): fq.pop()
    for f in fill: g(f)

def softmax_ops(t):
    S = [SACC + 12 * t + k for k in range(12)]
    m, x = vSM + 2 * t, vSM + 2 * t + 1
    o = []
    o.append(f"v_max3_f32 v{m}, v{S[0]}, v{S[1]}, v{S[2]}")
    o.append(f"v_max3_f32 v{x}, v{S[3]}, v{S[4]}, v{S[5]}")
    o.append(f"v_max3_f32 v{m}, v{m}, v{S[6]}, v{S[7]}")
    o.append(f"v_max3_f32 v{x}, v{x}, v{S[8]}, v{S[9]}")
    o.append(f"v_max3_f32 v{m}, v{m}, v{S[10]}, v{S[11]}")
    o.append(f"v_max_f32 v{m}, v{m}, v{x}")
    for sw in ("v_permlane32_swap_b32", "v_permlane16_swap_b32"):
        o.append(f"v_mov_b32 v{x}, v{m}")
        o.append(f"{sw} v{m}, v{x}")
        o.append(f"v_max_f32 v{m}, v{m}, v{x}")
    o.append(f"v_mul_f32 v{m}, s{sC}, v{m}")
    for k in range(12):
        o.append(f"v_fma_f32 v{S[k]}, v{S[k]}, s{sC}, -v{m}")
    for k in range(12):
        o.append(f"v_exp_f32 v{S[k]}, v{S[k]}")
    o.append(f"v_add_f32 v{m}, v{S[0]}, v{S[1]}")
    o.append(f"v_add_f32 v{x}, v{S[2]}, v{S[3]}")
    for k in range(4, 12, 2):
        o.append(f"v_add_f32 v{m}, v{m}, v{S[k]}")
        o.append(f"v_add_f32 v{x}, v{x}, v{S[k+1]}")
    o.append(f"v_add_f32 v{m}, v{m}, v{x}")
    for sw in ("v_permlane32_swap_b32", "v_permlane16_swap_b32"):
        o.append(f"v_mov_b32 v{x}, v{m}")
        o.append(f"{sw} v{m}, v{x}")
        o.append(f"v_add_f32 v{m}, v{m}, v{x}")
    o.append(f"v_rcp_f32 v{m}, v{m}")
    for k in range(12):
        o.append(f"v_mul_f32 v{S[k]}, v{S[k]}, v{m}")
    for k in range(6):
        o.append(f"v_cvt_pk_bf16_f32 v{vPOWN + 6*t + k}, v{S[2*k]}, v{S[2*k+1]}")
    return o

def merge(*lists):
    out = []
    n = max(len(l) for l in lists)
    for i in range(n):
        for l in lists:
            if i < len(l): out.append(l[i])
    return out

def cvt_pairs(acc, s_list, t):
    o = []
    for s in s_list:
        b, b2 = acc(2 * s, t), acc(2 * s + 1, t)
        o.append(f"v_cvt_pk_bf16_f32 v{b}, v{b}, v{b+1}")
        o.append(f"v_cvt_pk_bf16_f32 v{b+1}, v{b+2}, v{b+3}")
        o.append(f"v_cvt_pk_bf16_f32 v{b+2}, v{b2}, v{b2+1}")
        o.append(f"v_cvt_pk_bf16_f32 v{b+3}, v{b2+2}, v{b2+3}")
    return o

def p_write(which, lbl):
    g.wait_all(vm=False, lg=True)
    g(f"s_cmp_lg_u32 s{sJ}, {which}")
    g(f"s_cbranch_scc1 {lbl}")
    n0 = g.n
    for t in range(3):
        g(f"ds_write_b128 v{vPW}, {vr(vPOWN+6*t)} offset:{t*1536}")
        g(f"ds_write_b64 v{vPW2}, {vr(vPOWN+6*t+4,2)} offset:{t*1536}")
    g.wait_all(vm=False, lg=True)
    g.raw(f"{lbl}:")
    g.n = n0

def p_reads(hh):
    o = []
    for t in range(3):
        o.append((f"ds_read_b128 {vr(vP[hh]+6*t)}, v{vPW} offset:{t*1536}", None))
        o.append((f"ds_read_b64 {vr(vP[hh]+6*t+4,2)}, v{vPW2} offset:{t*1536}", None))
    return o

def q_groups():
    gs = []
    for s in range(14):
        slot = s % 3
        win, base = (1, 0) if slot == 2 else (0, slot * SLOT)
        for T in range(16):
            reads = [f"ds_read_b64_tr_b16 {{d}}, v{vWQR + win*8 + (T & 7)} offset:{base + rd*16384 + (T>>3)*256}" for rd in range(2)]
            mf = []
            for t in range(3):
                acc = vr(QACC(T, t))
                xb = ar(aX + (s % XRING) * 12 + t * 4)
                mf.append(f"v_mfma_f32_16x16x32_bf16 {acc}, {{a}}, {xb}, {acc if s else 0}")
            gs.append(dict(stage=s, reads=reads, mfmas=mf, idx=T))
    return gs

def vw_cvt(R):
    par = R % 2
    o = []
    for T in range(2):
        for u in range(3):
            b = VWACC(par, T, u)
            o.append((f"v_cvt_pk_bf16_f32 v{vVWB+6*T+2*u}, v{b}, v{b+1}", None))
            o.append((f"v_cvt_pk_bf16_f32 v{vVWB+6*T+2*u+1}, v{b+2}, v{b+3}", None))
    return o

def final_groups(R, stage):
    hh, c = divmod(R - 14, 7)
    a, b = [], []
    for T in range(2):
        for t in range(3):
            acc = ar(OUTACC(c, T, t))
            a.append(f"v_mfma_f32_16x16x32_bf16 {acc}, {vr(vVWB+6*T)}, {vr(vP[hh]+6*t)}, {acc if hh else 0}")
            b.append(f"v_mfma_f32_16x16x16_bf16 {acc}, {vr(vVWB+6*T+4,2)}, {vr(vP[hh]+6*t+4,2)}, {acc}")
    return dict(stage=stage, reads=[], mfmas=a), dict(stage=stage, reads=[], mfmas=b)

def epilogue_ops(c):
    o = [(f"s_add_u32 s{sT0}, s{sST}, {c*6144}", None)]
    for t in range(3):
        tb = vEP + t * 8
        for T in range(2):
            for r in range(4):
                o.append((f"v_accvgpr_read_b32 v{tb + T*4 + r}, a{OUTACC(c,T,t)+r}", None))
        for k in range(4):
            o.append((f"v_cvt_pk_bf16_f32 v{tb+k}, v{tb+2*k}, v{tb+2*k+1}", None))
        if not OPT['nost']: o.append((f"buffer_store_dwordx4 {vr(tb)}, v{vSTO}, {sr(S_WS)}, s{sT0} offen offset:{t*1024}{FL[OPT['stf']]}", None))
    return o

def o_groups():
    gs = []
    for R in range(14, 28):
        hh, c = divmod(R - 14, 7)
        slot = R % 3
        win, base = (1, 0) if slot == 2 else (0, slot * SLOT)
        for s in range(8):
            for T in range(2):
                idx = 2 * s + T
                reads = [f"ds_read_b64_tr_b16 {{d}}, v{vWOR + win*2 + T} offset:{base + s*4096 + rd*2048}" for rd in range(2)]
                mf = []
                for u in range(3):
                    acc = vr(VWACC(R % 2, T, u))
                    mf.append(f"v_mfma_f32_16x16x32_bf16 {acc}, {vr(VFRAG(u,s))}, {{a}}, {acc if s else 0}")
                gr = dict(stage=R, reads=reads, mfmas=mf, idx=idx)
                if R > 14 and idx == 2: gr['front'] = vw_cvt(R - 1)
                if R == 20 and T == 1:
                    gr['post'] = [v_read(u, s) for u in range(3)]
                gs.append(gr)
                if R > 14 and idx == 5: gs.append(final_groups(R - 1, R)[0])
                if R > 14 and idx == 7:
                    gb = final_groups(R - 1, R)[1]
                    gs.append(gb)
                if R > 21 and idx == 11: gs[-1]['post'] = epilogue_ops(R - 22)
    return gs

def finish_stamps(cls):
    if OPT['stamps']:
        stamp("real_end", real=True)
        g.smem_wait(); stamp_flush()
        g(f"v_writelane_b32 v{vSTAMP}, s98, 62")
        g(f"v_writelane_b32 v{vSTAMP}, s96, 63")
        g(f"s_lshl_b32 s{sT0}, s2, 2")
        g(f"s_add_u32 s{sT0}, s{sT0}, s{sW}")
        g(f"s_lshl_b32 s{sT0}, s{sT0}, 8")
        g(f"s_add_u32 s{sT0}, s{sT0}, {24<<20}")
        g(f"s_mov_b32 s{S_WS+2}, 0x10000000")
        g(f"v_lshrrev_b32 v1, 2, v{vSTO}")
        g(f"buffer_store_dword v{vSTAMP}, v1, {sr(S_WS)}, s{sT0} offen")
        json.dump(names, open(sys.argv[1] + ".names", "w"))
    g("s_endpgm")

def main_kernel():
    kernel_open(MAIN)
    g(f"s_cmp_ge_u32 s2, 256")
    g(f"s_cbranch_scc1 L_main_end")
    if OPT['stamps']:
        g("s_memrealtime s[96:97]")
        g("s_memtime s[98:99]")
    g("s_load_dwordx8 s[64:71], s[0:1], 0")
    g("s_load_dwordx2 s[72:73], s[0:1], 32")
    g("s_load_dwordx8 s[76:83], s[0:1], 40")
    g("s_load_dwordx2 s[84:85], s[0:1], 72")
    g("s_load_dwordx2 s[86:87], s[0:1], 96")
    g(f"s_getpc_b64 s[{sPC}:{sPC+1}]")
    g.raw("L_pc:")
    L = 1
    t0, t1, t2, t3, t4, t5 = 2, 3, 4, 5, 6, 7
    g(f"v_lshrrev_b32 v{t0}, 6, v0")
    g(f"v_and_b32 v{L}, 63, v0")
    g(f"v_readfirstlane_b32 s{sW}, v{t0}")
    g(f"s_and_b32 s{sT0}, s2, 7")
    g(f"s_lshr_b32 s{sT1}, s2, 3")
    g(f"s_lshr_b32 s{sBR}, s{sT0}, 2")
    g(f"s_and_b32 s{sHG}, s{sT0}, 3")
    g(f"s_lshl_b32 s{sT0}, s{sHG}, 2")
    g(f"s_and_b32 s{sHP}, s{sT1}, 1")
    g(f"s_lshl_b32 s{sT2}, s{sHP}, 1")
    g(f"s_add_u32 s{sH0}, s{sT0}, s{sT2}")
    g(f"s_lshr_b32 s{sB0}, s{sT1}, 1")
    if OPT['nc'] == 3:
        g(f"s_mul_i32 s{sCLS}, s{sB0}, 11")
        g(f"s_lshr_b32 s{sCLS}, s{sCLS}, 5")
        g(f"s_mul_i32 s{sCLS}, s{sCLS}, 3")
        g(f"s_sub_u32 s{sCLS}, s{sB0}, s{sCLS}")
    else:
        g(f"s_and_b32 s{sCLS}, s{sB0}, {OPT['nc']-1}")
    g(f"s_lshl_b32 s{sB0}, s{sB0}, 1")
    g(f"s_lshl_b32 s{sWI}, s{sT1}, 2")
    g(f"s_add_u32 s{sWI}, s{sWI}, s{sW}")
    g(f"s_and_b32 s{sBSEL}, s{sW}, 1")
    g(f"s_lshr_b32 s{sJ}, s{sW}, 1")
    g(f"s_add_u32 s{sB}, s{sB0}, s{sBSEL}")
    g(f"s_lshl_b32 s{sM}, s{sW}, 13")
    g(f"s_lshl_b32 s{sVM}, s{sW}, 10")
    g(f"s_add_u32 s{sVM}, s{sVM}, {VB}")
    g(f"s_mov_b32 s{sXM}, s{sVM}")
    g(f"s_lshl_b32 s{sWQB}, s{sH0}, 9")
    g(f"s_mul_i32 s{sXB}, s{sB0}, 43008")
    g(f"s_lshl_b32 s{sT0}, s{sBSEL}, 4")
    g(f"s_lshl_b32 s{sT1}, s{sJ}, 2")
    g(f"s_add_u32 s{sT0}, s{sT0}, s{sT1}")
    g(f"s_lshl_b32 s{sT0}, s{sT0}, 13")
    g(f"v_lshlrev_b32 v{vSTO}, 4, v{L}")
    g(f"v_add_u32 v{t1}, s{sT0}, v{vSTO}")
    for i in range(8):
        const = (8 * (i >> 2) + (i & 3)) * 8192 - (i & 3) * 1024
        g(f"v_xor_b32 v{t0}, {32*i}, v{t1}")
        g(f"v_add_u32 v{vWQD+i}, {const}, v{t0}")
    g(f"v_lshrrev_b32 v{t0}, 3, v{L}")
    g(f"v_mul_u32_u24 v{t0}, 896, v{t0}")
    g(f"v_lshrrev_b32 v{t1}, 4, v{L}")
    g(f"s_lshl_b32 s{sT0}, s{sBSEL}, 2")
    g(f"v_add_u32 v{t1}, s{sT0}, v{t1}")
    g(f"v_and_b32 v{t2}, 7, v{L}")
    g(f"v_xor_b32 v{t1}, v{t1}, v{t2}")
    g(f"v_lshl_add_u32 v{t0}, v{t1}, 4, v{t0}")
    g(f"s_mul_i32 s{sT0}, s{sW}, 7168")
    g(f"v_add_u32 v{vXD}, s{sT0}, v{t0}")
    g(f"v_and_b32 v{t0}, 15, v{L}")
    g(f"v_lshrrev_b32 v{t1}, 4, v{L}")
    g(f"v_mov_b32 v{t5}, {BIG}")
    g(f"v_lshlrev_b32 v{t2}, 7, v{t0}")
    g(f"v_cmp_gt_u32 vcc, 16, v{L}")
    g(f"s_lshl_b32 s{sTWQ}, s{sWI}, 13")
    g(f"s_lshl_b32 s{sT0}, s{sHG}, 11")
    g(f"v_cndmask_b32 v9, v{t5}, v{t2}, vcc")
    g(f"s_add_u32 s{sTWQ}, s{sTWQ}, s{sT0}")
    g(f"v_lshl_add_u32 v{t2}, v{t1}, 20, v{t2}")
    g(f"v_cmp_gt_u32 vcc, 32, v{L}")
    g(f"s_lshl_b32 s{sT0}, s{sHP}, 2")
    g(f"s_add_u32 s{sT0}, s{sT0}, s{sW}")
    g(f"v_cndmask_b32 v{vTWQ}, v{t5}, v{t2}, vcc")
    g(f"s_mul_i32 s{sT1}, s{sT0}, 24")
    g(f"s_mul_i32 s{sT2}, s{sT0}, 36")
    g(f"v_add_u32 v{t2}, s{sT1}, v{L}")
    g(f"v_lshrrev_b32 v{t3}, 1, v{t2}")
    g(f"v_mul_u32_u24 v{t3}, 896, v{t3}")
    g(f"v_and_b32 v{t2}, 1, v{t2}")
    g(f"v_lshl_add_u32 v{t2}, v{t2}, 7, v{t3}")
    g(f"v_cmp_gt_u32 vcc, 24, v{L}")
    g(f"v_add_u32 v{t3}, s{sT2}, v{L}")
    g(f"v_mul_u32_u24 v{t4}, 21846, v{t3}")
    g(f"v_cndmask_b32 v{vTXA}, v{t5}, v{t2}, vcc")
    g(f"v_lshrrev_b32 v{t4}, 16, v{t4}")
    g(f"v_mul_u32_u24 v{t2}, 3, v{t4}")
    g(f"v_sub_u32 v{t3}, v{t3}, v{t2}")
    g(f"v_mul_u32_u24 v{t4}, 896, v{t4}")
    g(f"v_lshl_add_u32 v{t3}, v{t3}, 7, v{t4}")
    g(f"v_cmp_gt_u32 vcc, 36, v{L}")
    g(f"s_nop 1")
    g(f"v_cndmask_b32 v{vTXB}, v{t5}, v{t3}, vcc")
    g.smem_wait()
    g(f"s_cmp_eq_u32 s{sBR}, 0")
    for k in (0, 3, 1, 2, 4):
        g(f"s_cselect_b64 s[{64+2*k}:{65+2*k}], s[{64+2*k}:{65+2*k}], s[{76+2*k}:{77+2*k}]")
    srd(S_X, 64, 65, 1376256)
    srd(S_WQ, 70, 71, 3670016)
    emit_list(touch(9, S_WQ, sTWQ, 0))
    if OPT['code_pf']:
        g(f"s_min_u32 s{sT0}, s{sWI}, (L_main_end-L_pc)/1024-1")
        g(f"s_lshl_b32 s{sT0}, s{sT0}, 10")
        g(f"v_add_u32 v{t2}, s{sT0}, v{vSTO}")
        g(f"global_load_dword v{vDUM}, v{t2}, s[{sPC}:{sPC+1}]", nodst=True)
    emit_list(x_dma(0, "R0"))
    emit_list(x_dma(1, "R0"))
    g(f"v_mov_b32 v{vT16}, v9")
    if OPT['t_a'] < 0:
        emit_list(touch(9, S_WQ, sTWQ, 128 * 8192) + touch(vTXA, S_X, sXB, 256))
    g(f"v_lshrrev_b32 v{t2}, 1, v{t0}")
    g(f"v_xor_b32 v{t2}, v{t2}, v{t1}")
    g(f"v_lshlrev_b32 v{t2}, 4, v{t2}")
    g(f"v_lshl_add_u32 v{t2}, v{t0}, 7, v{t2}")
    g(f"s_mul_i32 s{sT0}, s{sBSEL}, 6144")
    g(f"s_add_u32 s{sT0}, s{sT0}, {VB}")
    g(f"v_add_u32 v{vXR}, s{sT0}, v{t2}")
    g(f"v_xor_b32 v{vXR+1}, 64, v{vXR}")
    g(f"v_lshlrev_b32 v{t2}, 7, v{L}")
    g(f"v_cmp_gt_u32 vcc, 32, v{L}")
    srd(S_K, 66, 67, 12582912)
    g(f"v_cndmask_b32 v{vT32}, v{t5}, v{t2}, vcc")
    srd(S_V, 68, 69, 12582912)
    srd(S_WO, 72, 73, 3670016)
    srd(S_WS, 86, 87, 22020096)
    u0, u1, u2 = 10, 11, 12
    g(f"v_lshrrev_b32 v{u0}, 2, v{L}")
    g(f"v_and_b32 v{u1}, 7, v{u0}")
    g(f"v_and_b32 v{u2}, 3, v{L}")
    g(f"v_lshlrev_b32 v{u2}, 3, v{u2}")
    g(f"s_lshl_b32 s{sT0}, s{sJ}, 9")
    g(f"v_lshl_add_u32 v{t3}, v{u0}, 10, v{u2}")
    g(f"v_add_u32 v{t3}, s{sT0}, v{t3}")
    for T in range(8):
        g(f"v_xor_b32 v{t4}, {T}, v{u1}")
        g(f"v_lshl_add_u32 v{vWQR+T}, v{t4}, 5, v{t3}")
        g(f"v_add_u32 v{vWQR+8+T}, 0x10000, v{vWQR+T}")
    g(f"s_lshl_b32 s{sT0}, s{sB}, 4")
    g(f"s_add_u32 s{sT0}, s{sT0}, s{sH0}")
    g(f"s_add_u32 s{sT0}, s{sT0}, s{sJ}")
    g(f"s_mul_i32 s{sKB}, s{sT0}, 24576")
    g(f"s_mul_i32 s{sKM}, s{sW}, 8320")
    g(f"s_add_u32 s{sKM}, s{sKM}, {KA}")
    g(f"v_lshlrev_b32 v{t2}, 2, v{t1}")
    g(f"v_xor_b32 v{t2}, v{t2}, v{t0}")
    g(f"v_lshlrev_b32 v{t2}, 4, v{t2}")
    g(f"v_lshl_add_u32 v{vKD}, v{t1}, 9, v{t2}")
    g(f"v_lshrrev_b32 v{t2}, 2, v{t0}")
    g(f"v_mul_u32_u24 v{t2}, 1040, v{t2}")
    g(f"v_and_b32 v{t3}, 3, v{t0}")
    g(f"v_lshl_add_u32 v{t2}, v{t3}, 8, v{t2}")
    g(f"v_lshl_add_u32 v{t2}, v{t1}, 3, v{t2}")
    g(f"v_add_u32 v{t2}, s{sKM}, v{t2}")
    for s4 in range(4):
        g(f"v_xor_b32 v{t4}, {s4}, v{t3}")
        g(f"v_lshl_add_u32 v{vKR+s4}, v{t4}, 6, v{t2}")
    g(f"s_mul_i32 s{sWOBASE}, s{sH0}, 229376")
    g(f"s_lshl_b32 s{sT0}, s{sB0}, 4")
    g(f"s_add_u32 s{sT0}, s{sT0}, s{sH0}")
    g(f"s_mul_i32 s{sVBASE}, s{sT0}, 24576")
    g(f"s_add_u32 s{sT0}, s{sH0}, s{sBR}")
    g(f"s_lshl_b32 s{sT0}, s{sT0}, 5")
    g(f"s_add_u32 s{sT0}, s{sT0}, s{sB}")
    g(f"s_mul_i32 s{sST}, s{sT0}, 43008")
    g(f"s_mul_i32 s{sT0}, s{sJ}, 3072")
    g(f"s_add_u32 s{sST}, s{sST}, s{sT0}")
    g(f"s_mov_b32 s{sC}, 0x{struct.unpack('<I', struct.pack('<f', 1.4426950408889634/16.0))[0]:08x}")
    g(f"s_lshr_b32 s{sT0}, s{sWI}, 6")
    g(f"s_lshl_b32 s{sT1}, s{sHG}, 1")
    g(f"s_add_u32 s{sT0}, s{sT0}, s{sT1}")
    g(f"s_mul_i32 s{sTWO}, s{sT0}, 458752")
    g(f"s_and_b32 s{sT0}, s{sWI}, 63")
    g(f"s_mul_i32 s{sT0}, s{sT0}, 3584")
    g(f"s_add_u32 s{sTWO}, s{sTWO}, s{sT0}")
    g(f"s_mul_i32 s{sT0}, s{sBSEL}, 24576")
    g(f"s_add_u32 s{sT0}, s{sT0}, {VB}")
    g(f"v_xor_b32 v{t3}, v{t1}, v{t0}")
    g(f"v_lshlrev_b32 v{t3}, 4, v{t3}")
    g(f"v_lshl_add_u32 v{t3}, v{t0}, 8, v{t3}")
    g(f"v_add_u32 v{vVR}, s{sT0}, v{t3}")
    for s4 in range(1, 4):
        g(f"v_xor_b32 v{vVR+s4}, {64*s4}, v{vVR}")
    g(f"s_lshl_b32 s{sT0}, s{sW}, 2")
    g(f"v_add_u32 v{t3}, s{sT0}, v{t1}")
    g(f"v_xor_b32 v{t3}, v{t3}, v{t0}")
    g(f"v_lshlrev_b32 v{t3}, 4, v{t3}")
    g(f"v_lshl_add_u32 v{t3}, v{t1}, 9, v{t3}")
    g(f"s_lshl_b32 s{sT0}, s{sW}, 11")
    g(f"v_add_u32 v{vVD}, s{sT0}, v{t3}")
    g(f"v_lshl_add_u32 v{t3}, v{u0}, 7, v{u2}")
    g(f"v_bfe_u32 v{t2}, v{L}, 3, 2")
    g(f"s_lshl_b32 s{sT0}, s{sJ}, 1")
    for T in range(2):
        g(f"s_add_u32 s{sT3}, s{sT0}, {T}")
        g(f"v_xor_b32 v{t4}, s{sT3}, v{t2}")
        g(f"v_lshl_add_u32 v{vWOR+T}, v{t4}, 5, v{t3}")
        g(f"v_add_u32 v{vWOR+2+T}, 0x10000, v{vWOR+T}")
    g(f"v_lshrrev_b32 v{t3}, 5, v{L}")
    g(f"v_lshl_add_u32 v{t2}, v{t3}, 3, v{t2}")
    g(f"v_mul_u32_u24 v{t2}, 896, v{t2}")
    g(f"v_lshlrev_b32 v{t3}, 1, v{t1}")
    g(f"v_and_b32 v{t4}, 7, v{L}")
    g(f"v_xor_b32 v{t3}, v{t3}, v{t4}")
    g(f"v_lshl_add_u32 v{t2}, v{t3}, 4, v{t2}")
    g(f"s_mul_i32 s{sT0}, s{sW}, 57344")
    g(f"v_add_u32 v{vWOD}, s{sT0}, v{t2}")
    for k in range(1, 4):
        g(f"v_add_u32 v{vWOD+k}, {(16*(k&1) + 4*(k>>1))*896 - k*1024}, v{vWOD}")
    g(f"s_mul_i32 s{sT0}, s{sBSEL}, 4608")
    g(f"s_add_u32 s{sT0}, s{sT0}, {PB}")
    g(f"v_add_u32 v{vPW}, s{sT0}, v{vSTO}")
    g(f"s_add_u32 s{sT0}, s{sT0}, 1024")
    g(f"v_lshl_add_u32 v{vPW2}, v{L}, 3, s{sT0}")
    emit_list(ring_dma(0))
    stamp('pro')
    g.wait_tag("R0")
    g.barrier()
    stamp('b0')
    import copy
    NC = OPT['nc']
    for cls in range(1, NC):
        g(f"s_cmp_eq_u32 s{sCLS}, {cls}")
        g(f"s_cbranch_scc1 L_body_{cls}")
    saved = copy.deepcopy({k: v for k, v in g.__dict__.items() if k != 'lines'})
    st0 = (nstamp, pending, list(names))
    for cls in range(NC):
        for k, v in copy.deepcopy(saved).items(): setattr(g, k, v)
        globals().update(nstamp=st0[0], pending=st0[1], names=list(st0[2]))
        if cls: g.raw(".p2align 6"); g.raw(f"L_body_{cls}:")
        body(cls)
    g.raw("L_main_end:")
    g("s_endpgm")

def body(cls):
    KS = [OPT[f'k{u}'] + cls * OPT['kstep'] for u in range(3)]
    TWO0 = OPT['t_wo0'] + cls * OPT['kstep']
    TB = OPT['t_b'] + cls * OPT['kstep']
    V1A = OPT['v1'] + (cls * OPT['vstep']) % 3
    V1B = OPT['v1b'] - 3 + (3 + cls * OPT['vstep']) % 3 + (0 if True else 0)
    V1B = min(V1A + (OPT['v1b'] - OPT['v1']), 18)
    emit_list(x_reads(0))
    def early_touches(R):
        o = []
        if R == OPT['t_a']: o += touch(vT16, S_WQ, sTWQ, 128 * 8192) + touch(vTXA, S_X, sXB, 256)
        if R == TB: o += touch(vTWQ, S_WQ, sTWQ, 256 * 8192) + touch(vTXB, S_X, sXB, 512)
        return o
    fq.add(x_reads(1) + ring_dma(1) + ring_dma(2) + early_touches(0))
    x_issue = {1: (2, "R3"), 2: (3, "R4"), 5: (4, "R7"), 6: (5, "R8"), 8: (6, "R10")}
    x_read = {3: 2, 4: 3, 7: 4, 8: 5, 10: 6}
    k_issue = {KS[u]: u for u in range(3)}
    k_read = {KS[u] + OPT['kw']: u for u in range(3)}
    assert max(k_read) <= 13
    for u in range(2): assert KS[u+1] > KS[u] + OPT['kw']
    if 0 in k_issue: fq.add(k_dma(k_issue[0], f"R{OPT['kw']}"))
    def after1(R):
        out = []
        if R in x_read: out += x_reads(x_read[R])
        if R in k_read: out += k_reads(k_read[R])
        out += ring_dma(R + 2)
        if R in x_issue: out += x_dma(*x_issue[R])
        if R in k_issue: out += k_dma(k_issue[R], f"R{R+OPT['kw']}")
        if R == TWO0: out += touch(vT32, S_WO, sTWO, 0)
        out += early_touches(R)
        if R == OPT['v0a']: out += v_dma(0, range(7))
        if R == 14: out += v_dma(0, range(7, 12))
        if R == OPT['t_wo1']: out += touch(vT32, S_WO, sTWO, 229376)
        return out
    run_stages(q_groups(), after1, lambda R: f"R{R}" if R < 14 else "none", tail_barrier=True)
    stamp('G1end')
    def s_mf(t):
        return [f"v_mfma_f32_16x16x32_bf16 {vr(SACC+(t*3+u)*4)}, {ar(aK+(u*8+s)*4)}, {vr(QFRAG(s,t))}, {vr(SACC+(t*3+u)*4) if s else 0}"
                for s in range(8) for u in range(3)]
    def paced(ins_list, every):
        n = 0
        for ins in ins_list:
            g(ins); n += 1
            if n % every == 0:
                while len(fq) and not fq.is_vm(fq.q[0]): fq.pop()
                if len(fq): fq.pop()
    paced(cvt_pairs(QACC, range(8), 0), 8)
    def mix(mf, fill):
        o = []; fill = list(fill)
        for m in mf:
            o.append(m)
            for _ in range(2):
                if fill: o.append(fill.pop(0))
        return o + fill
    paced(mix(s_mf(0), cvt_pairs(QACC, range(8), 1)), 10)
    paced(mix(s_mf(1), cvt_pairs(QACC, range(8), 2)), 10)
    fq.drain()
    sm0 = softmax_ops(0)
    interleave(s_mf(2), sm0[:40])
    for ins in merge(sm0[40:], softmax_ops(1), softmax_ops(2)): g(ins)
    stamp('SM')
    p_write(0, f"L_pw0_{cls}")
    g.wait_tag(["V0", "R14"], lg=0)
    g.barrier()
    stamp('Pbar')
    for u in range(3): emit_list([v_read(u, 0)])
    for s in range(1, 8):
        fq.add([v_read(u, s) for u in range(3)])
    fq.add(p_reads(0))
    def after2(R):
        out = []
        if R == OPT['p1'] + 1: out += p_reads(1)
        out += ring_dma(R + 2)
        if R == V1A: out += v_dma(1, range(6))
        if R == V1B: out += v_dma(1, range(6, 12))
        if R == OPT['t_wo1']: out += touch(vT32, S_WO, sTWO, 229376)
        if R == OPT['p1']: out.append(lambda: p_write(1, f"L_pw1_{cls}"))
        return out
    def wt(R):
        return [f"R{R}", "V1"] if R == 20 else f"R{R}"
    run_stages(o_groups(), after2, wt, tail_barrier=False)
    fq.drain()
    stamp('G2end')
    emit_list(vw_cvt(27))
    fa, fb = final_groups(27, 27)
    for m in fa['mfmas'] + fb['mfmas']: g(m)
    emit_list(epilogue_ops(6))
    stamp('epi')
    if OPT['stamps']:
        g.wait_all()
        stamp('drain')
    finish_stamps(cls)

def reduce_kernel():
    global g
    lines = g.lines
    g = Gen(); g.lines = lines
    kernel_open(RED)
    g("s_cmp_ge_u32 s2, 448")
    g("s_cbranch_scc1 L_red_end")
    g("s_load_dwordx2 s[4:5], s[0:1], 80")
    g("s_load_dwordx2 s[6:7], s[0:1], 96")
    g("s_mov_b32 s16, 0x24924925")
    g("s_mul_hi_u32 s17, s2, s16")
    g("s_mul_i32 s18, s17, 7")
    g("s_sub_u32 s18, s2, s18")
    g("s_mul_i32 s19, s17, 43008")
    g("s_mul_i32 s20, s18, 6144")
    g("s_add_u32 s19, s19, s20")
    g("v_lshlrev_b32 v1, 4, v0")
    g("v_lshrrev_b32 v2, 6, v0")
    g("v_and_b32 v3, 63, v0")
    g("v_readfirstlane_b32 s21, v2")
    g("s_cmp_ge_u32 s21, 3")
    g("s_cselect_b32 s22, 1, 0")
    g("s_mul_i32 s23, s22, 3")
    g("s_sub_u32 s23, s21, s23")
    g("s_and_b32 s24, s17, 31")
    g("s_lshr_b32 s25, s17, 5")
    g("s_mul_i32 s24, s24, 48")
    g("s_lshl_b32 s23, s23, 4")
    g("s_add_u32 s24, s24, s23")
    g("s_mul_i32 s24, s24, 1792")
    g("s_mul_i32 s25, s25, 896")
    g("s_add_u32 s24, s24, s25")
    g("s_lshl_b32 s26, s18, 7")
    g("s_add_u32 s24, s24, s26")
    g("s_lshl_b32 s26, s22, 6")
    g("s_add_u32 s24, s24, s26")
    g("v_and_b32 v4, 15, v3")
    g("v_mul_u32_u24 v4, 1792, v4")
    g("v_lshrrev_b32 v5, 4, v3")
    g("v_lshl_add_u32 v4, v5, 4, v4")
    g.smem_wait()
    srd(8, 6, 7, 22020096)
    srd(12, 4, 5, 2752512)
    for p in range(8):
        if p:
            g(f"s_add_u32 s19, s19, {64*43008}")
        g(f"buffer_load_dwordx4 {vr(8+4*p)}, v1, s[8:11], s19 offen{FL[OPT['ldf']]}")
    for p in range(8):
        for k in range(4):
            src = 8 + 4 * p + k
            if p == 0:
                g(f"v_lshlrev_b32 v{40+2*k}, 16, v{src}")
                g(f"v_and_b32 v{41+2*k}, 0xffff0000, v{src}")
            else:
                g(f"v_lshlrev_b32 v{48+2*k}, 16, v{src}")
                g(f"v_and_b32 v{49+2*k}, 0xffff0000, v{src}")
        if p:
            for k in range(8):
                g(f"v_add_f32 v{40+k}, v{40+k}, v{48+k}")
    for k in range(4):
        g(f"v_cvt_pk_bf16_f32 v{56+k}, v{40+2*k}, v{41+2*k}")
    g("v_permlane32_swap_b32 v56, v58")
    g("v_permlane32_swap_b32 v57, v59")
    g("v_permlane16_swap_b32 v56, v58")
    g("v_permlane16_swap_b32 v57, v59")
    g(f"buffer_store_dwordx4 v[56:59], v4, s[12:15], s24 offen{FL[OPT['osf']]}")
    g.raw("L_red_end:")
    g("s_endpgm")

def descriptors():
    g.raw('.section .rodata,"a"')
    for name, nv, acc in ((MAIN, 512, 256), (RED, 64, 64)):
        g.raw(".p2align 6")
        g.raw(f".amdhsa_kernel {name}")
        g.raw(f"  .amdhsa_next_free_vgpr {nv}")
        g.raw("  .amdhsa_next_free_sgpr 102")
        g.raw(f"  .amdhsa_accum_offset {acc}")
        g.raw("  .amdhsa_group_segment_fixed_size 0")
        g.raw("  .amdhsa_kernarg_size 104")
        g.raw("  .amdhsa_user_sgpr_count 2")
        g.raw("  .amdhsa_user_sgpr_kernarg_segment_ptr 1")
        g.raw("  .amdhsa_system_sgpr_workgroup_id_x 1")
        g.raw("  .amdhsa_float_denorm_mode_32 3")
        g.raw(".end_amdhsa_kernel")

header()
main_kernel()
st = dict(g.stats)
reduce_kernel()
descriptors()
open(sys.argv[1], "w").write(g.text())
print("main stats", st, "forced", fq.forced)
```

```python
import sys, struct, json
from asmgen import Gen, classify

NAME = "concat_heads__mha_block_cached__gqa_block_cached__near_ridge"
MAIN = NAME + "_kernel"
RED = "reduce_partials_kernel"

OPT = dict(bar_group=10, D=7, stamps=0, code_pf=1, touch=1, ntk=1, ntv=1, nttw=0, nttx=0,
           k0=2, k1=6, k2=10, kw=3, t_wo0=10, t_wo1=14, v1=15, v1b=18, p1=17, t_a=0, t_b=3, v0a=14, nc=1, kstep=1, vstep=1, ntfirst=1, pace=1, diag=0, nok=0, nov=0, now=0, nost=0, nox=0, dbg=0, stf=1, ldf=0, osf=0, tlb=0)
FL = ['', ' sc1', ' sc0 sc1', ' nt', ' sc1 nt', ' sc0 sc1 nt']
for a in sys.argv[2:]:
    k, v = a.split('=')
    assert k in OPT, k
    OPT[k] = int(v)
def NT(k): return ' nt' if OPT[k] else ''

SLOT = 32768
VB = 3 * SLOT
XU = 12288
KA = VB + 65536 - 4 * 8320
PB = VB + 49152
LDS_BYTES = 163840
BIG = 0x7ffff000

S_X, S_K, S_V, S_WQ, S_WO, S_WS = 8, 12, 16, 20, 24, 28
sW, sBSEL, sJ, sBR, sH0, sB0, sB = 32, 33, 34, 35, 36, 37, 38
sWQB = 39
sXB, sXM, sKB, sKM, sXO, sKO, sWQO, sWOO, sWOO2, sVO = 40, 41, 42, 43, 44, 45, 46, 47, 48, 49
sM, sVM, sST, sC = 50, 51, 52, 53
sT0, sT1, sT2, sT3 = 54, 55, 56, 57
sVBASE, sWOBASE = 58, 59
sPC = 60
sTWQ = 63
sHG, sHP, sWI, sTWO, sCLS = 88, 89, 90, 91, 94
STB = 64

def QACC(T, t): return (((T // 2) * 3 + t) * 4) + (96 if T & 1 else 0)
def QFRAG(s, t): return (s * 3 + t) * 4
SACC = 192
vWQR = 192
vWQD = 208
vXR = 216
vXD = 218
vKR = 219
vKD = 223
vTWQ = 224
vTXA = 225
vTXB = 226
vT16 = 227
vWOD = 228
vVD = 232
vVR = 233
vWOR = 237
vSTO = 241
vPW = 242
vPW2 = 243
vT32 = 244
vDUM = 245
vSM = 246
def VFRAG(u, s): return (u * 8 + s) * 4
vPOWN = 96
vP = [114, 132]
vVWB = 150
vEP = 96
def VWACC(par, T, u): return 180 + par * 24 + (T * 3 + u) * 4
aFR, aK, aX, XRING, aOUT = 0, 32, 128, 10, 32
def OUTACC(c, T, t): return aOUT + ((c * 2 + T) * 3 + t) * 4

def vr(b, n=4): return f"v[{b}:{b+n-1}]"
def ar(b, n=4): return f"a[{b}:{b+n-1}]"
def sr(b, n=4): return f"s[{b}:{b+n-1}]"

g = Gen()
nstamp = 0
vSTAMP = 255
pending = False
names = []
def stamp_flush():
    global pending
    if pending:
        g(f"v_writelane_b32 v{vSTAMP}, s92, {nstamp-1}")
        pending = False
def stamp(name="", real=False, drained=False):
    global nstamp, pending
    if OPT['stamps']:
        if pending:
            if not drained: g.smem_wait()
            stamp_flush()
        g(f"{'s_memrealtime' if real else 's_memtime'} s[92:93]")
        names.append(name); nstamp += 1; pending = True

def header():
    g.raw("; fused attention block: launch 1 computes per-head-pair partial outputs, launch 2 sums them")
    g.raw(f"; @launch kernel={MAIN} grid=(256,1,1) block=(256,1,1) lds={LDS_BYTES}")
    g.raw(f"; @launch kernel={RED} grid=(448,1,1) block=(384,1,1) lds=0")
    g.raw('.amdgcn_target "amdgcn-amd-amdhsa--gfx950"')
    g.raw(".text")

def kernel_open(name):
    g.raw(f".globl {name}")
    g.raw(".p2align 8")
    g.raw(f".type {name},@function")
    g.raw(f"{name}:")

def srd(dst, lo, hi, nbytes):
    g(f"s_mov_b32 s{dst}, s{lo}")
    g(f"s_and_b32 s{dst+1}, s{hi}, 0xffff")
    g(f"s_mov_b32 s{dst+2}, {nbytes}")
    g(f"s_mov_b32 s{dst+3}, 0x20000")

def wq_dma(R):
    slot = (R % 3) * SLOT
    out = [(f"s_add_u32 s{sWQO}, s{sWQB}, {R*262144}", None)]
    for i in range(8):
        if i % 4 == 0:
            out.append((f"s_add_u32 m0, s{sM}, {slot + (i//4)*4096}", None))
        out.append((f"buffer_load_dwordx4 v{vWQD+i}, {sr(S_WQ)}, s{sWQO} offen offset:{(i%4)*1024} lds", f"R{R}"))
    return out

def wo_dma(R):
    hh, c = divmod(R - 14, 7)
    slot = (R % 3) * SLOT
    out = [(f"s_add_u32 s{sWOO}, s{sWOBASE}, {hh*229376 + c*128}", None),
           (f"s_add_u32 s{sWOO2}, s{sWOBASE}, {hh*229376 + c*128 + 28672}", None)]
    for i in range(8):
        if i % 4 == 0:
            out.append((f"s_add_u32 m0, s{sM}, {slot + (i//4)*4096}", None))
        so = sWOO if i < 4 else sWOO2
        out.append((f"buffer_load_dwordx4 v{vWOD+(i%4)}, {sr(S_WO)}, s{so} offen offset:{(i%4)*1024} lds", f"R{R}"))
    return out

def ring_dma(R):
    if OPT['now'] and R > 2: return []
    if R < 14: return wq_dma(R)
    if R < 28: return wo_dma(R)
    return []

def x_dma(p, tag):
    out = []
    if OPT['nox'] and p > 1: return out
    for k in range(3):
        out.append((f"s_add_u32 s{sXO}, s{sXB}, {p*128 + k*28672}", None))
        out.append((f"s_add_u32 m0, s{sXM}, {(p % 2)*XU + k*4096}", None))
        out.append((f"buffer_load_dwordx4 v{vXD}, {sr(S_X)}, s{sXO} offen{NT('ntfirst') if p < 2 else ''} lds", tag))
    return out

def x_reads(p):
    out = []
    for s2 in range(2):
        s = 2 * p + s2
        for t in range(3):
            d = aX + (s % XRING) * 12 + t * 4
            out.append((f"ds_read_b128 {ar(d)}, v{vXR+s2} offset:{(p % 2)*XU + t*2048}", None))
    return out

def k_dma(u, tag):
    out = []
    if OPT['nok']: return out
    for dh in range(2):
        out.append((f"s_add_u32 m0, s{sKM}, {dh*4160}", None))
        for j in range(4):
            out.append((f"s_add_u32 s{sKO}, s{sKB}, {u*8192 + dh*256 + j*(2048-1040)}", None))
            out.append((f"buffer_load_dwordx4 v{vKD}, {sr(S_K)}, s{sKO} offen offset:{j*1040}{NT('ntk')} lds", tag))
    return out

def k_reads(u):
    out = []
    for dh in range(2):
        for s4 in range(4):
            for p in range(2):
                d = aK + (u * 8 + dh * 4 + s4) * 4 + 2 * p
                out.append((f"ds_read_b64 {ar(d,2)}, v{vKR+s4} offset:{dh*4160 + 32*p}", None))
    return out

def v_dma(hh, subs):
    out = []
    if OPT['nov']: return out
    for sub in subs:
        bb, r = divmod(sub, 6); u, dh = divmod(r, 2)
        out.append((f"s_add_u32 s{sVO}, s{sVBASE}, {hh*24576 + bb*393216 + u*8192 + dh*256}", None))
        out.append((f"s_add_u32 m0, s{sVM}, {sub*4096}", None))
        out.append((f"buffer_load_dwordx4 v{vVD}, {sr(S_V)}, s{sVO} offen{NT('ntv')} lds", f"V{hh}"))
    return out

def v_read(u, s):
    dh, s4 = divmod(s, 4)
    return (f"ds_read_b128 {vr(VFRAG(u,s))}, v{vVR+s4} offset:{(u*2+dh)*4096}", None)

def touch(vaddr, srd_, sbase, add):
    key = {S_WQ: 'nttw', S_WO: 'nttw', S_X: 'nttx'}[srd_]
    if not OPT['touch']: return []
    return [(f"s_add_u32 s{sT1}, s{sbase}, {add}", None),
            (f"buffer_load_dword v{vDUM}, v{vaddr}, {sr(srd_)}, s{sT1} offen{NT(key)}", None, True)]

class FillQ:
    def __init__(self): self.q = []
    def add(self, items): self.q.extend(items)
    def pop(self):
        it = self.q.pop(0)
        if callable(it): it()
        else: g(it[0], tag=it[1], nodst=(len(it) > 2))
    def __len__(self): return len(self.q)
    def is_vm(self, it):
        return (not callable(it)) and it[0].startswith(('buffer_', 'global_'))
    def nvm(self): return sum(1 for it in self.q if self.is_vm(it))
    def drain(self):
        while self.q: self.pop()
    def guard(self, text):
        _, _, _, _, rd, wr = classify(text)
        rd = {r for r in rd if r[0] != 's'}; wr = {r for r in wr if r[0] != 's'}
        last = -1
        for i, it in enumerate(self.q):
            if callable(it): continue
            _, _, _, _, frd, fwr = classify(it[0])
            if len(it) > 2: fwr = []
            if (set(fwr) & (rd | wr)) or (set(frd) & wr): last = i
        if last >= 0: self.forced += last + 1
        for _ in range(last + 1): self.pop()
    forced = 0
fq = FillQ()
def emit_list(l):
    for it in l: g(it[0], tag=it[1], nodst=(len(it) > 2))

def run_stages(groups, after_barrier, wait_tags, tail_barrier=None, ring=8, nreg=4):
    D = min(OPT['D'], ring - 1)
    open_stage = groups[0]['stage']
    pend = []
    fr = 0
    for n, gr in enumerate(groups):
        gr['fr'] = fr
        if gr['reads']:
            d = aFR + (fr % ring) * nreg
            for k, rt in enumerate(gr['reads']):
                pend.append((fr, gr['stage'], rt.format(d=ar(d + 2 * k, 2))))
            fr += 1
    rp = 0
    def can_read(f_cur):
        if rp >= len(pend): return False
        f, st, _ = pend[rp]
        return st <= open_stage and f <= f_cur + D
    while rp < len(pend) and pend[rp][0] < D and pend[rp][1] <= open_stage:
        g(pend[rp][2]); rp += 1
    last_stage = groups[-1]['stage']
    left = [0] * len(groups)
    acc = 0
    for n in range(len(groups) - 1, -1, -1):
        if groups[n].get('idx') == OPT['bar_group']: acc = 0
        acc += len(groups[n]['mfmas'])
        left[n] = acc
    since_vm = 1000
    for n, gr in enumerate(groups):
        f = gr['fr']
        d = aFR + (f % ring) * nreg
        if gr['reads']:
            while rp < len(pend) and pend[rp][0] <= f:
                assert pend[rp][1] <= open_stage
                g(pend[rp][2]); rp += 1
        fcur = f if gr['reads'] else f - 1
        R = gr['stage']
        for it in gr.get('pre', []): fq.q.insert(0, it) if False else None
        if gr.get('front'):
            fq.q[0:0] = gr['front']
        for k, mt in enumerate(gr['mfmas']):
            fq.guard(mt.format(a=ar(d)))
            g(mt.format(a=ar(d)))
            budget = 2
            since_vm += 1
            rem = left[n] - k - 1
            while budget:
                if can_read(fcur):
                    g(pend[rp][2]); rp += 1; budget -= 1
                elif len(fq):
                    j = None
                    if fq.is_vm(fq.q[0]) and OPT['pace']:
                        gap = max(1, (rem - 2) // max(1, fq.nvm()))
                        if since_vm >= min(gap, OPT['pace'] * 6): j = 0
                        else:
                            for i, it in enumerate(fq.q):
                                if callable(it): break
                                if fq.is_vm(it) or it[0].startswith('s_'): continue
                                _, _, _, _, rd_, wr_ = classify(it[0])
                                clash = False
                                for e in fq.q[:i]:
                                    _, _, _, _, erd, ewr = classify(e[0])
                                    if (set(erd) | set(ewr)) & set(wr_) or set(ewr) & set(rd_): clash = True
                                if not clash: j = i
                                break
                    else:
                        j = 0
                    if j is None: break
                    if j == 0:
                        if fq.is_vm(fq.q[0]): since_vm = 0
                        fq.pop()
                    else:
                        it = fq.q.pop(j); g(it[0], tag=it[1], nodst=(len(it) > 2))
                    budget -= 1
                else:
                    break
        for it in gr.get('post', []):
            fq.add([it])
        if gr.get('idx') == OPT['bar_group'] and (R < last_stage or tail_barrier):
            while rp < len(pend) and pend[rp][1] <= R:
                g(pend[rp][2]); rp += 1
            fq.drain()
            g.wait_tag(wait_tags(R + 1), lg=0)
            if OPT['stamps'] > 1: g.smem_wait()
            g.barrier()
            if OPT['stamps'] > 1: stamp(f"b{R+1}", drained=True)
            open_stage = R + 1
            fq.add(after_barrier(R + 1))

def interleave(mf, fill, per=2):
    fill = list(fill)
    for m in mf:
        g(m)
        for _ in range(per):
            if fill: g(fill.pop(0))
            elif len(fq): fq.pop()
    for f in fill: g(f)

def softmax_ops(t):
    S = [SACC + 12 * t + k for k in range(12)]
    m, x = vSM + 2 * t, vSM + 2 * t + 1
    o = []
    o.append(f"v_max3_f32 v{m}, v{S[0]}, v{S[1]}, v{S[2]}")
    o.append(f"v_max3_f32 v{x}, v{S[3]}, v{S[4]}, v{S[5]}")
    o.append(f"v_max3_f32 v{m}, v{m}, v{S[6]}, v{S[7]}")
    o.append(f"v_max3_f32 v{x}, v{x}, v{S[8]}, v{S[9]}")
    o.append(f"v_max3_f32 v{m}, v{m}, v{S[10]}, v{S[11]}")
    o.append(f"v_max_f32 v{m}, v{m}, v{x}")
    for sw in ("v_permlane32_swap_b32", "v_permlane16_swap_b32"):
        o.append(f"v_mov_b32 v{x}, v{m}")
        o.append(f"{sw} v{m}, v{x}")
        o.append(f"v_max_f32 v{m}, v{m}, v{x}")
    o.append(f"v_mul_f32 v{m}, s{sC}, v{m}")
    for k in range(12):
        o.append(f"v_fma_f32 v{S[k]}, v{S[k]}, s{sC}, -v{m}")
    for k in range(12):
        o.append(f"v_exp_f32 v{S[k]}, v{S[k]}")
    o.append(f"v_add_f32 v{m}, v{S[0]}, v{S[1]}")
    o.append(f"v_add_f32 v{x}, v{S[2]}, v{S[3]}")
    for k in range(4, 12, 2):
        o.append(f"v_add_f32 v{m}, v{m}, v{S[k]}")
        o.append(f"v_add_f32 v{x}, v{x}, v{S[k+1]}")
    o.append(f"v_add_f32 v{m}, v{m}, v{x}")
    for sw in ("v_permlane32_swap_b32", "v_permlane16_swap_b32"):
        o.append(f"v_mov_b32 v{x}, v{m}")
        o.append(f"{sw} v{m}, v{x}")
        o.append(f"v_add_f32 v{m}, v{m}, v{x}")
    o.append(f"v_rcp_f32 v{m}, v{m}")
    for k in range(12):
        o.append(f"v_mul_f32 v{S[k]}, v{S[k]}, v{m}")
    for k in range(6):
        o.append(f"v_cvt_pk_bf16_f32 v{vPOWN + 6*t + k}, v{S[2*k]}, v{S[2*k+1]}")
    return o

def merge(*lists):
    out = []
    n = max(len(l) for l in lists)
    for i in range(n):
        for l in lists:
            if i < len(l): out.append(l[i])
    return out

def cvt_pairs(acc, s_list, t):
    o = []
    for s in s_list:
        b, b2 = acc(2 * s, t), acc(2 * s + 1, t)
        o.append(f"v_cvt_pk_bf16_f32 v{b}, v{b}, v{b+1}")
        o.append(f"v_cvt_pk_bf16_f32 v{b+1}, v{b+2}, v{b+3}")
        o.append(f"v_cvt_pk_bf16_f32 v{b+2}, v{b2}, v{b2+1}")
        o.append(f"v_cvt_pk_bf16_f32 v{b+3}, v{b2+2}, v{b2+3}")
    return o

def p_write(which, lbl):
    g.wait_all(vm=False, lg=True)
    g(f"s_cmp_lg_u32 s{sJ}, {which}")
    g(f"s_cbranch_scc1 {lbl}")
    n0 = g.n
    for t in range(3):
        g(f"ds_write_b128 v{vPW}, {vr(vPOWN+6*t)} offset:{t*1536}")
        g(f"ds_write_b64 v{vPW2}, {vr(vPOWN+6*t+4,2)} offset:{t*1536}")
    g.wait_all(vm=False, lg=True)
    g.raw(f"{lbl}:")
    g.n = n0

def p_reads(hh):
    o = []
    for t in range(3):
        o.append((f"ds_read_b128 {vr(vP[hh]+6*t)}, v{vPW} offset:{t*1536}", None))
        o.append((f"ds_read_b64 {vr(vP[hh]+6*t+4,2)}, v{vPW2} offset:{t*1536}", None))
    return o

def q_groups():
    gs = []
    for s in range(14):
        slot = s % 3
        win, base = (1, 0) if slot == 2 else (0, slot * SLOT)
        for T in range(16):
            reads = [f"ds_read_b64_tr_b16 {{d}}, v{vWQR + win*8 + (T & 7)} offset:{base + rd*16384 + (T>>3)*256}" for rd in range(2)]
            mf = []
            for t in range(3):
                acc = vr(QACC(T, t))
                xb = ar(aX + (s % XRING) * 12 + t * 4)
                mf.append(f"v_mfma_f32_16x16x32_bf16 {acc}, {{a}}, {xb}, {acc if s else 0}")
            gs.append(dict(stage=s, reads=reads, mfmas=mf, idx=T))
    return gs

def vw_cvt(R):
    par = R % 2
    o = []
    for T in range(2):
        for u in range(3):
            b = VWACC(par, T, u)
            o.append((f"v_cvt_pk_bf16_f32 v{vVWB+6*T+2*u}, v{b}, v{b+1}", None))
            o.append((f"v_cvt_pk_bf16_f32 v{vVWB+6*T+2*u+1}, v{b+2}, v{b+3}", None))
    return o

def final_groups(R, stage):
    hh, c = divmod(R - 14, 7)
    a, b = [], []
    for T in range(2):
        for t in range(3):
            acc = ar(OUTACC(c, T, t))
            a.append(f"v_mfma_f32_16x16x32_bf16 {acc}, {vr(vVWB+6*T)}, {vr(vP[hh]+6*t)}, {acc if hh else 0}")
            b.append(f"v_mfma_f32_16x16x16_bf16 {acc}, {vr(vVWB+6*T+4,2)}, {vr(vP[hh]+6*t+4,2)}, {acc}")
    return dict(stage=stage, reads=[], mfmas=a), dict(stage=stage, reads=[], mfmas=b)

def epilogue_ops(c):
    o = [(f"s_add_u32 s{sT0}, s{sST}, {c*6144}", None)]
    for t in range(3):
        tb = vEP + t * 8
        for T in range(2):
            for r in range(4):
                o.append((f"v_accvgpr_read_b32 v{tb + T*4 + r}, a{OUTACC(c,T,t)+r}", None))
        for k in range(4):
            o.append((f"v_cvt_pk_bf16_f32 v{tb+k}, v{tb+2*k}, v{tb+2*k+1}", None))
        if not OPT['nost']: o.append((f"buffer_store_dwordx4 {vr(tb)}, v{vSTO}, {sr(S_WS)}, s{sT0} offen offset:{t*1024}{FL[OPT['stf']]}", None))
    return o

def o_groups():
    gs = []
    for R in range(14, 28):
        hh, c = divmod(R - 14, 7)
        slot = R % 3
        win, base = (1, 0) if slot == 2 else (0, slot * SLOT)
        for s in range(8):
            for T in range(2):
                idx = 2 * s + T
                reads = [f"ds_read_b64_tr_b16 {{d}}, v{vWOR + win*2 + T} offset:{base + s*4096 + rd*2048}" for rd in range(2)]
                mf = []
                for u in range(3):
                    acc = vr(VWACC(R % 2, T, u))
                    mf.append(f"v_mfma_f32_16x16x32_bf16 {acc}, {vr(VFRAG(u,s))}, {{a}}, {acc if s else 0}")
                gr = dict(stage=R, reads=reads, mfmas=mf, idx=idx)
                if R > 14 and idx == 2: gr['front'] = vw_cvt(R - 1)
                if R == 20 and T == 1:
                    gr['post'] = [v_read(u, s) for u in range(3)]
                gs.append(gr)
                if R > 14 and idx == 5: gs.append(final_groups(R - 1, R)[0])
                if R > 14 and idx == 7:
                    gb = final_groups(R - 1, R)[1]
                    gs.append(gb)
                if R > 21 and idx == 11: gs[-1]['post'] = epilogue_ops(R - 22)
    return gs

def finish_stamps(cls):
    if OPT['stamps']:
        stamp("real_end", real=True)
        g.smem_wait(); stamp_flush()
        g(f"v_writelane_b32 v{vSTAMP}, s98, 62")
        g(f"v_writelane_b32 v{vSTAMP}, s96, 63")
        g(f"s_lshl_b32 s{sT0}, s2, 2")
        g(f"s_add_u32 s{sT0}, s{sT0}, s{sW}")
        g(f"s_lshl_b32 s{sT0}, s{sT0}, 8")
        g(f"s_add_u32 s{sT0}, s{sT0}, {24<<20}")
        g(f"s_mov_b32 s{S_WS+2}, 0x10000000")
        g(f"v_lshrrev_b32 v1, 2, v{vSTO}")
        g(f"buffer_store_dword v{vSTAMP}, v1, {sr(S_WS)}, s{sT0} offen")
        json.dump(names, open(sys.argv[1] + ".names", "w"))
    g("s_endpgm")

def main_kernel():
    kernel_open(MAIN)
    g(f"s_cmp_ge_u32 s2, 256")
    g(f"s_cbranch_scc1 L_main_end")
    if OPT['stamps']:
        g("s_memrealtime s[96:97]")
        g("s_memtime s[98:99]")
    g("s_load_dwordx8 s[64:71], s[0:1], 0")
    g("s_load_dwordx2 s[72:73], s[0:1], 32")
    g("s_load_dwordx8 s[76:83], s[0:1], 40")
    g("s_load_dwordx2 s[84:85], s[0:1], 72")
    g("s_load_dwordx2 s[86:87], s[0:1], 96")
    g(f"s_getpc_b64 s[{sPC}:{sPC+1}]")
    g.raw("L_pc:")
    L = 1
    t0, t1, t2, t3, t4, t5 = 2, 3, 4, 5, 6, 7
    g(f"v_lshrrev_b32 v{t0}, 6, v0")
    g(f"v_and_b32 v{L}, 63, v0")
    g(f"v_readfirstlane_b32 s{sW}, v{t0}")
    g(f"s_and_b32 s{sT0}, s2, 7")
    g(f"s_lshr_b32 s{sT1}, s2, 3")
    g(f"s_lshr_b32 s{sBR}, s{sT0}, 2")
    g(f"s_and_b32 s{sHG}, s{sT0}, 3")
    g(f"s_lshl_b32 s{sT0}, s{sHG}, 2")
    g(f"s_and_b32 s{sHP}, s{sT1}, 1")
    g(f"s_lshl_b32 s{sT2}, s{sHP}, 1")
    g(f"s_add_u32 s{sH0}, s{sT0}, s{sT2}")
    g(f"s_lshr_b32 s{sB0}, s{sT1}, 1")
    if OPT['nc'] == 3:
        g(f"s_mul_i32 s{sCLS}, s{sB0}, 11")
        g(f"s_lshr_b32 s{sCLS}, s{sCLS}, 5")
        g(f"s_mul_i32 s{sCLS}, s{sCLS}, 3")
        g(f"s_sub_u32 s{sCLS}, s{sB0}, s{sCLS}")
    else:
        g(f"s_and_b32 s{sCLS}, s{sB0}, {OPT['nc']-1}")
    g(f"s_lshl_b32 s{sB0}, s{sB0}, 1")
    g(f"s_lshl_b32 s{sWI}, s{sT1}, 2")
    g(f"s_add_u32 s{sWI}, s{sWI}, s{sW}")
    g(f"s_and_b32 s{sBSEL}, s{sW}, 1")
    g(f"s_lshr_b32 s{sJ}, s{sW}, 1")
    g(f"s_add_u32 s{sB}, s{sB0}, s{sBSEL}")
    g(f"s_lshl_b32 s{sM}, s{sW}, 13")
    g(f"s_lshl_b32 s{sVM}, s{sW}, 10")
    g(f"s_add_u32 s{sVM}, s{sVM}, {VB}")
    g(f"s_mov_b32 s{sXM}, s{sVM}")
    g(f"s_lshl_b32 s{sWQB}, s{sH0}, 9")
    g(f"s_mul_i32 s{sXB}, s{sB0}, 43008")
    g(f"s_lshl_b32 s{sT0}, s{sBSEL}, 4")
    g(f"s_lshl_b32 s{sT1}, s{sJ}, 2")
    g(f"s_add_u32 s{sT0}, s{sT0}, s{sT1}")
    g(f"s_lshl_b32 s{sT0}, s{sT0}, 13")
    g(f"v_lshlrev_b32 v{vSTO}, 4, v{L}")
    g(f"v_add_u32 v{t1}, s{sT0}, v{vSTO}")
    for i in range(8):
        const = (8 * (i >> 2) + (i & 3)) * 8192 - (i & 3) * 1024
        g(f"v_xor_b32 v{t0}, {32*i}, v{t1}")
        g(f"v_add_u32 v{vWQD+i}, {const}, v{t0}")
    g(f"v_lshrrev_b32 v{t0}, 3, v{L}")
    g(f"v_mul_u32_u24 v{t0}, 896, v{t0}")
    g(f"v_lshrrev_b32 v{t1}, 4, v{L}")
    g(f"s_lshl_b32 s{sT0}, s{sBSEL}, 2")
    g(f"v_add_u32 v{t1}, s{sT0}, v{t1}")
    g(f"v_and_b32 v{t2}, 7, v{L}")
    g(f"v_xor_b32 v{t1}, v{t1}, v{t2}")
    g(f"v_lshl_add_u32 v{t0}, v{t1}, 4, v{t0}")
    g(f"s_mul_i32 s{sT0}, s{sW}, 7168")
    g(f"v_add_u32 v{vXD}, s{sT0}, v{t0}")
    g(f"v_and_b32 v{t0}, 15, v{L}")
    g(f"v_lshrrev_b32 v{t1}, 4, v{L}")
    g(f"v_mov_b32 v{t5}, {BIG}")
    g(f"v_lshlrev_b32 v{t2}, 7, v{t0}")
    g(f"v_cmp_gt_u32 vcc, 16, v{L}")
    g(f"s_lshl_b32 s{sTWQ}, s{sWI}, 13")
    g(f"s_lshl_b32 s{sT0}, s{sHG}, 11")
    g(f"v_cndmask_b32 v9, v{t5}, v{t2}, vcc")
    g(f"s_add_u32 s{sTWQ}, s{sTWQ}, s{sT0}")
    g(f"v_lshl_add_u32 v{t2}, v{t1}, 20, v{t2}")
    g(f"v_cmp_gt_u32 vcc, 32, v{L}")
    g(f"s_lshl_b32 s{sT0}, s{sHP}, 2")
    g(f"s_add_u32 s{sT0}, s{sT0}, s{sW}")
    g(f"v_cndmask_b32 v{vTWQ}, v{t5}, v{t2}, vcc")
    g(f"s_mul_i32 s{sT1}, s{sT0}, 24")
    g(f"s_mul_i32 s{sT2}, s{sT0}, 36")
    g(f"v_add_u32 v{t2}, s{sT1}, v{L}")
    g(f"v_lshrrev_b32 v{t3}, 1, v{t2}")
    g(f"v_mul_u32_u24 v{t3}, 896, v{t3}")
    g(f"v_and_b32 v{t2}, 1, v{t2}")
    g(f"v_lshl_add_u32 v{t2}, v{t2}, 7, v{t3}")
    g(f"v_cmp_gt_u32 vcc, 24, v{L}")
    g(f"v_add_u32 v{t3}, s{sT2}, v{L}")
    g(f"v_mul_u32_u24 v{t4}, 21846, v{t3}")
    g(f"v_cndmask_b32 v{vTXA}, v{t5}, v{t2}, vcc")
    g(f"v_lshrrev_b32 v{t4}, 16, v{t4}")
    g(f"v_mul_u32_u24 v{t2}, 3, v{t4}")
    g(f"v_sub_u32 v{t3}, v{t3}, v{t2}")
    g(f"v_mul_u32_u24 v{t4}, 896, v{t4}")
    g(f"v_lshl_add_u32 v{t3}, v{t3}, 7, v{t4}")
    g(f"v_cmp_gt_u32 vcc, 36, v{L}")
    g(f"s_nop 1")
    g(f"v_cndmask_b32 v{vTXB}, v{t5}, v{t3}, vcc")
    g.smem_wait()
    g(f"s_cmp_eq_u32 s{sBR}, 0")
    for k in (0, 3, 1, 2, 4):
        g(f"s_cselect_b64 s[{64+2*k}:{65+2*k}], s[{64+2*k}:{65+2*k}], s[{76+2*k}:{77+2*k}]")
    srd(S_X, 64, 65, 1376256)
    srd(S_WQ, 70, 71, 3670016)
    emit_list(touch(9, S_WQ, sTWQ, 0))
    if OPT['code_pf']:
        g(f"s_min_u32 s{sT0}, s{sWI}, (L_main_end-L_pc)/1024-1")
        g(f"s_lshl_b32 s{sT0}, s{sT0}, 10")
        g(f"v_add_u32 v{t2}, s{sT0}, v{vSTO}")
        g(f"global_load_dword v{vDUM}, v{t2}, s[{sPC}:{sPC+1}]", nodst=True)
    emit_list(x_dma(0, "R0"))
    emit_list(x_dma(1, "R0"))
    g(f"v_mov_b32 v{vT16}, v9")
    if OPT['t_a'] < 0:
        emit_list(touch(9, S_WQ, sTWQ, 128 * 8192) + touch(vTXA, S_X, sXB, 256))
    g(f"v_lshrrev_b32 v{t2}, 1, v{t0}")
    g(f"v_xor_b32 v{t2}, v{t2}, v{t1}")
    g(f"v_lshlrev_b32 v{t2}, 4, v{t2}")
    g(f"v_lshl_add_u32 v{t2}, v{t0}, 7, v{t2}")
    g(f"s_mul_i32 s{sT0}, s{sBSEL}, 6144")
    g(f"s_add_u32 s{sT0}, s{sT0}, {VB}")
    g(f"v_add_u32 v{vXR}, s{sT0}, v{t2}")
    g(f"v_xor_b32 v{vXR+1}, 64, v{vXR}")
    g(f"v_lshlrev_b32 v{t2}, 7, v{L}")
    g(f"v_cmp_gt_u32 vcc, 32, v{L}")
    srd(S_K, 66, 67, 12582912)
    g(f"v_cndmask_b32 v{vT32}, v{t5}, v{t2}, vcc")
    srd(S_V, 68, 69, 12582912)
    srd(S_WO, 72, 73, 3670016)
    srd(S_WS, 86, 87, 22020096)
    u0, u1, u2 = 10, 11, 12
    g(f"v_lshrrev_b32 v{u0}, 2, v{L}")
    g(f"v_and_b32 v{u1}, 7, v{u0}")
    g(f"v_and_b32 v{u2}, 3, v{L}")
    g(f"v_lshlrev_b32 v{u2}, 3, v{u2}")
    g(f"s_lshl_b32 s{sT0}, s{sJ}, 9")
    g(f"v_lshl_add_u32 v{t3}, v{u0}, 10, v{u2}")
    g(f"v_add_u32 v{t3}, s{sT0}, v{t3}")
    for T in range(8):
        g(f"v_xor_b32 v{t4}, {T}, v{u1}")
        g(f"v_lshl_add_u32 v{vWQR+T}, v{t4}, 5, v{t3}")
        g(f"v_add_u32 v{vWQR+8+T}, 0x10000, v{vWQR+T}")
    g(f"s_lshl_b32 s{sT0}, s{sB}, 4")
    g(f"s_add_u32 s{sT0}, s{sT0}, s{sH0}")
    g(f"s_add_u32 s{sT0}, s{sT0}, s{sJ}")
    g(f"s_mul_i32 s{sKB}, s{sT0}, 24576")
    g(f"s_mul_i32 s{sKM}, s{sW}, 8320")
    g(f"s_add_u32 s{sKM}, s{sKM}, {KA}")
    g(f"v_lshlrev_b32 v{t2}, 2, v{t1}")
    g(f"v_xor_b32 v{t2}, v{t2}, v{t0}")
    g(f"v_lshlrev_b32 v{t2}, 4, v{t2}")
    g(f"v_lshl_add_u32 v{vKD}, v{t1}, 9, v{t2}")
    g(f"v_lshrrev_b32 v{t2}, 2, v{t0}")
    g(f"v_mul_u32_u24 v{t2}, 1040, v{t2}")
    g(f"v_and_b32 v{t3}, 3, v{t0}")
    g(f"v_lshl_add_u32 v{t2}, v{t3}, 8, v{t2}")
    g(f"v_lshl_add_u32 v{t2}, v{t1}, 3, v{t2}")
    g(f"v_add_u32 v{t2}, s{sKM}, v{t2}")
    for s4 in range(4):
        g(f"v_xor_b32 v{t4}, {s4}, v{t3}")
        g(f"v_lshl_add_u32 v{vKR+s4}, v{t4}, 6, v{t2}")
    g(f"s_mul_i32 s{sWOBASE}, s{sH0}, 229376")
    g(f"s_lshl_b32 s{sT0}, s{sB0}, 4")
    g(f"s_add_u32 s{sT0}, s{sT0}, s{sH0}")
    g(f"s_mul_i32 s{sVBASE}, s{sT0}, 24576")
    g(f"s_add_u32 s{sT0}, s{sH0}, s{sBR}")
    g(f"s_lshl_b32 s{sT0}, s{sT0}, 5")
    g(f"s_add_u32 s{sT0}, s{sT0}, s{sB}")
    g(f"s_mul_i32 s{sST}, s{sT0}, 43008")
    g(f"s_mul_i32 s{sT0}, s{sJ}, 3072")
    g(f"s_add_u32 s{sST}, s{sST}, s{sT0}")
    g(f"s_mov_b32 s{sC}, 0x{struct.unpack('<I', struct.pack('<f', 1.4426950408889634/16.0))[0]:08x}")
    g(f"s_lshr_b32 s{sT0}, s{sWI}, 6")
    g(f"s_lshl_b32 s{sT1}, s{sHG}, 1")
    g(f"s_add_u32 s{sT0}, s{sT0}, s{sT1}")
    g(f"s_mul_i32 s{sTWO}, s{sT0}, 458752")
    g(f"s_and_b32 s{sT0}, s{sWI}, 63")
    g(f"s_mul_i32 s{sT0}, s{sT0}, 3584")
    g(f"s_add_u32 s{sTWO}, s{sTWO}, s{sT0}")
    g(f"s_mul_i32 s{sT0}, s{sBSEL}, 24576")
    g(f"s_add_u32 s{sT0}, s{sT0}, {VB}")
    g(f"v_xor_b32 v{t3}, v{t1}, v{t0}")
    g(f"v_lshlrev_b32 v{t3}, 4, v{t3}")
    g(f"v_lshl_add_u32 v{t3}, v{t0}, 8, v{t3}")
    g(f"v_add_u32 v{vVR}, s{sT0}, v{t3}")
    for s4 in range(1, 4):
        g(f"v_xor_b32 v{vVR+s4}, {64*s4}, v{vVR}")
    g(f"s_lshl_b32 s{sT0}, s{sW}, 2")
    g(f"v_add_u32 v{t3}, s{sT0}, v{t1}")
    g(f"v_xor_b32 v{t3}, v{t3}, v{t0}")
    g(f"v_lshlrev_b32 v{t3}, 4, v{t3}")
    g(f"v_lshl_add_u32 v{t3}, v{t1}, 9, v{t3}")
    g(f"s_lshl_b32 s{sT0}, s{sW}, 11")
    g(f"v_add_u32 v{vVD}, s{sT0}, v{t3}")
    g(f"v_lshl_add_u32 v{t3}, v{u0}, 7, v{u2}")
    g(f"v_bfe_u32 v{t2}, v{L}, 3, 2")
    g(f"s_lshl_b32 s{sT0}, s{sJ}, 1")
    for T in range(2):
        g(f"s_add_u32 s{sT3}, s{sT0}, {T}")
        g(f"v_xor_b32 v{t4}, s{sT3}, v{t2}")
        g(f"v_lshl_add_u32 v{vWOR+T}, v{t4}, 5, v{t3}")
        g(f"v_add_u32 v{vWOR+2+T}, 0x10000, v{vWOR+T}")
    g(f"v_lshrrev_b32 v{t3}, 5, v{L}")
    g(f"v_lshl_add_u32 v{t2}, v{t3}, 3, v{t2}")
    g(f"v_mul_u32_u24 v{t2}, 896, v{t2}")
    g(f"v_lshlrev_b32 v{t3}, 1, v{t1}")
    g(f"v_and_b32 v{t4}, 7, v{L}")
    g(f"v_xor_b32 v{t3}, v{t3}, v{t4}")
    g(f"v_lshl_add_u32 v{t2}, v{t3}, 4, v{t2}")
    g(f"s_mul_i32 s{sT0}, s{sW}, 57344")
    g(f"v_add_u32 v{vWOD}, s{sT0}, v{t2}")
    for k in range(1, 4):
        g(f"v_add_u32 v{vWOD+k}, {(16*(k&1) + 4*(k>>1))*896 - k*1024}, v{vWOD}")
    g(f"s_mul_i32 s{sT0}, s{sBSEL}, 4608")
    g(f"s_add_u32 s{sT0}, s{sT0}, {PB}")
    g(f"v_add_u32 v{vPW}, s{sT0}, v{vSTO}")
    g(f"s_add_u32 s{sT0}, s{sT0}, 1024")
    g(f"v_lshl_add_u32 v{vPW2}, v{L}, 3, s{sT0}")
    if OPT['tlb']:
        g(f"v_and_b32 v{t2}, 1, v{L}")
        g(f"v_mul_u32_u24 v{t2}, 393216, v{t2}")
        g(f"v_lshrrev_b32 v{t3}, 1, v{L}")
        g(f"v_mul_u32_u24 v{t3}, 49024, v{t3}")
        g(f"v_add_u32 v{t2}, v{t2}, v{t3}")
        g(f"v_cmp_gt_u32 vcc, 4, v{L}")
        g(f"v_lshlrev_b32 v{t3}, 17, v{L}")
        g(f"v_mul_u32_u24 v{t4}, 39808, v{L}")
        g(f"v_cndmask_b32 v{t2}, v{t5}, v{t2}, vcc")
        g(f"v_cndmask_b32 v{t3}, v{t5}, v{t3}, vcc")
        g(f"v_cmp_gt_u32 vcc, 2, v{L}")
        g(f"buffer_load_dword v{vDUM}, v{t2}, {sr(S_K)}, s{sVBASE} offen nt", nodst=True)
        g(f"v_cndmask_b32 v{t4}, v{t5}, v{t4}, vcc")
        g(f"buffer_load_dword v{vDUM}, v{t2}, {sr(S_V)}, s{sVBASE} offen nt", nodst=True)
        g(f"buffer_load_dword v{vDUM}, v{t3}, {sr(S_WO)}, s{sWOBASE} offen", nodst=True)
        g(f"buffer_load_dword v{vDUM}, v{t4}, {sr(S_WS)}, s{sST} offen nt", nodst=True)
    emit_list(ring_dma(0))
    stamp('pro')
    g.wait_tag("R0")
    g.barrier()
    stamp('b0')
    import copy
    NC = OPT['nc']
    for cls in range(1, NC):
        g(f"s_cmp_eq_u32 s{sCLS}, {cls}")
        g(f"s_cbranch_scc1 L_body_{cls}")
    saved = copy.deepcopy({k: v for k, v in g.__dict__.items() if k != 'lines'})
    st0 = (nstamp, pending, list(names))
    for cls in range(NC):
        for k, v in copy.deepcopy(saved).items(): setattr(g, k, v)
        globals().update(nstamp=st0[0], pending=st0[1], names=list(st0[2]))
        if cls: g.raw(".p2align 6"); g.raw(f"L_body_{cls}:")
        body(cls)
    g.raw("L_main_end:")
    g("s_endpgm")

def body(cls):
    KS = [OPT[f'k{u}'] + cls * OPT['kstep'] for u in range(3)]
    TWO0 = OPT['t_wo0'] + cls * OPT['kstep']
    TB = OPT['t_b'] + cls * OPT['kstep']
    V1A = OPT['v1'] + (cls * OPT['vstep']) % 3
    V1B = OPT['v1b'] - 3 + (3 + cls * OPT['vstep']) % 3 + (0 if True else 0)
    V1B = min(V1A + (OPT['v1b'] - OPT['v1']), 18)
    emit_list(x_reads(0))
    def early_touches(R):
        o = []
        if R == OPT['t_a']: o += touch(vT16, S_WQ, sTWQ, 128 * 8192) + touch(vTXA, S_X, sXB, 256)
        if R == TB: o += touch(vTWQ, S_WQ, sTWQ, 256 * 8192) + touch(vTXB, S_X, sXB, 512)
        return o
    fq.add(x_reads(1) + ring_dma(1) + ring_dma(2) + early_touches(0))
    x_issue = {1: (2, "R3"), 2: (3, "R4"), 5: (4, "R7"), 6: (5, "R8"), 8: (6, "R10")}
    x_read = {3: 2, 4: 3, 7: 4, 8: 5, 10: 6}
    k_issue = {KS[u]: u for u in range(3)}
    k_read = {KS[u] + OPT['kw']: u for u in range(3)}
    assert max(k_read) <= 13
    for u in range(2): assert KS[u+1] > KS[u] + OPT['kw']
    if 0 in k_issue: fq.add(k_dma(k_issue[0], f"R{OPT['kw']}"))
    def after1(R):
        out = []
        if R in x_read: out += x_reads(x_read[R])
        if R in k_read: out += k_reads(k_read[R])
        out += ring_dma(R + 2)
        if R in x_issue: out += x_dma(*x_issue[R])
        if R in k_issue: out += k_dma(k_issue[R], f"R{R+OPT['kw']}")
        if R == TWO0: out += touch(vT32, S_WO, sTWO, 0)
        out += early_touches(R)
        if R == OPT['v0a']: out += v_dma(0, range(7))
        if R == 14: out += v_dma(0, range(7, 12))
        if R == OPT['t_wo1']: out += touch(vT32, S_WO, sTWO, 229376)
        return out
    run_stages(q_groups(), after1, lambda R: f"R{R}" if R < 14 else "none", tail_barrier=True)
    stamp('G1end')
    def s_mf(t):
        return [f"v_mfma_f32_16x16x32_bf16 {vr(SACC+(t*3+u)*4)}, {ar(aK+(u*8+s)*4)}, {vr(QFRAG(s,t))}, {vr(SACC+(t*3+u)*4) if s else 0}"
                for s in range(8) for u in range(3)]
    def paced(ins_list, every):
        n = 0
        for ins in ins_list:
            g(ins); n += 1
            if n % every == 0:
                while len(fq) and not fq.is_vm(fq.q[0]): fq.pop()
                if len(fq): fq.pop()
    paced(cvt_pairs(QACC, range(8), 0), 8)
    def mix(mf, fill):
        o = []; fill = list(fill)
        for m in mf:
            o.append(m)
            for _ in range(2):
                if fill: o.append(fill.pop(0))
        return o + fill
    paced(mix(s_mf(0), cvt_pairs(QACC, range(8), 1)), 10)
    paced(mix(s_mf(1), cvt_pairs(QACC, range(8), 2)), 10)
    fq.drain()
    sm0 = softmax_ops(0)
    interleave(s_mf(2), sm0[:40])
    for ins in merge(sm0[40:], softmax_ops(1), softmax_ops(2)): g(ins)
    stamp('SM')
    p_write(0, f"L_pw0_{cls}")
    g.wait_tag(["V0", "R14"], lg=0)
    g.barrier()
    stamp('Pbar')
    for u in range(3): emit_list([v_read(u, 0)])
    for s in range(1, 8):
        fq.add([v_read(u, s) for u in range(3)])
    fq.add(p_reads(0))
    def after2(R):
        out = []
        if R == OPT['p1'] + 1: out += p_reads(1)
        out += ring_dma(R + 2)
        if R == V1A: out += v_dma(1, range(6))
        if R == V1B: out += v_dma(1, range(6, 12))
        if R == OPT['t_wo1']: out += touch(vT32, S_WO, sTWO, 229376)
        if R == OPT['p1']: out.append(lambda: p_write(1, f"L_pw1_{cls}"))
        return out
    def wt(R):
        return [f"R{R}", "V1"] if R == 20 else f"R{R}"
    run_stages(o_groups(), after2, wt, tail_barrier=False)
    fq.drain()
    stamp('G2end')
    emit_list(vw_cvt(27))
    fa, fb = final_groups(27, 27)
    for m in fa['mfmas'] + fb['mfmas']: g(m)
    emit_list(epilogue_ops(6))
    stamp('epi')
    if OPT['stamps']:
        g.wait_all()
        stamp('drain')
    finish_stamps(cls)

def reduce_kernel():
    global g
    lines = g.lines
    g = Gen(); g.lines = lines
    kernel_open(RED)
    g("s_cmp_ge_u32 s2, 448")
    g("s_cbranch_scc1 L_red_end")
    g("s_load_dwordx2 s[4:5], s[0:1], 80")
    g("s_load_dwordx2 s[6:7], s[0:1], 96")
    g("s_mov_b32 s16, 0x24924925")
    g("s_mul_hi_u32 s17, s2, s16")
    g("s_mul_i32 s18, s17, 7")
    g("s_sub_u32 s18, s2, s18")
    g("s_mul_i32 s19, s17, 43008")
    g("s_mul_i32 s20, s18, 6144")
    g("s_add_u32 s19, s19, s20")
    g("v_lshlrev_b32 v1, 4, v0")
    g("v_lshrrev_b32 v2, 6, v0")
    g("v_and_b32 v3, 63, v0")
    g("v_readfirstlane_b32 s21, v2")
    g("s_cmp_ge_u32 s21, 3")
    g("s_cselect_b32 s22, 1, 0")
    g("s_mul_i32 s23, s22, 3")
    g("s_sub_u32 s23, s21, s23")
    g("s_and_b32 s24, s17, 31")
    g("s_lshr_b32 s25, s17, 5")
    g("s_mul_i32 s24, s24, 48")
    g("s_lshl_b32 s23, s23, 4")
    g("s_add_u32 s24, s24, s23")
    g("s_mul_i32 s24, s24, 1792")
    g("s_mul_i32 s25, s25, 896")
    g("s_add_u32 s24, s24, s25")
    g("s_lshl_b32 s26, s18, 7")
    g("s_add_u32 s24, s24, s26")
    g("s_lshl_b32 s26, s22, 6")
    g("s_add_u32 s24, s24, s26")
    g("v_and_b32 v4, 15, v3")
    g("v_mul_u32_u24 v4, 1792, v4")
    g("v_lshrrev_b32 v5, 4, v3")
    g("v_lshl_add_u32 v4, v5, 4, v4")
    g.smem_wait()
    srd(8, 6, 7, 22020096)
    srd(12, 4, 5, 2752512)
    for p in range(8):
        if p:
            g(f"s_add_u32 s19, s19, {64*43008}")
        g(f"buffer_load_dwordx4 {vr(8+4*p)}, v1, s[8:11], s19 offen{FL[OPT['ldf']]}")
    for p in range(8):
        for k in range(4):
            src = 8 + 4 * p + k
            if p == 0:
                g(f"v_lshlrev_b32 v{40+2*k}, 16, v{src}")
                g(f"v_and_b32 v{41+2*k}, 0xffff0000, v{src}")
            else:
                g(f"v_lshlrev_b32 v{48+2*k}, 16, v{src}")
                g(f"v_and_b32 v{49+2*k}, 0xffff0000, v{src}")
        if p:
            for k in range(8):
                g(f"v_add_f32 v{40+k}, v{40+k}, v{48+k}")
    for k in range(4):
        g(f"v_cvt_pk_bf16_f32 v{56+k}, v{40+2*k}, v{41+2*k}")
    g("v_permlane32_swap_b32 v56, v58")
    g("v_permlane32_swap_b32 v57, v59")
    g("v_permlane16_swap_b32 v56, v58")
    g("v_permlane16_swap_b32 v57, v59")
    g(f"buffer_store_dwordx4 v[56:59], v4, s[12:15], s24 offen{FL[OPT['osf']]}")
    g.raw("L_red_end:")
    g("s_endpgm")

def descriptors():
    g.raw('.section .rodata,"a"')
    for name, nv, acc in ((MAIN, 512, 256), (RED, 64, 64)):
        g.raw(".p2align 6")
        g.raw(f".amdhsa_kernel {name}")
        g.raw(f"  .amdhsa_next_free_vgpr {nv}")
        g.raw("  .amdhsa_next_free_sgpr 102")
        g.raw(f"  .amdhsa_accum_offset {acc}")
        g.raw("  .amdhsa_group_segment_fixed_size 0")
        g.raw("  .amdhsa_kernarg_size 104")
        g.raw("  .amdhsa_user_sgpr_count 2")
        g.raw("  .amdhsa_user_sgpr_kernarg_segment_ptr 1")
        g.raw("  .amdhsa_system_sgpr_workgroup_id_x 1")
        g.raw("  .amdhsa_float_denorm_mode_32 3")
        g.raw(".end_amdhsa_kernel")

header()
main_kernel()
st = dict(g.stats)
reduce_kernel()
descriptors()
open(sys.argv[1], "w").write(g.text())
print("main stats", st, "forced", fq.forced)
```

```python
import sys, struct, json
from asmgen import Gen, classify

NAME = "concat_heads__mha_block_cached__gqa_block_cached__near_ridge"
MAIN = NAME + "_kernel"
RED = "reduce_partials_kernel"

OPT = dict(bar_group=10, D=7, stamps=0, code_pf=1, touch=1, ntk=1, ntv=1, nttw=0, nttx=0,
           k0=2, k1=6, k2=10, kw=3, t_wo0=10, t_wo1=14, v1=15, v1b=18, p1=17, t_a=0, t_b=3, v0a=14, nc=1, kstep=1, vstep=1, ntfirst=1, pace=1, diag=0, nok=0, nov=0, now=0, nost=0, nox=0, dbg=0, stf=1, ldf=0, osf=0, tlb=0, cpf_first=1, cpf_red=0, cpf2=0)
FL = ['', ' sc1', ' sc0 sc1', ' nt', ' sc1 nt', ' sc0 sc1 nt']
for a in sys.argv[2:]:
    k, v = a.split('=')
    assert k in OPT, k
    OPT[k] = int(v)
def NT(k): return ' nt' if OPT[k] else ''

SLOT = 32768
VB = 3 * SLOT
XU = 12288
KA = VB + 65536 - 4 * 8320
PB = VB + 49152
LDS_BYTES = 163840
BIG = 0x7ffff000

S_X, S_K, S_V, S_WQ, S_WO, S_WS = 8, 12, 16, 20, 24, 28
sW, sBSEL, sJ, sBR, sH0, sB0, sB = 32, 33, 34, 35, 36, 37, 38
sWQB = 39
sXB, sXM, sKB, sKM, sXO, sKO, sWQO, sWOO, sWOO2, sVO = 40, 41, 42, 43, 44, 45, 46, 47, 48, 49
sM, sVM, sST, sC = 50, 51, 52, 53
sT0, sT1, sT2, sT3 = 54, 55, 56, 57
sVBASE, sWOBASE = 58, 59
sPC = 60
sTWQ = 63
sHG, sHP, sWI, sTWO, sCLS = 88, 89, 90, 91, 94
STB = 64

def QACC(T, t): return (((T // 2) * 3 + t) * 4) + (96 if T & 1 else 0)
def QFRAG(s, t): return (s * 3 + t) * 4
SACC = 192
vWQR = 192
vWQD = 208
vXR = 216
vXD = 218
vKR = 219
vKD = 223
vTWQ = 224
vTXA = 225
vTXB = 226
vT16 = 227
vWOD = 228
vVD = 232
vVR = 233
vWOR = 237
vSTO = 241
vPW = 242
vPW2 = 243
vT32 = 244
vDUM = 245
vSM = 246
def VFRAG(u, s): return (u * 8 + s) * 4
vPOWN = 96
vP = [114, 132]
vVWB = 150
vEP = 96
def VWACC(par, T, u): return 180 + par * 24 + (T * 3 + u) * 4
aFR, aK, aX, XRING, aOUT = 0, 32, 128, 10, 32
def OUTACC(c, T, t): return aOUT + ((c * 2 + T) * 3 + t) * 4

def vr(b, n=4): return f"v[{b}:{b+n-1}]"
def ar(b, n=4): return f"a[{b}:{b+n-1}]"
def sr(b, n=4): return f"s[{b}:{b+n-1}]"

g = Gen()
nstamp = 0
vSTAMP = 255
pending = False
names = []
def stamp_flush():
    global pending
    if pending:
        g(f"v_writelane_b32 v{vSTAMP}, s92, {nstamp-1}")
        pending = False
def stamp(name="", real=False, drained=False):
    global nstamp, pending
    if OPT['stamps']:
        if pending:
            if not drained: g.smem_wait()
            stamp_flush()
        g(f"{'s_memrealtime' if real else 's_memtime'} s[92:93]")
        names.append(name); nstamp += 1; pending = True

def header():
    g.raw("; fused attention block: launch 1 computes per-head-pair partial outputs, launch 2 sums them")
    g.raw(f"; @launch kernel={MAIN} grid=(256,1,1) block=(256,1,1) lds={LDS_BYTES}")
    g.raw(f"; @launch kernel={RED} grid=(448,1,1) block=(384,1,1) lds=0")
    g.raw('.amdgcn_target "amdgcn-amd-amdhsa--gfx950"')
    g.raw(".text")

def kernel_open(name):
    g.raw(f".globl {name}")
    g.raw(".p2align 8")
    g.raw(f".type {name},@function")
    g.raw(f"{name}:")

def srd(dst, lo, hi, nbytes):
    g(f"s_mov_b32 s{dst}, s{lo}")
    g(f"s_and_b32 s{dst+1}, s{hi}, 0xffff")
    g(f"s_mov_b32 s{dst+2}, {nbytes}")
    g(f"s_mov_b32 s{dst+3}, 0x20000")

def wq_dma(R):
    slot = (R % 3) * SLOT
    out = [(f"s_add_u32 s{sWQO}, s{sWQB}, {R*262144}", None)]
    for i in range(8):
        if i % 4 == 0:
            out.append((f"s_add_u32 m0, s{sM}, {slot + (i//4)*4096}", None))
        out.append((f"buffer_load_dwordx4 v{vWQD+i}, {sr(S_WQ)}, s{sWQO} offen offset:{(i%4)*1024} lds", f"R{R}"))
    return out

def wo_dma(R):
    hh, c = divmod(R - 14, 7)
    slot = (R % 3) * SLOT
    out = [(f"s_add_u32 s{sWOO}, s{sWOBASE}, {hh*229376 + c*128}", None),
           (f"s_add_u32 s{sWOO2}, s{sWOBASE}, {hh*229376 + c*128 + 28672}", None)]
    for i in range(8):
        if i % 4 == 0:
            out.append((f"s_add_u32 m0, s{sM}, {slot + (i//4)*4096}", None))
        so = sWOO if i < 4 else sWOO2
        out.append((f"buffer_load_dwordx4 v{vWOD+(i%4)}, {sr(S_WO)}, s{so} offen offset:{(i%4)*1024} lds", f"R{R}"))
    return out

def ring_dma(R):
    if OPT['now'] and R > 2: return []
    if R < 14: return wq_dma(R)
    if R < 28: return wo_dma(R)
    return []

def x_dma(p, tag):
    out = []
    if OPT['nox'] and p > 1: return out
    for k in range(3):
        out.append((f"s_add_u32 s{sXO}, s{sXB}, {p*128 + k*28672}", None))
        out.append((f"s_add_u32 m0, s{sXM}, {(p % 2)*XU + k*4096}", None))
        out.append((f"buffer_load_dwordx4 v{vXD}, {sr(S_X)}, s{sXO} offen{NT('ntfirst') if p < 2 else ''} lds", tag))
    return out

def x_reads(p):
    out = []
    for s2 in range(2):
        s = 2 * p + s2
        for t in range(3):
            d = aX + (s % XRING) * 12 + t * 4
            out.append((f"ds_read_b128 {ar(d)}, v{vXR+s2} offset:{(p % 2)*XU + t*2048}", None))
    return out

def k_dma(u, tag):
    out = []
    if OPT['nok']: return out
    for dh in range(2):
        out.append((f"s_add_u32 m0, s{sKM}, {dh*4160}", None))
        for j in range(4):
            out.append((f"s_add_u32 s{sKO}, s{sKB}, {u*8192 + dh*256 + j*(2048-1040)}", None))
            out.append((f"buffer_load_dwordx4 v{vKD}, {sr(S_K)}, s{sKO} offen offset:{j*1040}{NT('ntk')} lds", tag))
    return out

def k_reads(u):
    out = []
    for dh in range(2):
        for s4 in range(4):
            for p in range(2):
                d = aK + (u * 8 + dh * 4 + s4) * 4 + 2 * p
                out.append((f"ds_read_b64 {ar(d,2)}, v{vKR+s4} offset:{dh*4160 + 32*p}", None))
    return out

def v_dma(hh, subs):
    out = []
    if OPT['nov']: return out
    for sub in subs:
        bb, r = divmod(sub, 6); u, dh = divmod(r, 2)
        out.append((f"s_add_u32 s{sVO}, s{sVBASE}, {hh*24576 + bb*393216 + u*8192 + dh*256}", None))
        out.append((f"s_add_u32 m0, s{sVM}, {sub*4096}", None))
        out.append((f"buffer_load_dwordx4 v{vVD}, {sr(S_V)}, s{sVO} offen{NT('ntv')} lds", f"V{hh}"))
    return out

def v_read(u, s):
    dh, s4 = divmod(s, 4)
    return (f"ds_read_b128 {vr(VFRAG(u,s))}, v{vVR+s4} offset:{(u*2+dh)*4096}", None)

def touch(vaddr, srd_, sbase, add):
    key = {S_WQ: 'nttw', S_WO: 'nttw', S_X: 'nttx'}[srd_]
    if not OPT['touch']: return []
    return [(f"s_add_u32 s{sT1}, s{sbase}, {add}", None),
            (f"buffer_load_dword v{vDUM}, v{vaddr}, {sr(srd_)}, s{sT1} offen{NT(key)}", None, True)]

class FillQ:
    def __init__(self): self.q = []
    def add(self, items): self.q.extend(items)
    def pop(self):
        it = self.q.pop(0)
        if callable(it): it()
        else: g(it[0], tag=it[1], nodst=(len(it) > 2))
    def __len__(self): return len(self.q)
    def is_vm(self, it):
        return (not callable(it)) and it[0].startswith(('buffer_', 'global_'))
    def nvm(self): return sum(1 for it in self.q if self.is_vm(it))
    def drain(self):
        while self.q: self.pop()
    def guard(self, text):
        _, _, _, _, rd, wr = classify(text)
        rd = {r for r in rd if r[0] != 's'}; wr = {r for r in wr if r[0] != 's'}
        last = -1
        for i, it in enumerate(self.q):
            if callable(it): continue
            _, _, _, _, frd, fwr = classify(it[0])
            if len(it) > 2: fwr = []
            if (set(fwr) & (rd | wr)) or (set(frd) & wr): last = i
        if last >= 0: self.forced += last + 1
        for _ in range(last + 1): self.pop()
    forced = 0
fq = FillQ()
def emit_list(l):
    for it in l: g(it[0], tag=it[1], nodst=(len(it) > 2))

def run_stages(groups, after_barrier, wait_tags, tail_barrier=None, ring=8, nreg=4):
    D = min(OPT['D'], ring - 1)
    open_stage = groups[0]['stage']
    pend = []
    fr = 0
    for n, gr in enumerate(groups):
        gr['fr'] = fr
        if gr['reads']:
            d = aFR + (fr % ring) * nreg
            for k, rt in enumerate(gr['reads']):
                pend.append((fr, gr['stage'], rt.format(d=ar(d + 2 * k, 2))))
            fr += 1
    rp = 0
    def can_read(f_cur):
        if rp >= len(pend): return False
        f, st, _ = pend[rp]
        return st <= open_stage and f <= f_cur + D
    while rp < len(pend) and pend[rp][0] < D and pend[rp][1] <= open_stage:
        g(pend[rp][2]); rp += 1
    last_stage = groups[-1]['stage']
    left = [0] * len(groups)
    acc = 0
    for n in range(len(groups) - 1, -1, -1):
        if groups[n].get('idx') == OPT['bar_group']: acc = 0
        acc += len(groups[n]['mfmas'])
        left[n] = acc
    since_vm = 1000
    for n, gr in enumerate(groups):
        f = gr['fr']
        d = aFR + (f % ring) * nreg
        if gr['reads']:
            while rp < len(pend) and pend[rp][0] <= f:
                assert pend[rp][1] <= open_stage
                g(pend[rp][2]); rp += 1
        fcur = f if gr['reads'] else f - 1
        R = gr['stage']
        for it in gr.get('pre', []): fq.q.insert(0, it) if False else None
        if gr.get('front'):
            fq.q[0:0] = gr['front']
        for k, mt in enumerate(gr['mfmas']):
            fq.guard(mt.format(a=ar(d)))
            g(mt.format(a=ar(d)))
            budget = 2
            since_vm += 1
            rem = left[n] - k - 1
            while budget:
                if can_read(fcur):
                    g(pend[rp][2]); rp += 1; budget -= 1
                elif len(fq):
                    j = None
                    if fq.is_vm(fq.q[0]) and OPT['pace']:
                        gap = max(1, (rem - 2) // max(1, fq.nvm()))
                        if since_vm >= min(gap, OPT['pace'] * 6): j = 0
                        else:
                            for i, it in enumerate(fq.q):
                                if callable(it): break
                                if fq.is_vm(it) or it[0].startswith('s_'): continue
                                _, _, _, _, rd_, wr_ = classify(it[0])
                                clash = False
                                for e in fq.q[:i]:
                                    _, _, _, _, erd, ewr = classify(e[0])
                                    if (set(erd) | set(ewr)) & set(wr_) or set(ewr) & set(rd_): clash = True
                                if not clash: j = i
                                break
                    else:
                        j = 0
                    if j is None: break
                    if j == 0:
                        if fq.is_vm(fq.q[0]): since_vm = 0
                        fq.pop()
                    else:
                        it = fq.q.pop(j); g(it[0], tag=it[1], nodst=(len(it) > 2))
                    budget -= 1
                else:
                    break
        for it in gr.get('post', []):
            fq.add([it])
        if gr.get('idx') == OPT['bar_group'] and (R < last_stage or tail_barrier):
            while rp < len(pend) and pend[rp][1] <= R:
                g(pend[rp][2]); rp += 1
            fq.drain()
            g.wait_tag(wait_tags(R + 1), lg=0)
            if OPT['stamps'] > 1: g.smem_wait()
            g.barrier()
            if OPT['stamps'] > 1: stamp(f"b{R+1}", drained=True)
            open_stage = R + 1
            fq.add(after_barrier(R + 1))

def interleave(mf, fill, per=2):
    fill = list(fill)
    for m in mf:
        g(m)
        for _ in range(per):
            if fill: g(fill.pop(0))
            elif len(fq): fq.pop()
    for f in fill: g(f)

def softmax_ops(t):
    S = [SACC + 12 * t + k for k in range(12)]
    m, x = vSM + 2 * t, vSM + 2 * t + 1
    o = []
    o.append(f"v_max3_f32 v{m}, v{S[0]}, v{S[1]}, v{S[2]}")
    o.append(f"v_max3_f32 v{x}, v{S[3]}, v{S[4]}, v{S[5]}")
    o.append(f"v_max3_f32 v{m}, v{m}, v{S[6]}, v{S[7]}")
    o.append(f"v_max3_f32 v{x}, v{x}, v{S[8]}, v{S[9]}")
    o.append(f"v_max3_f32 v{m}, v{m}, v{S[10]}, v{S[11]}")
    o.append(f"v_max_f32 v{m}, v{m}, v{x}")
    for sw in ("v_permlane32_swap_b32", "v_permlane16_swap_b32"):
        o.append(f"v_mov_b32 v{x}, v{m}")
        o.append(f"{sw} v{m}, v{x}")
        o.append(f"v_max_f32 v{m}, v{m}, v{x}")
    o.append(f"v_mul_f32 v{m}, s{sC}, v{m}")
    for k in range(12):
        o.append(f"v_fma_f32 v{S[k]}, v{S[k]}, s{sC}, -v{m}")
    for k in range(12):
        o.append(f"v_exp_f32 v{S[k]}, v{S[k]}")
    o.append(f"v_add_f32 v{m}, v{S[0]}, v{S[1]}")
    o.append(f"v_add_f32 v{x}, v{S[2]}, v{S[3]}")
    for k in range(4, 12, 2):
        o.append(f"v_add_f32 v{m}, v{m}, v{S[k]}")
        o.append(f"v_add_f32 v{x}, v{x}, v{S[k+1]}")
    o.append(f"v_add_f32 v{m}, v{m}, v{x}")
    for sw in ("v_permlane32_swap_b32", "v_permlane16_swap_b32"):
        o.append(f"v_mov_b32 v{x}, v{m}")
        o.append(f"{sw} v{m}, v{x}")
        o.append(f"v_add_f32 v{m}, v{m}, v{x}")
    o.append(f"v_rcp_f32 v{m}, v{m}")
    for k in range(12):
        o.append(f"v_mul_f32 v{S[k]}, v{S[k]}, v{m}")
    for k in range(6):
        o.append(f"v_cvt_pk_bf16_f32 v{vPOWN + 6*t + k}, v{S[2*k]}, v{S[2*k+1]}")
    return o

def merge(*lists):
    out = []
    n = max(len(l) for l in lists)
    for i in range(n):
        for l in lists:
            if i < len(l): out.append(l[i])
    return out

def cvt_pairs(acc, s_list, t):
    o = []
    for s in s_list:
        b, b2 = acc(2 * s, t), acc(2 * s + 1, t)
        o.append(f"v_cvt_pk_bf16_f32 v{b}, v{b}, v{b+1}")
        o.append(f"v_cvt_pk_bf16_f32 v{b+1}, v{b+2}, v{b+3}")
        o.append(f"v_cvt_pk_bf16_f32 v{b+2}, v{b2}, v{b2+1}")
        o.append(f"v_cvt_pk_bf16_f32 v{b+3}, v{b2+2}, v{b2+3}")
    return o

def p_write(which, lbl):
    g.wait_all(vm=False, lg=True)
    g(f"s_cmp_lg_u32 s{sJ}, {which}")
    g(f"s_cbranch_scc1 {lbl}")
    n0 = g.n
    for t in range(3):
        g(f"ds_write_b128 v{vPW}, {vr(vPOWN+6*t)} offset:{t*1536}")
        g(f"ds_write_b64 v{vPW2}, {vr(vPOWN+6*t+4,2)} offset:{t*1536}")
    g.wait_all(vm=False, lg=True)
    g.raw(f"{lbl}:")
    g.n = n0

def p_reads(hh):
    o = []
    for t in range(3):
        o.append((f"ds_read_b128 {vr(vP[hh]+6*t)}, v{vPW} offset:{t*1536}", None))
        o.append((f"ds_read_b64 {vr(vP[hh]+6*t+4,2)}, v{vPW2} offset:{t*1536}", None))
    return o

def q_groups():
    gs = []
    for s in range(14):
        slot = s % 3
        win, base = (1, 0) if slot == 2 else (0, slot * SLOT)
        for T in range(16):
            reads = [f"ds_read_b64_tr_b16 {{d}}, v{vWQR + win*8 + (T & 7)} offset:{base + rd*16384 + (T>>3)*256}" for rd in range(2)]
            mf = []
            for t in range(3):
                acc = vr(QACC(T, t))
                xb = ar(aX + (s % XRING) * 12 + t * 4)
                mf.append(f"v_mfma_f32_16x16x32_bf16 {acc}, {{a}}, {xb}, {acc if s else 0}")
            gs.append(dict(stage=s, reads=reads, mfmas=mf, idx=T))
    return gs

def vw_cvt(R):
    par = R % 2
    o = []
    for T in range(2):
        for u in range(3):
            b = VWACC(par, T, u)
            o.append((f"v_cvt_pk_bf16_f32 v{vVWB+6*T+2*u}, v{b}, v{b+1}", None))
            o.append((f"v_cvt_pk_bf16_f32 v{vVWB+6*T+2*u+1}, v{b+2}, v{b+3}", None))
    return o

def final_groups(R, stage):
    hh, c = divmod(R - 14, 7)
    a, b = [], []
    for T in range(2):
        for t in range(3):
            acc = ar(OUTACC(c, T, t))
            a.append(f"v_mfma_f32_16x16x32_bf16 {acc}, {vr(vVWB+6*T)}, {vr(vP[hh]+6*t)}, {acc if hh else 0}")
            b.append(f"v_mfma_f32_16x16x16_bf16 {acc}, {vr(vVWB+6*T+4,2)}, {vr(vP[hh]+6*t+4,2)}, {acc}")
    return dict(stage=stage, reads=[], mfmas=a), dict(stage=stage, reads=[], mfmas=b)

def epilogue_ops(c):
    o = [(f"s_add_u32 s{sT0}, s{sST}, {c*6144}", None)]
    for t in range(3):
        tb = vEP + t * 8
        for T in range(2):
            for r in range(4):
                o.append((f"v_accvgpr_read_b32 v{tb + T*4 + r}, a{OUTACC(c,T,t)+r}", None))
        for k in range(4):
            o.append((f"v_cvt_pk_bf16_f32 v{tb+k}, v{tb+2*k}, v{tb+2*k+1}", None))
        if not OPT['nost']: o.append((f"buffer_store_dwordx4 {vr(tb)}, v{vSTO}, {sr(S_WS)}, s{sT0} offen offset:{t*1024}{FL[OPT['stf']]}", None))
    return o

def o_groups():
    gs = []
    for R in range(14, 28):
        hh, c = divmod(R - 14, 7)
        slot = R % 3
        win, base = (1, 0) if slot == 2 else (0, slot * SLOT)
        for s in range(8):
            for T in range(2):
                idx = 2 * s + T
                reads = [f"ds_read_b64_tr_b16 {{d}}, v{vWOR + win*2 + T} offset:{base + s*4096 + rd*2048}" for rd in range(2)]
                mf = []
                for u in range(3):
                    acc = vr(VWACC(R % 2, T, u))
                    mf.append(f"v_mfma_f32_16x16x32_bf16 {acc}, {vr(VFRAG(u,s))}, {{a}}, {acc if s else 0}")
                gr = dict(stage=R, reads=reads, mfmas=mf, idx=idx)
                if R > 14 and idx == 2: gr['front'] = vw_cvt(R - 1)
                if R == 20 and T == 1:
                    gr['post'] = [v_read(u, s) for u in range(3)]
                gs.append(gr)
                if R > 14 and idx == 5: gs.append(final_groups(R - 1, R)[0])
                if R > 14 and idx == 7:
                    gb = final_groups(R - 1, R)[1]
                    gs.append(gb)
                if R > 21 and idx == 11: gs[-1]['post'] = epilogue_ops(R - 22)
    return gs

def finish_stamps(cls):
    if OPT['stamps']:
        stamp("real_end", real=True)
        g.smem_wait(); stamp_flush()
        g(f"v_writelane_b32 v{vSTAMP}, s98, 62")
        g(f"v_writelane_b32 v{vSTAMP}, s96, 63")
        g(f"s_lshl_b32 s{sT0}, s2, 2")
        g(f"s_add_u32 s{sT0}, s{sT0}, s{sW}")
        g(f"s_lshl_b32 s{sT0}, s{sT0}, 8")
        g(f"s_add_u32 s{sT0}, s{sT0}, {24<<20}")
        g(f"s_mov_b32 s{S_WS+2}, 0x10000000")
        g(f"v_lshrrev_b32 v1, 2, v{vSTO}")
        g(f"buffer_store_dword v{vSTAMP}, v1, {sr(S_WS)}, s{sT0} offen")
        json.dump(names, open(sys.argv[1] + ".names", "w"))
    g("s_endpgm")

def main_kernel():
    kernel_open(MAIN)
    g(f"s_cmp_ge_u32 s2, 256")
    g(f"s_cbranch_scc1 L_main_end")
    if OPT['stamps']:
        g("s_memrealtime s[96:97]")
        g("s_memtime s[98:99]")
    if OPT['cpf_first']:
        g(f"s_getpc_b64 s[{sPC}:{sPC+1}]")
        g.raw("L_pc0:")
        g(f"s_lshr_b32 s{sT0}, s2, 3")
        g(f"s_lshl_b32 s{sT0}, s{sT0}, 12")
        g(f"v_lshl_add_u32 v2, v0, 4, s{sT0}")
        g(f"v_min_u32 v2, (L_{'text' if OPT['cpf_red'] else 'main'}_end-L_pc0)/16*16-16, v2")
        g(f"global_load_dword v{vDUM}, v2, s[{sPC}:{sPC+1}]", nodst=True)
    g("s_load_dwordx8 s[64:71], s[0:1], 0")
    g("s_load_dwordx2 s[72:73], s[0:1], 32")
    g("s_load_dwordx8 s[76:83], s[0:1], 40")
    g("s_load_dwordx2 s[84:85], s[0:1], 72")
    g("s_load_dwordx2 s[86:87], s[0:1], 96")
    g(f"s_getpc_b64 s[{sPC}:{sPC+1}]")
    g.raw("L_pc:")
    L = 1
    t0, t1, t2, t3, t4, t5 = 2, 3, 4, 5, 6, 7
    g(f"v_lshrrev_b32 v{t0}, 6, v0")
    g(f"v_and_b32 v{L}, 63, v0")
    g(f"v_readfirstlane_b32 s{sW}, v{t0}")
    g(f"s_and_b32 s{sT0}, s2, 7")
    g(f"s_lshr_b32 s{sT1}, s2, 3")
    g(f"s_lshr_b32 s{sBR}, s{sT0}, 2")
    g(f"s_and_b32 s{sHG}, s{sT0}, 3")
    g(f"s_lshl_b32 s{sT0}, s{sHG}, 2")
    g(f"s_and_b32 s{sHP}, s{sT1}, 1")
    g(f"s_lshl_b32 s{sT2}, s{sHP}, 1")
    g(f"s_add_u32 s{sH0}, s{sT0}, s{sT2}")
    g(f"s_lshr_b32 s{sB0}, s{sT1}, 1")
    if OPT['nc'] == 3:
        g(f"s_mul_i32 s{sCLS}, s{sB0}, 11")
        g(f"s_lshr_b32 s{sCLS}, s{sCLS}, 5")
        g(f"s_mul_i32 s{sCLS}, s{sCLS}, 3")
        g(f"s_sub_u32 s{sCLS}, s{sB0}, s{sCLS}")
    else:
        g(f"s_and_b32 s{sCLS}, s{sB0}, {OPT['nc']-1}")
    g(f"s_lshl_b32 s{sB0}, s{sB0}, 1")
    g(f"s_lshl_b32 s{sWI}, s{sT1}, 2")
    g(f"s_add_u32 s{sWI}, s{sWI}, s{sW}")
    g(f"s_and_b32 s{sBSEL}, s{sW}, 1")
    g(f"s_lshr_b32 s{sJ}, s{sW}, 1")
    g(f"s_add_u32 s{sB}, s{sB0}, s{sBSEL}")
    g(f"s_lshl_b32 s{sM}, s{sW}, 13")
    g(f"s_lshl_b32 s{sVM}, s{sW}, 10")
    g(f"s_add_u32 s{sVM}, s{sVM}, {VB}")
    g(f"s_mov_b32 s{sXM}, s{sVM}")
    g(f"s_lshl_b32 s{sWQB}, s{sH0}, 9")
    g(f"s_mul_i32 s{sXB}, s{sB0}, 43008")
    g(f"s_lshl_b32 s{sT0}, s{sBSEL}, 4")
    g(f"s_lshl_b32 s{sT1}, s{sJ}, 2")
    g(f"s_add_u32 s{sT0}, s{sT0}, s{sT1}")
    g(f"s_lshl_b32 s{sT0}, s{sT0}, 13")
    g(f"v_lshlrev_b32 v{vSTO}, 4, v{L}")
    g(f"v_add_u32 v{t1}, s{sT0}, v{vSTO}")
    for i in range(8):
        const = (8 * (i >> 2) + (i & 3)) * 8192 - (i & 3) * 1024
        g(f"v_xor_b32 v{t0}, {32*i}, v{t1}")
        g(f"v_add_u32 v{vWQD+i}, {const}, v{t0}")
    g(f"v_lshrrev_b32 v{t0}, 3, v{L}")
    g(f"v_mul_u32_u24 v{t0}, 896, v{t0}")
    g(f"v_lshrrev_b32 v{t1}, 4, v{L}")
    g(f"s_lshl_b32 s{sT0}, s{sBSEL}, 2")
    g(f"v_add_u32 v{t1}, s{sT0}, v{t1}")
    g(f"v_and_b32 v{t2}, 7, v{L}")
    g(f"v_xor_b32 v{t1}, v{t1}, v{t2}")
    g(f"v_lshl_add_u32 v{t0}, v{t1}, 4, v{t0}")
    g(f"s_mul_i32 s{sT0}, s{sW}, 7168")
    g(f"v_add_u32 v{vXD}, s{sT0}, v{t0}")
    g(f"v_and_b32 v{t0}, 15, v{L}")
    g(f"v_lshrrev_b32 v{t1}, 4, v{L}")
    g(f"v_mov_b32 v{t5}, {BIG}")
    g(f"v_lshlrev_b32 v{t2}, 7, v{t0}")
    g(f"v_cmp_gt_u32 vcc, 16, v{L}")
    g(f"s_lshl_b32 s{sTWQ}, s{sWI}, 13")
    g(f"s_lshl_b32 s{sT0}, s{sHG}, 11")
    g(f"v_cndmask_b32 v9, v{t5}, v{t2}, vcc")
    g(f"s_add_u32 s{sTWQ}, s{sTWQ}, s{sT0}")
    g(f"v_lshl_add_u32 v{t2}, v{t1}, 20, v{t2}")
    g(f"v_cmp_gt_u32 vcc, 32, v{L}")
    g(f"s_lshl_b32 s{sT0}, s{sHP}, 2")
    g(f"s_add_u32 s{sT0}, s{sT0}, s{sW}")
    g(f"v_cndmask_b32 v{vTWQ}, v{t5}, v{t2}, vcc")
    g(f"s_mul_i32 s{sT1}, s{sT0}, 24")
    g(f"s_mul_i32 s{sT2}, s{sT0}, 36")
    g(f"v_add_u32 v{t2}, s{sT1}, v{L}")
    g(f"v_lshrrev_b32 v{t3}, 1, v{t2}")
    g(f"v_mul_u32_u24 v{t3}, 896, v{t3}")
    g(f"v_and_b32 v{t2}, 1, v{t2}")
    g(f"v_lshl_add_u32 v{t2}, v{t2}, 7, v{t3}")
    g(f"v_cmp_gt_u32 vcc, 24, v{L}")
    g(f"v_add_u32 v{t3}, s{sT2}, v{L}")
    g(f"v_mul_u32_u24 v{t4}, 21846, v{t3}")
    g(f"v_cndmask_b32 v{vTXA}, v{t5}, v{t2}, vcc")
    g(f"v_lshrrev_b32 v{t4}, 16, v{t4}")
    g(f"v_mul_u32_u24 v{t2}, 3, v{t4}")
    g(f"v_sub_u32 v{t3}, v{t3}, v{t2}")
    g(f"v_mul_u32_u24 v{t4}, 896, v{t4}")
    g(f"v_lshl_add_u32 v{t3}, v{t3}, 7, v{t4}")
    g(f"v_cmp_gt_u32 vcc, 36, v{L}")
    g(f"s_nop 1")
    g(f"v_cndmask_b32 v{vTXB}, v{t5}, v{t3}, vcc")
    g.smem_wait()
    g(f"s_cmp_eq_u32 s{sBR}, 0")
    for k in (0, 3, 1, 2, 4):
        g(f"s_cselect_b64 s[{64+2*k}:{65+2*k}], s[{64+2*k}:{65+2*k}], s[{76+2*k}:{77+2*k}]")
    srd(S_X, 64, 65, 1376256)
    srd(S_WQ, 70, 71, 3670016)
    emit_list(touch(9, S_WQ, sTWQ, 0))
    if OPT['code_pf'] and not OPT['cpf_first']:
        g(f"s_min_u32 s{sT0}, s{sWI}, (L_main_end-L_pc)/1024-1")
        g(f"s_lshl_b32 s{sT0}, s{sT0}, 10")
        g(f"v_add_u32 v{t2}, s{sT0}, v{vSTO}")
        g(f"global_load_dword v{vDUM}, v{t2}, s[{sPC}:{sPC+1}]", nodst=True)
    emit_list(x_dma(0, "R0"))
    emit_list(x_dma(1, "R0"))
    g(f"v_mov_b32 v{vT16}, v9")
    if OPT['t_a'] < 0:
        emit_list(touch(9, S_WQ, sTWQ, 128 * 8192) + touch(vTXA, S_X, sXB, 256))
    g(f"v_lshrrev_b32 v{t2}, 1, v{t0}")
    g(f"v_xor_b32 v{t2}, v{t2}, v{t1}")
    g(f"v_lshlrev_b32 v{t2}, 4, v{t2}")
    g(f"v_lshl_add_u32 v{t2}, v{t0}, 7, v{t2}")
    g(f"s_mul_i32 s{sT0}, s{sBSEL}, 6144")
    g(f"s_add_u32 s{sT0}, s{sT0}, {VB}")
    g(f"v_add_u32 v{vXR}, s{sT0}, v{t2}")
    g(f"v_xor_b32 v{vXR+1}, 64, v{vXR}")
    g(f"v_lshlrev_b32 v{t2}, 7, v{L}")
    g(f"v_cmp_gt_u32 vcc, 32, v{L}")
    srd(S_K, 66, 67, 12582912)
    g(f"v_cndmask_b32 v{vT32}, v{t5}, v{t2}, vcc")
    srd(S_V, 68, 69, 12582912)
    srd(S_WO, 72, 73, 3670016)
    srd(S_WS, 86, 87, 22020096)
    u0, u1, u2 = 10, 11, 12
    g(f"v_lshrrev_b32 v{u0}, 2, v{L}")
    g(f"v_and_b32 v{u1}, 7, v{u0}")
    g(f"v_and_b32 v{u2}, 3, v{L}")
    g(f"v_lshlrev_b32 v{u2}, 3, v{u2}")
    g(f"s_lshl_b32 s{sT0}, s{sJ}, 9")
    g(f"v_lshl_add_u32 v{t3}, v{u0}, 10, v{u2}")
    g(f"v_add_u32 v{t3}, s{sT0}, v{t3}")
    for T in range(8):
        g(f"v_xor_b32 v{t4}, {T}, v{u1}")
        g(f"v_lshl_add_u32 v{vWQR+T}, v{t4}, 5, v{t3}")
        g(f"v_add_u32 v{vWQR+8+T}, 0x10000, v{vWQR+T}")
    g(f"s_lshl_b32 s{sT0}, s{sB}, 4")
    g(f"s_add_u32 s{sT0}, s{sT0}, s{sH0}")
    g(f"s_add_u32 s{sT0}, s{sT0}, s{sJ}")
    g(f"s_mul_i32 s{sKB}, s{sT0}, 24576")
    g(f"s_mul_i32 s{sKM}, s{sW}, 8320")
    g(f"s_add_u32 s{sKM}, s{sKM}, {KA}")
    g(f"v_lshlrev_b32 v{t2}, 2, v{t1}")
    g(f"v_xor_b32 v{t2}, v{t2}, v{t0}")
    g(f"v_lshlrev_b32 v{t2}, 4, v{t2}")
    g(f"v_lshl_add_u32 v{vKD}, v{t1}, 9, v{t2}")
    g(f"v_lshrrev_b32 v{t2}, 2, v{t0}")
    g(f"v_mul_u32_u24 v{t2}, 1040, v{t2}")
    g(f"v_and_b32 v{t3}, 3, v{t0}")
    g(f"v_lshl_add_u32 v{t2}, v{t3}, 8, v{t2}")
    g(f"v_lshl_add_u32 v{t2}, v{t1}, 3, v{t2}")
    g(f"v_add_u32 v{t2}, s{sKM}, v{t2}")
    for s4 in range(4):
        g(f"v_xor_b32 v{t4}, {s4}, v{t3}")
        g(f"v_lshl_add_u32 v{vKR+s4}, v{t4}, 6, v{t2}")
    g(f"s_mul_i32 s{sWOBASE}, s{sH0}, 229376")
    g(f"s_lshl_b32 s{sT0}, s{sB0}, 4")
    g(f"s_add_u32 s{sT0}, s{sT0}, s{sH0}")
    g(f"s_mul_i32 s{sVBASE}, s{sT0}, 24576")
    g(f"s_add_u32 s{sT0}, s{sH0}, s{sBR}")
    g(f"s_lshl_b32 s{sT0}, s{sT0}, 5")
    g(f"s_add_u32 s{sT0}, s{sT0}, s{sB}")
    g(f"s_mul_i32 s{sST}, s{sT0}, 43008")
    g(f"s_mul_i32 s{sT0}, s{sJ}, 3072")
    g(f"s_add_u32 s{sST}, s{sST}, s{sT0}")
    g(f"s_mov_b32 s{sC}, 0x{struct.unpack('<I', struct.pack('<f', 1.4426950408889634/16.0))[0]:08x}")
    g(f"s_lshr_b32 s{sT0}, s{sWI}, 6")
    g(f"s_lshl_b32 s{sT1}, s{sHG}, 1")
    g(f"s_add_u32 s{sT0}, s{sT0}, s{sT1}")
    g(f"s_mul_i32 s{sTWO}, s{sT0}, 458752")
    g(f"s_and_b32 s{sT0}, s{sWI}, 63")
    g(f"s_mul_i32 s{sT0}, s{sT0}, 3584")
    g(f"s_add_u32 s{sTWO}, s{sTWO}, s{sT0}")
    g(f"s_mul_i32 s{sT0}, s{sBSEL}, 24576")
    g(f"s_add_u32 s{sT0}, s{sT0}, {VB}")
    g(f"v_xor_b32 v{t3}, v{t1}, v{t0}")
    g(f"v_lshlrev_b32 v{t3}, 4, v{t3}")
    g(f"v_lshl_add_u32 v{t3}, v{t0}, 8, v{t3}")
    g(f"v_add_u32 v{vVR}, s{sT0}, v{t3}")
    for s4 in range(1, 4):
        g(f"v_xor_b32 v{vVR+s4}, {64*s4}, v{vVR}")
    g(f"s_lshl_b32 s{sT0}, s{sW}, 2")
    g(f"v_add_u32 v{t3}, s{sT0}, v{t1}")
    g(f"v_xor_b32 v{t3}, v{t3}, v{t0}")
    g(f"v_lshlrev_b32 v{t3}, 4, v{t3}")
    g(f"v_lshl_add_u32 v{t3}, v{t1}, 9, v{t3}")
    g(f"s_lshl_b32 s{sT0}, s{sW}, 11")
    g(f"v_add_u32 v{vVD}, s{sT0}, v{t3}")
    g(f"v_lshl_add_u32 v{t3}, v{u0}, 7, v{u2}")
    g(f"v_bfe_u32 v{t2}, v{L}, 3, 2")
    g(f"s_lshl_b32 s{sT0}, s{sJ}, 1")
    for T in range(2):
        g(f"s_add_u32 s{sT3}, s{sT0}, {T}")
        g(f"v_xor_b32 v{t4}, s{sT3}, v{t2}")
        g(f"v_lshl_add_u32 v{vWOR+T}, v{t4}, 5, v{t3}")
        g(f"v_add_u32 v{vWOR+2+T}, 0x10000, v{vWOR+T}")
    g(f"v_lshrrev_b32 v{t3}, 5, v{L}")
    g(f"v_lshl_add_u32 v{t2}, v{t3}, 3, v{t2}")
    g(f"v_mul_u32_u24 v{t2}, 896, v{t2}")
    g(f"v_lshlrev_b32 v{t3}, 1, v{t1}")
    g(f"v_and_b32 v{t4}, 7, v{L}")
    g(f"v_xor_b32 v{t3}, v{t3}, v{t4}")
    g(f"v_lshl_add_u32 v{t2}, v{t3}, 4, v{t2}")
    g(f"s_mul_i32 s{sT0}, s{sW}, 57344")
    g(f"v_add_u32 v{vWOD}, s{sT0}, v{t2}")
    for k in range(1, 4):
        g(f"v_add_u32 v{vWOD+k}, {(16*(k&1) + 4*(k>>1))*896 - k*1024}, v{vWOD}")
    g(f"s_mul_i32 s{sT0}, s{sBSEL}, 4608")
    g(f"s_add_u32 s{sT0}, s{sT0}, {PB}")
    g(f"v_add_u32 v{vPW}, s{sT0}, v{vSTO}")
    g(f"s_add_u32 s{sT0}, s{sT0}, 1024")
    g(f"v_lshl_add_u32 v{vPW2}, v{L}, 3, s{sT0}")
    if OPT['tlb']:
        g(f"v_and_b32 v{t2}, 1, v{L}")
        g(f"v_mul_u32_u24 v{t2}, 393216, v{t2}")
        g(f"v_lshrrev_b32 v{t3}, 1, v{L}")
        g(f"v_mul_u32_u24 v{t3}, 49024, v{t3}")
        g(f"v_add_u32 v{t2}, v{t2}, v{t3}")
        g(f"v_cmp_gt_u32 vcc, 4, v{L}")
        g(f"v_lshlrev_b32 v{t3}, 17, v{L}")
        g(f"v_mul_u32_u24 v{t4}, 39808, v{L}")
        g(f"v_cndmask_b32 v{t2}, v{t5}, v{t2}, vcc")
        g(f"v_cndmask_b32 v{t3}, v{t5}, v{t3}, vcc")
        g(f"v_cmp_gt_u32 vcc, 2, v{L}")
        g(f"buffer_load_dword v{vDUM}, v{t2}, {sr(S_K)}, s{sVBASE} offen nt", nodst=True)
        g(f"v_cndmask_b32 v{t4}, v{t5}, v{t4}, vcc")
        g(f"buffer_load_dword v{vDUM}, v{t2}, {sr(S_V)}, s{sVBASE} offen nt", nodst=True)
        g(f"buffer_load_dword v{vDUM}, v{t3}, {sr(S_WO)}, s{sWOBASE} offen", nodst=True)
        g(f"buffer_load_dword v{vDUM}, v{t4}, {sr(S_WS)}, s{sST} offen nt", nodst=True)
    emit_list(ring_dma(0))
    stamp('pro')
    g.wait_tag("R0")
    g.barrier()
    stamp('b0')
    import copy
    NC = OPT['nc']
    for cls in range(1, NC):
        g(f"s_cmp_eq_u32 s{sCLS}, {cls}")
        g(f"s_cbranch_scc1 L_body_{cls}")
    saved = copy.deepcopy({k: v for k, v in g.__dict__.items() if k != 'lines'})
    st0 = (nstamp, pending, list(names))
    for cls in range(NC):
        for k, v in copy.deepcopy(saved).items(): setattr(g, k, v)
        globals().update(nstamp=st0[0], pending=st0[1], names=list(st0[2]))
        if cls: g.raw(".p2align 6"); g.raw(f"L_body_{cls}:")
        body(cls)
    g.raw("L_main_end:")
    g("s_endpgm")

def body(cls):
    KS = [OPT[f'k{u}'] + cls * OPT['kstep'] for u in range(3)]
    TWO0 = OPT['t_wo0'] + cls * OPT['kstep']
    TB = OPT['t_b'] + cls * OPT['kstep']
    V1A = OPT['v1'] + (cls * OPT['vstep']) % 3
    V1B = OPT['v1b'] - 3 + (3 + cls * OPT['vstep']) % 3 + (0 if True else 0)
    V1B = min(V1A + (OPT['v1b'] - OPT['v1']), 18)
    emit_list(x_reads(0))
    def early_touches(R):
        o = []
        if R == OPT['t_a']: o += touch(vT16, S_WQ, sTWQ, 128 * 8192) + touch(vTXA, S_X, sXB, 256)
        if R == TB: o += touch(vTWQ, S_WQ, sTWQ, 256 * 8192) + touch(vTXB, S_X, sXB, 512)
        return o
    fq.add(x_reads(1) + ring_dma(1) + ring_dma(2) + early_touches(0))
    x_issue = {1: (2, "R3"), 2: (3, "R4"), 5: (4, "R7"), 6: (5, "R8"), 8: (6, "R10")}
    x_read = {3: 2, 4: 3, 7: 4, 8: 5, 10: 6}
    k_issue = {KS[u]: u for u in range(3)}
    k_read = {KS[u] + OPT['kw']: u for u in range(3)}
    assert max(k_read) <= 13
    for u in range(2): assert KS[u+1] > KS[u] + OPT['kw']
    if 0 in k_issue: fq.add(k_dma(k_issue[0], f"R{OPT['kw']}"))
    def after1(R):
        out = []
        if R in x_read: out += x_reads(x_read[R])
        if R in k_read: out += k_reads(k_read[R])
        out += ring_dma(R + 2)
        if R in x_issue: out += x_dma(*x_issue[R])
        if R in k_issue: out += k_dma(k_issue[R], f"R{R+OPT['kw']}")
        if R == TWO0: out += touch(vT32, S_WO, sTWO, 0)
        out += early_touches(R)
        if R == OPT['v0a']: out += v_dma(0, range(7))
        if R == 14: out += v_dma(0, range(7, 12))
        if R == OPT['t_wo1']: out += touch(vT32, S_WO, sTWO, 229376)
        return out
    run_stages(q_groups(), after1, lambda R: f"R{R}" if R < 14 else "none", tail_barrier=True)
    stamp('G1end')
    def s_mf(t):
        return [f"v_mfma_f32_16x16x32_bf16 {vr(SACC+(t*3+u)*4)}, {ar(aK+(u*8+s)*4)}, {vr(QFRAG(s,t))}, {vr(SACC+(t*3+u)*4) if s else 0}"
                for s in range(8) for u in range(3)]
    def paced(ins_list, every):
        n = 0
        for ins in ins_list:
            g(ins); n += 1
            if n % every == 0:
                while len(fq) and not fq.is_vm(fq.q[0]): fq.pop()
                if len(fq): fq.pop()
    paced(cvt_pairs(QACC, range(8), 0), 8)
    def mix(mf, fill):
        o = []; fill = list(fill)
        for m in mf:
            o.append(m)
            for _ in range(2):
                if fill: o.append(fill.pop(0))
        return o + fill
    paced(mix(s_mf(0), cvt_pairs(QACC, range(8), 1)), 10)
    paced(mix(s_mf(1), cvt_pairs(QACC, range(8), 2)), 10)
    fq.drain()
    sm0 = softmax_ops(0)
    interleave(s_mf(2), sm0[:40])
    for ins in merge(sm0[40:], softmax_ops(1), softmax_ops(2)): g(ins)
    stamp('SM')
    p_write(0, f"L_pw0_{cls}")
    g.wait_tag(["V0", "R14"], lg=0)
    g.barrier()
    stamp('Pbar')
    for u in range(3): emit_list([v_read(u, 0)])
    for s in range(1, 8):
        fq.add([v_read(u, s) for u in range(3)])
    fq.add(p_reads(0))
    def after2(R):
        out = []
        if R == OPT['p1'] + 1: out += p_reads(1)
        out += ring_dma(R + 2)
        if R == V1A: out += v_dma(1, range(6))
        if R == V1B: out += v_dma(1, range(6, 12))
        if R == OPT['t_wo1']: out += touch(vT32, S_WO, sTWO, 229376)
        if R == OPT['p1']: out.append(lambda: p_write(1, f"L_pw1_{cls}"))
        return out
    def wt(R):
        return [f"R{R}", "V1"] if R == 20 else f"R{R}"
    run_stages(o_groups(), after2, wt, tail_barrier=False)
    fq.drain()
    stamp('G2end')
    emit_list(vw_cvt(27))
    fa, fb = final_groups(27, 27)
    for m in fa['mfmas'] + fb['mfmas']: g(m)
    emit_list(epilogue_ops(6))
    stamp('epi')
    if OPT['stamps']:
        g.wait_all()
        stamp('drain')
    finish_stamps(cls)

def reduce_kernel():
    global g
    lines = g.lines
    g = Gen(); g.lines = lines
    kernel_open(RED)
    g("s_cmp_ge_u32 s2, 448")
    g("s_cbranch_scc1 L_red_end")
    g("s_load_dwordx2 s[4:5], s[0:1], 80")
    g("s_load_dwordx2 s[6:7], s[0:1], 96")
    g("s_mov_b32 s16, 0x24924925")
    g("s_mul_hi_u32 s17, s2, s16")
    g("s_mul_i32 s18, s17, 7")
    g("s_sub_u32 s18, s2, s18")
    g("s_mul_i32 s19, s17, 43008")
    g("s_mul_i32 s20, s18, 6144")
    g("s_add_u32 s19, s19, s20")
    g("v_lshlrev_b32 v1, 4, v0")
    g("v_lshrrev_b32 v2, 6, v0")
    g("v_and_b32 v3, 63, v0")
    g("v_readfirstlane_b32 s21, v2")
    g("s_cmp_ge_u32 s21, 3")
    g("s_cselect_b32 s22, 1, 0")
    g("s_mul_i32 s23, s22, 3")
    g("s_sub_u32 s23, s21, s23")
    g("s_and_b32 s24, s17, 31")
    g("s_lshr_b32 s25, s17, 5")
    g("s_mul_i32 s24, s24, 48")
    g("s_lshl_b32 s23, s23, 4")
    g("s_add_u32 s24, s24, s23")
    g("s_mul_i32 s24, s24, 1792")
    g("s_mul_i32 s25, s25, 896")
    g("s_add_u32 s24, s24, s25")
    g("s_lshl_b32 s26, s18, 7")
    g("s_add_u32 s24, s24, s26")
    g("s_lshl_b32 s26, s22, 6")
    g("s_add_u32 s24, s24, s26")
    g("v_and_b32 v4, 15, v3")
    g("v_mul_u32_u24 v4, 1792, v4")
    g("v_lshrrev_b32 v5, 4, v3")
    g("v_lshl_add_u32 v4, v5, 4, v4")
    g.smem_wait()
    srd(8, 6, 7, 22020096)
    srd(12, 4, 5, 2752512)
    for p in range(8):
        if p:
            g(f"s_add_u32 s19, s19, {64*43008}")
        g(f"buffer_load_dwordx4 {vr(8+4*p)}, v1, s[8:11], s19 offen{FL[OPT['ldf']]}")
    for p in range(8):
        for k in range(4):
            src = 8 + 4 * p + k
            if p == 0:
                g(f"v_lshlrev_b32 v{40+2*k}, 16, v{src}")
                g(f"v_and_b32 v{41+2*k}, 0xffff0000, v{src}")
            else:
                g(f"v_lshlrev_b32 v{48+2*k}, 16, v{src}")
                g(f"v_and_b32 v{49+2*k}, 0xffff0000, v{src}")
        if p:
            for k in range(8):
                g(f"v_add_f32 v{40+k}, v{40+k}, v{48+k}")
    for k in range(4):
        g(f"v_cvt_pk_bf16_f32 v{56+k}, v{40+2*k}, v{41+2*k}")
    g("v_permlane32_swap_b32 v56, v58")
    g("v_permlane32_swap_b32 v57, v59")
    g("v_permlane16_swap_b32 v56, v58")
    g("v_permlane16_swap_b32 v57, v59")
    g(f"buffer_store_dwordx4 v[56:59], v4, s[12:15], s24 offen{FL[OPT['osf']]}")
    g.raw("L_red_end:")
    g("s_endpgm")
    g.raw("L_text_end:")

def descriptors():
    g.raw('.section .rodata,"a"')
    for name, nv, acc in ((MAIN, 512, 256), (RED, 64, 64)):
        g.raw(".p2align 6")
        g.raw(f".amdhsa_kernel {name}")
        g.raw(f"  .amdhsa_next_free_vgpr {nv}")
        g.raw("  .amdhsa_next_free_sgpr 102")
        g.raw(f"  .amdhsa_accum_offset {acc}")
        g.raw("  .amdhsa_group_segment_fixed_size 0")
        g.raw("  .amdhsa_kernarg_size 104")
        g.raw("  .amdhsa_user_sgpr_count 2")
        g.raw("  .amdhsa_user_sgpr_kernarg_segment_ptr 1")
        g.raw("  .amdhsa_system_sgpr_workgroup_id_x 1")
        g.raw("  .amdhsa_float_denorm_mode_32 3")
        g.raw(".end_amdhsa_kernel")

header()
main_kernel()
st = dict(g.stats)
reduce_kernel()
descriptors()
open(sys.argv[1], "w").write(g.text())
print("main stats", st, "forced", fq.forced)
```

```python
import sys, struct, json
from asmgen import Gen, classify

NAME = "concat_heads__mha_block_cached__gqa_block_cached__near_ridge"
MAIN = NAME + "_kernel"
RED = "reduce_partials_kernel"

OPT = dict(bar_group=10, D=7, stamps=0, code_pf=1, touch=1, ntk=1, ntv=1, nttw=0, nttx=0,
           k0=2, k1=6, k2=10, kw=3, t_wo0=10, t_wo1=14, v1=15, v1b=18, p1=17, t_a=0, t_b=3, v0a=14, nc=1, kstep=1, vstep=1, ntfirst=1, pace=1, diag=0, nok=0, nov=0, now=0, nost=0, nox=0, dbg=0, stf=1, ldf=0, osf=0, tlb=0, cpf_first=1, cpf_red=0, cpf2=0, fuse=0, slp=2)
FL = ['', ' sc1', ' sc0 sc1', ' nt', ' sc1 nt', ' sc0 sc1 nt']
for a in sys.argv[2:]:
    k, v = a.split('=')
    assert k in OPT, k
    OPT[k] = int(v)
def NT(k): return ' nt' if OPT[k] else ''

SLOT = 32768
VB = 3 * SLOT
XU = 12288
KA = VB + 65536 - 4 * 8320
PB = VB + 49152
LDS_BYTES = 163840
BIG = 0x7ffff000

S_X, S_K, S_V, S_WQ, S_WO, S_WS = 8, 12, 16, 20, 24, 28
sW, sBSEL, sJ, sBR, sH0, sB0, sB = 32, 33, 34, 35, 36, 37, 38
sWQB = 39
sXB, sXM, sKB, sKM, sXO, sKO, sWQO, sWOO, sWOO2, sVO = 40, 41, 42, 43, 44, 45, 46, 47, 48, 49
sM, sVM, sST, sC = 50, 51, 52, 53
sT0, sT1, sT2, sT3 = 54, 55, 56, 57
sVBASE, sWOBASE = 58, 59
sPC = 60
sTWQ = 63
sHG, sHP, sWI, sTWO, sCLS = 88, 89, 90, 91, 94
S_FLG, sFLG = 4, 95
STB = 64

def QACC(T, t): return (((T // 2) * 3 + t) * 4) + (96 if T & 1 else 0)
def QFRAG(s, t): return (s * 3 + t) * 4
SACC = 192
vWQR = 192
vWQD = 208
vXR = 216
vXD = 218
vKR = 219
vKD = 223
vTWQ = 224
vTXA = 225
vTXB = 226
vT16 = 227
vWOD = 228
vVD = 232
vVR = 233
vWOR = 237
vSTO = 241
vPW = 242
vPW2 = 243
vT32 = 244
vDUM = 245
vFLAG = 252
vSM = 246
def VFRAG(u, s): return (u * 8 + s) * 4
vPOWN = 96
vP = [114, 132]
vVWB = 150
vEP = 96
def VWACC(par, T, u): return 180 + par * 24 + (T * 3 + u) * 4
aFR, aK, aX, XRING, aOUT = 0, 32, 128, 10, 32
def OUTACC(c, T, t): return aOUT + ((c * 2 + T) * 3 + t) * 4

def vr(b, n=4): return f"v[{b}:{b+n-1}]"
def ar(b, n=4): return f"a[{b}:{b+n-1}]"
def sr(b, n=4): return f"s[{b}:{b+n-1}]"

g = Gen()
nstamp = 0
vSTAMP = 255
pending = False
names = []
def stamp_flush():
    global pending
    if pending:
        g(f"v_writelane_b32 v{vSTAMP}, s92, {nstamp-1}")
        pending = False
def stamp(name="", real=False, drained=False):
    global nstamp, pending
    if OPT['stamps']:
        if pending:
            if not drained: g.smem_wait()
            stamp_flush()
        g(f"{'s_memrealtime' if real else 's_memtime'} s[92:93]")
        names.append(name); nstamp += 1; pending = True

def header():
    g.raw("; fused attention block: launch 1 computes per-head-pair partial outputs, launch 2 sums them")
    if OPT['fuse']:
        g.raw(f"; @launch grid=(256,1,1) block=(256,1,1) lds={LDS_BYTES}")
    else:
        g.raw(f"; @launch kernel={MAIN} grid=(256,1,1) block=(256,1,1) lds={LDS_BYTES}")
        g.raw(f"; @launch kernel={RED} grid=(448,1,1) block=(384,1,1) lds=0")
    g.raw('.amdgcn_target "amdgcn-amd-amdhsa--gfx950"')
    g.raw(".text")

def kernel_open(name):
    g.raw(f".globl {name}")
    g.raw(".p2align 8")
    g.raw(f".type {name},@function")
    g.raw(f"{name}:")

def srd(dst, lo, hi, nbytes):
    g(f"s_mov_b32 s{dst}, s{lo}")
    g(f"s_and_b32 s{dst+1}, s{hi}, 0xffff")
    g(f"s_mov_b32 s{dst+2}, {nbytes}")
    g(f"s_mov_b32 s{dst+3}, 0x20000")

def wq_dma(R):
    slot = (R % 3) * SLOT
    out = [(f"s_add_u32 s{sWQO}, s{sWQB}, {R*262144}", None)]
    for i in range(8):
        if i % 4 == 0:
            out.append((f"s_add_u32 m0, s{sM}, {slot + (i//4)*4096}", None))
        out.append((f"buffer_load_dwordx4 v{vWQD+i}, {sr(S_WQ)}, s{sWQO} offen offset:{(i%4)*1024} lds", f"R{R}"))
    return out

def wo_dma(R):
    hh, c = divmod(R - 14, 7)
    slot = (R % 3) * SLOT
    out = [(f"s_add_u32 s{sWOO}, s{sWOBASE}, {hh*229376 + c*128}", None),
           (f"s_add_u32 s{sWOO2}, s{sWOBASE}, {hh*229376 + c*128 + 28672}", None)]
    for i in range(8):
        if i % 4 == 0:
            out.append((f"s_add_u32 m0, s{sM}, {slot + (i//4)*4096}", None))
        so = sWOO if i < 4 else sWOO2
        out.append((f"buffer_load_dwordx4 v{vWOD+(i%4)}, {sr(S_WO)}, s{so} offen offset:{(i%4)*1024} lds", f"R{R}"))
    return out

def ring_dma(R):
    if OPT['now'] and R > 2: return []
    if R < 14: return wq_dma(R)
    if R < 28: return wo_dma(R)
    return []

def x_dma(p, tag):
    out = []
    if OPT['nox'] and p > 1: return out
    for k in range(3):
        out.append((f"s_add_u32 s{sXO}, s{sXB}, {p*128 + k*28672}", None))
        out.append((f"s_add_u32 m0, s{sXM}, {(p % 2)*XU + k*4096}", None))
        out.append((f"buffer_load_dwordx4 v{vXD}, {sr(S_X)}, s{sXO} offen{NT('ntfirst') if p < 2 else ''} lds", tag))
    return out

def x_reads(p):
    out = []
    for s2 in range(2):
        s = 2 * p + s2
        for t in range(3):
            d = aX + (s % XRING) * 12 + t * 4
            out.append((f"ds_read_b128 {ar(d)}, v{vXR+s2} offset:{(p % 2)*XU + t*2048}", None))
    return out

def k_dma(u, tag):
    out = []
    if OPT['nok']: return out
    for dh in range(2):
        out.append((f"s_add_u32 m0, s{sKM}, {dh*4160}", None))
        for j in range(4):
            out.append((f"s_add_u32 s{sKO}, s{sKB}, {u*8192 + dh*256 + j*(2048-1040)}", None))
            out.append((f"buffer_load_dwordx4 v{vKD}, {sr(S_K)}, s{sKO} offen offset:{j*1040}{NT('ntk')} lds", tag))
    return out

def k_reads(u):
    out = []
    for dh in range(2):
        for s4 in range(4):
            for p in range(2):
                d = aK + (u * 8 + dh * 4 + s4) * 4 + 2 * p
                out.append((f"ds_read_b64 {ar(d,2)}, v{vKR+s4} offset:{dh*4160 + 32*p}", None))
    return out

def v_dma(hh, subs):
    out = []
    if OPT['nov']: return out
    for sub in subs:
        bb, r = divmod(sub, 6); u, dh = divmod(r, 2)
        out.append((f"s_add_u32 s{sVO}, s{sVBASE}, {hh*24576 + bb*393216 + u*8192 + dh*256}", None))
        out.append((f"s_add_u32 m0, s{sVM}, {sub*4096}", None))
        out.append((f"buffer_load_dwordx4 v{vVD}, {sr(S_V)}, s{sVO} offen{NT('ntv')} lds", f"V{hh}"))
    return out

def v_read(u, s):
    dh, s4 = divmod(s, 4)
    return (f"ds_read_b128 {vr(VFRAG(u,s))}, v{vVR+s4} offset:{(u*2+dh)*4096}", None)

def touch(vaddr, srd_, sbase, add):
    key = {S_WQ: 'nttw', S_WO: 'nttw', S_X: 'nttx'}[srd_]
    if not OPT['touch']: return []
    return [(f"s_add_u32 s{sT1}, s{sbase}, {add}", None),
            (f"buffer_load_dword v{vDUM}, v{vaddr}, {sr(srd_)}, s{sT1} offen{NT(key)}", None, True)]

class FillQ:
    def __init__(self): self.q = []
    def add(self, items): self.q.extend(items)
    def pop(self):
        it = self.q.pop(0)
        if callable(it): it()
        else: g(it[0], tag=it[1], nodst=(len(it) > 2))
    def __len__(self): return len(self.q)
    def is_vm(self, it):
        return (not callable(it)) and it[0].startswith(('buffer_', 'global_'))
    def nvm(self): return sum(1 for it in self.q if self.is_vm(it))
    def drain(self):
        while self.q: self.pop()
    def guard(self, text):
        _, _, _, _, rd, wr = classify(text)
        rd = {r for r in rd if r[0] != 's'}; wr = {r for r in wr if r[0] != 's'}
        last = -1
        for i, it in enumerate(self.q):
            if callable(it): continue
            _, _, _, _, frd, fwr = classify(it[0])
            if len(it) > 2: fwr = []
            if (set(fwr) & (rd | wr)) or (set(frd) & wr): last = i
        if last >= 0: self.forced += last + 1
        for _ in range(last + 1): self.pop()
    forced = 0
fq = FillQ()
def emit_list(l):
    for it in l: g(it[0], tag=it[1], nodst=(len(it) > 2))

def run_stages(groups, after_barrier, wait_tags, tail_barrier=None, ring=8, nreg=4):
    D = min(OPT['D'], ring - 1)
    open_stage = groups[0]['stage']
    pend = []
    fr = 0
    for n, gr in enumerate(groups):
        gr['fr'] = fr
        if gr['reads']:
            d = aFR + (fr % ring) * nreg
            for k, rt in enumerate(gr['reads']):
                pend.append((fr, gr['stage'], rt.format(d=ar(d + 2 * k, 2))))
            fr += 1
    rp = 0
    def can_read(f_cur):
        if rp >= len(pend): return False
        f, st, _ = pend[rp]
        return st <= open_stage and f <= f_cur + D
    while rp < len(pend) and pend[rp][0] < D and pend[rp][1] <= open_stage:
        g(pend[rp][2]); rp += 1
    last_stage = groups[-1]['stage']
    left = [0] * len(groups)
    acc = 0
    for n in range(len(groups) - 1, -1, -1):
        if groups[n].get('idx') == OPT['bar_group']: acc = 0
        acc += len(groups[n]['mfmas'])
        left[n] = acc
    since_vm = 1000
    for n, gr in enumerate(groups):
        f = gr['fr']
        d = aFR + (f % ring) * nreg
        if gr['reads']:
            while rp < len(pend) and pend[rp][0] <= f:
                assert pend[rp][1] <= open_stage
                g(pend[rp][2]); rp += 1
        fcur = f if gr['reads'] else f - 1
        R = gr['stage']
        for it in gr.get('pre', []): fq.q.insert(0, it) if False else None
        if gr.get('front'):
            fq.q[0:0] = gr['front']
        for k, mt in enumerate(gr['mfmas']):
            fq.guard(mt.format(a=ar(d)))
            g(mt.format(a=ar(d)))
            budget = 2
            since_vm += 1
            rem = left[n] - k - 1
            while budget:
                if can_read(fcur):
                    g(pend[rp][2]); rp += 1; budget -= 1
                elif len(fq):
                    j = None
                    if fq.is_vm(fq.q[0]) and OPT['pace']:
                        gap = max(1, (rem - 2) // max(1, fq.nvm()))
                        if since_vm >= min(gap, OPT['pace'] * 6): j = 0
                        else:
                            for i, it in enumerate(fq.q):
                                if callable(it): break
                                if fq.is_vm(it) or it[0].startswith('s_'): continue
                                _, _, _, _, rd_, wr_ = classify(it[0])
                                clash = False
                                for e in fq.q[:i]:
                                    _, _, _, _, erd, ewr = classify(e[0])
                                    if (set(erd) | set(ewr)) & set(wr_) or set(ewr) & set(rd_): clash = True
                                if not clash: j = i
                                break
                    else:
                        j = 0
                    if j is None: break
                    if j == 0:
                        if fq.is_vm(fq.q[0]): since_vm = 0
                        fq.pop()
                    else:
                        it = fq.q.pop(j); g(it[0], tag=it[1], nodst=(len(it) > 2))
                    budget -= 1
                else:
                    break
        for it in gr.get('post', []):
            fq.add([it])
        if gr.get('idx') == OPT['bar_group'] and (R < last_stage or tail_barrier):
            while rp < len(pend) and pend[rp][1] <= R:
                g(pend[rp][2]); rp += 1
            fq.drain()
            g.wait_tag(wait_tags(R + 1), lg=0)
            if OPT['stamps'] > 1: g.smem_wait()
            g.barrier()
            if OPT['stamps'] > 1: stamp(f"b{R+1}", drained=True)
            open_stage = R + 1
            fq.add(after_barrier(R + 1))

def interleave(mf, fill, per=2):
    fill = list(fill)
    for m in mf:
        g(m)
        for _ in range(per):
            if fill: g(fill.pop(0))
            elif len(fq): fq.pop()
    for f in fill: g(f)

def softmax_ops(t):
    S = [SACC + 12 * t + k for k in range(12)]
    m, x = vSM + 2 * t, vSM + 2 * t + 1
    o = []
    o.append(f"v_max3_f32 v{m}, v{S[0]}, v{S[1]}, v{S[2]}")
    o.append(f"v_max3_f32 v{x}, v{S[3]}, v{S[4]}, v{S[5]}")
    o.append(f"v_max3_f32 v{m}, v{m}, v{S[6]}, v{S[7]}")
    o.append(f"v_max3_f32 v{x}, v{x}, v{S[8]}, v{S[9]}")
    o.append(f"v_max3_f32 v{m}, v{m}, v{S[10]}, v{S[11]}")
    o.append(f"v_max_f32 v{m}, v{m}, v{x}")
    for sw in ("v_permlane32_swap_b32", "v_permlane16_swap_b32"):
        o.append(f"v_mov_b32 v{x}, v{m}")
        o.append(f"{sw} v{m}, v{x}")
        o.append(f"v_max_f32 v{m}, v{m}, v{x}")
    o.append(f"v_mul_f32 v{m}, s{sC}, v{m}")
    for k in range(12):
        o.append(f"v_fma_f32 v{S[k]}, v{S[k]}, s{sC}, -v{m}")
    for k in range(12):
        o.append(f"v_exp_f32 v{S[k]}, v{S[k]}")
    o.append(f"v_add_f32 v{m}, v{S[0]}, v{S[1]}")
    o.append(f"v_add_f32 v{x}, v{S[2]}, v{S[3]}")
    for k in range(4, 12, 2):
        o.append(f"v_add_f32 v{m}, v{m}, v{S[k]}")
        o.append(f"v_add_f32 v{x}, v{x}, v{S[k+1]}")
    o.append(f"v_add_f32 v{m}, v{m}, v{x}")
    for sw in ("v_permlane32_swap_b32", "v_permlane16_swap_b32"):
        o.append(f"v_mov_b32 v{x}, v{m}")
        o.append(f"{sw} v{m}, v{x}")
        o.append(f"v_add_f32 v{m}, v{m}, v{x}")
    o.append(f"v_rcp_f32 v{m}, v{m}")
    for k in range(12):
        o.append(f"v_mul_f32 v{S[k]}, v{S[k]}, v{m}")
    for k in range(6):
        o.append(f"v_cvt_pk_bf16_f32 v{vPOWN + 6*t + k}, v{S[2*k]}, v{S[2*k+1]}")
    return o

def merge(*lists):
    out = []
    n = max(len(l) for l in lists)
    for i in range(n):
        for l in lists:
            if i < len(l): out.append(l[i])
    return out

def cvt_pairs(acc, s_list, t):
    o = []
    for s in s_list:
        b, b2 = acc(2 * s, t), acc(2 * s + 1, t)
        o.append(f"v_cvt_pk_bf16_f32 v{b}, v{b}, v{b+1}")
        o.append(f"v_cvt_pk_bf16_f32 v{b+1}, v{b+2}, v{b+3}")
        o.append(f"v_cvt_pk_bf16_f32 v{b+2}, v{b2}, v{b2+1}")
        o.append(f"v_cvt_pk_bf16_f32 v{b+3}, v{b2+2}, v{b2+3}")
    return o

def p_write(which, lbl):
    g.wait_all(vm=False, lg=True)
    g(f"s_cmp_lg_u32 s{sJ}, {which}")
    g(f"s_cbranch_scc1 {lbl}")
    n0 = g.n
    for t in range(3):
        g(f"ds_write_b128 v{vPW}, {vr(vPOWN+6*t)} offset:{t*1536}")
        g(f"ds_write_b64 v{vPW2}, {vr(vPOWN+6*t+4,2)} offset:{t*1536}")
    g.wait_all(vm=False, lg=True)
    g.raw(f"{lbl}:")
    g.n = n0

def p_reads(hh):
    o = []
    for t in range(3):
        o.append((f"ds_read_b128 {vr(vP[hh]+6*t)}, v{vPW} offset:{t*1536}", None))
        o.append((f"ds_read_b64 {vr(vP[hh]+6*t+4,2)}, v{vPW2} offset:{t*1536}", None))
    return o

def q_groups():
    gs = []
    for s in range(14):
        slot = s % 3
        win, base = (1, 0) if slot == 2 else (0, slot * SLOT)
        for T in range(16):
            reads = [f"ds_read_b64_tr_b16 {{d}}, v{vWQR + win*8 + (T & 7)} offset:{base + rd*16384 + (T>>3)*256}" for rd in range(2)]
            mf = []
            for t in range(3):
                acc = vr(QACC(T, t))
                xb = ar(aX + (s % XRING) * 12 + t * 4)
                mf.append(f"v_mfma_f32_16x16x32_bf16 {acc}, {{a}}, {xb}, {acc if s else 0}")
            gs.append(dict(stage=s, reads=reads, mfmas=mf, idx=T))
    return gs

def vw_cvt(R):
    par = R % 2
    o = []
    for T in range(2):
        for u in range(3):
            b = VWACC(par, T, u)
            o.append((f"v_cvt_pk_bf16_f32 v{vVWB+6*T+2*u}, v{b}, v{b+1}", None))
            o.append((f"v_cvt_pk_bf16_f32 v{vVWB+6*T+2*u+1}, v{b+2}, v{b+3}", None))
    return o

def final_groups(R, stage):
    hh, c = divmod(R - 14, 7)
    a, b = [], []
    for T in range(2):
        for t in range(3):
            acc = ar(OUTACC(c, T, t))
            a.append(f"v_mfma_f32_16x16x32_bf16 {acc}, {vr(vVWB+6*T)}, {vr(vP[hh]+6*t)}, {acc if hh else 0}")
            b.append(f"v_mfma_f32_16x16x16_bf16 {acc}, {vr(vVWB+6*T+4,2)}, {vr(vP[hh]+6*t+4,2)}, {acc}")
    return dict(stage=stage, reads=[], mfmas=a), dict(stage=stage, reads=[], mfmas=b)

def epilogue_ops(c):
    o = [(f"s_add_u32 s{sT0}, s{sST}, {c*6144}", None)]
    for t in range(3):
        tb = vEP + t * 8
        for T in range(2):
            for r in range(4):
                o.append((f"v_accvgpr_read_b32 v{tb + T*4 + r}, a{OUTACC(c,T,t)+r}", None))
        for k in range(4):
            o.append((f"v_cvt_pk_bf16_f32 v{tb+k}, v{tb+2*k}, v{tb+2*k+1}", None))
        if not OPT['nost']: o.append((f"buffer_store_dwordx4 {vr(tb)}, v{vSTO}, {sr(S_WS)}, s{sT0} offen offset:{t*1024}{FL[OPT['stf']]}", None))
    return o

def o_groups():
    gs = []
    for R in range(14, 28):
        hh, c = divmod(R - 14, 7)
        slot = R % 3
        win, base = (1, 0) if slot == 2 else (0, slot * SLOT)
        for s in range(8):
            for T in range(2):
                idx = 2 * s + T
                reads = [f"ds_read_b64_tr_b16 {{d}}, v{vWOR + win*2 + T} offset:{base + s*4096 + rd*2048}" for rd in range(2)]
                mf = []
                for u in range(3):
                    acc = vr(VWACC(R % 2, T, u))
                    mf.append(f"v_mfma_f32_16x16x32_bf16 {acc}, {vr(VFRAG(u,s))}, {{a}}, {acc if s else 0}")
                gr = dict(stage=R, reads=reads, mfmas=mf, idx=idx)
                if R > 14 and idx == 2: gr['front'] = vw_cvt(R - 1)
                if R == 20 and T == 1:
                    gr['post'] = [v_read(u, s) for u in range(3)]
                gs.append(gr)
                if R > 14 and idx == 5: gs.append(final_groups(R - 1, R)[0])
                if R > 14 and idx == 7:
                    gb = final_groups(R - 1, R)[1]
                    gs.append(gb)
                if R > 21 and idx == 11: gs[-1]['post'] = epilogue_ops(R - 22)
    return gs

def finish_stamps(cls):
    if OPT['stamps']:
        stamp("real_end", real=True)
        g.smem_wait(); stamp_flush()
        g(f"v_writelane_b32 v{vSTAMP}, s98, 62")
        g(f"v_writelane_b32 v{vSTAMP}, s96, 63")
        g(f"s_lshl_b32 s{sT0}, s2, 2")
        g(f"s_add_u32 s{sT0}, s{sT0}, s{sW}")
        g(f"s_lshl_b32 s{sT0}, s{sT0}, 8")
        g(f"s_add_u32 s{sT0}, s{sT0}, {24<<20}")
        g(f"s_mov_b32 s{S_WS+2}, 0x10000000")
        g(f"v_lshrrev_b32 v1, 2, v{vSTO}")
        if OPT['dbg']:
            g(f"s_cmp_lg_u32 s2, {OPT['dbg']}")
            g(f"s_cbranch_scc1 L_nodbg_{cls}")
            g(f"s_cmp_lg_u32 s{sW}, 1")
            g(f"s_cbranch_scc1 L_nodbg_{cls}")
            g(f"v_subrev_u32 v2, s98, v{vSTAMP}")
            g(f"s_mov_b64 exec, 0xffff")
            g(f"buffer_store_dword v2, v1, {sr(S_K)}, 0 offen")
            g.raw(f"L_nodbg_{cls}:")
        else:
            g(f"buffer_store_dword v{vSTAMP}, v1, {sr(S_WS)}, s{sT0} offen")
        json.dump(names, open(sys.argv[1] + ".names", "w"))
    g("s_endpgm")

def main_kernel():
    kernel_open(MAIN)
    g(f"s_cmp_ge_u32 s2, 256")
    g(f"s_cbranch_scc1 L_main_end")
    if OPT['stamps']:
        g("s_memrealtime s[96:97]")
        g("s_memtime s[98:99]")
    if OPT['cpf_first']:
        g(f"s_getpc_b64 s[{sPC}:{sPC+1}]")
        g.raw("L_pc0:")
        g(f"s_lshr_b32 s{sT0}, s2, 3")
        g(f"s_lshl_b32 s{sT0}, s{sT0}, 12")
        g(f"v_lshl_add_u32 v2, v0, 4, s{sT0}")
        g(f"v_min_u32 v2, (L_{'text' if OPT['cpf_red'] else 'main'}_end-L_pc0)/16*16-16, v2")
        g(f"global_load_dword v{vDUM}, v2, s[{sPC}:{sPC+1}]", nodst=True)
    g("s_load_dwordx8 s[64:71], s[0:1], 0")
    g("s_load_dwordx2 s[72:73], s[0:1], 32")
    g("s_load_dwordx8 s[76:83], s[0:1], 40")
    g("s_load_dwordx2 s[84:85], s[0:1], 72")
    g("s_load_dwordx2 s[86:87], s[0:1], 96")
    g(f"s_getpc_b64 s[{sPC}:{sPC+1}]")
    g.raw("L_pc:")
    L = 1
    t0, t1, t2, t3, t4, t5 = 2, 3, 4, 5, 6, 7
    g(f"v_lshrrev_b32 v{t0}, 6, v0")
    g(f"v_and_b32 v{L}, 63, v0")
    g(f"v_readfirstlane_b32 s{sW}, v{t0}")
    g(f"s_and_b32 s{sT0}, s2, 7")
    g(f"s_lshr_b32 s{sT1}, s2, 3")
    g(f"s_lshr_b32 s{sBR}, s{sT0}, 2")
    g(f"s_and_b32 s{sHG}, s{sT0}, 3")
    g(f"s_lshl_b32 s{sT0}, s{sHG}, 2")
    g(f"s_and_b32 s{sHP}, s{sT1}, 1")
    g(f"s_lshl_b32 s{sT2}, s{sHP}, 1")
    g(f"s_add_u32 s{sH0}, s{sT0}, s{sT2}")
    g(f"s_lshr_b32 s{sB0}, s{sT1}, 1")
    if OPT['nc'] == 3:
        g(f"s_mul_i32 s{sCLS}, s{sB0}, 11")
        g(f"s_lshr_b32 s{sCLS}, s{sCLS}, 5")
        g(f"s_mul_i32 s{sCLS}, s{sCLS}, 3")
        g(f"s_sub_u32 s{sCLS}, s{sB0}, s{sCLS}")
    else:
        g(f"s_and_b32 s{sCLS}, s{sB0}, {OPT['nc']-1}")
    g(f"s_lshl_b32 s{sB0}, s{sB0}, 1")
    g(f"s_lshl_b32 s{sWI}, s{sT1}, 2")
    g(f"s_add_u32 s{sWI}, s{sWI}, s{sW}")
    g(f"s_and_b32 s{sBSEL}, s{sW}, 1")
    g(f"s_lshr_b32 s{sJ}, s{sW}, 1")
    g(f"s_add_u32 s{sB}, s{sB0}, s{sBSEL}")
    g(f"s_lshl_b32 s{sM}, s{sW}, 13")
    g(f"s_lshl_b32 s{sVM}, s{sW}, 10")
    g(f"s_add_u32 s{sVM}, s{sVM}, {VB}")
    g(f"s_mov_b32 s{sXM}, s{sVM}")
    g(f"s_lshl_b32 s{sWQB}, s{sH0}, 9")
    g(f"s_mul_i32 s{sXB}, s{sB0}, 43008")
    g(f"s_lshl_b32 s{sT0}, s{sBSEL}, 4")
    g(f"s_lshl_b32 s{sT1}, s{sJ}, 2")
    g(f"s_add_u32 s{sT0}, s{sT0}, s{sT1}")
    g(f"s_lshl_b32 s{sT0}, s{sT0}, 13")
    g(f"v_lshlrev_b32 v{vSTO}, 4, v{L}")
    g(f"v_add_u32 v{t1}, s{sT0}, v{vSTO}")
    for i in range(8):
        const = (8 * (i >> 2) + (i & 3)) * 8192 - (i & 3) * 1024
        g(f"v_xor_b32 v{t0}, {32*i}, v{t1}")
        g(f"v_add_u32 v{vWQD+i}, {const}, v{t0}")
    g(f"v_lshrrev_b32 v{t0}, 3, v{L}")
    g(f"v_mul_u32_u24 v{t0}, 896, v{t0}")
    g(f"v_lshrrev_b32 v{t1}, 4, v{L}")
    g(f"s_lshl_b32 s{sT0}, s{sBSEL}, 2")
    g(f"v_add_u32 v{t1}, s{sT0}, v{t1}")
    g(f"v_and_b32 v{t2}, 7, v{L}")
    g(f"v_xor_b32 v{t1}, v{t1}, v{t2}")
    g(f"v_lshl_add_u32 v{t0}, v{t1}, 4, v{t0}")
    g(f"s_mul_i32 s{sT0}, s{sW}, 7168")
    g(f"v_add_u32 v{vXD}, s{sT0}, v{t0}")
    g(f"v_and_b32 v{t0}, 15, v{L}")
    g(f"v_lshrrev_b32 v{t1}, 4, v{L}")
    g(f"v_mov_b32 v{t5}, {BIG}")
    g(f"v_lshlrev_b32 v{t2}, 7, v{t0}")
    g(f"v_cmp_gt_u32 vcc, 16, v{L}")
    g(f"s_lshl_b32 s{sTWQ}, s{sWI}, 13")
    g(f"s_lshl_b32 s{sT0}, s{sHG}, 11")
    g(f"v_cndmask_b32 v9, v{t5}, v{t2}, vcc")
    g(f"s_add_u32 s{sTWQ}, s{sTWQ}, s{sT0}")
    g(f"v_lshl_add_u32 v{t2}, v{t1}, 20, v{t2}")
    g(f"v_cmp_gt_u32 vcc, 32, v{L}")
    g(f"s_lshl_b32 s{sT0}, s{sHP}, 2")
    g(f"s_add_u32 s{sT0}, s{sT0}, s{sW}")
    g(f"v_cndmask_b32 v{vTWQ}, v{t5}, v{t2}, vcc")
    g(f"s_mul_i32 s{sT1}, s{sT0}, 24")
    g(f"s_mul_i32 s{sT2}, s{sT0}, 36")
    g(f"v_add_u32 v{t2}, s{sT1}, v{L}")
    g(f"v_lshrrev_b32 v{t3}, 1, v{t2}")
    g(f"v_mul_u32_u24 v{t3}, 896, v{t3}")
    g(f"v_and_b32 v{t2}, 1, v{t2}")
    g(f"v_lshl_add_u32 v{t2}, v{t2}, 7, v{t3}")
    g(f"v_cmp_gt_u32 vcc, 24, v{L}")
    g(f"v_add_u32 v{t3}, s{sT2}, v{L}")
    g(f"v_mul_u32_u24 v{t4}, 21846, v{t3}")
    g(f"v_cndmask_b32 v{vTXA}, v{t5}, v{t2}, vcc")
    g(f"v_lshrrev_b32 v{t4}, 16, v{t4}")
    g(f"v_mul_u32_u24 v{t2}, 3, v{t4}")
    g(f"v_sub_u32 v{t3}, v{t3}, v{t2}")
    g(f"v_mul_u32_u24 v{t4}, 896, v{t4}")
    g(f"v_lshl_add_u32 v{t3}, v{t3}, 7, v{t4}")
    g(f"v_cmp_gt_u32 vcc, 36, v{L}")
    g(f"s_nop 1")
    g(f"v_cndmask_b32 v{vTXB}, v{t5}, v{t3}, vcc")
    g.smem_wait()
    g(f"s_cmp_eq_u32 s{sBR}, 0")
    for k in (0, 3, 1, 2, 4):
        g(f"s_cselect_b64 s[{64+2*k}:{65+2*k}], s[{64+2*k}:{65+2*k}], s[{76+2*k}:{77+2*k}]")
    srd(S_X, 64, 65, 1376256)
    srd(S_WQ, 70, 71, 3670016)
    emit_list(touch(9, S_WQ, sTWQ, 0))
    if OPT['code_pf'] and not OPT['cpf_first']:
        g(f"s_min_u32 s{sT0}, s{sWI}, (L_main_end-L_pc)/1024-1")
        g(f"s_lshl_b32 s{sT0}, s{sT0}, 10")
        g(f"v_add_u32 v{t2}, s{sT0}, v{vSTO}")
        g(f"global_load_dword v{vDUM}, v{t2}, s[{sPC}:{sPC+1}]", nodst=True)
    emit_list(x_dma(0, "R0"))
    emit_list(x_dma(1, "R0"))
    g(f"v_mov_b32 v{vT16}, v9")
    if OPT['t_a'] < 0:
        emit_list(touch(9, S_WQ, sTWQ, 128 * 8192) + touch(vTXA, S_X, sXB, 256))
    g(f"v_lshrrev_b32 v{t2}, 1, v{t0}")
    g(f"v_xor_b32 v{t2}, v{t2}, v{t1}")
    g(f"v_lshlrev_b32 v{t2}, 4, v{t2}")
    g(f"v_lshl_add_u32 v{t2}, v{t0}, 7, v{t2}")
    g(f"s_mul_i32 s{sT0}, s{sBSEL}, 6144")
    g(f"s_add_u32 s{sT0}, s{sT0}, {VB}")
    g(f"v_add_u32 v{vXR}, s{sT0}, v{t2}")
    g(f"v_xor_b32 v{vXR+1}, 64, v{vXR}")
    g(f"v_lshlrev_b32 v{t2}, 7, v{L}")
    g(f"v_cmp_gt_u32 vcc, 32, v{L}")
    srd(S_K, 66, 67, 12582912)
    g(f"v_cndmask_b32 v{vT32}, v{t5}, v{t2}, vcc")
    srd(S_V, 68, 69, 12582912)
    srd(S_WO, 72, 73, 3670016)
    srd(S_WS, 86, 87, 22020096)
    u0, u1, u2 = 10, 11, 12
    g(f"v_lshrrev_b32 v{u0}, 2, v{L}")
    g(f"v_and_b32 v{u1}, 7, v{u0}")
    g(f"v_and_b32 v{u2}, 3, v{L}")
    g(f"v_lshlrev_b32 v{u2}, 3, v{u2}")
    g(f"s_lshl_b32 s{sT0}, s{sJ}, 9")
    g(f"v_lshl_add_u32 v{t3}, v{u0}, 10, v{u2}")
    g(f"v_add_u32 v{t3}, s{sT0}, v{t3}")
    for T in range(8):
        g(f"v_xor_b32 v{t4}, {T}, v{u1}")
        g(f"v_lshl_add_u32 v{vWQR+T}, v{t4}, 5, v{t3}")
        g(f"v_add_u32 v{vWQR+8+T}, 0x10000, v{vWQR+T}")
    g(f"s_lshl_b32 s{sT0}, s{sB}, 4")
    g(f"s_add_u32 s{sT0}, s{sT0}, s{sH0}")
    g(f"s_add_u32 s{sT0}, s{sT0}, s{sJ}")
    g(f"s_mul_i32 s{sKB}, s{sT0}, 24576")
    g(f"s_mul_i32 s{sKM}, s{sW}, 8320")
    g(f"s_add_u32 s{sKM}, s{sKM}, {KA}")
    g(f"v_lshlrev_b32 v{t2}, 2, v{t1}")
    g(f"v_xor_b32 v{t2}, v{t2}, v{t0}")
    g(f"v_lshlrev_b32 v{t2}, 4, v{t2}")
    g(f"v_lshl_add_u32 v{vKD}, v{t1}, 9, v{t2}")
    g(f"v_lshrrev_b32 v{t2}, 2, v{t0}")
    g(f"v_mul_u32_u24 v{t2}, 1040, v{t2}")
    g(f"v_and_b32 v{t3}, 3, v{t0}")
    g(f"v_lshl_add_u32 v{t2}, v{t3}, 8, v{t2}")
    g(f"v_lshl_add_u32 v{t2}, v{t1}, 3, v{t2}")
    g(f"v_add_u32 v{t2}, s{sKM}, v{t2}")
    for s4 in range(4):
        g(f"v_xor_b32 v{t4}, {s4}, v{t3}")
        g(f"v_lshl_add_u32 v{vKR+s4}, v{t4}, 6, v{t2}")
    g(f"s_mul_i32 s{sWOBASE}, s{sH0}, 229376")
    g(f"s_lshl_b32 s{sT0}, s{sB0}, 4")
    g(f"s_add_u32 s{sT0}, s{sT0}, s{sH0}")
    g(f"s_mul_i32 s{sVBASE}, s{sT0}, 24576")
    g(f"s_add_u32 s{sT0}, s{sH0}, s{sBR}")
    g(f"s_lshl_b32 s{sT0}, s{sT0}, 5")
    g(f"s_add_u32 s{sT0}, s{sT0}, s{sB}")
    g(f"s_mul_i32 s{sST}, s{sT0}, 43008")
    g(f"s_mul_i32 s{sT0}, s{sJ}, 3072")
    g(f"s_add_u32 s{sST}, s{sST}, s{sT0}")
    g(f"s_mov_b32 s{sC}, 0x{struct.unpack('<I', struct.pack('<f', 1.4426950408889634/16.0))[0]:08x}")
    g(f"s_lshr_b32 s{sT0}, s{sWI}, 6")
    g(f"s_lshl_b32 s{sT1}, s{sHG}, 1")
    g(f"s_add_u32 s{sT0}, s{sT0}, s{sT1}")
    g(f"s_mul_i32 s{sTWO}, s{sT0}, 458752")
    g(f"s_and_b32 s{sT0}, s{sWI}, 63")
    g(f"s_mul_i32 s{sT0}, s{sT0}, 3584")
    g(f"s_add_u32 s{sTWO}, s{sTWO}, s{sT0}")
    g(f"s_mul_i32 s{sT0}, s{sBSEL}, 24576")
    g(f"s_add_u32 s{sT0}, s{sT0}, {VB}")
    g(f"v_xor_b32 v{t3}, v{t1}, v{t0}")
    g(f"v_lshlrev_b32 v{t3}, 4, v{t3}")
    g(f"v_lshl_add_u32 v{t3}, v{t0}, 8, v{t3}")
    g(f"v_add_u32 v{vVR}, s{sT0}, v{t3}")
    for s4 in range(1, 4):
        g(f"v_xor_b32 v{vVR+s4}, {64*s4}, v{vVR}")
    g(f"s_lshl_b32 s{sT0}, s{sW}, 2")
    g(f"v_add_u32 v{t3}, s{sT0}, v{t1}")
    g(f"v_xor_b32 v{t3}, v{t3}, v{t0}")
    g(f"v_lshlrev_b32 v{t3}, 4, v{t3}")
    g(f"v_lshl_add_u32 v{t3}, v{t1}, 9, v{t3}")
    g(f"s_lshl_b32 s{sT0}, s{sW}, 11")
    g(f"v_add_u32 v{vVD}, s{sT0}, v{t3}")
    g(f"v_lshl_add_u32 v{t3}, v{u0}, 7, v{u2}")
    g(f"v_bfe_u32 v{t2}, v{L}, 3, 2")
    g(f"s_lshl_b32 s{sT0}, s{sJ}, 1")
    for T in range(2):
        g(f"s_add_u32 s{sT3}, s{sT0}, {T}")
        g(f"v_xor_b32 v{t4}, s{sT3}, v{t2}")
        g(f"v_lshl_add_u32 v{vWOR+T}, v{t4}, 5, v{t3}")
        g(f"v_add_u32 v{vWOR+2+T}, 0x10000, v{vWOR+T}")
    g(f"v_lshrrev_b32 v{t3}, 5, v{L}")
    g(f"v_lshl_add_u32 v{t2}, v{t3}, 3, v{t2}")
    g(f"v_mul_u32_u24 v{t2}, 896, v{t2}")
    g(f"v_lshlrev_b32 v{t3}, 1, v{t1}")
    g(f"v_and_b32 v{t4}, 7, v{L}")
    g(f"v_xor_b32 v{t3}, v{t3}, v{t4}")
    g(f"v_lshl_add_u32 v{t2}, v{t3}, 4, v{t2}")
    g(f"s_mul_i32 s{sT0}, s{sW}, 57344")
    g(f"v_add_u32 v{vWOD}, s{sT0}, v{t2}")
    for k in range(1, 4):
        g(f"v_add_u32 v{vWOD+k}, {(16*(k&1) + 4*(k>>1))*896 - k*1024}, v{vWOD}")
    g(f"s_mul_i32 s{sT0}, s{sBSEL}, 4608")
    g(f"s_add_u32 s{sT0}, s{sT0}, {PB}")
    g(f"v_add_u32 v{vPW}, s{sT0}, v{vSTO}")
    g(f"s_add_u32 s{sT0}, s{sT0}, 1024")
    g(f"v_lshl_add_u32 v{vPW2}, v{L}, 3, s{sT0}")
    if OPT['tlb']:
        g(f"v_and_b32 v{t2}, 1, v{L}")
        g(f"v_mul_u32_u24 v{t2}, 393216, v{t2}")
        g(f"v_lshrrev_b32 v{t3}, 1, v{L}")
        g(f"v_mul_u32_u24 v{t3}, 49024, v{t3}")
        g(f"v_add_u32 v{t2}, v{t2}, v{t3}")
        g(f"v_cmp_gt_u32 vcc, 4, v{L}")
        g(f"v_lshlrev_b32 v{t3}, 17, v{L}")
        g(f"v_mul_u32_u24 v{t4}, 39808, v{L}")
        g(f"v_cndmask_b32 v{t2}, v{t5}, v{t2}, vcc")
        g(f"v_cndmask_b32 v{t3}, v{t5}, v{t3}, vcc")
        g(f"v_cmp_gt_u32 vcc, 2, v{L}")
        g(f"buffer_load_dword v{vDUM}, v{t2}, {sr(S_K)}, s{sVBASE} offen nt", nodst=True)
        g(f"v_cndmask_b32 v{t4}, v{t5}, v{t4}, vcc")
        g(f"buffer_load_dword v{vDUM}, v{t2}, {sr(S_V)}, s{sVBASE} offen nt", nodst=True)
        g(f"buffer_load_dword v{vDUM}, v{t3}, {sr(S_WO)}, s{sWOBASE} offen", nodst=True)
        g(f"buffer_load_dword v{vDUM}, v{t4}, {sr(S_WS)}, s{sST} offen nt", nodst=True)
    if OPT['fuse']:
        srd(S_FLG, 86, 87, 22020096 + 32 * 256)
        g(f"s_lshl_b32 s{sT0}, s{sBR}, 5")
        g(f"s_add_u32 s{sT0}, s{sT0}, s{sB0}")
        g(f"s_lshl_b32 s{sFLG}, s{sT0}, 7")
        g(f"s_add_u32 s{sFLG}, s{sFLG}, 22020096")
        g(f"v_mov_b32 v{t2}, 0")
        g(f"buffer_load_dword v{vFLAG}, v{t2}, {sr(S_FLG)}, s{sFLG} offen sc1")
    emit_list(ring_dma(0))
    stamp('pro')
    g.wait_tag("R0")
    g.barrier()
    stamp('b0')
    import copy
    NC = OPT['nc']
    for cls in range(1, NC):
        g(f"s_cmp_eq_u32 s{sCLS}, {cls}")
        g(f"s_cbranch_scc1 L_body_{cls}")
    saved = copy.deepcopy({k: v for k, v in g.__dict__.items() if k != 'lines'})
    st0 = (nstamp, pending, list(names))
    for cls in range(NC):
        for k, v in copy.deepcopy(saved).items(): setattr(g, k, v)
        globals().update(nstamp=st0[0], pending=st0[1], names=list(st0[2]))
        if cls: g.raw(".p2align 6"); g.raw(f"L_body_{cls}:")
        body(cls)
    g.raw("L_main_end:")
    g("s_endpgm")

def fused_reduce(cls):
    S_DBG, S_OUT = S_K, S_V
    g("s_load_dwordx4 s[64:67], s[0:1], 80")
    g(f"s_lshl_b32 s70, s{sH0}, 1")
    g(f"s_add_u32 s70, s70, s{sW}")
    g(f"s_lshl_b32 s71, s{sBR}, 5")
    g(f"s_add_u32 s71, s71, s{sB0}")
    g(f"s_lshr_b32 s72, s71, 1")
    g(f"s_lshl_b32 s72, s72, 2")
    g(f"s_add_u32 s72, s72, 128")
    g(f"s_mul_i32 s71, s71, 43008")
    for k in range(3):
        f, ld, st = 73, 76 + k, 80 + k
        g(f"s_add_u32 s{f}, s70, {32*k}")
        g(f"s_lshl_b32 s{ld}, s{f}, 10")
        g(f"s_add_u32 s{ld}, s{ld}, s71")
        g(f"s_cmp_ge_u32 s{f}, 42")
        g(f"s_cselect_b32 s74, 1, 0")
        g(f"s_mul_i32 s75, s74, 42")
        g(f"s_sub_u32 s75, s{f}, s75")
        g(f"s_mul_i32 s83, s75, 43")
        g(f"s_lshr_b32 s83, s83, 7")
        g(f"s_mul_i32 s84, s83, 3")
        g(f"s_sub_u32 s84, s75, s84")
        g(f"s_add_u32 s74, s74, s{sB0}")
        g(f"s_mul_i32 s74, s74, 3")
        g(f"s_add_u32 s74, s74, s84")
        g(f"s_mul_i32 s{st}, s74, {16*1792}")
        g(f"s_lshl_b32 s83, s83, 6")
        g(f"s_add_u32 s{st}, s{st}, s83")
        g(f"s_mul_i32 s83, s{sBR}, 896")
        g(f"s_add_u32 s{st}, s{st}, s83")
        if k == 2:
            g(f"s_cmp_lt_u32 s{f}, 84")
            g(f"s_cselect_b32 s{ld}, s{ld}, {BIG}")
            g(f"s_cselect_b32 s{st}, s{st}, {BIG}")
    g(f"v_lshrrev_b32 v200, 4, v{vSTO}")
    g(f"v_and_b32 v201, 15, v200")
    g(f"v_mul_u32_u24 v201, 1792, v201")
    g(f"v_lshrrev_b32 v200, 4, v200")
    g(f"v_lshl_add_u32 v201, v200, 4, v201")
    g(f"v_mov_b32 v202, 0")
    g(f"v_mov_b32 v203, 1")
    g.smem_wait()
    srd(S_OUT, 64, 65, 2752512)
    srd(S_DBG, 66, 67, 256)
    g.wait_all()
    g.barrier()
    stamp('stdrain')
    g(f"s_cmp_lg_u32 s{sW}, 0")
    g(f"s_cbranch_scc1 L_wait_{cls}")
    g("s_mov_b64 exec, 1")
    g(f"buffer_atomic_add v203, v202, {sr(S_DBG)}, s72 offen sc0")
    g.vm[-1] = ({('v', 203)}, None)
    g(f"v_readfirstlane_b32 s86, v203")
    g(f"s_cmp_lg_u32 s86, 7")
    g(f"s_cbranch_scc1 L_notlast_{cls}")
    g(f"v_add_u32 v204, 1, v{vFLAG}")
    g(f"buffer_store_dword v204, v202, {sr(S_FLG)}, s{sFLG} offen sc1")
    g(f"s_branch L_got_{cls}")
    g.raw(f"L_notlast_{cls}:")
    g(f"s_mov_b32 s85, 0x200000")
    g(f"v_readfirstlane_b32 s87, v{vFLAG}")
    g.raw(f"L_poll_{cls}:")
    g(f"buffer_load_dword v204, v202, {sr(S_FLG)}, s{sFLG} offen sc1")
    g.wait_all()
    g(f"v_readfirstlane_b32 s86, v204")
    g(f"s_cmp_lg_u32 s86, s87")
    g(f"s_cbranch_scc1 L_got_{cls}")
    g(f"s_sleep {OPT['slp']}")
    g(f"s_sub_u32 s85, s85, 1")
    g(f"s_cmp_lg_u32 s85, 0")
    g(f"s_cbranch_scc1 L_poll_{cls}")
    g.raw(f"L_got_{cls}:")
    g("s_mov_b64 exec, -1")
    g.raw(f"L_wait_{cls}:")
    g.barrier()
    stamp('met')
    for k in range(3):
        for p in range(8):
            if p == 0:
                g(f"s_mov_b32 s{sT0}, s{76+k}")
            else:
                g(f"s_add_u32 s{sT0}, s{sT0}, {64*43008}")
            g(f"buffer_load_dwordx4 {vr((k*8+p)*4)}, v{vSTO}, {sr(S_WS)}, s{sT0} offen sc1")
    for k in range(3):
        A, B = 100 + 24 * k, 108 + 24 * k
        for p in range(8):
            for q in range(4):
                src = (k * 8 + p) * 4 + q
                d = A if p == 0 else B
                g(f"v_lshlrev_b32 v{d+2*q}, 16, v{src}")
                g(f"v_and_b32 v{d+2*q+1}, 0xffff0000, v{src}")
            if p:
                for q in range(8):
                    g(f"v_add_f32 v{A+q}, v{A+q}, v{B+q}")
        O = 116 + 24 * k
        for q in range(4):
            g(f"v_cvt_pk_bf16_f32 v{O+q}, v{A+2*q}, v{A+2*q+1}")
        g(f"v_permlane32_swap_b32 v{O}, v{O+2}")
        g(f"v_permlane32_swap_b32 v{O+1}, v{O+3}")
        g(f"v_permlane16_swap_b32 v{O}, v{O+2}")
        g(f"v_permlane16_swap_b32 v{O+1}, v{O+3}")
        g(f"buffer_store_dwordx4 {vr(O)}, v201, {sr(S_OUT)}, s{80+k} offen{FL[OPT['osf']]}")

def body(cls):
    KS = [OPT[f'k{u}'] + cls * OPT['kstep'] for u in range(3)]
    TWO0 = OPT['t_wo0'] + cls * OPT['kstep']
    TB = OPT['t_b'] + cls * OPT['kstep']
    V1A = OPT['v1'] + (cls * OPT['vstep']) % 3
    V1B = OPT['v1b'] - 3 + (3 + cls * OPT['vstep']) % 3 + (0 if True else 0)
    V1B = min(V1A + (OPT['v1b'] - OPT['v1']), 18)
    emit_list(x_reads(0))
    def early_touches(R):
        o = []
        if R == OPT['t_a']: o += touch(vT16, S_WQ, sTWQ, 128 * 8192) + touch(vTXA, S_X, sXB, 256)
        if R == TB: o += touch(vTWQ, S_WQ, sTWQ, 256 * 8192) + touch(vTXB, S_X, sXB, 512)
        return o
    fq.add(x_reads(1) + ring_dma(1) + ring_dma(2) + early_touches(0))
    x_issue = {1: (2, "R3"), 2: (3, "R4"), 5: (4, "R7"), 6: (5, "R8"), 8: (6, "R10")}
    x_read = {3: 2, 4: 3, 7: 4, 8: 5, 10: 6}
    k_issue = {KS[u]: u for u in range(3)}
    k_read = {KS[u] + OPT['kw']: u for u in range(3)}
    assert max(k_read) <= 13
    for u in range(2): assert KS[u+1] > KS[u] + OPT['kw']
    if 0 in k_issue: fq.add(k_dma(k_issue[0], f"R{OPT['kw']}"))
    def after1(R):
        out = []
        if R in x_read: out += x_reads(x_read[R])
        if R in k_read: out += k_reads(k_read[R])
        out += ring_dma(R + 2)
        if R in x_issue: out += x_dma(*x_issue[R])
        if R in k_issue: out += k_dma(k_issue[R], f"R{R+OPT['kw']}")
        if R == TWO0: out += touch(vT32, S_WO, sTWO, 0)
        out += early_touches(R)
        if R == OPT['v0a']: out += v_dma(0, range(7))
        if R == 14: out += v_dma(0, range(7, 12))
        if R == OPT['t_wo1']: out += touch(vT32, S_WO, sTWO, 229376)
        return out
    run_stages(q_groups(), after1, lambda R: f"R{R}" if R < 14 else "none", tail_barrier=True)
    stamp('G1end')
    def s_mf(t):
        return [f"v_mfma_f32_16x16x32_bf16 {vr(SACC+(t*3+u)*4)}, {ar(aK+(u*8+s)*4)}, {vr(QFRAG(s,t))}, {vr(SACC+(t*3+u)*4) if s else 0}"
                for s in range(8) for u in range(3)]
    def paced(ins_list, every):
        n = 0
        for ins in ins_list:
            g(ins); n += 1
            if n % every == 0:
                while len(fq) and not fq.is_vm(fq.q[0]): fq.pop()
                if len(fq): fq.pop()
    paced(cvt_pairs(QACC, range(8), 0), 8)
    def mix(mf, fill):
        o = []; fill = list(fill)
        for m in mf:
            o.append(m)
            for _ in range(2):
                if fill: o.append(fill.pop(0))
        return o + fill
    paced(mix(s_mf(0), cvt_pairs(QACC, range(8), 1)), 10)
    paced(mix(s_mf(1), cvt_pairs(QACC, range(8), 2)), 10)
    fq.drain()
    sm0 = softmax_ops(0)
    interleave(s_mf(2), sm0[:40])
    for ins in merge(sm0[40:], softmax_ops(1), softmax_ops(2)): g(ins)
    stamp('SM')
    p_write(0, f"L_pw0_{cls}")
    g.wait_tag(["V0", "R14"], lg=0)
    g.barrier()
    stamp('Pbar')
    for u in range(3): emit_list([v_read(u, 0)])
    for s in range(1, 8):
        fq.add([v_read(u, s) for u in range(3)])
    fq.add(p_reads(0))
    def after2(R):
        out = []
        if R == OPT['p1'] + 1: out += p_reads(1)
        out += ring_dma(R + 2)
        if R == V1A: out += v_dma(1, range(6))
        if R == V1B: out += v_dma(1, range(6, 12))
        if R == OPT['t_wo1']: out += touch(vT32, S_WO, sTWO, 229376)
        if R == OPT['p1']: out.append(lambda: p_write(1, f"L_pw1_{cls}"))
        return out
    def wt(R):
        return [f"R{R}", "V1"] if R == 20 else f"R{R}"
    run_stages(o_groups(), after2, wt, tail_barrier=False)
    fq.drain()
    stamp('G2end')
    emit_list(vw_cvt(27))
    fa, fb = final_groups(27, 27)
    for m in fa['mfmas'] + fb['mfmas']: g(m)
    emit_list(epilogue_ops(6))
    stamp('epi')
    if OPT['fuse']: fused_reduce(cls)
    if OPT['stamps']:
        g.wait_all()
        stamp('drain')
    finish_stamps(cls)

def reduce_kernel():
    global g
    lines = g.lines
    g = Gen(); g.lines = lines
    kernel_open(RED)
    g("s_cmp_ge_u32 s2, 448")
    g("s_cbranch_scc1 L_red_end")
    g("s_load_dwordx2 s[4:5], s[0:1], 80")
    g("s_load_dwordx2 s[6:7], s[0:1], 96")
    g("s_mov_b32 s16, 0x24924925")
    g("s_mul_hi_u32 s17, s2, s16")
    g("s_mul_i32 s18, s17, 7")
    g("s_sub_u32 s18, s2, s18")
    g("s_mul_i32 s19, s17, 43008")
    g("s_mul_i32 s20, s18, 6144")
    g("s_add_u32 s19, s19, s20")
    g("v_lshlrev_b32 v1, 4, v0")
    g("v_lshrrev_b32 v2, 6, v0")
    g("v_and_b32 v3, 63, v0")
    g("v_readfirstlane_b32 s21, v2")
    g("s_cmp_ge_u32 s21, 3")
    g("s_cselect_b32 s22, 1, 0")
    g("s_mul_i32 s23, s22, 3")
    g("s_sub_u32 s23, s21, s23")
    g("s_and_b32 s24, s17, 31")
    g("s_lshr_b32 s25, s17, 5")
    g("s_mul_i32 s24, s24, 48")
    g("s_lshl_b32 s23, s23, 4")
    g("s_add_u32 s24, s24, s23")
    g("s_mul_i32 s24, s24, 1792")
    g("s_mul_i32 s25, s25, 896")
    g("s_add_u32 s24, s24, s25")
    g("s_lshl_b32 s26, s18, 7")
    g("s_add_u32 s24, s24, s26")
    g("s_lshl_b32 s26, s22, 6")
    g("s_add_u32 s24, s24, s26")
    g("v_and_b32 v4, 15, v3")
    g("v_mul_u32_u24 v4, 1792, v4")
    g("v_lshrrev_b32 v5, 4, v3")
    g("v_lshl_add_u32 v4, v5, 4, v4")
    g.smem_wait()
    srd(8, 6, 7, 22020096)
    srd(12, 4, 5, 2752512)
    for p in range(8):
        if p:
            g(f"s_add_u32 s19, s19, {64*43008}")
        g(f"buffer_load_dwordx4 {vr(8+4*p)}, v1, s[8:11], s19 offen{FL[OPT['ldf']]}")
    for p in range(8):
        for k in range(4):
            src = 8 + 4 * p + k
            if p == 0:
                g(f"v_lshlrev_b32 v{40+2*k}, 16, v{src}")
                g(f"v_and_b32 v{41+2*k}, 0xffff0000, v{src}")
            else:
                g(f"v_lshlrev_b32 v{48+2*k}, 16, v{src}")
                g(f"v_and_b32 v{49+2*k}, 0xffff0000, v{src}")
        if p:
            for k in range(8):
                g(f"v_add_f32 v{40+k}, v{40+k}, v{48+k}")
    for k in range(4):
        g(f"v_cvt_pk_bf16_f32 v{56+k}, v{40+2*k}, v{41+2*k}")
    g("v_permlane32_swap_b32 v56, v58")
    g("v_permlane32_swap_b32 v57, v59")
    g("v_permlane16_swap_b32 v56, v58")
    g("v_permlane16_swap_b32 v57, v59")
    g(f"buffer_store_dwordx4 v[56:59], v4, s[12:15], s24 offen{FL[OPT['osf']]}")
    g.raw("L_red_end:")
    g("s_endpgm")
    g.raw("L_text_end:")

def descriptors():
    g.raw('.section .rodata,"a"')
    for name, nv, acc in ((MAIN, 512, 256), (RED, 64, 64))[:1 if OPT['fuse'] else 2]:
        g.raw(".p2align 6")
        g.raw(f".amdhsa_kernel {name}")
        g.raw(f"  .amdhsa_next_free_vgpr {nv}")
        g.raw("  .amdhsa_next_free_sgpr 102")
        g.raw(f"  .amdhsa_accum_offset {acc}")
        g.raw("  .amdhsa_group_segment_fixed_size 0")
        g.raw("  .amdhsa_kernarg_size 104")
        g.raw("  .amdhsa_user_sgpr_count 2")
        g.raw("  .amdhsa_user_sgpr_kernarg_segment_ptr 1")
        g.raw("  .amdhsa_system_sgpr_workgroup_id_x 1")
        g.raw("  .amdhsa_float_denorm_mode_32 3")
        g.raw(".end_amdhsa_kernel")

header()
main_kernel()
st = dict(g.stats)
if not OPT['fuse']: reduce_kernel()
else: g.raw('L_text_end:')
descriptors()
open(sys.argv[1], "w").write(g.text())
print("main stats", st, "forced", fq.forced)
```

```python
import re

REG_RE = re.compile(r'\b([vas])(\d+)\b|\b([vas])\[(\d+):(\d+)\]')

def regs_of(tok):
    out = []
    tok = tok.strip()
    m = re.fullmatch(r'-?(?:abs\()?([vas])(\d+)\)?', tok)
    if m:
        return [(m.group(1), int(m.group(2)))]
    m = re.fullmatch(r'-?([vas])\[(\d+):(\d+)\]', tok)
    if m:
        return [(m.group(1), i) for i in range(int(m.group(2)), int(m.group(3)) + 1)]
    if tok in ('vcc',):
        return [('s', 106), ('s', 107)]
    if tok == 'm0':
        return [('s', 124)]
    if tok == 'exec':
        return [('s', 126), ('s', 127)]
    return out

TRANS = ('v_exp_f32', 'v_log_f32', 'v_rcp_f32', 'v_rsq_f32', 'v_sqrt_f32')

def classify(text):
    text = text.strip()
    op, _, rest = text.partition(' ')
    toks = [t.strip() for t in rest.split(',')] if rest else []
    mods = ''
    if toks:
        parts = toks[-1].split()
        toks[-1] = parts[0]
        mods = ' '.join(parts[1:])
    rd, wr = [], []
    kind = None
    if op.startswith('v_mfma'):
        kind = 'mfma'
        wr = regs_of(toks[0]); a = regs_of(toks[1]); b = regs_of(toks[2]); c = regs_of(toks[3])
        rd = a + b + c
    elif op.startswith('ds_read'):
        kind = 'dsr'; wr = regs_of(toks[0]); rd = regs_of(toks[1])
    elif op.startswith('ds_write'):
        kind = 'dsw'; rd = sum((regs_of(t) for t in toks), [])
    elif op.startswith('buffer_load') or op.startswith('global_load'):
        kind = 'vml'
        if 'lds' in mods.split():
            kind = 'dma'; rd = sum((regs_of(t) for t in toks), []) + [('s', 124)]
        else:
            wr = regs_of(toks[0]); rd = sum((regs_of(t) for t in toks[1:]), [])
    elif op.startswith('buffer_store') or op.startswith('global_store') or op.startswith('buffer_atomic') or op.startswith('global_atomic'):
        kind = 'vms'; rd = sum((regs_of(t) for t in toks), [])
    elif op.startswith('v_permlane'):
        kind = 'valu'; wr = regs_of(toks[0]) + regs_of(toks[1]); rd = list(wr)
    elif op.startswith('v_'):
        kind = 'valu'
        wr = regs_of(toks[0]); rd = sum((regs_of(t) for t in toks[1:]), [])
        if op.startswith('v_fmac') or op.startswith('v_pk_fmac'):
            rd += wr
    elif op.startswith('s_load') or op.startswith('s_memtime') or op.startswith('s_memrealtime'):
        kind = 'smem'; wr = regs_of(toks[0]); rd = sum((regs_of(t) for t in toks[1:]), [])
    elif op.startswith('s_'):
        kind = 'salu'
        if op.startswith('s_cmp') or op.startswith('s_cbranch') or op.startswith('s_branch') or op in ('s_endpgm', 's_setprio', 's_sleep', 's_nop'):
            rd = sum((regs_of(t) for t in toks), [])
        else:
            wr = regs_of(toks[0]); rd = sum((regs_of(t) for t in toks[1:]), [])
    else:
        raise ValueError('unknown op ' + text)
    return op, toks, mods, kind, rd, wr

class Gen:
    def __init__(self):
        self.lines = []
        self.n = 0
        self.lgkm = []
        self.vm = []
        self.valu_w = {}
        self.trans_w = {}
        self.mfma_w = {}
        self.mfma_c = {}
        self.salu_m0 = -100
        self.mfma_op = {}
        self.vmtot = 0
        self.valu_sw = {}
        self.store_r = {}
        self.smem_pending = False
        self.stats = {'nop': 0, 'wait': 0, 'mfma': 0, 'ins': 0}

    def raw(self, text):
        self.lines.append(text)

    def comment(self, text):
        self.lines.append('    ; ' + text)

    def _emit(self, text, slots=1):
        self.lines.append('    ' + text)
        self.n += slots
        self.stats['ins'] += 1

    def nop(self, k):
        while k > 0:
            c = min(k, 16)
            self._emit(f's_nop {c-1}', c)
            self.stats['nop'] += c
            k -= c

    def _wait(self, vm=None, lg=None):
        parts = []
        if vm is not None:
            vm = min(vm, 63)
            if vm < len(self.vm):
                parts.append(f'vmcnt({vm})')
                self.vm = self.vm[len(self.vm) - vm:] if vm else []
        if lg is not None:
            lg = min(lg, 15)
            if lg < len(self.lgkm):
                parts.append(f'lgkmcnt({lg})')
                self.lgkm = self.lgkm[len(self.lgkm) - lg:] if lg else []
        if parts:
            self._emit('s_waitcnt ' + ' '.join(parts))
            self.stats['wait'] += 1

    def wait_tag(self, tag, lg=None):
        tags = tag if isinstance(tag, (list, tuple, set)) else [tag]
        idx = [i for i, (d, t) in enumerate(self.vm) if t in tags]
        vm = (len(self.vm) - 1 - idx[-1]) if idx else None
        self._wait(vm=vm, lg=lg)

    def need(self, regs):
        regs = set(regs); n = None
        for i, d in enumerate(self.lgkm):
            if d & regs: n = len(self.lgkm) - 1 - i
        if n is not None: self._wait(lg=n)

    def wait_all(self, vm=True, lg=True):
        self._wait(vm=0 if vm else None, lg=0 if lg else None)

    def smem_wait(self):
        self._emit('s_waitcnt lgkmcnt(0)')
        self.lgkm = []

    def barrier(self):
        self._emit('s_barrier')

    def __call__(self, text, tag=None, nodst=False):
        text = text.strip()
        op, toks, mods, kind, rd, wr = classify(text)
        if nodst: wr = []
        srd, swr = set(rd), set(wr)
        touch = srd | swr
        need_lg = None
        for i, d in enumerate(self.lgkm):
            if d & touch:
                need_lg = len(self.lgkm) - 1 - i
        need_vm = None
        for i, (d, t) in enumerate(self.vm):
            if d & touch:
                need_vm = len(self.vm) - 1 - i
        if need_lg is not None or need_vm is not None:
            self._wait(vm=need_vm, lg=need_lg)
        need = 0
        def req(slot, k):
            nonlocal need
            gap = self.n - slot - 1
            if gap < k:
                need = max(need, k - gap)
        if kind == 'mfma':
            passes = 8 if '32x32' in op else 4
            for r in srd:
                if r in self.valu_w: req(self.valu_w[r], 2)
            ab = set(regs_of(toks[1]) + regs_of(toks[2]))
            cset = tuple(regs_of(toks[3]))
            for r in ab:
                if r in self.mfma_w:
                    s, d, p = self.mfma_w[r]; req(s, {4: 8, 8: 12}[p])
            for r in cset:
                if r in self.mfma_w:
                    s, d, p = self.mfma_w[r]
                    if d != cset or p != passes or self.mfma_op.get(r) != op: req(s, {4: 6, 8: 10}[p])
            for r in swr:
                if r in self.mfma_w:
                    s, d, p = self.mfma_w[r]
                    if d != tuple(wr): req(s, {4: 6, 8: 10}[p])
        else:
            chk = touch if kind in ('valu', 'dsr', 'vml') else srd
            for r in chk:
                if r in self.mfma_w:
                    s, d, p = self.mfma_w[r]; req(s, {4: 8, 8: 12}[p])
            if kind in ('valu', 'dsr', 'vml'):
                for r in swr:
                    if r in self.mfma_c:
                        s, p = self.mfma_c[r]; req(s, {4: 3, 8: 7}[p])
                    if r in self.store_r: req(self.store_r[r], 2)
        if kind == 'valu':
            if op not in TRANS and not any(op.startswith(t) for t in TRANS):
                for r in srd:
                    if r in self.trans_w: req(self.trans_w[r], 1)
            if op.startswith('v_permlane'):
                for r in srd:
                    if r in self.valu_w: req(self.valu_w[r], 2)
            if op.startswith('v_readfirstlane') or op.startswith('v_readlane'):
                for r in srd:
                    if r in self.valu_w: req(self.valu_w[r], 1)
            if 'dpp' in mods or 'row_' in mods or 'quad_perm' in mods:
                for r in srd:
                    if r in self.valu_w: req(self.valu_w[r], 2)
            for r in srd:
                if r[0] == 's' and r in self.valu_sw: req(self.valu_sw[r], 2)
        if kind in ('mfma',):
            for r in srd:
                if r in self.trans_w: req(self.trans_w[r], 2)
        if kind in ('vml', 'vms', 'dma'):
            for r in srd:
                if r[0] == 's' and r in self.valu_sw: req(self.valu_sw[r], 5)
        if kind == 'salu' or kind == 'smem':
            for r in srd:
                if r in self.valu_sw: req(self.valu_sw[r], 4)
        if kind == 'dma':
            req(self.salu_m0, 1)
        if need:
            self.nop(need)
        slot = self.n
        self._emit(text)
        if kind == 'mfma':
            self.stats['mfma'] += 1
            passes = 8 if '32x32' in op else 4
            for r in swr:
                self.mfma_w[r] = (slot, tuple(wr), passes); self.valu_w.pop(r, None); self.trans_w.pop(r, None)
                self.mfma_op[r] = op
            for r in regs_of(toks[3]):
                self.mfma_c[r] = (slot, passes)
        elif kind == 'valu':
            for r in swr:
                if r[0] == 's':
                    self.valu_sw[r] = slot
                else:
                    self.valu_w[r] = slot; self.mfma_w.pop(r, None)
                    if any(op.startswith(t) for t in TRANS): self.trans_w[r] = slot
                    else: self.trans_w.pop(r, None)
        elif kind in ('dsr', 'dsw'):
            self.lgkm.append(swr)
            for r in swr:
                self.mfma_w.pop(r, None); self.valu_w.pop(r, None); self.trans_w.pop(r, None)
        elif kind in ('vml', 'vms', 'dma'):
            self.vm.append((swr, tag))
            self.vmtot += 1
            for r in swr:
                self.mfma_w.pop(r, None); self.valu_w.pop(r, None); self.trans_w.pop(r, None)
            if kind == 'vms' and ('x4' in op or 'x3' in op):
                for r in regs_of(toks[0]):
                    self.store_r[r] = slot
        elif kind == 'salu':
            for r in swr:
                self.valu_sw.pop(r, None)
                if r == ('s', 124): self.salu_m0 = slot

    def text(self):
        return '\n'.join(self.lines) + '\n'
```

```python
import sys, struct, json
from asmgen import Gen, classify

NAME = "concat_heads__mha_block_cached__gqa_block_cached__near_ridge"
MAIN = NAME + "_kernel"
RED = "reduce_partials_kernel"

OPT = dict(bar_group=10, D=7, stamps=0, code_pf=1, touch=1, ntk=1, ntv=1, nttw=0, nttx=0,
           k0=2, k1=6, k2=10, kw=3, t_wo0=10, t_wo1=14, v1=15, v1b=18, p1=17, t_a=0, t_b=3, v0a=14, nc=1, kstep=1, vstep=1, ntfirst=1, pace=1, diag=0, nok=0, nov=0, now=0, nost=0, nox=0, dbg=0, stf=1, ldf=0, osf=0, tlb=0, cpf_first=1, cpf_red=0, cpf2=0, fuse=0, slp=2, t_xa=0, t_xb=3, ret=0, hw=1)
FL = ['', ' sc1', ' sc0 sc1', ' nt', ' sc1 nt', ' sc0 sc1 nt']
for a in sys.argv[2:]:
    k, v = a.split('=')
    assert k in OPT, k
    OPT[k] = int(v)
def NT(k): return ' nt' if OPT[k] else ''

SLOT = 32768
VB = 3 * SLOT
XU = 12288
KA = VB + 65536 - 4 * 8320
PB = VB + 49152
LDS_BYTES = 163840
BIG = 0x7ffff000

S_X, S_K, S_V, S_WQ, S_WO, S_WS = 8, 12, 16, 20, 24, 28
sW, sBSEL, sJ, sBR, sH0, sB0, sB = 32, 33, 34, 35, 36, 37, 38
sWQB = 39
sXB, sXM, sKB, sKM, sXO, sKO, sWQO, sWOO, sWOO2, sVO = 40, 41, 42, 43, 44, 45, 46, 47, 48, 49
sM, sVM, sST, sC = 50, 51, 52, 53
sT0, sT1, sT2, sT3 = 54, 55, 56, 57
sVBASE, sWOBASE = 58, 59
sPC = 60
sTWQ = 63
sHG, sHP, sWI, sTWO, sCLS = 88, 89, 90, 91, 94
S_FLG, sFLG = 4, 95
STB = 64

def QACC(T, t): return (((T // 2) * 3 + t) * 4) + (96 if T & 1 else 0)
def QFRAG(s, t): return (s * 3 + t) * 4
SACC = 192
vWQR = 192
vWQD = 208
vXR = 216
vXD = 218
vKR = 219
vKD = 223
vTWQ = 224
vTXA = 225
vTXB = 226
vT16 = 227
vWOD = 228
vVD = 232
vVR = 233
vWOR = 237
vSTO = 241
vPW = 242
vPW2 = 243
vT32 = 244
vDUM = 245
vFLAG = 252
vSM = 246
def VFRAG(u, s): return (u * 8 + s) * 4
vPOWN = 96
vP = [114, 132]
vVWB = 150
vEP = 96
def VWACC(par, T, u): return 180 + par * 24 + (T * 3 + u) * 4
aFR, aK, aX, XRING, aOUT = 0, 32, 128, 10, 32
def OUTACC(c, T, t): return aOUT + ((c * 2 + T) * 3 + t) * 4

def vr(b, n=4): return f"v[{b}:{b+n-1}]"
def ar(b, n=4): return f"a[{b}:{b+n-1}]"
def sr(b, n=4): return f"s[{b}:{b+n-1}]"

g = Gen()
nstamp = 0
vSTAMP = 255
pending = False
names = []
def stamp_flush():
    global pending
    if pending:
        g(f"v_writelane_b32 v{vSTAMP}, s92, {nstamp-1}")
        pending = False
def stamp(name="", real=False, drained=False):
    global nstamp, pending
    if OPT['stamps']:
        if pending:
            if not drained: g.smem_wait()
            stamp_flush()
        g(f"{'s_memrealtime' if real else 's_memtime'} s[92:93]")
        names.append(name); nstamp += 1; pending = True

def header():
    g.raw("; fused attention block: launch 1 computes per-head-pair partial outputs, launch 2 sums them")
    if OPT['fuse']:
        g.raw(f"; @launch grid=(256,1,1) block=(256,1,1) lds={LDS_BYTES}")
    else:
        g.raw(f"; @launch kernel={MAIN} grid=(256,1,1) block=(256,1,1) lds={LDS_BYTES}")
        g.raw(f"; @launch kernel={RED} grid=(448,1,1) block=(384,1,1) lds=0")
    g.raw('.amdgcn_target "amdgcn-amd-amdhsa--gfx950"')
    g.raw(".text")

def kernel_open(name):
    g.raw(f".globl {name}")
    g.raw(".p2align 8")
    g.raw(f".type {name},@function")
    g.raw(f"{name}:")

def srd(dst, lo, hi, nbytes):
    g(f"s_mov_b32 s{dst}, s{lo}")
    g(f"s_and_b32 s{dst+1}, s{hi}, 0xffff")
    g(f"s_mov_b32 s{dst+2}, {nbytes}")
    g(f"s_mov_b32 s{dst+3}, 0x20000")

def wq_dma(R):
    slot = (R % 3) * SLOT
    out = [(f"s_add_u32 s{sWQO}, s{sWQB}, {R*262144}", None)]
    for i in range(8):
        if i % 4 == 0:
            out.append((f"s_add_u32 m0, s{sM}, {slot + (i//4)*4096}", None))
        out.append((f"buffer_load_dwordx4 v{vWQD+i}, {sr(S_WQ)}, s{sWQO} offen offset:{(i%4)*1024} lds", f"R{R}"))
    return out

def wo_dma(R):
    hh, c = divmod(R - 14, 7)
    slot = (R % 3) * SLOT
    out = [(f"s_add_u32 s{sWOO}, s{sWOBASE}, {hh*229376 + c*128}", None),
           (f"s_add_u32 s{sWOO2}, s{sWOBASE}, {hh*229376 + c*128 + 28672}", None)]
    for i in range(8):
        if i % 4 == 0:
            out.append((f"s_add_u32 m0, s{sM}, {slot + (i//4)*4096}", None))
        so = sWOO if i < 4 else sWOO2
        out.append((f"buffer_load_dwordx4 v{vWOD+(i%4)}, {sr(S_WO)}, s{so} offen offset:{(i%4)*1024} lds", f"R{R}"))
    return out

def ring_dma(R):
    if OPT['now'] and R > 2: return []
    if R < 14: return wq_dma(R)
    if R < 28: return wo_dma(R)
    return []

def x_dma(p, tag):
    out = []
    if OPT['nox'] and p > 1: return out
    for k in range(3):
        out.append((f"s_add_u32 s{sXO}, s{sXB}, {p*128 + k*28672}", None))
        out.append((f"s_add_u32 m0, s{sXM}, {(p % 2)*XU + k*4096}", None))
        out.append((f"buffer_load_dwordx4 v{vXD}, {sr(S_X)}, s{sXO} offen{NT('ntfirst') if p < 2 else ''} lds", tag))
    return out

def x_reads(p):
    out = []
    for s2 in range(2):
        s = 2 * p + s2
        for t in range(3):
            d = aX + (s % XRING) * 12 + t * 4
            out.append((f"ds_read_b128 {ar(d)}, v{vXR+s2} offset:{(p % 2)*XU + t*2048}", None))
    return out

def k_dma(u, tag):
    out = []
    if OPT['nok']: return out
    for dh in range(2):
        out.append((f"s_add_u32 m0, s{sKM}, {dh*4160}", None))
        for j in range(4):
            out.append((f"s_add_u32 s{sKO}, s{sKB}, {u*8192 + dh*256 + j*(2048-1040)}", None))
            out.append((f"buffer_load_dwordx4 v{vKD}, {sr(S_K)}, s{sKO} offen offset:{j*1040}{NT('ntk')} lds", tag))
    return out

def k_reads(u):
    out = []
    for dh in range(2):
        for s4 in range(4):
            for p in range(2):
                d = aK + (u * 8 + dh * 4 + s4) * 4 + 2 * p
                out.append((f"ds_read_b64 {ar(d,2)}, v{vKR+s4} offset:{dh*4160 + 32*p}", None))
    return out

def v_dma(hh, subs):
    out = []
    if OPT['nov']: return out
    for sub in subs:
        bb, r = divmod(sub, 6); u, dh = divmod(r, 2)
        out.append((f"s_add_u32 s{sVO}, s{sVBASE}, {hh*24576 + bb*393216 + u*8192 + dh*256}", None))
        out.append((f"s_add_u32 m0, s{sVM}, {sub*4096}", None))
        out.append((f"buffer_load_dwordx4 v{vVD}, {sr(S_V)}, s{sVO} offen{NT('ntv')} lds", f"V{hh}"))
    return out

def v_read(u, s):
    dh, s4 = divmod(s, 4)
    return (f"ds_read_b128 {vr(VFRAG(u,s))}, v{vVR+s4} offset:{(u*2+dh)*4096}", None)

def touch(vaddr, srd_, sbase, add, plain=False):
    key = {S_WQ: 'nttw', S_WO: 'nttw', S_X: 'nttx'}[srd_]
    if not OPT['touch']: return []
    return [(f"s_add_u32 s{sT1}, s{sbase}, {add}", None),
            (f"buffer_load_dword v{vDUM}, v{vaddr}, {sr(srd_)}, s{sT1} offen{'' if plain else NT(key)}", None, True)]

def touch_table():
    return {'t_a': (vT16, S_WQ, sTWQ, 128 * 8192), 't_xa': (vTXA, S_X, sXB, 256), 't_b': (vTWQ, S_WQ, sTWQ, 256 * 8192),
            't_xb': (vTXB, S_X, sXB, 512), 't_wo0': (vT32, S_WO, sTWO, 0), 't_wo1': (vT32, S_WO, sTWO, 229376)}
def touches(R, shift=0):
    o = []
    for k, a in touch_table().items():
        at = OPT[k] + (shift if OPT[k] >= 1 and k != 't_wo1' else 0)
        if at == R: o += touch(*a)
        if OPT['ret'] and max(at, 0) + OPT['ret'] == R: o += touch(*a, plain=True)
    return o

class FillQ:
    def __init__(self): self.q = []
    def add(self, items): self.q.extend(items)
    def pop(self):
        it = self.q.pop(0)
        if callable(it): it()
        else: g(it[0], tag=it[1], nodst=(len(it) > 2))
    def __len__(self): return len(self.q)
    def is_vm(self, it):
        return (not callable(it)) and it[0].startswith(('buffer_', 'global_'))
    def nvm(self): return sum(1 for it in self.q if self.is_vm(it))
    def drain(self):
        while self.q: self.pop()
    def guard(self, text):
        _, _, _, _, rd, wr = classify(text)
        rd = {r for r in rd if r[0] != 's'}; wr = {r for r in wr if r[0] != 's'}
        last = -1
        for i, it in enumerate(self.q):
            if callable(it): continue
            _, _, _, _, frd, fwr = classify(it[0])
            if len(it) > 2: fwr = []
            if (set(fwr) & (rd | wr)) or (set(frd) & wr): last = i
        if last >= 0: self.forced += last + 1
        for _ in range(last + 1): self.pop()
    forced = 0
fq = FillQ()
def emit_list(l):
    for it in l: g(it[0], tag=it[1], nodst=(len(it) > 2))

def run_stages(groups, after_barrier, wait_tags, tail_barrier=None, ring=8, nreg=4):
    D = min(OPT['D'], ring - 1)
    open_stage = groups[0]['stage']
    pend = []
    fr = 0
    for n, gr in enumerate(groups):
        gr['fr'] = fr
        if gr['reads']:
            d = aFR + (fr % ring) * nreg
            for k, rt in enumerate(gr['reads']):
                pend.append((fr, gr['stage'], rt.format(d=ar(d + 2 * k, 2))))
            fr += 1
    rp = 0
    def can_read(f_cur):
        if rp >= len(pend): return False
        f, st, _ = pend[rp]
        return st <= open_stage and f <= f_cur + D
    while rp < len(pend) and pend[rp][0] < D and pend[rp][1] <= open_stage:
        g(pend[rp][2]); rp += 1
    last_stage = groups[-1]['stage']
    left = [0] * len(groups)
    acc = 0
    for n in range(len(groups) - 1, -1, -1):
        if groups[n].get('idx') == OPT['bar_group']: acc = 0
        acc += len(groups[n]['mfmas'])
        left[n] = acc
    since_vm = 1000
    for n, gr in enumerate(groups):
        f = gr['fr']
        d = aFR + (f % ring) * nreg
        if gr['reads']:
            while rp < len(pend) and pend[rp][0] <= f:
                assert pend[rp][1] <= open_stage
                g(pend[rp][2]); rp += 1
        if gr['reads'] and OPT['hw'] and f % 2 == 0 and any(p[0] == f + 1 for p in pend[:rp]) and sum(1 for p in pend[:rp] if p[0] == f + 1) == 2:
            d2 = aFR + ((f + 1) % ring) * nreg
            g.need([('a', d + i) for i in range(4)] + [('a', d2 + i) for i in range(4)])
        fcur = f if gr['reads'] else f - 1
        R = gr['stage']
        for it in gr.get('pre', []): fq.q.insert(0, it) if False else None
        if gr.get('front'):
            fq.q[0:0] = gr['front']
        for k, mt in enumerate(gr['mfmas']):
            fq.guard(mt.format(a=ar(d)))
            g(mt.format(a=ar(d)))
            budget = 2
            since_vm += 1
            rem = left[n] - k - 1
            while budget:
                if can_read(fcur):
                    g(pend[rp][2]); rp += 1; budget -= 1
                elif len(fq):
                    j = None
                    if fq.is_vm(fq.q[0]) and OPT['pace']:
                        gap = max(1, (rem - 2) // max(1, fq.nvm()))
                        if since_vm >= min(gap, OPT['pace'] * 6): j = 0
                        else:
                            for i, it in enumerate(fq.q):
                                if callable(it): break
                                if fq.is_vm(it) or it[0].startswith('s_'): continue
                                _, _, _, _, rd_, wr_ = classify(it[0])
                                clash = False
                                for e in fq.q[:i]:
                                    _, _, _, _, erd, ewr = classify(e[0])
                                    if (set(erd) | set(ewr)) & set(wr_) or set(ewr) & set(rd_): clash = True
                                if not clash: j = i
                                break
                    else:
                        j = 0
                    if j is None: break
                    if j == 0:
                        if fq.is_vm(fq.q[0]): since_vm = 0
                        fq.pop()
                    else:
                        it = fq.q.pop(j); g(it[0], tag=it[1], nodst=(len(it) > 2))
                    budget -= 1
                else:
                    break
        for it in gr.get('post', []):
            fq.add([it])
        if gr.get('idx') == OPT['bar_group'] and (R < last_stage or tail_barrier):
            while rp < len(pend) and pend[rp][1] <= R:
                g(pend[rp][2]); rp += 1
            fq.drain()
            g.wait_tag(wait_tags(R + 1), lg=0)
            if OPT['stamps'] > 1: g.smem_wait()
            g.barrier()
            if OPT['stamps'] > 1: stamp(f"b{R+1}", drained=True)
            open_stage = R + 1
            fq.add(after_barrier(R + 1))

def interleave(mf, fill, per=2):
    fill = list(fill)
    for m in mf:
        g(m)
        for _ in range(per):
            if fill: g(fill.pop(0))
            elif len(fq): fq.pop()
    for f in fill: g(f)

def softmax_ops(t):
    S = [SACC + 12 * t + k for k in range(12)]
    m, x = vSM + 2 * t, vSM + 2 * t + 1
    o = []
    o.append(f"v_max3_f32 v{m}, v{S[0]}, v{S[1]}, v{S[2]}")
    o.append(f"v_max3_f32 v{x}, v{S[3]}, v{S[4]}, v{S[5]}")
    o.append(f"v_max3_f32 v{m}, v{m}, v{S[6]}, v{S[7]}")
    o.append(f"v_max3_f32 v{x}, v{x}, v{S[8]}, v{S[9]}")
    o.append(f"v_max3_f32 v{m}, v{m}, v{S[10]}, v{S[11]}")
    o.append(f"v_max_f32 v{m}, v{m}, v{x}")
    for sw in ("v_permlane32_swap_b32", "v_permlane16_swap_b32"):
        o.append(f"v_mov_b32 v{x}, v{m}")
        o.append(f"{sw} v{m}, v{x}")
        o.append(f"v_max_f32 v{m}, v{m}, v{x}")
    o.append(f"v_mul_f32 v{m}, s{sC}, v{m}")
    for k in range(12):
        o.append(f"v_fma_f32 v{S[k]}, v{S[k]}, s{sC}, -v{m}")
    for k in range(12):
        o.append(f"v_exp_f32 v{S[k]}, v{S[k]}")
    o.append(f"v_add_f32 v{m}, v{S[0]}, v{S[1]}")
    o.append(f"v_add_f32 v{x}, v{S[2]}, v{S[3]}")
    for k in range(4, 12, 2):
        o.append(f"v_add_f32 v{m}, v{m}, v{S[k]}")
        o.append(f"v_add_f32 v{x}, v{x}, v{S[k+1]}")
    o.append(f"v_add_f32 v{m}, v{m}, v{x}")
    for sw in ("v_permlane32_swap_b32", "v_permlane16_swap_b32"):
        o.append(f"v_mov_b32 v{x}, v{m}")
        o.append(f"{sw} v{m}, v{x}")
        o.append(f"v_add_f32 v{m}, v{m}, v{x}")
    o.append(f"v_rcp_f32 v{m}, v{m}")
    for k in range(12):
        o.append(f"v_mul_f32 v{S[k]}, v{S[k]}, v{m}")
    for k in range(6):
        o.append(f"v_cvt_pk_bf16_f32 v{vPOWN + 6*t + k}, v{S[2*k]}, v{S[2*k+1]}")
    return o

def merge(*lists):
    out = []
    n = max(len(l) for l in lists)
    for i in range(n):
        for l in lists:
            if i < len(l): out.append(l[i])
    return out

def cvt_pairs(acc, s_list, t):
    o = []
    for s in s_list:
        b, b2 = acc(2 * s, t), acc(2 * s + 1, t)
        o.append(f"v_cvt_pk_bf16_f32 v{b}, v{b}, v{b+1}")
        o.append(f"v_cvt_pk_bf16_f32 v{b+1}, v{b+2}, v{b+3}")
        o.append(f"v_cvt_pk_bf16_f32 v{b+2}, v{b2}, v{b2+1}")
        o.append(f"v_cvt_pk_bf16_f32 v{b+3}, v{b2+2}, v{b2+3}")
    return o

def p_write(which, lbl):
    g.wait_all(vm=False, lg=True)
    g(f"s_cmp_lg_u32 s{sJ}, {which}")
    g(f"s_cbranch_scc1 {lbl}")
    n0 = g.n
    for t in range(3):
        g(f"ds_write_b128 v{vPW}, {vr(vPOWN+6*t)} offset:{t*1536}")
        g(f"ds_write_b64 v{vPW2}, {vr(vPOWN+6*t+4,2)} offset:{t*1536}")
    g.wait_all(vm=False, lg=True)
    g.raw(f"{lbl}:")
    g.n = n0

def p_reads(hh):
    o = []
    for t in range(3):
        o.append((f"ds_read_b128 {vr(vP[hh]+6*t)}, v{vPW} offset:{t*1536}", None))
        o.append((f"ds_read_b64 {vr(vP[hh]+6*t+4,2)}, v{vPW2} offset:{t*1536}", None))
    return o

def q_groups():
    gs = []
    for s in range(14):
        slot = s % 3
        win, base = (1, 0) if slot == 2 else (0, slot * SLOT)
        for T in range(16):
            reads = [f"ds_read_b64_tr_b16 {{d}}, v{vWQR + win*8 + (T & 7)} offset:{base + rd*16384 + (T>>3)*256}" for rd in range(2)]
            mf = []
            for t in range(3):
                acc = vr(QACC(T, t))
                xb = ar(aX + (s % XRING) * 12 + t * 4)
                mf.append(f"v_mfma_f32_16x16x32_bf16 {acc}, {{a}}, {xb}, {acc if s else 0}")
            gs.append(dict(stage=s, reads=reads, mfmas=mf, idx=T))
    return gs

def vw_cvt(R):
    par = R % 2
    o = []
    for T in range(2):
        for u in range(3):
            b = VWACC(par, T, u)
            o.append((f"v_cvt_pk_bf16_f32 v{vVWB+6*T+2*u}, v{b}, v{b+1}", None))
            o.append((f"v_cvt_pk_bf16_f32 v{vVWB+6*T+2*u+1}, v{b+2}, v{b+3}", None))
    return o

def final_groups(R, stage):
    hh, c = divmod(R - 14, 7)
    a, b = [], []
    for T in range(2):
        for t in range(3):
            acc = ar(OUTACC(c, T, t))
            a.append(f"v_mfma_f32_16x16x32_bf16 {acc}, {vr(vVWB+6*T)}, {vr(vP[hh]+6*t)}, {acc if hh else 0}")
            b.append(f"v_mfma_f32_16x16x16_bf16 {acc}, {vr(vVWB+6*T+4,2)}, {vr(vP[hh]+6*t+4,2)}, {acc}")
    return dict(stage=stage, reads=[], mfmas=a), dict(stage=stage, reads=[], mfmas=b)

def epilogue_ops(c):
    o = [(f"s_add_u32 s{sT0}, s{sST}, {c*6144}", None)]
    for t in range(3):
        tb = vEP + t * 8
        for T in range(2):
            for r in range(4):
                o.append((f"v_accvgpr_read_b32 v{tb + T*4 + r}, a{OUTACC(c,T,t)+r}", None))
        for k in range(4):
            o.append((f"v_cvt_pk_bf16_f32 v{tb+k}, v{tb+2*k}, v{tb+2*k+1}", None))
        if not OPT['nost']: o.append((f"buffer_store_dwordx4 {vr(tb)}, v{vSTO}, {sr(S_WS)}, s{sT0} offen offset:{t*1024}{FL[OPT['stf']]}", None))
    return o

def o_groups():
    gs = []
    for R in range(14, 28):
        hh, c = divmod(R - 14, 7)
        slot = R % 3
        win, base = (1, 0) if slot == 2 else (0, slot * SLOT)
        for s in range(8):
            for T in range(2):
                idx = 2 * s + T
                reads = [f"ds_read_b64_tr_b16 {{d}}, v{vWOR + win*2 + T} offset:{base + s*4096 + rd*2048}" for rd in range(2)]
                mf = []
                for u in range(3):
                    acc = vr(VWACC(R % 2, T, u))
                    mf.append(f"v_mfma_f32_16x16x32_bf16 {acc}, {vr(VFRAG(u,s))}, {{a}}, {acc if s else 0}")
                gr = dict(stage=R, reads=reads, mfmas=mf, idx=idx)
                if R > 14 and idx == 2: gr['front'] = vw_cvt(R - 1)
                if R == 20 and T == 1:
                    gr['post'] = [v_read(u, s) for u in range(3)]
                gs.append(gr)
                if R > 14 and idx == 5: gs.append(final_groups(R - 1, R)[0])
                if R > 14 and idx == 7:
                    gb = final_groups(R - 1, R)[1]
                    gs.append(gb)
                if R > 21 and idx == 11: gs[-1]['post'] = epilogue_ops(R - 22)
    return gs

def finish_stamps(cls):
    if OPT['stamps']:
        stamp("real_end", real=True)
        g.smem_wait(); stamp_flush()
        g(f"v_writelane_b32 v{vSTAMP}, s98, 62")
        g(f"v_writelane_b32 v{vSTAMP}, s96, 63")
        g(f"s_lshl_b32 s{sT0}, s2, 2")
        g(f"s_add_u32 s{sT0}, s{sT0}, s{sW}")
        g(f"s_lshl_b32 s{sT0}, s{sT0}, 8")
        g(f"s_add_u32 s{sT0}, s{sT0}, {24<<20}")
        g(f"s_mov_b32 s{S_WS+2}, 0x10000000")
        g(f"v_lshrrev_b32 v1, 2, v{vSTO}")
        if OPT['dbg']:
            g(f"s_cmp_lg_u32 s2, {OPT['dbg']}")
            g(f"s_cbranch_scc1 L_nodbg_{cls}")
            g(f"s_cmp_lg_u32 s{sW}, 1")
            g(f"s_cbranch_scc1 L_nodbg_{cls}")
            g(f"v_subrev_u32 v2, s98, v{vSTAMP}")
            g(f"s_mov_b64 exec, 0xffff")
            g(f"buffer_store_dword v2, v1, {sr(S_K)}, 0 offen")
            g.raw(f"L_nodbg_{cls}:")
        else:
            g(f"buffer_store_dword v{vSTAMP}, v1, {sr(S_WS)}, s{sT0} offen")
        json.dump(names, open(sys.argv[1] + ".names", "w"))
    g("s_endpgm")

def main_kernel():
    kernel_open(MAIN)
    g(f"s_cmp_ge_u32 s2, 256")
    g(f"s_cbranch_scc1 L_main_end")
    if OPT['stamps']:
        g("s_memrealtime s[96:97]")
        g("s_memtime s[98:99]")
    if OPT['cpf_first']:
        g(f"s_getpc_b64 s[{sPC}:{sPC+1}]")
        g.raw("L_pc0:")
        g(f"s_lshr_b32 s{sT0}, s2, 3")
        g(f"s_lshl_b32 s{sT0}, s{sT0}, 12")
        g(f"v_lshl_add_u32 v2, v0, 4, s{sT0}")
        g(f"v_min_u32 v2, (L_{'text' if OPT['cpf_red'] else 'main'}_end-L_pc0)/16*16-16, v2")
        g(f"global_load_dword v{vDUM}, v2, s[{sPC}:{sPC+1}]", nodst=True)
    g("s_load_dwordx8 s[64:71], s[0:1], 0")
    g("s_load_dwordx2 s[72:73], s[0:1], 32")
    g("s_load_dwordx8 s[76:83], s[0:1], 40")
    g("s_load_dwordx2 s[84:85], s[0:1], 72")
    g("s_load_dwordx2 s[86:87], s[0:1], 96")
    g(f"s_getpc_b64 s[{sPC}:{sPC+1}]")
    g.raw("L_pc:")
    L = 1
    t0, t1, t2, t3, t4, t5 = 2, 3, 4, 5, 6, 7
    g(f"v_lshrrev_b32 v{t0}, 6, v0")
    g(f"v_and_b32 v{L}, 63, v0")
    g(f"v_readfirstlane_b32 s{sW}, v{t0}")
    g(f"s_and_b32 s{sT0}, s2, 7")
    g(f"s_lshr_b32 s{sT1}, s2, 3")
    g(f"s_lshr_b32 s{sBR}, s{sT0}, 2")
    g(f"s_and_b32 s{sHG}, s{sT0}, 3")
    g(f"s_lshl_b32 s{sT0}, s{sHG}, 2")
    g(f"s_and_b32 s{sHP}, s{sT1}, 1")
    g(f"s_lshl_b32 s{sT2}, s{sHP}, 1")
    g(f"s_add_u32 s{sH0}, s{sT0}, s{sT2}")
    g(f"s_lshr_b32 s{sB0}, s{sT1}, 1")
    if OPT['nc'] == 3:
        g(f"s_mul_i32 s{sCLS}, s{sB0}, 11")
        g(f"s_lshr_b32 s{sCLS}, s{sCLS}, 5")
        g(f"s_mul_i32 s{sCLS}, s{sCLS}, 3")
        g(f"s_sub_u32 s{sCLS}, s{sB0}, s{sCLS}")
    else:
        g(f"s_and_b32 s{sCLS}, s{sB0}, {OPT['nc']-1}")
    g(f"s_lshl_b32 s{sB0}, s{sB0}, 1")
    g(f"s_lshl_b32 s{sWI}, s{sT1}, 2")
    g(f"s_add_u32 s{sWI}, s{sWI}, s{sW}")
    g(f"s_and_b32 s{sBSEL}, s{sW}, 1")
    g(f"s_lshr_b32 s{sJ}, s{sW}, 1")
    g(f"s_add_u32 s{sB}, s{sB0}, s{sBSEL}")
    g(f"s_lshl_b32 s{sM}, s{sW}, 13")
    g(f"s_lshl_b32 s{sVM}, s{sW}, 10")
    g(f"s_add_u32 s{sVM}, s{sVM}, {VB}")
    g(f"s_mov_b32 s{sXM}, s{sVM}")
    g(f"s_lshl_b32 s{sWQB}, s{sH0}, 9")
    g(f"s_mul_i32 s{sXB}, s{sB0}, 43008")
    g(f"s_lshl_b32 s{sT0}, s{sBSEL}, 4")
    g(f"s_lshl_b32 s{sT1}, s{sJ}, 2")
    g(f"s_add_u32 s{sT0}, s{sT0}, s{sT1}")
    g(f"s_lshl_b32 s{sT0}, s{sT0}, 13")
    g(f"v_lshlrev_b32 v{vSTO}, 4, v{L}")
    g(f"v_add_u32 v{t1}, s{sT0}, v{vSTO}")
    for i in range(8):
        const = (8 * (i >> 2) + (i & 3)) * 8192 - (i & 3) * 1024
        g(f"v_xor_b32 v{t0}, {32*i}, v{t1}")
        g(f"v_add_u32 v{vWQD+i}, {const}, v{t0}")
    g(f"v_lshrrev_b32 v{t0}, 3, v{L}")
    g(f"v_mul_u32_u24 v{t0}, 896, v{t0}")
    g(f"v_lshrrev_b32 v{t1}, 4, v{L}")
    g(f"s_lshl_b32 s{sT0}, s{sBSEL}, 2")
    g(f"v_add_u32 v{t1}, s{sT0}, v{t1}")
    g(f"v_and_b32 v{t2}, 7, v{L}")
    g(f"v_xor_b32 v{t1}, v{t1}, v{t2}")
    g(f"v_lshl_add_u32 v{t0}, v{t1}, 4, v{t0}")
    g(f"s_mul_i32 s{sT0}, s{sW}, 7168")
    g(f"v_add_u32 v{vXD}, s{sT0}, v{t0}")
    g(f"v_and_b32 v{t0}, 15, v{L}")
    g(f"v_lshrrev_b32 v{t1}, 4, v{L}")
    g(f"v_mov_b32 v{t5}, {BIG}")
    g(f"v_lshlrev_b32 v{t2}, 7, v{t0}")
    g(f"v_cmp_gt_u32 vcc, 16, v{L}")
    g(f"s_lshl_b32 s{sTWQ}, s{sWI}, 13")
    g(f"s_lshl_b32 s{sT0}, s{sHG}, 11")
    g(f"v_cndmask_b32 v9, v{t5}, v{t2}, vcc")
    g(f"s_add_u32 s{sTWQ}, s{sTWQ}, s{sT0}")
    g(f"v_lshl_add_u32 v{t2}, v{t1}, 20, v{t2}")
    g(f"v_cmp_gt_u32 vcc, 32, v{L}")
    g(f"s_lshl_b32 s{sT0}, s{sHP}, 2")
    g(f"s_add_u32 s{sT0}, s{sT0}, s{sW}")
    g(f"v_cndmask_b32 v{vTWQ}, v{t5}, v{t2}, vcc")
    g(f"s_mul_i32 s{sT1}, s{sT0}, 24")
    g(f"s_mul_i32 s{sT2}, s{sT0}, 36")
    g(f"v_add_u32 v{t2}, s{sT1}, v{L}")
    g(f"v_lshrrev_b32 v{t3}, 1, v{t2}")
    g(f"v_mul_u32_u24 v{t3}, 896, v{t3}")
    g(f"v_and_b32 v{t2}, 1, v{t2}")
    g(f"v_lshl_add_u32 v{t2}, v{t2}, 7, v{t3}")
    g(f"v_cmp_gt_u32 vcc, 24, v{L}")
    g(f"v_add_u32 v{t3}, s{sT2}, v{L}")
    g(f"v_mul_u32_u24 v{t4}, 21846, v{t3}")
    g(f"v_cndmask_b32 v{vTXA}, v{t5}, v{t2}, vcc")
    g(f"v_lshrrev_b32 v{t4}, 16, v{t4}")
    g(f"v_mul_u32_u24 v{t2}, 3, v{t4}")
    g(f"v_sub_u32 v{t3}, v{t3}, v{t2}")
    g(f"v_mul_u32_u24 v{t4}, 896, v{t4}")
    g(f"v_lshl_add_u32 v{t3}, v{t3}, 7, v{t4}")
    g(f"v_cmp_gt_u32 vcc, 36, v{L}")
    g(f"s_nop 1")
    g(f"v_cndmask_b32 v{vTXB}, v{t5}, v{t3}, vcc")
    g.smem_wait()
    g(f"s_cmp_eq_u32 s{sBR}, 0")
    for k in (0, 3, 1, 2, 4):
        g(f"s_cselect_b64 s[{64+2*k}:{65+2*k}], s[{64+2*k}:{65+2*k}], s[{76+2*k}:{77+2*k}]")
    srd(S_X, 64, 65, 1376256)
    srd(S_WQ, 70, 71, 3670016)
    emit_list(touch(9, S_WQ, sTWQ, 0))
    if OPT['code_pf'] and not OPT['cpf_first']:
        g(f"s_min_u32 s{sT0}, s{sWI}, (L_main_end-L_pc)/1024-1")
        g(f"s_lshl_b32 s{sT0}, s{sT0}, 10")
        g(f"v_add_u32 v{t2}, s{sT0}, v{vSTO}")
        g(f"global_load_dword v{vDUM}, v{t2}, s[{sPC}:{sPC+1}]", nodst=True)
    emit_list(x_dma(0, "R0"))
    emit_list(x_dma(1, "R0"))
    g(f"v_mov_b32 v{vT16}, v9")
    g(f"v_lshrrev_b32 v{t2}, 1, v{t0}")
    g(f"v_xor_b32 v{t2}, v{t2}, v{t1}")
    g(f"v_lshlrev_b32 v{t2}, 4, v{t2}")
    g(f"v_lshl_add_u32 v{t2}, v{t0}, 7, v{t2}")
    g(f"s_mul_i32 s{sT0}, s{sBSEL}, 6144")
    g(f"s_add_u32 s{sT0}, s{sT0}, {VB}")
    g(f"v_add_u32 v{vXR}, s{sT0}, v{t2}")
    g(f"v_xor_b32 v{vXR+1}, 64, v{vXR}")
    g(f"v_lshlrev_b32 v{t2}, 7, v{L}")
    g(f"v_cmp_gt_u32 vcc, 32, v{L}")
    srd(S_K, 66, 67, 12582912)
    g(f"v_cndmask_b32 v{vT32}, v{t5}, v{t2}, vcc")
    srd(S_V, 68, 69, 12582912)
    srd(S_WO, 72, 73, 3670016)
    srd(S_WS, 86, 87, 22020096)
    u0, u1, u2 = 10, 11, 12
    g(f"v_lshrrev_b32 v{u0}, 2, v{L}")
    g(f"v_and_b32 v{u1}, 7, v{u0}")
    g(f"v_and_b32 v{u2}, 3, v{L}")
    g(f"v_lshlrev_b32 v{u2}, 3, v{u2}")
    g(f"s_lshl_b32 s{sT0}, s{sJ}, 9")
    g(f"v_lshl_add_u32 v{t3}, v{u0}, 10, v{u2}")
    g(f"v_add_u32 v{t3}, s{sT0}, v{t3}")
    for T in range(8):
        g(f"v_xor_b32 v{t4}, {T}, v{u1}")
        g(f"v_lshl_add_u32 v{vWQR+T}, v{t4}, 5, v{t3}")
        g(f"v_add_u32 v{vWQR+8+T}, 0x10000, v{vWQR+T}")
    g(f"s_lshl_b32 s{sT0}, s{sB}, 4")
    g(f"s_add_u32 s{sT0}, s{sT0}, s{sH0}")
    g(f"s_add_u32 s{sT0}, s{sT0}, s{sJ}")
    g(f"s_mul_i32 s{sKB}, s{sT0}, 24576")
    g(f"s_mul_i32 s{sKM}, s{sW}, 8320")
    g(f"s_add_u32 s{sKM}, s{sKM}, {KA}")
    g(f"v_lshlrev_b32 v{t2}, 2, v{t1}")
    g(f"v_xor_b32 v{t2}, v{t2}, v{t0}")
    g(f"v_lshlrev_b32 v{t2}, 4, v{t2}")
    g(f"v_lshl_add_u32 v{vKD}, v{t1}, 9, v{t2}")
    g(f"v_lshrrev_b32 v{t2}, 2, v{t0}")
    g(f"v_mul_u32_u24 v{t2}, 1040, v{t2}")
    g(f"v_and_b32 v{t3}, 3, v{t0}")
    g(f"v_lshl_add_u32 v{t2}, v{t3}, 8, v{t2}")
    g(f"v_lshl_add_u32 v{t2}, v{t1}, 3, v{t2}")
    g(f"v_add_u32 v{t2}, s{sKM}, v{t2}")
    for s4 in range(4):
        g(f"v_xor_b32 v{t4}, {s4}, v{t3}")
        g(f"v_lshl_add_u32 v{vKR+s4}, v{t4}, 6, v{t2}")
    g(f"s_mul_i32 s{sWOBASE}, s{sH0}, 229376")
    g(f"s_lshl_b32 s{sT0}, s{sB0}, 4")
    g(f"s_add_u32 s{sT0}, s{sT0}, s{sH0}")
    g(f"s_mul_i32 s{sVBASE}, s{sT0}, 24576")
    g(f"s_add_u32 s{sT0}, s{sH0}, s{sBR}")
    g(f"s_lshl_b32 s{sT0}, s{sT0}, 5")
    g(f"s_add_u32 s{sT0}, s{sT0}, s{sB}")
    g(f"s_mul_i32 s{sST}, s{sT0}, 43008")
    g(f"s_mul_i32 s{sT0}, s{sJ}, 3072")
    g(f"s_add_u32 s{sST}, s{sST}, s{sT0}")
    g(f"s_mov_b32 s{sC}, 0x{struct.unpack('<I', struct.pack('<f', 1.4426950408889634/16.0))[0]:08x}")
    g(f"s_lshr_b32 s{sT0}, s{sWI}, 6")
    g(f"s_lshl_b32 s{sT1}, s{sHG}, 1")
    g(f"s_add_u32 s{sT0}, s{sT0}, s{sT1}")
    g(f"s_mul_i32 s{sTWO}, s{sT0}, 458752")
    g(f"s_and_b32 s{sT0}, s{sWI}, 63")
    g(f"s_mul_i32 s{sT0}, s{sT0}, 3584")
    g(f"s_add_u32 s{sTWO}, s{sTWO}, s{sT0}")
    g(f"s_mul_i32 s{sT0}, s{sBSEL}, 24576")
    g(f"s_add_u32 s{sT0}, s{sT0}, {VB}")
    g(f"v_xor_b32 v{t3}, v{t1}, v{t0}")
    g(f"v_lshlrev_b32 v{t3}, 4, v{t3}")
    g(f"v_lshl_add_u32 v{t3}, v{t0}, 8, v{t3}")
    g(f"v_add_u32 v{vVR}, s{sT0}, v{t3}")
    for s4 in range(1, 4):
        g(f"v_xor_b32 v{vVR+s4}, {64*s4}, v{vVR}")
    g(f"s_lshl_b32 s{sT0}, s{sW}, 2")
    g(f"v_add_u32 v{t3}, s{sT0}, v{t1}")
    g(f"v_xor_b32 v{t3}, v{t3}, v{t0}")
    g(f"v_lshlrev_b32 v{t3}, 4, v{t3}")
    g(f"v_lshl_add_u32 v{t3}, v{t1}, 9, v{t3}")
    g(f"s_lshl_b32 s{sT0}, s{sW}, 11")
    g(f"v_add_u32 v{vVD}, s{sT0}, v{t3}")
    g(f"v_lshl_add_u32 v{t3}, v{u0}, 7, v{u2}")
    g(f"v_bfe_u32 v{t2}, v{L}, 3, 2")
    g(f"s_lshl_b32 s{sT0}, s{sJ}, 1")
    for T in range(2):
        g(f"s_add_u32 s{sT3}, s{sT0}, {T}")
        g(f"v_xor_b32 v{t4}, s{sT3}, v{t2}")
        g(f"v_lshl_add_u32 v{vWOR+T}, v{t4}, 5, v{t3}")
        g(f"v_add_u32 v{vWOR+2+T}, 0x10000, v{vWOR+T}")
    g(f"v_lshrrev_b32 v{t3}, 5, v{L}")
    g(f"v_lshl_add_u32 v{t2}, v{t3}, 3, v{t2}")
    g(f"v_mul_u32_u24 v{t2}, 896, v{t2}")
    g(f"v_lshlrev_b32 v{t3}, 1, v{t1}")
    g(f"v_and_b32 v{t4}, 7, v{L}")
    g(f"v_xor_b32 v{t3}, v{t3}, v{t4}")
    g(f"v_lshl_add_u32 v{t2}, v{t3}, 4, v{t2}")
    g(f"s_mul_i32 s{sT0}, s{sW}, 57344")
    g(f"v_add_u32 v{vWOD}, s{sT0}, v{t2}")
    for k in range(1, 4):
        g(f"v_add_u32 v{vWOD+k}, {(16*(k&1) + 4*(k>>1))*896 - k*1024}, v{vWOD}")
    g(f"s_mul_i32 s{sT0}, s{sBSEL}, 4608")
    g(f"s_add_u32 s{sT0}, s{sT0}, {PB}")
    g(f"v_add_u32 v{vPW}, s{sT0}, v{vSTO}")
    g(f"s_add_u32 s{sT0}, s{sT0}, 1024")
    g(f"v_lshl_add_u32 v{vPW2}, v{L}, 3, s{sT0}")
    if OPT['tlb']:
        g(f"v_and_b32 v{t2}, 1, v{L}")
        g(f"v_mul_u32_u24 v{t2}, 393216, v{t2}")
        g(f"v_lshrrev_b32 v{t3}, 1, v{L}")
        g(f"v_mul_u32_u24 v{t3}, 49024, v{t3}")
        g(f"v_add_u32 v{t2}, v{t2}, v{t3}")
        g(f"v_cmp_gt_u32 vcc, 4, v{L}")
        g(f"v_lshlrev_b32 v{t3}, 17, v{L}")
        g(f"v_mul_u32_u24 v{t4}, 39808, v{L}")
        g(f"v_cndmask_b32 v{t2}, v{t5}, v{t2}, vcc")
        g(f"v_cndmask_b32 v{t3}, v{t5}, v{t3}, vcc")
        g(f"v_cmp_gt_u32 vcc, 2, v{L}")
        g(f"buffer_load_dword v{vDUM}, v{t2}, {sr(S_K)}, s{sVBASE} offen nt", nodst=True)
        g(f"v_cndmask_b32 v{t4}, v{t5}, v{t4}, vcc")
        g(f"buffer_load_dword v{vDUM}, v{t2}, {sr(S_V)}, s{sVBASE} offen nt", nodst=True)
        g(f"buffer_load_dword v{vDUM}, v{t3}, {sr(S_WO)}, s{sWOBASE} offen", nodst=True)
        g(f"buffer_load_dword v{vDUM}, v{t4}, {sr(S_WS)}, s{sST} offen nt", nodst=True)
    if OPT['fuse']:
        srd(S_FLG, 86, 87, 22020096 + 32 * 256)
        g(f"s_lshl_b32 s{sT0}, s{sBR}, 5")
        g(f"s_add_u32 s{sT0}, s{sT0}, s{sB0}")
        g(f"s_lshl_b32 s{sFLG}, s{sT0}, 7")
        g(f"s_add_u32 s{sFLG}, s{sFLG}, 22020096")
        g(f"v_mov_b32 v{t2}, 0")
        g(f"buffer_load_dword v{vFLAG}, v{t2}, {sr(S_FLG)}, s{sFLG} offen sc1")
    emit_list(touches(-1))
    emit_list(ring_dma(0))
    stamp('pro')
    g.wait_tag("R0")
    g.barrier()
    stamp('b0')
    import copy
    NC = OPT['nc']
    for cls in range(1, NC):
        g(f"s_cmp_eq_u32 s{sCLS}, {cls}")
        g(f"s_cbranch_scc1 L_body_{cls}")
    saved = copy.deepcopy({k: v for k, v in g.__dict__.items() if k != 'lines'})
    st0 = (nstamp, pending, list(names))
    for cls in range(NC):
        for k, v in copy.deepcopy(saved).items(): setattr(g, k, v)
        globals().update(nstamp=st0[0], pending=st0[1], names=list(st0[2]))
        if cls: g.raw(".p2align 6"); g.raw(f"L_body_{cls}:")
        body(cls)
    g.raw("L_main_end:")
    g("s_endpgm")

def fused_reduce(cls):
    S_DBG, S_OUT = S_K, S_V
    g("s_load_dwordx4 s[64:67], s[0:1], 80")
    g(f"s_lshl_b32 s70, s{sH0}, 1")
    g(f"s_add_u32 s70, s70, s{sW}")
    g(f"s_lshl_b32 s71, s{sBR}, 5")
    g(f"s_add_u32 s71, s71, s{sB0}")
    g(f"s_lshr_b32 s72, s71, 1")
    g(f"s_lshl_b32 s72, s72, 2")
    g(f"s_add_u32 s72, s72, 128")
    g(f"s_mul_i32 s71, s71, 43008")
    for k in range(3):
        f, ld, st = 73, 76 + k, 80 + k
        g(f"s_add_u32 s{f}, s70, {32*k}")
        g(f"s_lshl_b32 s{ld}, s{f}, 10")
        g(f"s_add_u32 s{ld}, s{ld}, s71")
        g(f"s_cmp_ge_u32 s{f}, 42")
        g(f"s_cselect_b32 s74, 1, 0")
        g(f"s_mul_i32 s75, s74, 42")
        g(f"s_sub_u32 s75, s{f}, s75")
        g(f"s_mul_i32 s83, s75, 43")
        g(f"s_lshr_b32 s83, s83, 7")
        g(f"s_mul_i32 s84, s83, 3")
        g(f"s_sub_u32 s84, s75, s84")
        g(f"s_add_u32 s74, s74, s{sB0}")
        g(f"s_mul_i32 s74, s74, 3")
        g(f"s_add_u32 s74, s74, s84")
        g(f"s_mul_i32 s{st}, s74, {16*1792}")
        g(f"s_lshl_b32 s83, s83, 6")
        g(f"s_add_u32 s{st}, s{st}, s83")
        g(f"s_mul_i32 s83, s{sBR}, 896")
        g(f"s_add_u32 s{st}, s{st}, s83")
        if k == 2:
            g(f"s_cmp_lt_u32 s{f}, 84")
            g(f"s_cselect_b32 s{ld}, s{ld}, {BIG}")
            g(f"s_cselect_b32 s{st}, s{st}, {BIG}")
    g(f"v_lshrrev_b32 v200, 4, v{vSTO}")
    g(f"v_and_b32 v201, 15, v200")
    g(f"v_mul_u32_u24 v201, 1792, v201")
    g(f"v_lshrrev_b32 v200, 4, v200")
    g(f"v_lshl_add_u32 v201, v200, 4, v201")
    g(f"v_mov_b32 v202, 0")
    g(f"v_mov_b32 v203, 1")
    g.smem_wait()
    srd(S_OUT, 64, 65, 2752512)
    srd(S_DBG, 66, 67, 256)
    g.wait_all()
    g.barrier()
    stamp('stdrain')
    g(f"s_cmp_lg_u32 s{sW}, 0")
    g(f"s_cbranch_scc1 L_wait_{cls}")
    g("s_mov_b64 exec, 1")
    g(f"buffer_atomic_add v203, v202, {sr(S_DBG)}, s72 offen sc0")
    g.vm[-1] = ({('v', 203)}, None)
    g(f"v_readfirstlane_b32 s86, v203")
    g(f"s_and_b32 s86, s86, 7")
    g(f"s_cmp_lg_u32 s86, 7")
    g(f"s_cbranch_scc1 L_notlast_{cls}")
    g(f"v_add_u32 v204, 1, v{vFLAG}")
    g(f"buffer_store_dword v204, v202, {sr(S_FLG)}, s{sFLG} offen sc1")
    g(f"s_branch L_got_{cls}")
    g.raw(f"L_notlast_{cls}:")
    g(f"s_mov_b32 s85, 0x40000")
    g(f"v_readfirstlane_b32 s87, v{vFLAG}")
    g.raw(f"L_poll_{cls}:")
    g(f"buffer_load_dword v204, v202, {sr(S_FLG)}, s{sFLG} offen sc1")
    g.wait_all()
    g(f"v_readfirstlane_b32 s86, v204")
    g(f"s_cmp_lg_u32 s86, s87")
    g(f"s_cbranch_scc1 L_got_{cls}")
    g(f"s_sleep {OPT['slp']}")
    g(f"s_sub_u32 s85, s85, 1")
    g(f"s_cmp_lg_u32 s85, 0")
    g(f"s_cbranch_scc1 L_poll_{cls}")
    g.raw(f"L_got_{cls}:")
    g("s_mov_b64 exec, -1")
    g.raw(f"L_wait_{cls}:")
    g.barrier()
    stamp('met')
    for k in range(3):
        for p in range(8):
            if p == 0:
                g(f"s_mov_b32 s{sT0}, s{76+k}")
            else:
                g(f"s_add_u32 s{sT0}, s{sT0}, {64*43008}")
            g(f"buffer_load_dwordx4 {vr((k*8+p)*4)}, v{vSTO}, {sr(S_WS)}, s{sT0} offen sc1")
    for k in range(3):
        A, B = 100 + 24 * k, 108 + 24 * k
        for p in range(8):
            for q in range(4):
                src = (k * 8 + p) * 4 + q
                d = A if p == 0 else B
                g(f"v_lshlrev_b32 v{d+2*q}, 16, v{src}")
                g(f"v_and_b32 v{d+2*q+1}, 0xffff0000, v{src}")
            if p:
                for q in range(8):
                    g(f"v_add_f32 v{A+q}, v{A+q}, v{B+q}")
        O = 116 + 24 * k
        for q in range(4):
            g(f"v_cvt_pk_bf16_f32 v{O+q}, v{A+2*q}, v{A+2*q+1}")
        g(f"v_permlane32_swap_b32 v{O}, v{O+2}")
        g(f"v_permlane32_swap_b32 v{O+1}, v{O+3}")
        g(f"v_permlane16_swap_b32 v{O}, v{O+2}")
        g(f"v_permlane16_swap_b32 v{O+1}, v{O+3}")
        g(f"buffer_store_dwordx4 {vr(O)}, v201, {sr(S_OUT)}, s{80+k} offen{FL[OPT['osf']]}")

def body(cls):
    KS = [OPT[f'k{u}'] + cls * OPT['kstep'] for u in range(3)]
    TWO0 = OPT['t_wo0'] + cls * OPT['kstep']
    TB = OPT['t_b'] + cls * OPT['kstep']
    V1A = OPT['v1'] + (cls * OPT['vstep']) % 3
    V1B = OPT['v1b'] - 3 + (3 + cls * OPT['vstep']) % 3 + (0 if True else 0)
    V1B = min(V1A + (OPT['v1b'] - OPT['v1']), 18)
    emit_list(x_reads(0))
    def early_touches(R): return touches(R, cls * OPT['kstep'])
    fq.add(x_reads(1) + ring_dma(1) + ring_dma(2) + early_touches(0))
    x_issue = {1: (2, "R3"), 2: (3, "R4"), 5: (4, "R7"), 6: (5, "R8"), 8: (6, "R10")}
    x_read = {3: 2, 4: 3, 7: 4, 8: 5, 10: 6}
    k_issue = {KS[u]: u for u in range(3)}
    k_read = {KS[u] + OPT['kw']: u for u in range(3)}
    assert max(k_read) <= 13
    for u in range(2): assert KS[u+1] > KS[u] + OPT['kw']
    if 0 in k_issue: fq.add(k_dma(k_issue[0], f"R{OPT['kw']}"))
    def after1(R):
        out = []
        if R in x_read: out += x_reads(x_read[R])
        if R in k_read: out += k_reads(k_read[R])
        out += ring_dma(R + 2)
        if R in x_issue: out += x_dma(*x_issue[R])
        if R in k_issue: out += k_dma(k_issue[R], f"R{R+OPT['kw']}")
        out += early_touches(R)
        if R == OPT['v0a']: out += v_dma(0, range(7))
        if R == 14: out += v_dma(0, range(7, 12))
        return out
    run_stages(q_groups(), after1, lambda R: f"R{R}" if R < 14 else "none", tail_barrier=True)
    stamp('G1end')
    def s_mf(t):
        return [f"v_mfma_f32_16x16x32_bf16 {vr(SACC+(t*3+u)*4)}, {ar(aK+(u*8+s)*4)}, {vr(QFRAG(s,t))}, {vr(SACC+(t*3+u)*4) if s else 0}"
                for s in range(8) for u in range(3)]
    def paced(ins_list, every):
        n = 0
        for ins in ins_list:
            g(ins); n += 1
            if n % every == 0:
                while len(fq) and not fq.is_vm(fq.q[0]): fq.pop()
                if len(fq): fq.pop()
    paced(cvt_pairs(QACC, range(8), 0), 8)
    def mix(mf, fill):
        o = []; fill = list(fill)
        for m in mf:
            o.append(m)
            for _ in range(2):
                if fill: o.append(fill.pop(0))
        return o + fill
    paced(mix(s_mf(0), cvt_pairs(QACC, range(8), 1)), 10)
    paced(mix(s_mf(1), cvt_pairs(QACC, range(8), 2)), 10)
    fq.drain()
    sm0 = softmax_ops(0)
    interleave(s_mf(2), sm0[:40])
    for ins in merge(sm0[40:], softmax_ops(1), softmax_ops(2)): g(ins)
    stamp('SM')
    p_write(0, f"L_pw0_{cls}")
    g.wait_tag(["V0", "R14"], lg=0)
    g.barrier()
    stamp('Pbar')
    for u in range(3): emit_list([v_read(u, 0)])
    for s in range(1, 8):
        fq.add([v_read(u, s) for u in range(3)])
    fq.add(p_reads(0))
    def after2(R):
        out = []
        if R == OPT['p1'] + 1: out += p_reads(1)
        out += ring_dma(R + 2)
        if R == V1A: out += v_dma(1, range(6))
        if R == V1B: out += v_dma(1, range(6, 12))
        out += early_touches(R)
        if R == OPT['p1']: out.append(lambda: p_write(1, f"L_pw1_{cls}"))
        return out
    def wt(R):
        return [f"R{R}", "V1"] if R == 20 else f"R{R}"
    run_stages(o_groups(), after2, wt, tail_barrier=False)
    fq.drain()
    stamp('G2end')
    emit_list(vw_cvt(27))
    fa, fb = final_groups(27, 27)
    for m in fa['mfmas'] + fb['mfmas']: g(m)
    emit_list(epilogue_ops(6))
    stamp('epi')
    if OPT['fuse']: fused_reduce(cls)
    if OPT['stamps']:
        g.wait_all()
        stamp('drain')
    finish_stamps(cls)

def reduce_kernel():
    global g
    lines = g.lines
    g = Gen(); g.lines = lines
    kernel_open(RED)
    g("s_cmp_ge_u32 s2, 448")
    g("s_cbranch_scc1 L_red_end")
    g("s_load_dwordx2 s[4:5], s[0:1], 80")
    g("s_load_dwordx2 s[6:7], s[0:1], 96")
    g("s_mov_b32 s16, 0x24924925")
    g("s_mul_hi_u32 s17, s2, s16")
    g("s_mul_i32 s18, s17, 7")
    g("s_sub_u32 s18, s2, s18")
    g("s_mul_i32 s19, s17, 43008")
    g("s_mul_i32 s20, s18, 6144")
    g("s_add_u32 s19, s19, s20")
    g("v_lshlrev_b32 v1, 4, v0")
    g("v_lshrrev_b32 v2, 6, v0")
    g("v_and_b32 v3, 63, v0")
    g("v_readfirstlane_b32 s21, v2")
    g("s_cmp_ge_u32 s21, 3")
    g("s_cselect_b32 s22, 1, 0")
    g("s_mul_i32 s23, s22, 3")
    g("s_sub_u32 s23, s21, s23")
    g("s_and_b32 s24, s17, 31")
    g("s_lshr_b32 s25, s17, 5")
    g("s_mul_i32 s24, s24, 48")
    g("s_lshl_b32 s23, s23, 4")
    g("s_add_u32 s24, s24, s23")
    g("s_mul_i32 s24, s24, 1792")
    g("s_mul_i32 s25, s25, 896")
    g("s_add_u32 s24, s24, s25")
    g("s_lshl_b32 s26, s18, 7")
    g("s_add_u32 s24, s24, s26")
    g("s_lshl_b32 s26, s22, 6")
    g("s_add_u32 s24, s24, s26")
    g("v_and_b32 v4, 15, v3")
    g("v_mul_u32_u24 v4, 1792, v4")
    g("v_lshrrev_b32 v5, 4, v3")
    g("v_lshl_add_u32 v4, v5, 4, v4")
    g.smem_wait()
    srd(8, 6, 7, 22020096)
    srd(12, 4, 5, 2752512)
    for p in range(8):
        if p:
            g(f"s_add_u32 s19, s19, {64*43008}")
        g(f"buffer_load_dwordx4 {vr(8+4*p)}, v1, s[8:11], s19 offen{FL[OPT['ldf']]}")
    for p in range(8):
        for k in range(4):
            src = 8 + 4 * p + k
            if p == 0:
                g(f"v_lshlrev_b32 v{40+2*k}, 16, v{src}")
                g(f"v_and_b32 v{41+2*k}, 0xffff0000, v{src}")
            else:
                g(f"v_lshlrev_b32 v{48+2*k}, 16, v{src}")
                g(f"v_and_b32 v{49+2*k}, 0xffff0000, v{src}")
        if p:
            for k in range(8):
                g(f"v_add_f32 v{40+k}, v{40+k}, v{48+k}")
    for k in range(4):
        g(f"v_cvt_pk_bf16_f32 v{56+k}, v{40+2*k}, v{41+2*k}")
    g("v_permlane32_swap_b32 v56, v58")
    g("v_permlane32_swap_b32 v57, v59")
    g("v_permlane16_swap_b32 v56, v58")
    g("v_permlane16_swap_b32 v57, v59")
    g(f"buffer_store_dwordx4 v[56:59], v4, s[12:15], s24 offen{FL[OPT['osf']]}")
    g.raw("L_red_end:")
    g("s_endpgm")
    g.raw("L_text_end:")

def descriptors():
    g.raw('.section .rodata,"a"')
    for name, nv, acc in ((MAIN, 512, 256), (RED, 64, 64))[:1 if OPT['fuse'] else 2]:
        g.raw(".p2align 6")
        g.raw(f".amdhsa_kernel {name}")
        g.raw(f"  .amdhsa_next_free_vgpr {nv}")
        g.raw("  .amdhsa_next_free_sgpr 102")
        g.raw(f"  .amdhsa_accum_offset {acc}")
        g.raw("  .amdhsa_group_segment_fixed_size 0")
        g.raw("  .amdhsa_kernarg_size 104")
        g.raw("  .amdhsa_user_sgpr_count 2")
        g.raw("  .amdhsa_user_sgpr_kernarg_segment_ptr 1")
        g.raw("  .amdhsa_system_sgpr_workgroup_id_x 1")
        g.raw("  .amdhsa_float_denorm_mode_32 3")
        g.raw(".end_amdhsa_kernel")

header()
main_kernel()
st = dict(g.stats)
if not OPT['fuse']: reduce_kernel()
else: g.raw('L_text_end:')
descriptors()
open(sys.argv[1], "w").write(g.text())
print("main stats", st, "forced", fq.forced)
```

```python
import sys, struct, json
from asmgen import Gen, classify

NAME = "concat_heads__mha_block_cached__gqa_block_cached__near_ridge"
MAIN = NAME + "_kernel"
RED = "reduce_partials_kernel"

OPT = dict(bar_group=10, D=7, stamps=0, code_pf=1, touch=1, ntk=1, ntv=1, nttw=0, nttx=0,
           k0=2, k1=6, k2=10, kw=3, t_wo0=3, t_wo1=14, v1=15, v1b=18, p1=17, t_a=0, t_b=3, v0a=13, nc=1, kstep=1, vstep=1, ntfirst=1, pace=1, diag=0, nok=0, nov=0, now=0, nost=0, nox=0, dbg=0, stf=1, ldf=0, osf=0, tlb=0, cpf_first=1, cpf_red=0, cpf2=0, fuse=0, slp=2, t_xa=0, t_xb=3, ret=0, hw=1, nobar=0, lastb=2, w1pro=1, pack=1, ring=8, spack=1, v0b=14, xdir=0, pw=1)
FL = ['', ' sc1', ' sc0 sc1', ' nt', ' sc1 nt', ' sc0 sc1 nt']
for a in sys.argv[2:]:
    k, v = a.split('=')
    assert k in OPT, k
    OPT[k] = int(v)
def NT(k): return ' nt' if OPT[k] else ''

SLOT = 32768
VB = 3 * SLOT
XU = 12288
KA = VB + 65536 - 4 * 8320
PB = VB + 49152
LDS_BYTES = 163840
BIG = 0x7ffff000

S_X, S_K, S_V, S_WQ, S_WO, S_WS = 8, 12, 16, 20, 24, 28
sW, sBSEL, sJ, sBR, sH0, sB0, sB = 32, 33, 34, 35, 36, 37, 38
sWQB = 39
sXB, sXM, sKB, sKM, sXO, sKO, sWQO, sWOO, sWOO2, sVO = 40, 41, 42, 43, 44, 45, 46, 47, 48, 49
sM, sVM, sST, sC = 50, 51, 52, 53
sT0, sT1, sT2, sT3 = 54, 55, 56, 57
sVBASE, sWOBASE = 58, 59
sPC = 60
sTWQ = 63
sHG, sHP, sWI, sTWO, sCLS = 88, 89, 90, 91, 94
S_FLG, sFLG = 4, 95
STB = 64

def QACC(T, t): return (((T // 2) * 3 + t) * 4) + (96 if T & 1 else 0)
def QFRAG(s, t): return (s * 3 + t) * 4
SACC = 192
vWQR = 192
vWQD = 208
vXR = 216
vXD = 218
vKR = 219
vKD = 223
vTWQ = 224
vTXA = 225
vTXB = 226
vT16 = 227
vWOD = 228
vVD = 232
vVR = 233
vWOR = 237
vSTO = 241
vPW = 242
vPW2 = 243
vT32 = 244
vDUM = 245
vFLAG = 252
vSM = 246
def VFRAG(u, s): return (u * 8 + s) * 4
vPOWN = 96
vP = [114, 132]
vVWB = 150
vEP = 96
def VWACC(par, T, u): return 180 + par * 24 + (T * 3 + u) * 4
aFR, aK, aX, XRING, aOUT = 0, 40, 136, 10, 40
def OUTACC(c, T, t): return aOUT + ((c * 2 + T) * 3 + t) * 4

def vr(b, n=4): return f"v[{b}:{b+n-1}]"
def ar(b, n=4): return f"a[{b}:{b+n-1}]"
def sr(b, n=4): return f"s[{b}:{b+n-1}]"

g = Gen()
nstamp = 0
vSTAMP = 255
pending = False
names = []
def stamp_flush():
    global pending
    if pending:
        g(f"v_writelane_b32 v{vSTAMP}, s92, {nstamp-1}")
        pending = False
def stamp(name="", real=False, drained=False):
    global nstamp, pending
    if OPT['stamps']:
        if pending:
            if not drained: g.smem_wait()
            stamp_flush()
        g(f"{'s_memrealtime' if real else 's_memtime'} s[92:93]")
        names.append(name); nstamp += 1; pending = True

def header():
    g.raw("; fused attention block: launch 1 computes per-head-pair partial outputs, launch 2 sums them")
    if OPT['fuse']:
        g.raw(f"; @launch grid=(256,1,1) block=(256,1,1) lds={LDS_BYTES}")
    else:
        g.raw(f"; @launch kernel={MAIN} grid=(256,1,1) block=(256,1,1) lds={LDS_BYTES}")
        g.raw(f"; @launch kernel={RED} grid=(448,1,1) block=(384,1,1) lds=0")
    g.raw('.amdgcn_target "amdgcn-amd-amdhsa--gfx950"')
    g.raw(".text")

def kernel_open(name):
    g.raw(f".globl {name}")
    g.raw(".p2align 8")
    g.raw(f".type {name},@function")
    g.raw(f"{name}:")

def srd(dst, lo, hi, nbytes):
    g(f"s_mov_b32 s{dst}, s{lo}")
    g(f"s_and_b32 s{dst+1}, s{hi}, 0xffff")
    g(f"s_mov_b32 s{dst+2}, {nbytes}")
    g(f"s_mov_b32 s{dst+3}, 0x20000")

def wq_dma(R):
    slot = (R % 3) * SLOT
    out = [(f"s_add_u32 s{sWQO}, s{sWQB}, {R*262144}", None)]
    for i in range(8):
        if i % 4 == 0:
            out.append((f"s_add_u32 m0, s{sM}, {slot + (i//4)*4096}", None))
        out.append((f"buffer_load_dwordx4 v{vWQD+i}, {sr(S_WQ)}, s{sWQO} offen offset:{(i%4)*1024} lds", f"R{R}"))
    return out

def wo_dma(R):
    hh, c = divmod(R - 14, 7)
    slot = (R % 3) * SLOT
    out = [(f"s_add_u32 s{sWOO}, s{sWOBASE}, {hh*229376 + c*128}", None),
           (f"s_add_u32 s{sWOO2}, s{sWOBASE}, {hh*229376 + c*128 + 28672}", None)]
    for i in range(8):
        if i % 4 == 0:
            out.append((f"s_add_u32 m0, s{sM}, {slot + (i//4)*4096}", None))
        so = sWOO if i < 4 else sWOO2
        out.append((f"buffer_load_dwordx4 v{vWOD+(i%4)}, {sr(S_WO)}, s{so} offen offset:{(i%4)*1024} lds", f"R{R}"))
    return out

def ring_dma(R):
    if OPT['now'] and R > 2: return []
    if R < 14: return wq_dma(R)
    if R < 28: return wo_dma(R)
    return []

def x_dma(p, tag):
    out = []
    if OPT['nox'] and p > 1: return out
    for k in range(3):
        out.append((f"s_add_u32 s{sXO}, s{sXB}, {p*128 + k*28672}", None))
        out.append((f"s_add_u32 m0, s{sXM}, {(p % 2)*XU + k*4096}", None))
        out.append((f"buffer_load_dwordx4 v{vXD}, {sr(S_X)}, s{sXO} offen{NT('ntfirst') if (p < 2 or OPT['xdir']) else ''} lds", tag))
    return out

def x_reads(p):
    out = []
    for s2 in range(2):
        s = 2 * p + s2
        for t in range(3):
            d = aX + (s % XRING) * 12 + t * 4
            out.append((f"ds_read_b128 {ar(d)}, v{vXR+s2} offset:{(p % 2)*XU + t*2048}", None))
    return out

def k_dma(u, tag):
    out = []
    if OPT['nok']: return out
    for dh in range(2):
        out.append((f"s_add_u32 m0, s{sKM}, {dh*4160}", None))
        for j in range(4):
            out.append((f"s_add_u32 s{sKO}, s{sKB}, {u*8192 + dh*256 + j*(2048-1040)}", None))
            out.append((f"buffer_load_dwordx4 v{vKD}, {sr(S_K)}, s{sKO} offen offset:{j*1040}{NT('ntk')} lds", tag))
    return out

def k_reads(u):
    out = []
    for dh in range(2):
        for s4 in range(4):
            for p in range(2):
                d = aK + (u * 8 + dh * 4 + s4) * 4 + 2 * p
                out.append((f"ds_read_b64 {ar(d,2)}, v{vKR+s4} offset:{dh*4160 + 32*p}", None))
    return out

def v_dma(hh, subs):
    out = []
    if OPT['nov']: return out
    for sub in subs:
        bb, r = divmod(sub, 6); u, dh = divmod(r, 2)
        out.append((f"s_add_u32 s{sVO}, s{sVBASE}, {hh*24576 + bb*393216 + u*8192 + dh*256}", None))
        out.append((f"s_add_u32 m0, s{sVM}, {sub*4096}", None))
        out.append((f"buffer_load_dwordx4 v{vVD}, {sr(S_V)}, s{sVO} offen{NT('ntv')} lds", f"V{hh}"))
    return out

def v_read(u, s):
    dh, s4 = divmod(s, 4)
    return (f"ds_read_b128 {vr(VFRAG(u,s))}, v{vVR+s4} offset:{(u*2+dh)*4096}", None)

def touch(vaddr, srd_, sbase, add, plain=False):
    key = {S_WQ: 'nttw', S_WO: 'nttw', S_X: 'nttx'}[srd_]
    if not OPT['touch']: return []
    return [(f"s_add_u32 s{sT1}, s{sbase}, {add}", None),
            (f"buffer_load_dword v{vDUM}, v{vaddr}, {sr(srd_)}, s{sT1} offen{'' if plain else NT(key)}", None, True)]

def touch_table():
    return {'t_a': (vT16, S_WQ, sTWQ, 128 * 8192), 't_xa': (vTXA, S_X, sXB, 256), 't_b': (vTWQ, S_WQ, sTWQ, 256 * 8192),
            't_xb': (vTXB, S_X, sXB, 512), 't_wo0': (vT32, S_WO, sTWO, 0), 't_wo1': (vT32, S_WO, sTWO, 229376)}
def touches(R, shift=0):
    o = []
    for k, a in touch_table().items():
        if OPT['xdir'] and k.startswith('t_x'): continue
        at = OPT[k] + (shift if OPT[k] >= 1 and k != 't_wo1' else 0)
        if at == R: o += touch(*a)
        if OPT['ret'] and max(at, 0) + OPT['ret'] == R: o += touch(*a, plain=True)
    return o

class FillQ:
    def __init__(self): self.q = []
    def add(self, items): self.q.extend(items)
    def pop(self):
        it = self.q.pop(0)
        if callable(it): it()
        else: g(it[0], tag=it[1], nodst=(len(it) > 2))
    def __len__(self): return len(self.q)
    def is_vm(self, it):
        return (not callable(it)) and it[0].startswith(('buffer_', 'global_'))
    def nvm(self): return sum(1 for it in self.q if self.is_vm(it))
    def drain(self):
        while self.q: self.pop()
    def guard(self, text):
        _, _, _, _, rd, wr = classify(text)
        rd = {r for r in rd if r[0] != 's'}; wr = {r for r in wr if r[0] != 's'}
        last = -1
        for i, it in enumerate(self.q):
            if callable(it): continue
            _, _, _, _, frd, fwr = classify(it[0])
            if len(it) > 2: fwr = []
            if (set(fwr) & (rd | wr)) or (set(frd) & wr): last = i
        if last >= 0: self.forced += last + 1
        for _ in range(last + 1): self.pop()
    forced = 0
    def kind(self, it):
        if callable(it): return 'call'
        t = it[0]
        if t.startswith(('buffer_', 'global_')): return 'm'
        if t.startswith('ds_'): return 'd'
        if t.startswith(('v_exp', 'v_rcp', 'v_log', 'v_rsq', 'v_sqrt')): return 'e'
        if t.startswith('v_'): return 'v'
        return 's'
    def find(self, kinds, depth=24):
        seen_r, seen_w = set(), set()
        for i, it in enumerate(self.q[:depth]):
            if callable(it): return None
            k = self.kind(it)
            _, _, _, _, rd_, wr_ = classify(it[0])
            if len(it) > 2: wr_ = []
            rd_, wr_ = set(rd_), set(wr_)
            if k == 's': wr_ = wr_ | {('scc', 0)} if False else wr_
            if k in kinds:
                order_ok = not (k in 'md' and any(self.kind(e) == k for e in self.q[:i]))
                if order_ok and not (wr_ & (seen_r | seen_w)) and not (rd_ & seen_w): return i
            seen_r |= rd_; seen_w |= wr_
        return None
    def pop_at(self, i):
        it = self.q.pop(i)
        g(it[0], tag=it[1], nodst=(len(it) > 2))
fq = FillQ()

def fill_gap(ring_read, vm_due, reserve):
    if len(fq) and callable(fq.q[0]):
        fq.pop(); return False
    if vm_due and not reserve:
        i = fq.find('m')
        if i is not None:
            fq.pop_at(i); return True
    slots = 2 - (1 if reserve else 0)
    if ring_read:
        ring_read(); slots -= 1
    else:
        i = fq.find('d')
        if i is not None:
            fq.pop_at(i); slots -= 1
    while slots > 0:
        i = fq.find('vse' if slots == 2 else 'vs')
        if i is None: break
        slots -= 2 if fq.kind(fq.q[i]) == 'e' else 1
        fq.pop_at(i)
    return False
def emit_list(l):
    for it in l: g(it[0], tag=it[1], nodst=(len(it) > 2))

def run_stages(groups, after_barrier, wait_tags, tail_barrier=None, nreg=4):
    ring = OPT['ring']
    D = min(OPT['D'], ring - 1)
    open_stage = groups[0]['stage']
    pend = []
    fr = 0
    for n, gr in enumerate(groups):
        gr['fr'] = fr
        if gr['reads']:
            d = aFR + (fr % ring) * nreg
            for k, rt in enumerate(gr['reads']):
                pend.append((fr, gr['stage'], rt.format(d=ar(d + 2 * k, 2))))
            fr += 1
    rp = 0
    def can_read(f_cur):
        if rp >= len(pend): return False
        f, st, _ = pend[rp]
        return st <= open_stage and f <= f_cur + D
    while rp < len(pend) and pend[rp][0] < D and pend[rp][1] <= open_stage:
        g(pend[rp][2]); rp += 1
    last_stage = groups[-1]['stage']
    left = [0] * len(groups)
    acc = 0
    for n in range(len(groups) - 1, -1, -1):
        if groups[n].get('idx') == OPT['bar_group']: acc = 0
        acc += len(groups[n]['mfmas'])
        left[n] = acc
    since_vm = 1000
    for n, gr in enumerate(groups):
        f = gr['fr']
        d = aFR + (f % ring) * nreg
        if gr['reads']:
            while rp < len(pend) and pend[rp][0] <= f:
                assert pend[rp][1] <= open_stage
                g(pend[rp][2]); rp += 1
        if gr['reads'] and OPT['hw'] and f % 2 == 0 and any(p[0] == f + 1 for p in pend[:rp]) and sum(1 for p in pend[:rp] if p[0] == f + 1) == 2:
            d2 = aFR + ((f + 1) % ring) * nreg
            g.need([('a', d + i) for i in range(4)] + [('a', d2 + i) for i in range(4)])
        fcur = f if gr['reads'] else f - 1
        R = gr['stage']
        for it in gr.get('pre', []): fq.q.insert(0, it) if False else None
        if gr.get('front'):
            fq.q[0:0] = gr['front']
        for k, mt in enumerate(gr['mfmas']):
            fq.guard(mt.format(a=ar(d)))
            g(mt.format(a=ar(d)))
            since_vm += 1
            rem = left[n] - k - 1
            if OPT['pack']:
                nxt = groups[n+1] if n + 1 < len(groups) else None
                reserve = (k == len(gr['mfmas']) - 1 and nxt is not None and bool(nxt['reads']) and nxt['fr'] % 2 == 0)
                nv = fq.nvm()
                gap = max(1, (rem - 1) // max(1, nv))
                behind = rp < len(pend) and can_read(fcur) and pend[rp][0] <= fcur + OPT['D'] - 3
                vm_due = nv > 0 and since_vm >= min(gap, 6) and not behind
                def rr():
                    nonlocal rp
                    g(pend[rp][2]); rp += 1
                if fill_gap(rr if can_read(fcur) else None, vm_due, reserve): since_vm = 0
                continue
            budget = 2
            if k == len(gr['mfmas']) - 1 and n + 1 < len(groups) and groups[n+1]['reads'] and (groups[n+1]['fr'] % 2 == 0 or not OPT['hw']):
                budget = OPT['lastb']
            while budget:
                if can_read(fcur):
                    g(pend[rp][2]); rp += 1; budget -= 1
                elif len(fq):
                    j = None
                    if fq.is_vm(fq.q[0]) and OPT['pace']:
                        gap = max(1, (rem - 2) // max(1, fq.nvm()))
                        if since_vm >= min(gap, OPT['pace'] * 6): j = 0
                        else:
                            for i, it in enumerate(fq.q):
                                if callable(it): break
                                if fq.is_vm(it) or it[0].startswith('s_'): continue
                                _, _, _, _, rd_, wr_ = classify(it[0])
                                clash = False
                                for e in fq.q[:i]:
                                    _, _, _, _, erd, ewr = classify(e[0])
                                    if (set(erd) | set(ewr)) & set(wr_) or set(ewr) & set(rd_): clash = True
                                if not clash: j = i
                                break
                    else:
                        j = 0
                    if j is None: break
                    if j == 0:
                        if fq.is_vm(fq.q[0]): since_vm = 0
                        fq.pop()
                    else:
                        it = fq.q.pop(j); g(it[0], tag=it[1], nodst=(len(it) > 2))
                    budget -= 1
                else:
                    break
        for it in gr.get('post', []):
            fq.add([it])
        if gr.get('idx') == OPT['bar_group'] and (R < last_stage or tail_barrier):
            while rp < len(pend) and pend[rp][1] <= R:
                g(pend[rp][2]); rp += 1
            fq.drain()
            g.wait_tag(wait_tags(R + 1), lg=0)
            if OPT['stamps'] > 1: g.smem_wait()
            if not OPT['nobar']: g.barrier()
            if OPT['stamps'] > 1: stamp(f"b{R+1}", drained=True)
            open_stage = R + 1
            fq.add(after_barrier(R + 1))

def interleave(mf, fill, per=2):
    fill = list(fill)
    for m in mf:
        g(m)
        for _ in range(per):
            if fill: g(fill.pop(0))
            elif len(fq): fq.pop()
    for f in fill: g(f)

def softmax_ops(t):
    S = [SACC + 12 * t + k for k in range(12)]
    m, x = vSM + 2 * t, vSM + 2 * t + 1
    o = []
    o.append(f"v_max3_f32 v{m}, v{S[0]}, v{S[1]}, v{S[2]}")
    o.append(f"v_max3_f32 v{x}, v{S[3]}, v{S[4]}, v{S[5]}")
    o.append(f"v_max3_f32 v{m}, v{m}, v{S[6]}, v{S[7]}")
    o.append(f"v_max3_f32 v{x}, v{x}, v{S[8]}, v{S[9]}")
    o.append(f"v_max3_f32 v{m}, v{m}, v{S[10]}, v{S[11]}")
    o.append(f"v_max_f32 v{m}, v{m}, v{x}")
    for sw in ("v_permlane32_swap_b32", "v_permlane16_swap_b32"):
        o.append(f"v_mov_b32 v{x}, v{m}")
        o.append(f"{sw} v{m}, v{x}")
        o.append(f"v_max_f32 v{m}, v{m}, v{x}")
    o.append(f"v_mul_f32 v{m}, s{sC}, v{m}")
    for k in range(12):
        o.append(f"v_fma_f32 v{S[k]}, v{S[k]}, s{sC}, -v{m}")
    for k in range(12):
        o.append(f"v_exp_f32 v{S[k]}, v{S[k]}")
    o.append(f"v_add_f32 v{m}, v{S[0]}, v{S[1]}")
    o.append(f"v_add_f32 v{x}, v{S[2]}, v{S[3]}")
    for k in range(4, 12, 2):
        o.append(f"v_add_f32 v{m}, v{m}, v{S[k]}")
        o.append(f"v_add_f32 v{x}, v{x}, v{S[k+1]}")
    o.append(f"v_add_f32 v{m}, v{m}, v{x}")
    for sw in ("v_permlane32_swap_b32", "v_permlane16_swap_b32"):
        o.append(f"v_mov_b32 v{x}, v{m}")
        o.append(f"{sw} v{m}, v{x}")
        o.append(f"v_add_f32 v{m}, v{m}, v{x}")
    o.append(f"v_rcp_f32 v{m}, v{m}")
    for k in range(12):
        o.append(f"v_mul_f32 v{S[k]}, v{S[k]}, v{m}")
    for k in range(6):
        o.append(f"v_cvt_pk_bf16_f32 v{vPOWN + 6*t + k}, v{S[2*k]}, v{S[2*k+1]}")
    return o

def merge(*lists):
    out = []
    n = max(len(l) for l in lists)
    for i in range(n):
        for l in lists:
            if i < len(l): out.append(l[i])
    return out

def cvt_pairs(acc, s_list, t):
    o = []
    for s in s_list:
        b, b2 = acc(2 * s, t), acc(2 * s + 1, t)
        o.append(f"v_cvt_pk_bf16_f32 v{b}, v{b}, v{b+1}")
        o.append(f"v_cvt_pk_bf16_f32 v{b+1}, v{b+2}, v{b+3}")
        o.append(f"v_cvt_pk_bf16_f32 v{b+2}, v{b2}, v{b2+1}")
        o.append(f"v_cvt_pk_bf16_f32 v{b+3}, v{b2+2}, v{b2+3}")
    return o

def p_write(which, lbl):
    g.wait_all(vm=False, lg=True)
    g(f"s_cmp_lg_u32 s{sJ}, {which}")
    g(f"s_cbranch_scc1 {lbl}")
    n0 = g.n
    for t in range(3):
        g(f"ds_write_b128 v{vPW}, {vr(vPOWN+6*t)} offset:{t*1536}")
        g(f"ds_write_b64 v{vPW2}, {vr(vPOWN+6*t+4,2)} offset:{t*1536}")
    g.wait_all(vm=False, lg=True)
    g.raw(f"{lbl}:")
    g.n = n0

def p_write_ops(which):
    o = [(f"s_cmp_eq_u32 s{sJ}, {which}", None, 'keep'), ]
    return o

def p_reads(hh):
    o = []
    for t in range(3):
        o.append((f"ds_read_b128 {vr(vP[hh]+6*t)}, v{vPW} offset:{t*1536}", None))
        o.append((f"ds_read_b64 {vr(vP[hh]+6*t+4,2)}, v{vPW2} offset:{t*1536}", None))
    return o

def q_groups():
    gs = []
    for s in range(14):
        slot = s % 3
        win, base = (1, 0) if slot == 2 else (0, slot * SLOT)
        for T in range(16):
            reads = [f"ds_read_b64_tr_b16 {{d}}, v{vWQR + win*8 + (T & 7)} offset:{base + rd*16384 + (T>>3)*256}" for rd in range(2)]
            mf = []
            for t in range(3):
                acc = vr(QACC(T, t))
                xb = ar(aX + (s % XRING) * 12 + t * 4)
                mf.append(f"v_mfma_f32_16x16x32_bf16 {acc}, {{a}}, {xb}, {acc if s else 0}")
            gs.append(dict(stage=s, reads=reads, mfmas=mf, idx=T))
    return gs

def vw_cvt(R):
    par = R % 2
    o = []
    for T in range(2):
        for u in range(3):
            b = VWACC(par, T, u)
            o.append((f"v_cvt_pk_bf16_f32 v{vVWB+6*T+2*u}, v{b}, v{b+1}", None))
            o.append((f"v_cvt_pk_bf16_f32 v{vVWB+6*T+2*u+1}, v{b+2}, v{b+3}", None))
    return o

def final_groups(R, stage):
    hh, c = divmod(R - 14, 7)
    a, b = [], []
    for T in range(2):
        for t in range(3):
            acc = ar(OUTACC(c, T, t))
            a.append(f"v_mfma_f32_16x16x32_bf16 {acc}, {vr(vVWB+6*T)}, {vr(vP[hh]+6*t)}, {acc if hh else 0}")
            b.append(f"v_mfma_f32_16x16x16_bf16 {acc}, {vr(vVWB+6*T+4,2)}, {vr(vP[hh]+6*t+4,2)}, {acc}")
    return dict(stage=stage, reads=[], mfmas=a), dict(stage=stage, reads=[], mfmas=b)

def epilogue_ops(c):
    o = [(f"s_add_u32 s{sT0}, s{sST}, {c*6144}", None)]
    for t in range(3):
        tb = vEP + t * 8
        for T in range(2):
            for r in range(4):
                o.append((f"v_accvgpr_read_b32 v{tb + T*4 + r}, a{OUTACC(c,T,t)+r}", None))
        for k in range(4):
            o.append((f"v_cvt_pk_bf16_f32 v{tb+k}, v{tb+2*k}, v{tb+2*k+1}", None))
        if not OPT['nost']: o.append((f"buffer_store_dwordx4 {vr(tb)}, v{vSTO}, {sr(S_WS)}, s{sT0} offen offset:{t*1024}{FL[OPT['stf']]}", None))
    return o

def o_groups():
    gs = []
    for R in range(14, 28):
        hh, c = divmod(R - 14, 7)
        slot = R % 3
        win, base = (1, 0) if slot == 2 else (0, slot * SLOT)
        for s in range(8):
            for T in range(2):
                idx = 2 * s + T
                reads = [f"ds_read_b64_tr_b16 {{d}}, v{vWOR + win*2 + T} offset:{base + s*4096 + rd*2048}" for rd in range(2)]
                mf = []
                for u in range(3):
                    acc = vr(VWACC(R % 2, T, u))
                    mf.append(f"v_mfma_f32_16x16x32_bf16 {acc}, {vr(VFRAG(u,s))}, {{a}}, {acc if s else 0}")
                gr = dict(stage=R, reads=reads, mfmas=mf, idx=idx)
                if R > 14 and idx == 2: gr['front'] = vw_cvt(R - 1)
                if R == 20 and T == 1:
                    gr['post'] = [v_read(u, s) for u in range(3)]
                gs.append(gr)
                if R > 14 and idx == 5: gs.append(final_groups(R - 1, R)[0])
                if R > 14 and idx == 7:
                    gb = final_groups(R - 1, R)[1]
                    gs.append(gb)
                if R > 21 and idx == 11: gs[-1]['post'] = epilogue_ops(R - 22)
    return gs

def finish_stamps(cls):
    if OPT['stamps']:
        stamp("real_end", real=True)
        g.smem_wait(); stamp_flush()
        g(f"v_writelane_b32 v{vSTAMP}, s98, 62")
        g(f"v_writelane_b32 v{vSTAMP}, s96, 63")
        g(f"s_lshl_b32 s{sT0}, s2, 2")
        g(f"s_add_u32 s{sT0}, s{sT0}, s{sW}")
        g(f"s_lshl_b32 s{sT0}, s{sT0}, 8")
        g(f"s_add_u32 s{sT0}, s{sT0}, {24<<20}")
        g(f"s_mov_b32 s{S_WS+2}, 0x10000000")
        g(f"v_lshrrev_b32 v1, 2, v{vSTO}")
        if OPT['dbg']:
            g(f"s_cmp_lg_u32 s2, {OPT['dbg']}")
            g(f"s_cbranch_scc1 L_nodbg_{cls}")
            g(f"s_cmp_lg_u32 s{sW}, 1")
            g(f"s_cbranch_scc1 L_nodbg_{cls}")
            g(f"v_subrev_u32 v2, s98, v{vSTAMP}")
            g(f"s_mov_b64 exec, 0xffff")
            g(f"buffer_store_dword v2, v1, {sr(S_K)}, 0 offen")
            g.raw(f"L_nodbg_{cls}:")
        else:
            g(f"buffer_store_dword v{vSTAMP}, v1, {sr(S_WS)}, s{sT0} offen")
        json.dump(names, open(sys.argv[1] + ".names", "w"))
    g("s_endpgm")

def main_kernel():
    kernel_open(MAIN)
    g(f"s_cmp_ge_u32 s2, 256")
    g(f"s_cbranch_scc1 L_main_end")
    if OPT['stamps']:
        g("s_memrealtime s[96:97]")
        g("s_memtime s[98:99]")
    if OPT['cpf_first']:
        g(f"s_getpc_b64 s[{sPC}:{sPC+1}]")
        g.raw("L_pc0:")
        g(f"s_lshr_b32 s{sT0}, s2, 3")
        g(f"s_lshl_b32 s{sT0}, s{sT0}, 12")
        g(f"v_lshl_add_u32 v2, v0, 4, s{sT0}")
        g(f"v_min_u32 v2, (L_{'text' if OPT['cpf_red'] else 'main'}_end-L_pc0)/16*16-16, v2")
        g(f"global_load_dword v{vDUM}, v2, s[{sPC}:{sPC+1}]", nodst=True)
    g("s_load_dwordx8 s[64:71], s[0:1], 0")
    g("s_load_dwordx2 s[72:73], s[0:1], 32")
    g("s_load_dwordx8 s[76:83], s[0:1], 40")
    g("s_load_dwordx2 s[84:85], s[0:1], 72")
    g("s_load_dwordx2 s[86:87], s[0:1], 96")
    g(f"s_getpc_b64 s[{sPC}:{sPC+1}]")
    g.raw("L_pc:")
    L = 1
    t0, t1, t2, t3, t4, t5 = 2, 3, 4, 5, 6, 7
    g(f"v_lshrrev_b32 v{t0}, 6, v0")
    g(f"v_and_b32 v{L}, 63, v0")
    g(f"v_readfirstlane_b32 s{sW}, v{t0}")
    g(f"s_and_b32 s{sT0}, s2, 7")
    g(f"s_lshr_b32 s{sT1}, s2, 3")
    g(f"s_lshr_b32 s{sBR}, s{sT0}, 2")
    g(f"s_and_b32 s{sHG}, s{sT0}, 3")
    g(f"s_lshl_b32 s{sT0}, s{sHG}, 2")
    g(f"s_and_b32 s{sHP}, s{sT1}, 1")
    g(f"s_lshl_b32 s{sT2}, s{sHP}, 1")
    g(f"s_add_u32 s{sH0}, s{sT0}, s{sT2}")
    g(f"s_lshr_b32 s{sB0}, s{sT1}, 1")
    if OPT['nc'] == 3:
        g(f"s_mul_i32 s{sCLS}, s{sB0}, 11")
        g(f"s_lshr_b32 s{sCLS}, s{sCLS}, 5")
        g(f"s_mul_i32 s{sCLS}, s{sCLS}, 3")
        g(f"s_sub_u32 s{sCLS}, s{sB0}, s{sCLS}")
    else:
        g(f"s_and_b32 s{sCLS}, s{sB0}, {OPT['nc']-1}")
    g(f"s_lshl_b32 s{sB0}, s{sB0}, 1")
    g(f"s_lshl_b32 s{sWI}, s{sT1}, 2")
    g(f"s_add_u32 s{sWI}, s{sWI}, s{sW}")
    g(f"s_and_b32 s{sBSEL}, s{sW}, 1")
    g(f"s_lshr_b32 s{sJ}, s{sW}, 1")
    g(f"s_add_u32 s{sB}, s{sB0}, s{sBSEL}")
    g(f"s_lshl_b32 s{sM}, s{sW}, 13")
    g(f"s_lshl_b32 s{sVM}, s{sW}, 10")
    g(f"s_add_u32 s{sVM}, s{sVM}, {VB}")
    g(f"s_mov_b32 s{sXM}, s{sVM}")
    g(f"s_lshl_b32 s{sWQB}, s{sH0}, 9")
    g(f"s_mul_i32 s{sXB}, s{sB0}, 43008")
    g(f"s_lshl_b32 s{sT0}, s{sBSEL}, 4")
    g(f"s_lshl_b32 s{sT1}, s{sJ}, 2")
    g(f"s_add_u32 s{sT0}, s{sT0}, s{sT1}")
    g(f"s_lshl_b32 s{sT0}, s{sT0}, 13")
    g(f"v_lshlrev_b32 v{vSTO}, 4, v{L}")
    g(f"v_add_u32 v{t1}, s{sT0}, v{vSTO}")
    for i in range(8):
        const = (8 * (i >> 2) + (i & 3)) * 8192 - (i & 3) * 1024
        g(f"v_xor_b32 v{t0}, {32*i}, v{t1}")
        g(f"v_add_u32 v{vWQD+i}, {const}, v{t0}")
    g(f"v_lshrrev_b32 v{t0}, 3, v{L}")
    g(f"v_mul_u32_u24 v{t0}, 896, v{t0}")
    g(f"v_lshrrev_b32 v{t1}, 4, v{L}")
    g(f"s_lshl_b32 s{sT0}, s{sBSEL}, 2")
    g(f"v_add_u32 v{t1}, s{sT0}, v{t1}")
    g(f"v_and_b32 v{t2}, 7, v{L}")
    g(f"v_xor_b32 v{t1}, v{t1}, v{t2}")
    g(f"v_lshl_add_u32 v{t0}, v{t1}, 4, v{t0}")
    g(f"s_mul_i32 s{sT0}, s{sW}, 7168")
    g(f"v_add_u32 v{vXD}, s{sT0}, v{t0}")
    g(f"v_and_b32 v{t0}, 15, v{L}")
    g(f"v_lshrrev_b32 v{t1}, 4, v{L}")
    g(f"v_mov_b32 v{t5}, {BIG}")
    g(f"v_lshlrev_b32 v{t2}, 7, v{t0}")
    g(f"v_cmp_gt_u32 vcc, 16, v{L}")
    g(f"s_lshl_b32 s{sTWQ}, s{sWI}, 13")
    g(f"s_lshl_b32 s{sT0}, s{sHG}, 11")
    g(f"v_cndmask_b32 v9, v{t5}, v{t2}, vcc")
    g(f"s_add_u32 s{sTWQ}, s{sTWQ}, s{sT0}")
    g(f"v_lshl_add_u32 v{t2}, v{t1}, 20, v{t2}")
    g(f"v_cmp_gt_u32 vcc, 32, v{L}")
    g(f"s_lshl_b32 s{sT0}, s{sHP}, 2")
    g(f"s_add_u32 s{sT0}, s{sT0}, s{sW}")
    g(f"v_cndmask_b32 v{vTWQ}, v{t5}, v{t2}, vcc")
    g(f"s_mul_i32 s{sT1}, s{sT0}, 24")
    g(f"s_mul_i32 s{sT2}, s{sT0}, 36")
    g(f"v_add_u32 v{t2}, s{sT1}, v{L}")
    g(f"v_lshrrev_b32 v{t3}, 1, v{t2}")
    g(f"v_mul_u32_u24 v{t3}, 896, v{t3}")
    g(f"v_and_b32 v{t2}, 1, v{t2}")
    g(f"v_lshl_add_u32 v{t2}, v{t2}, 7, v{t3}")
    g(f"v_cmp_gt_u32 vcc, 24, v{L}")
    g(f"v_add_u32 v{t3}, s{sT2}, v{L}")
    g(f"v_mul_u32_u24 v{t4}, 21846, v{t3}")
    g(f"v_cndmask_b32 v{vTXA}, v{t5}, v{t2}, vcc")
    g(f"v_lshrrev_b32 v{t4}, 16, v{t4}")
    g(f"v_mul_u32_u24 v{t2}, 3, v{t4}")
    g(f"v_sub_u32 v{t3}, v{t3}, v{t2}")
    g(f"v_mul_u32_u24 v{t4}, 896, v{t4}")
    g(f"v_lshl_add_u32 v{t3}, v{t3}, 7, v{t4}")
    g(f"v_cmp_gt_u32 vcc, 36, v{L}")
    g(f"s_nop 1")
    g(f"v_cndmask_b32 v{vTXB}, v{t5}, v{t3}, vcc")
    g.smem_wait()
    g(f"s_cmp_eq_u32 s{sBR}, 0")
    for k in (0, 3, 1, 2, 4):
        g(f"s_cselect_b64 s[{64+2*k}:{65+2*k}], s[{64+2*k}:{65+2*k}], s[{76+2*k}:{77+2*k}]")
    srd(S_X, 64, 65, 1376256)
    srd(S_WQ, 70, 71, 3670016)
    emit_list(touch(9, S_WQ, sTWQ, 0))
    if OPT['code_pf'] and not OPT['cpf_first']:
        g(f"s_min_u32 s{sT0}, s{sWI}, (L_main_end-L_pc)/1024-1")
        g(f"s_lshl_b32 s{sT0}, s{sT0}, 10")
        g(f"v_add_u32 v{t2}, s{sT0}, v{vSTO}")
        g(f"global_load_dword v{vDUM}, v{t2}, s[{sPC}:{sPC+1}]", nodst=True)
    emit_list(x_dma(0, "R0"))
    emit_list(x_dma(1, "R0"))
    g(f"v_mov_b32 v{vT16}, v9")
    g(f"v_lshrrev_b32 v{t2}, 1, v{t0}")
    g(f"v_xor_b32 v{t2}, v{t2}, v{t1}")
    g(f"v_lshlrev_b32 v{t2}, 4, v{t2}")
    g(f"v_lshl_add_u32 v{t2}, v{t0}, 7, v{t2}")
    g(f"s_mul_i32 s{sT0}, s{sBSEL}, 6144")
    g(f"s_add_u32 s{sT0}, s{sT0}, {VB}")
    g(f"v_add_u32 v{vXR}, s{sT0}, v{t2}")
    g(f"v_xor_b32 v{vXR+1}, 64, v{vXR}")
    g(f"v_lshlrev_b32 v{t2}, 7, v{L}")
    g(f"v_cmp_gt_u32 vcc, 32, v{L}")
    srd(S_K, 66, 67, 12582912)
    g(f"v_cndmask_b32 v{vT32}, v{t5}, v{t2}, vcc")
    srd(S_V, 68, 69, 12582912)
    srd(S_WO, 72, 73, 3670016)
    srd(S_WS, 86, 87, 22020096)
    u0, u1, u2 = 10, 11, 12
    g(f"v_lshrrev_b32 v{u0}, 2, v{L}")
    g(f"v_and_b32 v{u1}, 7, v{u0}")
    g(f"v_and_b32 v{u2}, 3, v{L}")
    g(f"v_lshlrev_b32 v{u2}, 3, v{u2}")
    g(f"s_lshl_b32 s{sT0}, s{sJ}, 9")
    g(f"v_lshl_add_u32 v{t3}, v{u0}, 10, v{u2}")
    g(f"v_add_u32 v{t3}, s{sT0}, v{t3}")
    for T in range(8):
        g(f"v_xor_b32 v{t4}, {T}, v{u1}")
        g(f"v_lshl_add_u32 v{vWQR+T}, v{t4}, 5, v{t3}")
        g(f"v_add_u32 v{vWQR+8+T}, 0x10000, v{vWQR+T}")
    g(f"s_lshl_b32 s{sT0}, s{sB}, 4")
    g(f"s_add_u32 s{sT0}, s{sT0}, s{sH0}")
    g(f"s_add_u32 s{sT0}, s{sT0}, s{sJ}")
    g(f"s_mul_i32 s{sKB}, s{sT0}, 24576")
    g(f"s_mul_i32 s{sKM}, s{sW}, 8320")
    g(f"s_add_u32 s{sKM}, s{sKM}, {KA}")
    g(f"v_lshlrev_b32 v{t2}, 2, v{t1}")
    g(f"v_xor_b32 v{t2}, v{t2}, v{t0}")
    g(f"v_lshlrev_b32 v{t2}, 4, v{t2}")
    g(f"v_lshl_add_u32 v{vKD}, v{t1}, 9, v{t2}")
    g(f"v_lshrrev_b32 v{t2}, 2, v{t0}")
    g(f"v_mul_u32_u24 v{t2}, 1040, v{t2}")
    g(f"v_and_b32 v{t3}, 3, v{t0}")
    g(f"v_lshl_add_u32 v{t2}, v{t3}, 8, v{t2}")
    g(f"v_lshl_add_u32 v{t2}, v{t1}, 3, v{t2}")
    g(f"v_add_u32 v{t2}, s{sKM}, v{t2}")
    for s4 in range(4):
        g(f"v_xor_b32 v{t4}, {s4}, v{t3}")
        g(f"v_lshl_add_u32 v{vKR+s4}, v{t4}, 6, v{t2}")
    g(f"s_mul_i32 s{sWOBASE}, s{sH0}, 229376")
    g(f"s_lshl_b32 s{sT0}, s{sB0}, 4")
    g(f"s_add_u32 s{sT0}, s{sT0}, s{sH0}")
    g(f"s_mul_i32 s{sVBASE}, s{sT0}, 24576")
    g(f"s_add_u32 s{sT0}, s{sH0}, s{sBR}")
    g(f"s_lshl_b32 s{sT0}, s{sT0}, 5")
    g(f"s_add_u32 s{sT0}, s{sT0}, s{sB}")
    g(f"s_mul_i32 s{sST}, s{sT0}, 43008")
    g(f"s_mul_i32 s{sT0}, s{sJ}, 3072")
    g(f"s_add_u32 s{sST}, s{sST}, s{sT0}")
    g(f"s_mov_b32 s{sC}, 0x{struct.unpack('<I', struct.pack('<f', 1.4426950408889634/16.0))[0]:08x}")
    g(f"s_lshr_b32 s{sT0}, s{sWI}, 6")
    g(f"s_lshl_b32 s{sT1}, s{sHG}, 1")
    g(f"s_add_u32 s{sT0}, s{sT0}, s{sT1}")
    g(f"s_mul_i32 s{sTWO}, s{sT0}, 458752")
    g(f"s_and_b32 s{sT0}, s{sWI}, 63")
    g(f"s_mul_i32 s{sT0}, s{sT0}, 3584")
    g(f"s_add_u32 s{sTWO}, s{sTWO}, s{sT0}")
    g(f"s_mul_i32 s{sT0}, s{sBSEL}, 24576")
    g(f"s_add_u32 s{sT0}, s{sT0}, {VB}")
    g(f"v_xor_b32 v{t3}, v{t1}, v{t0}")
    g(f"v_lshlrev_b32 v{t3}, 4, v{t3}")
    g(f"v_lshl_add_u32 v{t3}, v{t0}, 8, v{t3}")
    g(f"v_add_u32 v{vVR}, s{sT0}, v{t3}")
    for s4 in range(1, 4):
        g(f"v_xor_b32 v{vVR+s4}, {64*s4}, v{vVR}")
    g(f"s_lshl_b32 s{sT0}, s{sW}, 2")
    g(f"v_add_u32 v{t3}, s{sT0}, v{t1}")
    g(f"v_xor_b32 v{t3}, v{t3}, v{t0}")
    g(f"v_lshlrev_b32 v{t3}, 4, v{t3}")
    g(f"v_lshl_add_u32 v{t3}, v{t1}, 9, v{t3}")
    g(f"s_lshl_b32 s{sT0}, s{sW}, 11")
    g(f"v_add_u32 v{vVD}, s{sT0}, v{t3}")
    g(f"v_lshl_add_u32 v{t3}, v{u0}, 7, v{u2}")
    g(f"v_bfe_u32 v{t2}, v{L}, 3, 2")
    g(f"s_lshl_b32 s{sT0}, s{sJ}, 1")
    for T in range(2):
        g(f"s_add_u32 s{sT3}, s{sT0}, {T}")
        g(f"v_xor_b32 v{t4}, s{sT3}, v{t2}")
        g(f"v_lshl_add_u32 v{vWOR+T}, v{t4}, 5, v{t3}")
        g(f"v_add_u32 v{vWOR+2+T}, 0x10000, v{vWOR+T}")
    g(f"v_lshrrev_b32 v{t3}, 5, v{L}")
    g(f"v_lshl_add_u32 v{t2}, v{t3}, 3, v{t2}")
    g(f"v_mul_u32_u24 v{t2}, 896, v{t2}")
    g(f"v_lshlrev_b32 v{t3}, 1, v{t1}")
    g(f"v_and_b32 v{t4}, 7, v{L}")
    g(f"v_xor_b32 v{t3}, v{t3}, v{t4}")
    g(f"v_lshl_add_u32 v{t2}, v{t3}, 4, v{t2}")
    g(f"s_mul_i32 s{sT0}, s{sW}, 57344")
    g(f"v_add_u32 v{vWOD}, s{sT0}, v{t2}")
    for k in range(1, 4):
        g(f"v_add_u32 v{vWOD+k}, {(16*(k&1) + 4*(k>>1))*896 - k*1024}, v{vWOD}")
    g(f"s_mul_i32 s{sT0}, s{sBSEL}, 4608")
    g(f"s_add_u32 s{sT0}, s{sT0}, {PB}")
    g(f"v_add_u32 v{vPW}, s{sT0}, v{vSTO}")
    g(f"s_add_u32 s{sT0}, s{sT0}, 1024")
    g(f"v_lshl_add_u32 v{vPW2}, v{L}, 3, s{sT0}")
    if OPT['tlb']:
        g(f"v_and_b32 v{t2}, 1, v{L}")
        g(f"v_mul_u32_u24 v{t2}, 393216, v{t2}")
        g(f"v_lshrrev_b32 v{t3}, 1, v{L}")
        g(f"v_mul_u32_u24 v{t3}, 49024, v{t3}")
        g(f"v_add_u32 v{t2}, v{t2}, v{t3}")
        g(f"v_cmp_gt_u32 vcc, 4, v{L}")
        g(f"v_lshlrev_b32 v{t3}, 17, v{L}")
        g(f"v_mul_u32_u24 v{t4}, 39808, v{L}")
        g(f"v_cndmask_b32 v{t2}, v{t5}, v{t2}, vcc")
        g(f"v_cndmask_b32 v{t3}, v{t5}, v{t3}, vcc")
        g(f"v_cmp_gt_u32 vcc, 2, v{L}")
        g(f"buffer_load_dword v{vDUM}, v{t2}, {sr(S_K)}, s{sVBASE} offen nt", nodst=True)
        g(f"v_cndmask_b32 v{t4}, v{t5}, v{t4}, vcc")
        g(f"buffer_load_dword v{vDUM}, v{t2}, {sr(S_V)}, s{sVBASE} offen nt", nodst=True)
        g(f"buffer_load_dword v{vDUM}, v{t3}, {sr(S_WO)}, s{sWOBASE} offen", nodst=True)
        g(f"buffer_load_dword v{vDUM}, v{t4}, {sr(S_WS)}, s{sST} offen nt", nodst=True)
    if OPT['fuse']:
        srd(S_FLG, 86, 87, 22020096 + 32 * 256)
        g(f"s_lshl_b32 s{sT0}, s{sBR}, 5")
        g(f"s_add_u32 s{sT0}, s{sT0}, s{sB0}")
        g(f"s_lshl_b32 s{sFLG}, s{sT0}, 7")
        g(f"s_add_u32 s{sFLG}, s{sFLG}, 22020096")
        g(f"v_mov_b32 v{t2}, 0")
        g(f"buffer_load_dword v{vFLAG}, v{t2}, {sr(S_FLG)}, s{sFLG} offen sc1")
    emit_list(touches(-1))
    emit_list(ring_dma(0))
    if OPT['w1pro']: emit_list(ring_dma(1))
    stamp('pro')
    g.wait_tag("R0")
    g.barrier()
    stamp('b0')
    import copy
    NC = OPT['nc']
    for cls in range(1, NC):
        g(f"s_cmp_eq_u32 s{sCLS}, {cls}")
        g(f"s_cbranch_scc1 L_body_{cls}")
    saved = copy.deepcopy({k: v for k, v in g.__dict__.items() if k != 'lines'})
    st0 = (nstamp, pending, list(names))
    for cls in range(NC):
        for k, v in copy.deepcopy(saved).items(): setattr(g, k, v)
        globals().update(nstamp=st0[0], pending=st0[1], names=list(st0[2]))
        if cls: g.raw(".p2align 6"); g.raw(f"L_body_{cls}:")
        body(cls)
    g.raw("L_main_end:")
    g("s_endpgm")

def fused_reduce(cls):
    S_DBG, S_OUT = S_K, S_V
    g("s_load_dwordx4 s[64:67], s[0:1], 80")
    g(f"s_lshl_b32 s70, s{sH0}, 1")
    g(f"s_add_u32 s70, s70, s{sW}")
    g(f"s_lshl_b32 s71, s{sBR}, 5")
    g(f"s_add_u32 s71, s71, s{sB0}")
    g(f"s_lshr_b32 s72, s71, 1")
    g(f"s_lshl_b32 s72, s72, 2")
    g(f"s_add_u32 s72, s72, 128")
    g(f"s_mul_i32 s71, s71, 43008")
    for k in range(3):
        f, ld, st = 73, 76 + k, 80 + k
        g(f"s_add_u32 s{f}, s70, {32*k}")
        g(f"s_lshl_b32 s{ld}, s{f}, 10")
        g(f"s_add_u32 s{ld}, s{ld}, s71")
        g(f"s_cmp_ge_u32 s{f}, 42")
        g(f"s_cselect_b32 s74, 1, 0")
        g(f"s_mul_i32 s75, s74, 42")
        g(f"s_sub_u32 s75, s{f}, s75")
        g(f"s_mul_i32 s83, s75, 43")
        g(f"s_lshr_b32 s83, s83, 7")
        g(f"s_mul_i32 s84, s83, 3")
        g(f"s_sub_u32 s84, s75, s84")
        g(f"s_add_u32 s74, s74, s{sB0}")
        g(f"s_mul_i32 s74, s74, 3")
        g(f"s_add_u32 s74, s74, s84")
        g(f"s_mul_i32 s{st}, s74, {16*1792}")
        g(f"s_lshl_b32 s83, s83, 6")
        g(f"s_add_u32 s{st}, s{st}, s83")
        g(f"s_mul_i32 s83, s{sBR}, 896")
        g(f"s_add_u32 s{st}, s{st}, s83")
        if k == 2:
            g(f"s_cmp_lt_u32 s{f}, 84")
            g(f"s_cselect_b32 s{ld}, s{ld}, {BIG}")
            g(f"s_cselect_b32 s{st}, s{st}, {BIG}")
    g(f"v_lshrrev_b32 v200, 4, v{vSTO}")
    g(f"v_and_b32 v201, 15, v200")
    g(f"v_mul_u32_u24 v201, 1792, v201")
    g(f"v_lshrrev_b32 v200, 4, v200")
    g(f"v_lshl_add_u32 v201, v200, 4, v201")
    g(f"v_mov_b32 v202, 0")
    g(f"v_mov_b32 v203, 1")
    g.smem_wait()
    srd(S_OUT, 64, 65, 2752512)
    srd(S_DBG, 66, 67, 256)
    g.wait_all()
    g.barrier()
    stamp('stdrain')
    g(f"s_cmp_lg_u32 s{sW}, 0")
    g(f"s_cbranch_scc1 L_wait_{cls}")
    g("s_mov_b64 exec, 1")
    g(f"buffer_atomic_add v203, v202, {sr(S_DBG)}, s72 offen sc0")
    g.vm[-1] = ({('v', 203)}, None)
    g(f"v_readfirstlane_b32 s86, v203")
    g(f"s_and_b32 s86, s86, 7")
    g(f"s_cmp_lg_u32 s86, 7")
    g(f"s_cbranch_scc1 L_notlast_{cls}")
    g(f"v_add_u32 v204, 1, v{vFLAG}")
    g(f"buffer_store_dword v204, v202, {sr(S_FLG)}, s{sFLG} offen sc1")
    g(f"s_branch L_got_{cls}")
    g.raw(f"L_notlast_{cls}:")
    g(f"s_mov_b32 s85, 0x40000")
    g(f"v_readfirstlane_b32 s87, v{vFLAG}")
    g.raw(f"L_poll_{cls}:")
    g(f"buffer_load_dword v204, v202, {sr(S_FLG)}, s{sFLG} offen sc1")
    g.wait_all()
    g(f"v_readfirstlane_b32 s86, v204")
    g(f"s_cmp_lg_u32 s86, s87")
    g(f"s_cbranch_scc1 L_got_{cls}")
    g(f"s_sleep {OPT['slp']}")
    g(f"s_sub_u32 s85, s85, 1")
    g(f"s_cmp_lg_u32 s85, 0")
    g(f"s_cbranch_scc1 L_poll_{cls}")
    g.raw(f"L_got_{cls}:")
    g("s_mov_b64 exec, -1")
    g.raw(f"L_wait_{cls}:")
    g.barrier()
    stamp('met')
    for k in range(3):
        for p in range(8):
            if p == 0:
                g(f"s_mov_b32 s{sT0}, s{76+k}")
            else:
                g(f"s_add_u32 s{sT0}, s{sT0}, {64*43008}")
            g(f"buffer_load_dwordx4 {vr((k*8+p)*4)}, v{vSTO}, {sr(S_WS)}, s{sT0} offen sc1")
    for k in range(3):
        A, B = 100 + 24 * k, 108 + 24 * k
        for p in range(8):
            for q in range(4):
                src = (k * 8 + p) * 4 + q
                d = A if p == 0 else B
                g(f"v_lshlrev_b32 v{d+2*q}, 16, v{src}")
                g(f"v_and_b32 v{d+2*q+1}, 0xffff0000, v{src}")
            if p:
                for q in range(8):
                    g(f"v_add_f32 v{A+q}, v{A+q}, v{B+q}")
        O = 116 + 24 * k
        for q in range(4):
            g(f"v_cvt_pk_bf16_f32 v{O+q}, v{A+2*q}, v{A+2*q+1}")
        g(f"v_permlane32_swap_b32 v{O}, v{O+2}")
        g(f"v_permlane32_swap_b32 v{O+1}, v{O+3}")
        g(f"v_permlane16_swap_b32 v{O}, v{O+2}")
        g(f"v_permlane16_swap_b32 v{O+1}, v{O+3}")
        g(f"buffer_store_dwordx4 {vr(O)}, v201, {sr(S_OUT)}, s{80+k} offen{FL[OPT['osf']]}")

def body(cls):
    KS = [OPT[f'k{u}'] + cls * OPT['kstep'] for u in range(3)]
    TWO0 = OPT['t_wo0'] + cls * OPT['kstep']
    TB = OPT['t_b'] + cls * OPT['kstep']
    V1A = OPT['v1'] + (cls * OPT['vstep']) % 3
    V1B = OPT['v1b'] - 3 + (3 + cls * OPT['vstep']) % 3 + (0 if True else 0)
    V1B = min(V1A + (OPT['v1b'] - OPT['v1']), 18)
    emit_list(x_reads(0))
    def early_touches(R): return touches(R, cls * OPT['kstep'])
    fq.add(x_reads(1) + ([] if OPT['w1pro'] else ring_dma(1)) + ring_dma(2) + early_touches(0))
    x_issue = {1: (2, "R3"), 2: (3, "R4"), 5: (4, "R7"), 6: (5, "R8"), 8: (6, "R10")}
    x_read = {3: 2, 4: 3, 7: 4, 8: 5, 10: 6}
    x_issue = {k: [v] for k, v in x_issue.items()}
    x_read = {k: [v] for k, v in x_read.items()}
    if OPT['xdir']:
        kw = OPT['kw']
        x_issue = {KS[0]: [(2, f"R{KS[0]+kw}"), (3, f"R{KS[0]+kw}")], KS[1]: [(4, f"R{KS[1]+kw}"), (5, f"R{KS[1]+kw}")], KS[2]: [(6, f"R{KS[2]+kw}")]}
        x_read = {KS[0] + kw: [2, 3], KS[1] + kw: [4, 5], KS[2] + kw: [6]}
        assert KS[0] >= 1 and KS[0] + kw <= 4 and KS[1] + kw <= 8 and KS[2] + kw <= 12 and OPT['v0a'] > KS[2] + kw
    k_issue = {KS[u]: u for u in range(3)}
    k_read = {KS[u] + OPT['kw']: u for u in range(3)}
    assert max(k_read) <= 13 and OPT['v0b'] > max(k_read) and OPT['v0a'] >= 11
    for u in range(2): assert KS[u+1] > KS[u] + OPT['kw']
    if 0 in k_issue: fq.add(k_dma(k_issue[0], f"R{OPT['kw']}"))
    def after1(R):
        out = []
        for p in x_read.get(R, []): out += x_reads(p)
        if R in k_read: out += k_reads(k_read[R])
        out += ring_dma(R + 2)
        for a in x_issue.get(R, []): out += x_dma(*a)
        if R in k_issue: out += k_dma(k_issue[R], f"R{R+OPT['kw']}")
        if R == OPT['v0a']: out += v_dma(0, range(7))
        if R == OPT['v0b']: out += v_dma(0, range(7, 12))
        out += early_touches(R)
        return out
    run_stages(q_groups(), after1, lambda R: f"R{R}" if R < 14 else "none", tail_barrier=True)
    stamp('G1end')
    def s_mf(t):
        return [f"v_mfma_f32_16x16x32_bf16 {vr(SACC+(t*3+u)*4)}, {ar(aK+(u*8+s)*4)}, {vr(QFRAG(s,t))}, {vr(SACC+(t*3+u)*4) if s else 0}"
                for s in range(8) for u in range(3)]
    if OPT['spack']:
        vmq = list(fq.q); fq.q = []
        for ins in cvt_pairs(QACC, range(2), 0): g(ins)
        lists = [cvt_pairs(QACC, range(2, 8), 0) + cvt_pairs(QACC, range(8), 1)[:18],
                 cvt_pairs(QACC, range(8), 1)[18:] + cvt_pairs(QACC, range(8), 2),
                 softmax_ops(0)]
        cnt = 0
        for t in range(3):
            fq.add([(i, None) for i in lists[t]])
            third = (len(vmq) + 2 - t) // (3 - t) if t < 2 else len(vmq)
            while third < len(vmq) and not fq.is_vm(vmq[third - 1]): third += 1
            fq.add(vmq[:third]); vmq = vmq[third:]
            for m in s_mf(t):
                fq.guard(m)
                g(m); cnt += 1
                fill_gap(None, cnt % 5 == 0, False)
        rest = [it[0] for it in fq.q if fq.kind(it) in 've']
        fq.q = [it for it in fq.q if fq.kind(it) not in 've']
        fq.drain()
        for ins in merge(rest, softmax_ops(1), softmax_ops(2)): g(ins)
    else:
        def paced(ins_list, every):
            n = 0
            for ins in ins_list:
                g(ins); n += 1
                if n % every == 0:
                    while len(fq) and not fq.is_vm(fq.q[0]): fq.pop()
                    if len(fq): fq.pop()
        paced(cvt_pairs(QACC, range(8), 0), 8)
        def mix(mf, fill):
            o = []; fill = list(fill)
            for m in mf:
                o.append(m)
                for _ in range(2):
                    if fill: o.append(fill.pop(0))
            return o + fill
        paced(mix(s_mf(0), cvt_pairs(QACC, range(8), 1)), 10)
        paced(mix(s_mf(1), cvt_pairs(QACC, range(8), 2)), 10)
        fq.drain()
        sm0 = softmax_ops(0)
        interleave(s_mf(2), sm0[:40])
        for ins in merge(sm0[40:], softmax_ops(1), softmax_ops(2)): g(ins)
    stamp('SM')
    p_write(0, f"L_pw0_{cls}")
    g.wait_tag(["V0", "R14"], lg=0)
    g.barrier()
    stamp('Pbar')
    for u in range(3): emit_list([v_read(u, 0)])
    for s in range(1, 8):
        fq.add([v_read(u, s) for u in range(3)])
    fq.add(p_reads(0))
    def after2(R):
        out = []
        if R == OPT['p1'] + 1: out += p_reads(1)
        out += ring_dma(R + 2)
        if R == V1A: out += v_dma(1, range(6))
        if R == V1B: out += v_dma(1, range(6, 12))
        out += early_touches(R)
        if R == OPT['p1']: out.append(lambda: p_write(1, f"L_pw1_{cls}"))
        return out
    def wt(R):
        return [f"R{R}", "V1"] if R == 20 else f"R{R}"
    run_stages(o_groups(), after2, wt, tail_barrier=False)
    fq.drain()
    stamp('G2end')
    emit_list(vw_cvt(27))
    fa, fb = final_groups(27, 27)
    for m in fa['mfmas'] + fb['mfmas']: g(m)
    emit_list(epilogue_ops(6))
    stamp('epi')
    if OPT['fuse']: fused_reduce(cls)
    if OPT['stamps']:
        g.wait_all()
        stamp('drain')
    finish_stamps(cls)

def reduce_kernel():
    global g
    lines = g.lines
    g = Gen(); g.lines = lines
    kernel_open(RED)
    g("s_cmp_ge_u32 s2, 448")
    g("s_cbranch_scc1 L_red_end")
    g("s_load_dwordx2 s[4:5], s[0:1], 80")
    g("s_load_dwordx2 s[6:7], s[0:1], 96")
    g("s_mov_b32 s16, 0x24924925")
    g("s_mul_hi_u32 s17, s2, s16")
    g("s_mul_i32 s18, s17, 7")
    g("s_sub_u32 s18, s2, s18")
    g("s_mul_i32 s19, s17, 43008")
    g("s_mul_i32 s20, s18, 6144")
    g("s_add_u32 s19, s19, s20")
    g("v_lshlrev_b32 v1, 4, v0")
    g("v_lshrrev_b32 v2, 6, v0")
    g("v_and_b32 v3, 63, v0")
    g("v_readfirstlane_b32 s21, v2")
    g("s_cmp_ge_u32 s21, 3")
    g("s_cselect_b32 s22, 1, 0")
    g("s_mul_i32 s23, s22, 3")
    g("s_sub_u32 s23, s21, s23")
    g("s_and_b32 s24, s17, 31")
    g("s_lshr_b32 s25, s17, 5")
    g("s_mul_i32 s24, s24, 48")
    g("s_lshl_b32 s23, s23, 4")
    g("s_add_u32 s24, s24, s23")
    g("s_mul_i32 s24, s24, 1792")
    g("s_mul_i32 s25, s25, 896")
    g("s_add_u32 s24, s24, s25")
    g("s_lshl_b32 s26, s18, 7")
    g("s_add_u32 s24, s24, s26")
    g("s_lshl_b32 s26, s22, 6")
    g("s_add_u32 s24, s24, s26")
    g("v_and_b32 v4, 15, v3")
    g("v_mul_u32_u24 v4, 1792, v4")
    g("v_lshrrev_b32 v5, 4, v3")
    g("v_lshl_add_u32 v4, v5, 4, v4")
    g.smem_wait()
    srd(8, 6, 7, 22020096)
    srd(12, 4, 5, 2752512)
    for p in range(8):
        if p:
            g(f"s_add_u32 s19, s19, {64*43008}")
        g(f"buffer_load_dwordx4 {vr(8+4*p)}, v1, s[8:11], s19 offen{FL[OPT['ldf']]}")
    for p in range(8):
        for k in range(4):
            src = 8 + 4 * p + k
            if p == 0:
                g(f"v_lshlrev_b32 v{40+2*k}, 16, v{src}")
                g(f"v_and_b32 v{41+2*k}, 0xffff0000, v{src}")
            else:
                g(f"v_lshlrev_b32 v{48+2*k}, 16, v{src}")
                g(f"v_and_b32 v{49+2*k}, 0xffff0000, v{src}")
        if p:
            for k in range(8):
                g(f"v_add_f32 v{40+k}, v{40+k}, v{48+k}")
    for k in range(4):
        g(f"v_cvt_pk_bf16_f32 v{56+k}, v{40+2*k}, v{41+2*k}")
    g("v_permlane32_swap_b32 v56, v58")
    g("v_permlane32_swap_b32 v57, v59")
    g("v_permlane16_swap_b32 v56, v58")
    g("v_permlane16_swap_b32 v57, v59")
    g(f"buffer_store_dwordx4 v[56:59], v4, s[12:15], s24 offen{FL[OPT['osf']]}")
    g.raw("L_red_end:")
    g("s_endpgm")
    g.raw("L_text_end:")

def descriptors():
    g.raw('.section .rodata,"a"')
    for name, nv, acc in ((MAIN, 512, 256), (RED, 64, 64))[:1 if OPT['fuse'] else 2]:
        g.raw(".p2align 6")
        g.raw(f".amdhsa_kernel {name}")
        g.raw(f"  .amdhsa_next_free_vgpr {nv}")
        g.raw("  .amdhsa_next_free_sgpr 102")
        g.raw(f"  .amdhsa_accum_offset {acc}")
        g.raw("  .amdhsa_group_segment_fixed_size 0")
        g.raw("  .amdhsa_kernarg_size 104")
        g.raw("  .amdhsa_user_sgpr_count 2")
        g.raw("  .amdhsa_user_sgpr_kernarg_segment_ptr 1")
        g.raw("  .amdhsa_system_sgpr_workgroup_id_x 1")
        g.raw("  .amdhsa_float_denorm_mode_32 3")
        g.raw(".end_amdhsa_kernel")

header()
main_kernel()
st = dict(g.stats)
if not OPT['fuse']: reduce_kernel()
else: g.raw('L_text_end:')
descriptors()
open(sys.argv[1], "w").write(g.text())
print("main stats", st, "forced", fq.forced)
```

```python
import sys, struct, json
from asmgen import Gen, classify

NAME = "concat_heads__mha_block_cached__gqa_block_cached__near_ridge"
MAIN = NAME + "_kernel"
RED = "reduce_partials_kernel"

OPT = dict(bar_group=10, D=7, stamps=0, code_pf=1, touch=1, ntk=1, ntv=0, nttw=0, nttx=0,
           k0=2, k1=6, k2=10, kw=3, t_wo0=3, t_wo1=14, v1=16, v1b=18, p1=17, t_a=0, t_b=3, v0a=13, nc=1, kstep=1, vstep=1, ntfirst=1, pace=1, diag=0, nok=0, nov=0, now=0, nost=0, nox=0, dbg=0, stf=1, ldf=0, osf=0, tlb=0, cpf_first=1, cpf_red=0, cpf2=0, fuse=0, slp=2, t_xa=0, t_xb=3, ret=0, hw=1, nobar=0, lastb=2, w1pro=1, pack=1, ring=8, spack=1, v0b=14, xdir=0, pw=1, arr=10, ic=2, ia=6, ib=8, ie=11, vup=3, t_v1=14, nttv=0)
FL = ['', ' sc1', ' sc0 sc1', ' nt', ' sc1 nt', ' sc0 sc1 nt']
for a in sys.argv[2:]:
    k, v = a.split('=')
    assert k in OPT, k
    OPT[k] = int(v)
def NT(k): return ' nt' if OPT[k] else ''

SLOT = 32768
VB = 3 * SLOT
XU = 12288
KA = VB + 65536 - 4 * 8320
PB = VB + 49152
LDS_BYTES = 163840
BIG = 0x7ffff000

S_X, S_K, S_V, S_WQ, S_WO, S_WS = 8, 12, 16, 20, 24, 28
sW, sBSEL, sJ, sBR, sH0, sB0, sB = 32, 33, 34, 35, 36, 37, 38
sWQB = 39
sXB, sXM, sKB, sKM, sXO, sKO, sWQO, sWOO, sWOO2, sVO = 40, 41, 42, 43, 44, 45, 46, 47, 48, 49
sM, sVM, sST, sC = 50, 51, 52, 53
sT0, sT1, sT2, sT3 = 54, 55, 56, 57
sVBASE, sWOBASE = 58, 59
sPC = 60
sTWQ = 63
sTV = 62
sHG, sHP, sWI, sTWO, sCLS = 88, 89, 90, 91, 94
S_FLG, sFLG = 4, 95
sPD = 100
sPX, sPY = 3, 61
STB = 64

def QACC(T, t): return (((T // 2) * 3 + t) * 4) + (96 if T & 1 else 0)
def QFRAG(s, t): return (s * 3 + t) * 4
SACC = 192
vWQR = 192
vWQD = 208
vXR = 216
vXD = 218
vKR = 219
vKD = 223
vTWQ = 224
vTXA = 225
vTXB = 226
vT16 = 227
vWOD = 228
vVD = 232
vVR = 233
vWOR = 237
vSTO = 241
vPW = 242
vPW2 = 243
vT32 = 244
vDUM = 245
vFLAG = 252
vZERO = 179
vSM = 246
def VFRAG(u, s): return (u * 8 + s) * 4
vPOWN = 96
vP32 = [114, 126]
vPU2 = 138
vPA, vPB = 162, 163
vVWB = 150
vEP = 96
def VWACC(par, T, u): return 180 + par * 24 + (T * 3 + u) * 4
aFR, aK, aX, XRING, aOUT = 0, 40, 136, 10, 40
def U2(c, T):
    k = c * 2 + T
    return 32 + 4 * k if k < 2 else 208 + 4 * (k - 2)
def OUTACC(c, T, t): return aOUT + ((c * 2 + T) * 3 + t) * 4

def vr(b, n=4): return f"v[{b}:{b+n-1}]"
def ar(b, n=4): return f"a[{b}:{b+n-1}]"
def sr(b, n=4): return f"s[{b}:{b+n-1}]"

g = Gen()
nstamp = 0
vSTAMP = 255
pending = False
names = []
def stamp_flush():
    global pending
    if pending:
        g(f"v_writelane_b32 v{vSTAMP}, s92, {nstamp-1}")
        pending = False
def stamp(name="", real=False, drained=False):
    global nstamp, pending
    if OPT['stamps']:
        if pending:
            if not drained: g.smem_wait()
            stamp_flush()
        g(f"{'s_memrealtime' if real else 's_memtime'} s[92:93]")
        names.append(name); nstamp += 1; pending = True

def header():
    g.raw("; fused attention block: launch 1 computes per-head-pair partial outputs, launch 2 sums them")
    if OPT['fuse']:
        g.raw(f"; @launch grid=(256,1,1) block=(256,1,1) lds={LDS_BYTES}")
    else:
        g.raw(f"; @launch kernel={MAIN} grid=(256,1,1) block=(256,1,1) lds={LDS_BYTES}")
        g.raw(f"; @launch kernel={RED} grid=(448,1,1) block=(384,1,1) lds=0")
    g.raw('.amdgcn_target "amdgcn-amd-amdhsa--gfx950"')
    g.raw(".text")

def kernel_open(name):
    g.raw(f".globl {name}")
    g.raw(".p2align 8")
    g.raw(f".type {name},@function")
    g.raw(f"{name}:")

def srd(dst, lo, hi, nbytes):
    g(f"s_mov_b32 s{dst}, s{lo}")
    g(f"s_and_b32 s{dst+1}, s{hi}, 0xffff")
    g(f"s_mov_b32 s{dst+2}, {nbytes}")
    g(f"s_mov_b32 s{dst+3}, 0x20000")

def wq_dma(R):
    slot = (R % 3) * SLOT
    out = [(f"s_add_u32 s{sWQO}, s{sWQB}, {R*262144}", None)]
    for i in range(8):
        if i % 4 == 0:
            out.append((f"s_add_u32 m0, s{sM}, {slot + (i//4)*4096}", None))
        out.append((f"buffer_load_dwordx4 v{vWQD+i}, {sr(S_WQ)}, s{sWQO} offen offset:{(i%4)*1024} lds", f"R{R}"))
    return out

def wo_dma(R):
    hh, c = divmod(R - 14, 7)
    slot = (R % 3) * SLOT
    out = [(f"s_add_u32 s{sWOO}, s{sWOBASE}, {hh*229376 + c*128}", None),
           (f"s_add_u32 s{sWOO2}, s{sWOBASE}, {hh*229376 + c*128 + 28672}", None)]
    for i in range(8):
        if i % 4 == 0:
            out.append((f"s_add_u32 m0, s{sM}, {slot + (i//4)*4096}", None))
        so = sWOO if i < 4 else sWOO2
        out.append((f"buffer_load_dwordx4 v{vWOD+(i%4)}, {sr(S_WO)}, s{so} offen offset:{(i%4)*1024} lds", f"R{R}"))
    return out

def ring_dma(R):
    if OPT['now'] and R > 2: return []
    if R < 14: return wq_dma(R)
    if R < 28: return wo_dma(R)
    return []

def x_dma(p, tag):
    out = []
    if OPT['nox'] and p > 1: return out
    for k in range(3):
        out.append((f"s_add_u32 s{sXO}, s{sXB}, {p*128 + k*28672}", None))
        out.append((f"s_add_u32 m0, s{sXM}, {(p % 2)*XU + k*4096}", None))
        out.append((f"buffer_load_dwordx4 v{vXD}, {sr(S_X)}, s{sXO} offen{NT('ntfirst') if (p < 2 or OPT['xdir']) else ''} lds", tag))
    return out

def x_reads(p):
    out = []
    for s2 in range(2):
        s = 2 * p + s2
        for t in range(3):
            d = aX + (s % XRING) * 12 + t * 4
            out.append((f"ds_read_b128 {ar(d)}, v{vXR+s2} offset:{(p % 2)*XU + t*2048}", None))
    return out

def k_dma(u, tag):
    out = []
    if OPT['nok']: return out
    for dh in range(2):
        out.append((f"s_add_u32 m0, s{sKM}, {dh*4160}", None))
        for j in range(4):
            out.append((f"s_add_u32 s{sKO}, s{sKB}, {u*8192 + dh*256 + j*(2048-1040)}", None))
            out.append((f"buffer_load_dwordx4 v{vKD}, {sr(S_K)}, s{sKO} offen offset:{j*1040}{NT('ntk')} lds", tag))
    return out

def k_reads(u):
    out = []
    for dh in range(2):
        for s4 in range(4):
            for p in range(2):
                d = aK + (u * 8 + dh * 4 + s4) * 4 + 2 * p
                out.append((f"ds_read_b64 {ar(d,2)}, v{vKR+s4} offset:{dh*4160 + 32*p}", None))
    return out

def v_dma(hh, subs):
    out = []
    if OPT['nov']: return out
    for sub in subs:
        bb, r = divmod(sub, 6); u, dh = divmod(r, 2)
        out.append((f"s_add_u32 s{sVO}, s{sVBASE}, {hh*24576 + bb*393216 + u*8192 + dh*256}", None))
        out.append((f"s_add_u32 m0, s{sVM}, {sub*4096}", None))
        out.append((f"buffer_load_dwordx4 v{vVD}, {sr(S_V)}, s{sVO} offen{NT('ntv')} lds", f"V{hh}"))
    return out

def v_read(u, s):
    dh, s4 = divmod(s, 4)
    return (f"ds_read_b128 {vr(VFRAG(u,s))}, v{vVR+s4} offset:{(u*2+dh)*4096}", None)

def touch(vaddr, srd_, sbase, add, plain=False):
    key = {S_WQ: 'nttw', S_WO: 'nttw', S_X: 'nttx', S_V: 'nttv'}[srd_]
    if not OPT['touch']: return []
    return [(f"s_add_u32 s{sT1}, s{sbase}, {add}", None),
            (f"buffer_load_dword v{vDUM}, v{vaddr}, {sr(srd_)}, s{sT1} offen{'' if plain else NT(key)}", None, True)]

def touch_table():
    return {'t_a': (vT16, S_WQ, sTWQ, 128 * 8192), 't_xa': (vTXA, S_X, sXB, 256), 't_b': (vTWQ, S_WQ, sTWQ, 256 * 8192),
            't_xb': (vTXB, S_X, sXB, 512), 't_wo0': (vT32, S_WO, sTWO, 0), 't_wo1': (vT32, S_WO, sTWO, 229376)}
def touches(R, shift=0):
    o = []
    for k, a in touch_table().items():
        if OPT['xdir'] and k.startswith('t_x'): continue
        at = OPT[k] + (shift if OPT[k] >= 1 and k != 't_wo1' else 0)
        if at == R: o += touch(*a)
        if OPT['ret'] and max(at, 0) + OPT['ret'] == R: o += touch(*a, plain=True)
    if R == OPT['t_v1']:
        for k in range(3): o += touch(vT32, S_V, sTV, 24576 + 4096 * k)
    return o

class FillQ:
    def __init__(self): self.q = []
    def add(self, items): self.q.extend(items)
    def pop(self):
        it = self.q.pop(0)
        if callable(it): it()
        else: g(it[0], tag=it[1], nodst=(len(it) > 2))
    def __len__(self): return len(self.q)
    def is_vm(self, it):
        return (not callable(it)) and it[0].startswith(('buffer_', 'global_'))
    def nvm(self): return sum(1 for it in self.q if self.is_vm(it))
    def drain(self):
        while self.q: self.pop()
    def guard(self, text):
        _, _, _, _, rd, wr = classify(text)
        rd = {r for r in rd if r[0] != 's'}; wr = {r for r in wr if r[0] != 's'}
        last = -1
        for i, it in enumerate(self.q):
            if callable(it): continue
            _, _, _, _, frd, fwr = classify(it[0])
            if len(it) > 2: fwr = []
            if (set(fwr) & (rd | wr)) or (set(frd) & wr): last = i
        if last >= 0: self.forced += last + 1
        for _ in range(last + 1): self.pop()
    forced = 0
    def kind(self, it):
        if callable(it): return 'call'
        t = it[0]
        if t.startswith(('buffer_', 'global_')): return 'm'
        if t.startswith('ds_'): return 'd'
        if t.startswith(('v_exp', 'v_rcp', 'v_log', 'v_rsq', 'v_sqrt')): return 'e'
        if t.startswith('v_'): return 'v'
        return 's'
    def find(self, kinds, depth=24):
        seen_r, seen_w = set(), set()
        for i, it in enumerate(self.q[:depth]):
            if callable(it): return None
            k = self.kind(it)
            _, _, _, _, rd_, wr_ = classify(it[0])
            if len(it) > 2: wr_ = []
            rd_, wr_ = set(rd_), set(wr_)
            if k == 's': wr_ = wr_ | {('scc', 0)} if False else wr_
            if k in kinds:
                order_ok = not (k in 'md' and any(self.kind(e) == k for e in self.q[:i]))
                if order_ok and not (wr_ & (seen_r | seen_w)) and not (rd_ & seen_w): return i
            seen_r |= rd_; seen_w |= wr_
        return None
    def pop_at(self, i):
        it = self.q.pop(i)
        g(it[0], tag=it[1], nodst=(len(it) > 2))
fq = FillQ()

def fill_gap(ring_read, vm_due, reserve):
    if len(fq) and callable(fq.q[0]):
        fq.pop(); return False
    if vm_due and not reserve:
        i = fq.find('m')
        if i is not None:
            fq.pop_at(i); return True
    slots = 2 - (1 if reserve else 0)
    if ring_read:
        ring_read(); slots -= 1
    else:
        i = fq.find('d')
        if i is not None:
            fq.pop_at(i); slots -= 1
    while slots > 0:
        i = fq.find('vse' if slots == 2 else 'vs')
        if i is None: break
        slots -= 2 if fq.kind(fq.q[i]) == 'e' else 1
        fq.pop_at(i)
    return False
def emit_list(l):
    for it in l: g(it[0], tag=it[1], nodst=(len(it) > 2))

def run_stages(groups, after_barrier, wait_tags, tail_barrier=None, nreg=4):
    ring = OPT['ring']
    D = min(OPT['D'], ring - 1)
    open_stage = groups[0]['stage']
    pend = []
    fr = 0
    for n, gr in enumerate(groups):
        gr['fr'] = fr
        if gr['reads']:
            d = aFR + (fr % ring) * nreg
            for k, rt in enumerate(gr['reads']):
                pend.append((fr, gr['stage'], rt.format(d=ar(d + 2 * k, 2))))
            fr += 1
    rp = 0
    def can_read(f_cur):
        if rp >= len(pend): return False
        f, st, _ = pend[rp]
        return st <= open_stage and f <= f_cur + D
    while rp < len(pend) and pend[rp][0] < D and pend[rp][1] <= open_stage:
        g(pend[rp][2]); rp += 1
    last_stage = groups[-1]['stage']
    left = [0] * len(groups)
    acc = 0
    for n in range(len(groups) - 1, -1, -1):
        if groups[n].get('idx') == OPT['bar_group']: acc = 0
        acc += len(groups[n]['mfmas'])
        left[n] = acc
    since_vm = 1000
    for n, gr in enumerate(groups):
        f = gr['fr']
        d = aFR + (f % ring) * nreg
        if gr['reads']:
            while rp < len(pend) and pend[rp][0] <= f:
                assert pend[rp][1] <= open_stage
                g(pend[rp][2]); rp += 1
        if gr['reads'] and OPT['hw'] and f % 2 == 0 and any(p[0] == f + 1 for p in pend[:rp]) and sum(1 for p in pend[:rp] if p[0] == f + 1) == 2:
            d2 = aFR + ((f + 1) % ring) * nreg
            g.need([('a', d + i) for i in range(4)] + [('a', d2 + i) for i in range(4)])
        fcur = f if gr['reads'] else f - 1
        R = gr['stage']
        for it in gr.get('pre', []): fq.q.insert(0, it) if False else None
        if gr.get('front'):
            fq.q[0:0] = gr['front']
        for k, mt in enumerate(gr['mfmas']):
            fq.guard(mt.format(a=ar(d)))
            g(mt.format(a=ar(d)))
            since_vm += 1
            rem = left[n] - k - 1
            if OPT['pack']:
                nxt = groups[n+1] if n + 1 < len(groups) else None
                reserve = (k == len(gr['mfmas']) - 1 and nxt is not None and bool(nxt['reads']) and nxt['fr'] % 2 == 0)
                nv = fq.nvm()
                gap = max(1, (rem - 1) // max(1, nv))
                behind = rp < len(pend) and can_read(fcur) and pend[rp][0] <= fcur + OPT['D'] - 3
                vm_due = nv > 0 and since_vm >= min(gap, 6) and not behind
                def rr():
                    nonlocal rp
                    g(pend[rp][2]); rp += 1
                if fill_gap(rr if can_read(fcur) else None, vm_due, reserve): since_vm = 0
                continue
            budget = 2
            if k == len(gr['mfmas']) - 1 and n + 1 < len(groups) and groups[n+1]['reads'] and (groups[n+1]['fr'] % 2 == 0 or not OPT['hw']):
                budget = OPT['lastb']
            while budget:
                if can_read(fcur):
                    g(pend[rp][2]); rp += 1; budget -= 1
                elif len(fq):
                    j = None
                    if fq.is_vm(fq.q[0]) and OPT['pace']:
                        gap = max(1, (rem - 2) // max(1, fq.nvm()))
                        if since_vm >= min(gap, OPT['pace'] * 6): j = 0
                        else:
                            for i, it in enumerate(fq.q):
                                if callable(it): break
                                if fq.is_vm(it) or it[0].startswith('s_'): continue
                                _, _, _, _, rd_, wr_ = classify(it[0])
                                clash = False
                                for e in fq.q[:i]:
                                    _, _, _, _, erd, ewr = classify(e[0])
                                    if (set(erd) | set(ewr)) & set(wr_) or set(ewr) & set(rd_): clash = True
                                if not clash: j = i
                                break
                    else:
                        j = 0
                    if j is None: break
                    if j == 0:
                        if fq.is_vm(fq.q[0]): since_vm = 0
                        fq.pop()
                    else:
                        it = fq.q.pop(j); g(it[0], tag=it[1], nodst=(len(it) > 2))
                    budget -= 1
                else:
                    break
        for it in gr.get('post', []):
            fq.add([it])
        if gr.get('hook'):
            assert not any((not callable(it)) and it[1] == 'ST4' for it in fq.q)
            g.wait_tag("ST4")
            g.barrier()
            wave0("L_w0_%d" % CLS[0], lambda: arrive(0))
            CLS[1] = g.vmtot
        if gr.get('idx') == OPT['bar_group'] and (R < last_stage or tail_barrier):
            while rp < len(pend) and pend[rp][1] <= R:
                g(pend[rp][2]); rp += 1
            fq.drain()
            g.wait_tag(wait_tags(R + 1), lg=0)
            if OPT['stamps'] > 1: g.smem_wait()
            if not OPT['nobar']: g.barrier()
            if OPT['stamps'] > 1: stamp(f"b{R+1}", drained=True)
            open_stage = R + 1
            fq.add(after_barrier(R + 1))

def interleave(mf, fill, per=2):
    fill = list(fill)
    for m in mf:
        g(m)
        for _ in range(per):
            if fill: g(fill.pop(0))
            elif len(fq): fq.pop()
    for f in fill: g(f)

def softmax_ops(t):
    S = [SACC + 12 * t + k for k in range(12)]
    m, x = vSM + 2 * t, vSM + 2 * t + 1
    o = []
    o.append(f"v_max3_f32 v{m}, v{S[0]}, v{S[1]}, v{S[2]}")
    o.append(f"v_max3_f32 v{x}, v{S[3]}, v{S[4]}, v{S[5]}")
    o.append(f"v_max3_f32 v{m}, v{m}, v{S[6]}, v{S[7]}")
    o.append(f"v_max3_f32 v{x}, v{x}, v{S[8]}, v{S[9]}")
    o.append(f"v_max3_f32 v{m}, v{m}, v{S[10]}, v{S[11]}")
    o.append(f"v_max_f32 v{m}, v{m}, v{x}")
    for sw in ("v_permlane32_swap_b32", "v_permlane16_swap_b32"):
        o.append(f"v_mov_b32 v{x}, v{m}")
        o.append(f"{sw} v{m}, v{x}")
        o.append(f"v_max_f32 v{m}, v{m}, v{x}")
    o.append(f"v_mul_f32 v{m}, s{sC}, v{m}")
    for k in range(12):
        o.append(f"v_fma_f32 v{S[k]}, v{S[k]}, s{sC}, -v{m}")
    for k in range(12):
        o.append(f"v_exp_f32 v{S[k]}, v{S[k]}")
    o.append(f"v_add_f32 v{m}, v{S[0]}, v{S[1]}")
    o.append(f"v_add_f32 v{x}, v{S[2]}, v{S[3]}")
    for k in range(4, 12, 2):
        o.append(f"v_add_f32 v{m}, v{m}, v{S[k]}")
        o.append(f"v_add_f32 v{x}, v{x}, v{S[k+1]}")
    o.append(f"v_add_f32 v{m}, v{m}, v{x}")
    for sw in ("v_permlane32_swap_b32", "v_permlane16_swap_b32"):
        o.append(f"v_mov_b32 v{x}, v{m}")
        o.append(f"{sw} v{m}, v{x}")
        o.append(f"v_add_f32 v{m}, v{m}, v{x}")
    o.append(f"v_rcp_f32 v{m}, v{m}")
    for k in range(12):
        o.append(f"v_mul_f32 v{S[k]}, v{S[k]}, v{m}")
    for k in range(6):
        o.append(f"v_cvt_pk_bf16_f32 v{vPOWN + 6*t + k}, v{S[2*k]}, v{S[2*k+1]}")
    return o

def merge(*lists):
    out = []
    n = max(len(l) for l in lists)
    for i in range(n):
        for l in lists:
            if i < len(l): out.append(l[i])
    return out

def cvt_pairs(acc, s_list, t):
    o = []
    for s in s_list:
        b, b2 = acc(2 * s, t), acc(2 * s + 1, t)
        o.append(f"v_cvt_pk_bf16_f32 v{b}, v{b}, v{b+1}")
        o.append(f"v_cvt_pk_bf16_f32 v{b+1}, v{b+2}, v{b+3}")
        o.append(f"v_cvt_pk_bf16_f32 v{b+2}, v{b2}, v{b2+1}")
        o.append(f"v_cvt_pk_bf16_f32 v{b+3}, v{b2+2}, v{b2+3}")
    return o

def p_write0():
    for t in range(3):
        g(f"ds_write_b128 v{vPA}, {vr(vPOWN+6*t)} offset:{t*1024}")
    g(f"s_mov_b64 exec, s[{sPD}:{sPD+1}]")
    for t in range(3):
        g(f"ds_write_b64 v{vPW2}, {vr(vPOWN+6*t+4,2)} offset:{t*512}")
    g("s_mov_b64 exec, -1")

def p_write1():
    return [(f"ds_write_b64 v{vPB}, {vr(vPOWN+6*t+4,2)} offset:{t*512}", None) for t in range(3)]

def p_reads32(hh):
    return [(f"ds_read_b128 {vr(vP32[hh]+4*t)}, v{vPW} offset:{hh*6144 + t*1024}", None) for t in range(3)]
def p_readsu2(hh):
    return [(f"ds_read_b64 {vr(vPU2+4*t+2*hh,2)}, v{vPW2} offset:{t*512}", None) for t in range(3)]

def q_groups():
    gs = []
    for s in range(14):
        slot = s % 3
        win, base = (1, 0) if slot == 2 else (0, slot * SLOT)
        for T in range(16):
            reads = [f"ds_read_b64_tr_b16 {{d}}, v{vWQR + win*8 + (T & 7)} offset:{base + rd*16384 + (T>>3)*256}" for rd in range(2)]
            mf = []
            for t in range(3):
                acc = vr(QACC(T, t))
                xb = ar(aX + (s % XRING) * 12 + t * 4)
                mf.append(f"v_mfma_f32_16x16x32_bf16 {acc}, {{a}}, {xb}, {acc if s else 0}")
            gs.append(dict(stage=s, reads=reads, mfmas=mf, idx=T))
    return gs

def vw_cvt(R):
    par = R % 2
    hh, c = divmod(R - 14, 7)
    o = []
    for T in range(2):
        for u in range(3):
            b = VWACC(par, T, u)
            d = vVWB + 4 * T + 2 * u if u < 2 else vVWB + 8 + 2 * T
            o.append((f"v_cvt_pk_bf16_f32 v{d}, v{b}, v{b+1}", None))
            o.append((f"v_cvt_pk_bf16_f32 v{d+1}, v{b+2}, v{b+3}", None))
    for T in range(2):
        for i in range(2):
            o.append((f"v_accvgpr_write_b32 a{U2(c,T)+2*hh+i}, v{vVWB+8+2*T+i}", None))
    return o

def final_groups(R, stage):
    hh, c = divmod(R - 14, 7)
    a, b = [], []
    for T in range(2):
        for t in range(3):
            acc = ar(OUTACC(c, T, t))
            a.append(f"v_mfma_f32_16x16x32_bf16 {acc}, {vr(vVWB+4*T)}, {vr(vP32[hh]+4*t)}, {acc if hh else 0}")
            if hh: b.append(f"v_mfma_f32_16x16x32_bf16 {acc}, {ar(U2(c,T))}, {vr(vPU2+4*t)}, {acc}")
    return dict(stage=stage, reads=[], mfmas=a), dict(stage=stage, reads=[], mfmas=b)

def epilogue_ops(c):
    o = [(f"s_add_u32 s{sT0}, s{sST}, {c*6144}", None)]
    for t in range(3):
        tb = vEP + t * 8
        for T in range(2):
            for r in range(4):
                o.append((f"v_accvgpr_read_b32 v{tb + T*4 + r}, a{OUTACC(c,T,t)+r}", None))
        for k in range(4):
            o.append((f"v_cvt_pk_bf16_f32 v{tb+k}, v{tb+2*k}, v{tb+2*k+1}", None))
        if not OPT['nost']: o.append((f"buffer_store_dwordx4 {vr(tb)}, v{vSTO}, {sr(S_WS)}, s{sT0} offen offset:{t*1024}{FL[OPT['stf']]}", f"ST{c}"))
    return o

def o_groups():
    gs = []
    for R in range(14, 28):
        hh, c = divmod(R - 14, 7)
        slot = R % 3
        win, base = (1, 0) if slot == 2 else (0, slot * SLOT)
        for s in range(8):
            for T in range(2):
                idx = 2 * s + T
                reads = [f"ds_read_b64_tr_b16 {{d}}, v{vWOR + win*2 + T} offset:{base + s*4096 + rd*2048}" for rd in range(2)]
                mf = []
                for u in range(3):
                    acc = vr(VWACC(R % 2, T, u))
                    mf.append(f"v_mfma_f32_16x16x32_bf16 {acc}, {vr(VFRAG(u,s))}, {{a}}, {acc if s else 0}")
                gr = dict(stage=R, reads=reads, mfmas=mf, idx=idx)
                if R > 14 and idx == OPT['ic']: gr['front'] = vw_cvt(R - 1)
                if R == 20 and T == 1:
                    gr['post'] = [v_read(u, s) for u in range(3)]
                gs.append(gr)
                if R > 14 and idx == OPT['ia']: gs.append(final_groups(R - 1, R)[0])
                if R > 14 and idx == OPT['ib']:
                    gb = final_groups(R - 1, R)[1]
                    if gb['mfmas']: gs.append(gb)
                if R > 21 and idx == OPT['ie']: gs[-1]['post'] = epilogue_ops(R - 22)
                if R == 27 and idx == OPT['arr'] and OPT['fuse']: gs[-1]['hook'] = True
    return gs

def finish_stamps(cls):
    if OPT['stamps']:
        stamp("real_end", real=True)
        g.smem_wait(); stamp_flush()
        g(f"v_writelane_b32 v{vSTAMP}, s98, 62")
        g(f"v_writelane_b32 v{vSTAMP}, s96, 63")
        g(f"s_lshl_b32 s{sT0}, s2, 2")
        g(f"s_add_u32 s{sT0}, s{sT0}, s{sW}")
        g(f"s_lshl_b32 s{sT0}, s{sT0}, 8")
        g(f"s_add_u32 s{sT0}, s{sT0}, {24<<20}")
        g(f"s_mov_b32 s{S_WS+2}, 0x10000000")
        g(f"v_lshrrev_b32 v1, 2, v{vSTO}")
        if OPT['dbg']:
            g(f"s_cmp_lg_u32 s2, {OPT['dbg']}")
            g(f"s_cbranch_scc1 L_nodbg_{cls}")
            g(f"s_cmp_lg_u32 s{sW}, 1")
            g(f"s_cbranch_scc1 L_nodbg_{cls}")
            g(f"v_subrev_u32 v2, s98, v{vSTAMP}")
            g(f"s_mov_b64 exec, 0xffff")
            g(f"buffer_store_dword v2, v1, {sr(S_K)}, 0 offen")
            g.raw(f"L_nodbg_{cls}:")
        else:
            g(f"buffer_store_dword v{vSTAMP}, v1, {sr(S_WS)}, s{sT0} offen")
        json.dump(names, open(sys.argv[1] + ".names", "w"))
    g("s_endpgm")

def main_kernel():
    kernel_open(MAIN)
    g(f"s_cmp_ge_u32 s2, 256")
    g(f"s_cbranch_scc1 L_main_end")
    if OPT['stamps']:
        g("s_memrealtime s[96:97]")
        g("s_memtime s[98:99]")
    if OPT['cpf_first']:
        g(f"s_getpc_b64 s[{sPC}:{sPC+1}]")
        g.raw("L_pc0:")
        g(f"s_lshr_b32 s{sT0}, s2, 3")
        g(f"s_lshl_b32 s{sT0}, s{sT0}, 12")
        g(f"v_lshl_add_u32 v2, v0, 4, s{sT0}")
        g(f"v_min_u32 v2, (L_{'text' if OPT['cpf_red'] else 'main'}_end-L_pc0)/16*16-16, v2")
        g(f"global_load_dword v{vDUM}, v2, s[{sPC}:{sPC+1}]", nodst=True)
    g("s_load_dwordx8 s[64:71], s[0:1], 0")
    g("s_load_dwordx2 s[72:73], s[0:1], 32")
    g("s_load_dwordx8 s[76:83], s[0:1], 40")
    g("s_load_dwordx2 s[84:85], s[0:1], 72")
    g("s_load_dwordx2 s[86:87], s[0:1], 96")
    g(f"s_getpc_b64 s[{sPC}:{sPC+1}]")
    g.raw("L_pc:")
    L = 1
    t0, t1, t2, t3, t4, t5 = 2, 3, 4, 5, 6, 7
    g(f"v_lshrrev_b32 v{t0}, 6, v0")
    g(f"v_and_b32 v{L}, 63, v0")
    g(f"v_readfirstlane_b32 s{sW}, v{t0}")
    g(f"s_and_b32 s{sT0}, s2, 7")
    g(f"s_lshr_b32 s{sT1}, s2, 3")
    g(f"s_lshr_b32 s{sBR}, s{sT0}, 2")
    g(f"s_and_b32 s{sHG}, s{sT0}, 3")
    g(f"s_lshl_b32 s{sT0}, s{sHG}, 2")
    g(f"s_and_b32 s{sHP}, s{sT1}, 1")
    g(f"s_lshl_b32 s{sT2}, s{sHP}, 1")
    g(f"s_add_u32 s{sH0}, s{sT0}, s{sT2}")
    g(f"s_lshr_b32 s{sB0}, s{sT1}, 1")
    if OPT['nc'] == 3:
        g(f"s_mul_i32 s{sCLS}, s{sB0}, 11")
        g(f"s_lshr_b32 s{sCLS}, s{sCLS}, 5")
        g(f"s_mul_i32 s{sCLS}, s{sCLS}, 3")
        g(f"s_sub_u32 s{sCLS}, s{sB0}, s{sCLS}")
    else:
        g(f"s_and_b32 s{sCLS}, s{sB0}, {OPT['nc']-1}")
    g(f"s_lshl_b32 s{sB0}, s{sB0}, 1")
    g(f"s_lshl_b32 s{sWI}, s{sT1}, 2")
    g(f"s_add_u32 s{sWI}, s{sWI}, s{sW}")
    g(f"s_and_b32 s{sBSEL}, s{sW}, 1")
    g(f"s_lshr_b32 s{sJ}, s{sW}, 1")
    g(f"s_add_u32 s{sB}, s{sB0}, s{sBSEL}")
    g(f"s_lshl_b32 s{sM}, s{sW}, 13")
    g(f"s_lshl_b32 s{sVM}, s{sW}, 10")
    g(f"s_add_u32 s{sVM}, s{sVM}, {VB}")
    g(f"s_mov_b32 s{sXM}, s{sVM}")
    g(f"s_lshl_b32 s{sWQB}, s{sH0}, 9")
    g(f"s_mul_i32 s{sXB}, s{sB0}, 43008")
    g(f"s_lshl_b32 s{sT0}, s{sBSEL}, 4")
    g(f"s_lshl_b32 s{sT1}, s{sJ}, 2")
    g(f"s_add_u32 s{sT0}, s{sT0}, s{sT1}")
    g(f"s_lshl_b32 s{sT0}, s{sT0}, 13")
    g(f"v_lshlrev_b32 v{vSTO}, 4, v{L}")
    g(f"v_add_u32 v{t1}, s{sT0}, v{vSTO}")
    for i in range(8):
        const = (8 * (i >> 2) + (i & 3)) * 8192 - (i & 3) * 1024
        g(f"v_xor_b32 v{t0}, {32*i}, v{t1}")
        g(f"v_add_u32 v{vWQD+i}, {const}, v{t0}")
    g(f"v_lshrrev_b32 v{t0}, 3, v{L}")
    g(f"v_mul_u32_u24 v{t0}, 896, v{t0}")
    g(f"v_lshrrev_b32 v{t1}, 4, v{L}")
    g(f"s_lshl_b32 s{sT0}, s{sBSEL}, 2")
    g(f"v_add_u32 v{t1}, s{sT0}, v{t1}")
    g(f"v_and_b32 v{t2}, 7, v{L}")
    g(f"v_xor_b32 v{t1}, v{t1}, v{t2}")
    g(f"v_lshl_add_u32 v{t0}, v{t1}, 4, v{t0}")
    g(f"s_mul_i32 s{sT0}, s{sW}, 7168")
    g(f"v_add_u32 v{vXD}, s{sT0}, v{t0}")
    g(f"v_and_b32 v{t0}, 15, v{L}")
    g(f"v_lshrrev_b32 v{t1}, 4, v{L}")
    g(f"v_mov_b32 v{t5}, {BIG}")
    g(f"v_lshlrev_b32 v{t2}, 7, v{t0}")
    g(f"v_cmp_gt_u32 vcc, 16, v{L}")
    g(f"s_lshl_b32 s{sTWQ}, s{sWI}, 13")
    g(f"s_lshl_b32 s{sT0}, s{sHG}, 11")
    g(f"v_cndmask_b32 v9, v{t5}, v{t2}, vcc")
    g(f"s_add_u32 s{sTWQ}, s{sTWQ}, s{sT0}")
    g(f"v_lshl_add_u32 v{t2}, v{t1}, 20, v{t2}")
    g(f"v_cmp_gt_u32 vcc, 32, v{L}")
    g(f"s_lshl_b32 s{sT0}, s{sHP}, 2")
    g(f"s_add_u32 s{sT0}, s{sT0}, s{sW}")
    g(f"v_cndmask_b32 v{vTWQ}, v{t5}, v{t2}, vcc")
    g(f"s_mul_i32 s{sT1}, s{sT0}, 24")
    g(f"s_mul_i32 s{sT2}, s{sT0}, 36")
    g(f"v_add_u32 v{t2}, s{sT1}, v{L}")
    g(f"v_lshrrev_b32 v{t3}, 1, v{t2}")
    g(f"v_mul_u32_u24 v{t3}, 896, v{t3}")
    g(f"v_and_b32 v{t2}, 1, v{t2}")
    g(f"v_lshl_add_u32 v{t2}, v{t2}, 7, v{t3}")
    g(f"v_cmp_gt_u32 vcc, 24, v{L}")
    g(f"v_add_u32 v{t3}, s{sT2}, v{L}")
    g(f"v_mul_u32_u24 v{t4}, 21846, v{t3}")
    g(f"v_cndmask_b32 v{vTXA}, v{t5}, v{t2}, vcc")
    g(f"v_lshrrev_b32 v{t4}, 16, v{t4}")
    g(f"v_mul_u32_u24 v{t2}, 3, v{t4}")
    g(f"v_sub_u32 v{t3}, v{t3}, v{t2}")
    g(f"v_mul_u32_u24 v{t4}, 896, v{t4}")
    g(f"v_lshl_add_u32 v{t3}, v{t3}, 7, v{t4}")
    g(f"v_cmp_gt_u32 vcc, 36, v{L}")
    g(f"s_nop 1")
    g(f"v_cndmask_b32 v{vTXB}, v{t5}, v{t3}, vcc")
    g.smem_wait()
    g(f"s_cmp_eq_u32 s{sBR}, 0")
    for k in (0, 3, 1, 2, 4):
        g(f"s_cselect_b64 s[{64+2*k}:{65+2*k}], s[{64+2*k}:{65+2*k}], s[{76+2*k}:{77+2*k}]")
    srd(S_X, 64, 65, 1376256)
    srd(S_WQ, 70, 71, 3670016)
    emit_list(touch(9, S_WQ, sTWQ, 0))
    if OPT['code_pf'] and not OPT['cpf_first']:
        g(f"s_min_u32 s{sT0}, s{sWI}, (L_main_end-L_pc)/1024-1")
        g(f"s_lshl_b32 s{sT0}, s{sT0}, 10")
        g(f"v_add_u32 v{t2}, s{sT0}, v{vSTO}")
        g(f"global_load_dword v{vDUM}, v{t2}, s[{sPC}:{sPC+1}]", nodst=True)
    emit_list(x_dma(0, "R0"))
    emit_list(x_dma(1, "R0"))
    g(f"v_mov_b32 v{vT16}, v9")
    g(f"v_lshrrev_b32 v{t2}, 1, v{t0}")
    g(f"v_xor_b32 v{t2}, v{t2}, v{t1}")
    g(f"v_lshlrev_b32 v{t2}, 4, v{t2}")
    g(f"v_lshl_add_u32 v{t2}, v{t0}, 7, v{t2}")
    g(f"s_mul_i32 s{sT0}, s{sBSEL}, 6144")
    g(f"s_add_u32 s{sT0}, s{sT0}, {VB}")
    g(f"v_add_u32 v{vXR}, s{sT0}, v{t2}")
    g(f"v_xor_b32 v{vXR+1}, 64, v{vXR}")
    g(f"v_lshlrev_b32 v{t2}, 7, v{L}")
    g(f"v_cmp_gt_u32 vcc, 32, v{L}")
    srd(S_K, 66, 67, 12582912)
    g(f"v_cndmask_b32 v{vT32}, v{t5}, v{t2}, vcc")
    srd(S_V, 68, 69, 12582912)
    srd(S_WO, 72, 73, 3670016)
    srd(S_WS, 86, 87, 22020096)
    u0, u1, u2 = 10, 11, 12
    g(f"v_lshrrev_b32 v{u0}, 2, v{L}")
    g(f"v_and_b32 v{u1}, 7, v{u0}")
    g(f"v_and_b32 v{u2}, 3, v{L}")
    g(f"v_lshlrev_b32 v{u2}, 3, v{u2}")
    g(f"s_lshl_b32 s{sT0}, s{sJ}, 9")
    g(f"v_lshl_add_u32 v{t3}, v{u0}, 10, v{u2}")
    g(f"v_add_u32 v{t3}, s{sT0}, v{t3}")
    for T in range(8):
        g(f"v_xor_b32 v{t4}, {T}, v{u1}")
        g(f"v_lshl_add_u32 v{vWQR+T}, v{t4}, 5, v{t3}")
        g(f"v_add_u32 v{vWQR+8+T}, 0x10000, v{vWQR+T}")
    g(f"s_lshl_b32 s{sT0}, s{sB}, 4")
    g(f"s_add_u32 s{sT0}, s{sT0}, s{sH0}")
    g(f"s_add_u32 s{sT0}, s{sT0}, s{sJ}")
    g(f"s_mul_i32 s{sKB}, s{sT0}, 24576")
    g(f"s_mul_i32 s{sKM}, s{sW}, 8320")
    g(f"s_add_u32 s{sKM}, s{sKM}, {KA}")
    g(f"v_lshlrev_b32 v{t2}, 2, v{t1}")
    g(f"v_xor_b32 v{t2}, v{t2}, v{t0}")
    g(f"v_lshlrev_b32 v{t2}, 4, v{t2}")
    g(f"v_lshl_add_u32 v{vKD}, v{t1}, 9, v{t2}")
    g(f"v_lshrrev_b32 v{t2}, 2, v{t0}")
    g(f"v_mul_u32_u24 v{t2}, 1040, v{t2}")
    g(f"v_and_b32 v{t3}, 3, v{t0}")
    g(f"v_lshl_add_u32 v{t2}, v{t3}, 8, v{t2}")
    g(f"v_lshl_add_u32 v{t2}, v{t1}, 3, v{t2}")
    g(f"v_add_u32 v{t2}, s{sKM}, v{t2}")
    for s4 in range(4):
        g(f"v_xor_b32 v{t4}, {s4}, v{t3}")
        g(f"v_lshl_add_u32 v{vKR+s4}, v{t4}, 6, v{t2}")
    g(f"s_mul_i32 s{sWOBASE}, s{sH0}, 229376")
    g(f"s_lshl_b32 s{sT0}, s{sB0}, 4")
    g(f"s_add_u32 s{sT0}, s{sT0}, s{sH0}")
    g(f"s_mul_i32 s{sVBASE}, s{sT0}, 24576")
    g(f"s_mul_i32 s{sT0}, s{sJ}, 393216")
    g(f"s_mul_i32 s{sT1}, s{sBSEL}, 12288")
    g(f"s_add_u32 s{sTV}, s{sVBASE}, s{sT0}")
    g(f"s_add_u32 s{sTV}, s{sTV}, s{sT1}")
    g(f"s_add_u32 s{sT0}, s{sH0}, s{sBR}")
    g(f"s_lshl_b32 s{sT0}, s{sT0}, 5")
    g(f"s_add_u32 s{sT0}, s{sT0}, s{sB}")
    g(f"s_mul_i32 s{sST}, s{sT0}, 43008")
    g(f"s_mul_i32 s{sT0}, s{sJ}, 3072")
    g(f"s_add_u32 s{sST}, s{sST}, s{sT0}")
    g(f"s_mov_b32 s{sC}, 0x{struct.unpack('<I', struct.pack('<f', 1.4426950408889634/16.0))[0]:08x}")
    g(f"s_lshr_b32 s{sT0}, s{sWI}, 6")
    g(f"s_lshl_b32 s{sT1}, s{sHG}, 1")
    g(f"s_add_u32 s{sT0}, s{sT0}, s{sT1}")
    g(f"s_mul_i32 s{sTWO}, s{sT0}, 458752")
    g(f"s_and_b32 s{sT0}, s{sWI}, 63")
    g(f"s_mul_i32 s{sT0}, s{sT0}, 3584")
    g(f"s_add_u32 s{sTWO}, s{sTWO}, s{sT0}")
    g(f"s_mul_i32 s{sT0}, s{sBSEL}, 24576")
    g(f"s_add_u32 s{sT0}, s{sT0}, {VB}")
    g(f"v_xor_b32 v{t3}, v{t1}, v{t0}")
    g(f"v_lshlrev_b32 v{t3}, 4, v{t3}")
    g(f"v_lshl_add_u32 v{t3}, v{t0}, 8, v{t3}")
    g(f"v_add_u32 v{vVR}, s{sT0}, v{t3}")
    for s4 in range(1, 4):
        g(f"v_xor_b32 v{vVR+s4}, {64*s4}, v{vVR}")
    g(f"s_lshl_b32 s{sT0}, s{sW}, 2")
    g(f"v_add_u32 v{t3}, s{sT0}, v{t1}")
    g(f"v_xor_b32 v{t3}, v{t3}, v{t0}")
    g(f"v_lshlrev_b32 v{t3}, 4, v{t3}")
    g(f"v_lshl_add_u32 v{t3}, v{t1}, 9, v{t3}")
    g(f"s_lshl_b32 s{sT0}, s{sW}, 11")
    g(f"v_add_u32 v{vVD}, s{sT0}, v{t3}")
    g(f"v_lshl_add_u32 v{t3}, v{u0}, 7, v{u2}")
    g(f"v_bfe_u32 v{t2}, v{L}, 3, 2")
    g(f"s_lshl_b32 s{sT0}, s{sJ}, 1")
    for T in range(2):
        g(f"s_add_u32 s{sT3}, s{sT0}, {T}")
        g(f"v_xor_b32 v{t4}, s{sT3}, v{t2}")
        g(f"v_lshl_add_u32 v{vWOR+T}, v{t4}, 5, v{t3}")
        g(f"v_add_u32 v{vWOR+2+T}, 0x10000, v{vWOR+T}")
    g(f"v_lshrrev_b32 v{t3}, 5, v{L}")
    g(f"v_lshl_add_u32 v{t2}, v{t3}, 3, v{t2}")
    g(f"v_mul_u32_u24 v{t2}, 896, v{t2}")
    g(f"v_lshlrev_b32 v{t3}, 1, v{t1}")
    g(f"v_and_b32 v{t4}, 7, v{L}")
    g(f"v_xor_b32 v{t3}, v{t3}, v{t4}")
    g(f"v_lshl_add_u32 v{t2}, v{t3}, 4, v{t2}")
    g(f"s_mul_i32 s{sT0}, s{sW}, 57344")
    g(f"v_add_u32 v{vWOD}, s{sT0}, v{t2}")
    for k in range(1, 4):
        g(f"v_add_u32 v{vWOD+k}, {(16*(k&1) + 4*(k>>1))*896 - k*1024}, v{vWOD}")
    g(f"s_mul_i32 s{sT0}, s{sBSEL}, 3072")
    g(f"s_add_u32 s{sT0}, s{sT0}, {PB}")
    g(f"v_add_u32 v{vPW}, s{sT0}, v{vSTO}")
    g(f"s_mul_i32 s{sT1}, s{sBSEL}, 1536")
    g(f"s_add_u32 s{sT1}, s{sT1}, {PB + 12288}")
    g(f"v_lshl_add_u32 v{vPW2}, v{L}, 3, s{sT1}")
    g(f"s_mul_i32 s{sPX}, s{sJ}, 6144")
    g(f"s_cmp_eq_u32 s{sJ}, 0")
    g(f"s_cselect_b64 s[{sPD}:{sPD+1}], -1, 0")
    g(f"s_sub_u32 s{sT0}, s{sT0}, s{sT1}")
    g(f"s_cmp_eq_u32 s{sJ}, 0")
    g(f"s_cselect_b32 s{sPY}, s{sT0}, 0")
    if OPT['tlb']:
        g(f"v_and_b32 v{t2}, 1, v{L}")
        g(f"v_mul_u32_u24 v{t2}, 393216, v{t2}")
        g(f"v_lshrrev_b32 v{t3}, 1, v{L}")
        g(f"v_mul_u32_u24 v{t3}, 49024, v{t3}")
        g(f"v_add_u32 v{t2}, v{t2}, v{t3}")
        g(f"v_cmp_gt_u32 vcc, 4, v{L}")
        g(f"v_lshlrev_b32 v{t3}, 17, v{L}")
        g(f"v_mul_u32_u24 v{t4}, 39808, v{L}")
        g(f"v_cndmask_b32 v{t2}, v{t5}, v{t2}, vcc")
        g(f"v_cndmask_b32 v{t3}, v{t5}, v{t3}, vcc")
        g(f"v_cmp_gt_u32 vcc, 2, v{L}")
        g(f"buffer_load_dword v{vDUM}, v{t2}, {sr(S_K)}, s{sVBASE} offen nt", nodst=True)
        g(f"v_cndmask_b32 v{t4}, v{t5}, v{t4}, vcc")
        g(f"buffer_load_dword v{vDUM}, v{t2}, {sr(S_V)}, s{sVBASE} offen nt", nodst=True)
        g(f"buffer_load_dword v{vDUM}, v{t3}, {sr(S_WO)}, s{sWOBASE} offen", nodst=True)
        g(f"buffer_load_dword v{vDUM}, v{t4}, {sr(S_WS)}, s{sST} offen nt", nodst=True)
    emit_list(touches(-1))
    emit_list(ring_dma(0))
    if OPT['w1pro']: emit_list(ring_dma(1))
    if OPT['fuse']: fuse_setup()
    stamp('pro')
    g.wait_tag("R0")
    g.barrier()
    stamp('b0')
    import copy
    NC = OPT['nc']
    for cls in range(1, NC):
        g(f"s_cmp_eq_u32 s{sCLS}, {cls}")
        g(f"s_cbranch_scc1 L_body_{cls}")
    saved = copy.deepcopy({k: v for k, v in g.__dict__.items() if k != 'lines'})
    st0 = (nstamp, pending, list(names))
    for cls in range(NC):
        for k, v in copy.deepcopy(saved).items(): setattr(g, k, v)
        globals().update(nstamp=st0[0], pending=st0[1], names=list(st0[2]))
        if cls: g.raw(".p2align 6"); g.raw(f"L_body_{cls}:")
        body(cls)
    g.raw("L_main_end:")
    g("s_endpgm")

S_OUT, S_DBG = 64, 68
sLD, sSTO, sCNT, sLASTA, sLASTB = 72, 75, 78, 79, 80
vARR = 254
def fuse_setup():
    srd(S_FLG, 86, 87, 22020096 + 32 * 256)
    g(f"s_lshl_b32 s{sT0}, s{sBR}, 5")
    g(f"s_add_u32 s{sT0}, s{sT0}, s{sB0}")
    g(f"s_lshl_b32 s{sFLG}, s{sT0}, 7")
    g(f"s_add_u32 s{sFLG}, s{sFLG}, 22020096")
    g(f"s_lshl_b32 s{sCNT}, s{sT0}, 1")
    g(f"s_mul_i32 s81, s{sT0}, 43008")
    g(f"v_mov_b32 v2, 0")
    g(f"buffer_load_dword v{vFLAG}, v2, {sr(S_FLG)}, s{sFLG} offen sc1")
    g(f"buffer_load_dword v{vFLAG+1}, v2, {sr(S_FLG)}, s{sFLG} offen offset:128 sc1")
    srd(S_OUT, 100, 101, 2752512) if False else None
    g(f"s_lshl_b32 s82, s{sH0}, 1")
    g(f"s_add_u32 s82, s82, s{sW}")
    for k, (add, lim) in enumerate(((0, 60), (32, 60), (60, 84))):
        ld, st = sLD + k, sSTO + k
        g(f"s_add_u32 s83, s82, {add}")
        g(f"s_mul_i32 s84, s83, 43")
        g(f"s_lshr_b32 s84, s84, 9")
        g(f"s_mul_i32 s85, s84, 12")
        g(f"s_sub_u32 s85, s83, s85")
        g(f"s_cmp_ge_u32 s85, 6")
        g(f"s_cselect_b32 s{sT0}, 1, 0")
        g(f"s_mul_i32 s{sT1}, s{sT0}, 6")
        g(f"s_sub_u32 s85, s85, s{sT1}")
        g(f"s_mul_i32 s{ld}, s84, 6")
        g(f"s_add_u32 s{ld}, s{ld}, s85")
        g(f"s_lshl_b32 s{ld}, s{ld}, 10")
        g(f"s_mul_i32 s{sT1}, s{sT0}, 43008")
        g(f"s_add_u32 s{ld}, s{ld}, s{sT1}")
        g(f"s_add_u32 s{ld}, s{ld}, s81")
        g(f"s_cmp_ge_u32 s85, 3")
        g(f"s_cselect_b32 s{sT1}, 1, 0")
        g(f"s_mul_i32 s{sT2}, s{sT1}, 3")
        g(f"s_sub_u32 s85, s85, s{sT2}")
        g(f"s_lshl_b32 s84, s84, 1")
        g(f"s_add_u32 s84, s84, s{sT1}")
        g(f"s_lshl_b32 s84, s84, 6")
        g(f"s_add_u32 s{sT0}, s{sT0}, s{sB0}")
        g(f"s_mul_i32 s{sT0}, s{sT0}, 3")
        g(f"s_add_u32 s{sT0}, s{sT0}, s85")
        g(f"s_mul_i32 s{st}, s{sT0}, {16*1792}")
        g(f"s_add_u32 s{st}, s{st}, s84")
        g(f"s_mul_i32 s{sT0}, s{sBR}, 896")
        g(f"s_add_u32 s{st}, s{st}, s{sT0}")
        if k:
            g(f"s_cmp_lt_u32 s83, {lim}")
            g(f"s_cselect_b32 s{ld}, s{ld}, {BIG}")
            g(f"s_cselect_b32 s{st}, s{st}, {BIG}")
    g("s_load_dwordx4 s[84:87], s[0:1], 80")
    g.smem_wait()
    srd(S_OUT, 84, 85, 2752512)
    srd(S_DBG, 86, 87, 256)

def wave0(lbl, fn):
    g(f"s_cmp_lg_u32 s{sW}, 0")
    g(f"s_cbranch_scc1 {lbl}")
    n0, vm0, lg0 = g.n, list(g.vm), list(g.lgkm)
    g("s_mov_b64 exec, 1")
    fn()
    g("s_mov_b64 exec, -1")
    g.raw(f"{lbl}:")
    g.n, g.vm, g.lgkm = n0, vm0, lg0

def arrive(which):
    g(f"v_mov_b32 v{vARR}, 1")
    g(f"v_mov_b32 v{vZERO}, 0")
    g(f"buffer_atomic_add v{vARR}, v{vZERO}, {sr(S_DBG)}, s{sCNT} offen offset:{128*which} sc0")

def publish(which, cls, nwait):
    last = (sLASTA, sLASTB)[which]
    g.raw(f"    s_waitcnt vmcnt({nwait})"); g.n += 1
    g(f"v_readfirstlane_b32 s{last}, v{vARR}")
    g(f"s_and_b32 s{last}, s{last}, 7")
    g(f"s_cmp_lg_u32 s{last}, 7")
    g(f"s_cbranch_scc1 L_nl{which}_{cls}")
    g(f"v_add_u32 v{vARR}, 1, v{vFLAG+which}")
    g(f"buffer_store_dword v{vARR}, v{vZERO}, {sr(S_FLG)}, s{sFLG} offen offset:{128*which} sc1")
    g.raw(f"L_nl{which}_{cls}:")

def poll(which, cls):
    last = (sLASTA, sLASTB)[which]
    g(f"s_cmp_eq_u32 s{last}, 7")
    g(f"s_cbranch_scc1 L_got{which}_{cls}")
    g(f"s_mov_b32 s85, 0x40000")
    g(f"v_readfirstlane_b32 s87, v{vFLAG+which}")
    g.raw(f"L_poll{which}_{cls}:")
    g(f"buffer_load_dword v204, v{vZERO}, {sr(S_FLG)}, s{sFLG} offen offset:{128*which} sc1")
    g.raw("    s_waitcnt vmcnt(0)"); g.n += 1; g.vm = []
    g(f"v_readfirstlane_b32 s86, v204")
    g(f"s_cmp_lg_u32 s86, s87")
    g(f"s_cbranch_scc1 L_got{which}_{cls}")
    g(f"s_sleep {OPT['slp']}")
    g(f"s_sub_u32 s85, s85, 1")
    g(f"s_cmp_lg_u32 s85, 0")
    g(f"s_cbranch_scc1 L_poll{which}_{cls}")
    g.raw(f"L_got{which}_{cls}:")

def sum_round(ks):
    for k in ks:
        for p in range(8):
            if p == 0: g(f"s_mov_b32 s{sT0}, s{sLD+k}")
            else: g(f"s_add_u32 s{sT0}, s{sT0}, {64*43008}")
            g(f"buffer_load_dwordx4 {vr((k*8+p)*4)}, v{vSTO}, {sr(S_WS)}, s{sT0} offen sc1")
    for k in ks:
        A, B = 100 + 24 * k, 108 + 24 * k
        for p in range(8):
            for q in range(4):
                src = (k * 8 + p) * 4 + q
                d = A if p == 0 else B
                g(f"v_lshlrev_b32 v{d+2*q}, 16, v{src}")
                g(f"v_and_b32 v{d+2*q+1}, 0xffff0000, v{src}")
            if p:
                for q in range(8):
                    g(f"v_add_f32 v{A+q}, v{A+q}, v{B+q}")
        O = 116 + 24 * k
        for q in range(4):
            g(f"v_cvt_pk_bf16_f32 v{O+q}, v{A+2*q}, v{A+2*q+1}")
        g(f"v_permlane32_swap_b32 v{O}, v{O+2}")
        g(f"v_permlane32_swap_b32 v{O+1}, v{O+3}")
        g(f"v_permlane16_swap_b32 v{O}, v{O+2}")
        g(f"v_permlane16_swap_b32 v{O+1}, v{O+3}")
        g(f"buffer_store_dwordx4 {vr(O)}, v201, {sr(S_OUT)}, s{sSTO+k} offen{FL[OPT['osf']]}")

def fused_reduce(cls):
    g(f"v_lshrrev_b32 v200, 4, v{vSTO}")
    g(f"v_and_b32 v201, 15, v200")
    g(f"v_mul_u32_u24 v201, 1792, v201")
    g(f"v_lshrrev_b32 v200, 4, v200")
    g(f"v_lshl_add_u32 v201, v200, 4, v201")
    g.wait_all()
    g.barrier()
    stamp('stdrain')
    def f():
        arrive(1); publish(1, cls, 0); poll(0, cls)
    wave0(f"L_w1_{cls}", f)
    g.barrier()
    stamp('metA')
    sum_round([0, 1])
    stamp('sumA')
    wave0(f"L_w2_{cls}", lambda: poll(1, cls))
    g.barrier()
    stamp('metB')
    sum_round([2])

CLS = [0, 0]
def body(cls):
    CLS[0] = cls
    KS = [OPT[f'k{u}'] + cls * OPT['kstep'] for u in range(3)]
    TWO0 = OPT['t_wo0'] + cls * OPT['kstep']
    TB = OPT['t_b'] + cls * OPT['kstep']
    V1A = OPT['v1'] + (cls * OPT['vstep']) % 3
    V1B = OPT['v1b'] - 3 + (3 + cls * OPT['vstep']) % 3 + (0 if True else 0)
    V1B = min(V1A + (OPT['v1b'] - OPT['v1']), 18)
    emit_list(x_reads(0))
    def early_touches(R): return touches(R, cls * OPT['kstep'])
    fq.add(x_reads(1) + ([] if OPT['w1pro'] else ring_dma(1)) + ring_dma(2) + early_touches(0))
    x_issue = {1: (2, "R3"), 2: (3, "R4"), 5: (4, "R7"), 6: (5, "R8"), 8: (6, "R10")}
    x_read = {3: 2, 4: 3, 7: 4, 8: 5, 10: 6}
    x_issue = {k: [v] for k, v in x_issue.items()}
    x_read = {k: [v] for k, v in x_read.items()}
    if OPT['xdir']:
        kw = OPT['kw']
        x_issue = {KS[0]: [(2, f"R{KS[0]+kw}"), (3, f"R{KS[0]+kw}")], KS[1]: [(4, f"R{KS[1]+kw}"), (5, f"R{KS[1]+kw}")], KS[2]: [(6, f"R{KS[2]+kw}")]}
        x_read = {KS[0] + kw: [2, 3], KS[1] + kw: [4, 5], KS[2] + kw: [6]}
        assert KS[0] >= 1 and KS[0] + kw <= 4 and KS[1] + kw <= 8 and KS[2] + kw <= 12 and OPT['v0a'] > KS[2] + kw
    k_issue = {KS[u]: u for u in range(3)}
    k_read = {KS[u] + OPT['kw']: u for u in range(3)}
    assert max(k_read) <= 13 and OPT['v0b'] > max(k_read) and OPT['v0a'] >= 11
    for u in range(2): assert KS[u+1] > KS[u] + OPT['kw']
    if 0 in k_issue: fq.add(k_dma(k_issue[0], f"R{OPT['kw']}"))
    def after1(R):
        out = []
        for p in x_read.get(R, []): out += x_reads(p)
        if R in k_read: out += k_reads(k_read[R])
        out += ring_dma(R + 2)
        for a in x_issue.get(R, []): out += x_dma(*a)
        if R in k_issue: out += k_dma(k_issue[R], f"R{R+OPT['kw']}")
        if R == OPT['v0a']: out += v_dma(0, range(7))
        if R == OPT['v0b']: out += v_dma(0, range(7, 12))
        out += early_touches(R)
        return out
    run_stages(q_groups(), after1, lambda R: f"R{R}" if R < 14 else "none", tail_barrier=True)
    stamp('G1end')
    def s_mf(t):
        return [f"v_mfma_f32_16x16x32_bf16 {vr(SACC+(t*3+u)*4)}, {ar(aK+(u*8+s)*4)}, {vr(QFRAG(s,t))}, {vr(SACC+(t*3+u)*4) if s else 0}"
                for s in range(8) for u in range(3)]
    if OPT['spack']:
        vmq = list(fq.q); fq.q = []
        for ins in cvt_pairs(QACC, range(2), 0): g(ins)
        lists = [cvt_pairs(QACC, range(2, 8), 0) + cvt_pairs(QACC, range(8), 1)[:18],
                 cvt_pairs(QACC, range(8), 1)[18:] + cvt_pairs(QACC, range(8), 2),
                 softmax_ops(0)]
        cnt = 0
        for t in range(3):
            fq.add([(i, None) for i in lists[t]])
            third = (len(vmq) + 2 - t) // (3 - t) if t < 2 else len(vmq)
            while third < len(vmq) and not fq.is_vm(vmq[third - 1]): third += 1
            fq.add(vmq[:third]); vmq = vmq[third:]
            for m in s_mf(t):
                fq.guard(m)
                g(m); cnt += 1
                fill_gap(None, cnt % 5 == 0, False)
        rest = [it[0] for it in fq.q if fq.kind(it) in 've']
        fq.q = [it for it in fq.q if fq.kind(it) not in 've']
        fq.drain()
        for ins in merge(rest, softmax_ops(1), softmax_ops(2)): g(ins)
    else:
        def paced(ins_list, every):
            n = 0
            for ins in ins_list:
                g(ins); n += 1
                if n % every == 0:
                    while len(fq) and not fq.is_vm(fq.q[0]): fq.pop()
                    if len(fq): fq.pop()
        paced(cvt_pairs(QACC, range(8), 0), 8)
        def mix(mf, fill):
            o = []; fill = list(fill)
            for m in mf:
                o.append(m)
                for _ in range(2):
                    if fill: o.append(fill.pop(0))
            return o + fill
        paced(mix(s_mf(0), cvt_pairs(QACC, range(8), 1)), 10)
        paced(mix(s_mf(1), cvt_pairs(QACC, range(8), 2)), 10)
        fq.drain()
        sm0 = softmax_ops(0)
        interleave(s_mf(2), sm0[:40])
        for ins in merge(sm0[40:], softmax_ops(1), softmax_ops(2)): g(ins)
    stamp('SM')
    g(f"v_add_u32 v{vPA}, s{sPX}, v{vPW}")
    g(f"v_add_u32 v{vPB}, s{sPY}, v{vPW2}")
    p_write0()
    g.wait_tag(["V0", "R14"], lg=0)
    g.barrier()
    stamp('Pbar')
    for s in range(OPT['vup']):
        for u in range(3): emit_list([v_read(u, s)])
    for s in range(OPT['vup'], 8):
        fq.add([v_read(u, s) for u in range(3)])
    def after2(R):
        out = []
        if R == OPT['p1'] + 1: out += p_readsu2(1) + p_reads32(1)
        if R == 15: out += p_reads32(0) + p_readsu2(0)
        out += ring_dma(R + 2)
        if R == V1A: out += v_dma(1, range(6))
        if R == V1B: out += v_dma(1, range(6, 12))
        out += early_touches(R)
        if R == OPT['p1']: out = p_write1() + out
        return out
    def wt(R):
        return [f"R{R}", "V1"] if R == 20 else f"R{R}"
    run_stages(o_groups(), after2, wt, tail_barrier=False)
    fq.drain()
    stamp('G2end')
    if OPT['fuse']:
        wave0(f"L_wp_{cls}", lambda: publish(0, cls, g.vmtot - CLS[1]))
    emit_list(vw_cvt(27))
    fa, fb = final_groups(27, 27)
    for m in fa['mfmas'] + fb['mfmas']: g(m)
    emit_list(epilogue_ops(6))
    stamp('epi')
    if OPT['fuse']: fused_reduce(cls)
    if OPT['stamps']:
        g.wait_all()
        stamp('drain')
    finish_stamps(cls)

def reduce_kernel():
    global g
    lines = g.lines
    g = Gen(); g.lines = lines
    kernel_open(RED)
    g("s_cmp_ge_u32 s2, 448")
    g("s_cbranch_scc1 L_red_end")
    g("s_load_dwordx2 s[4:5], s[0:1], 80")
    g("s_load_dwordx2 s[6:7], s[0:1], 96")
    g("s_mov_b32 s16, 0x24924925")
    g("s_mul_hi_u32 s17, s2, s16")
    g("s_mul_i32 s18, s17, 7")
    g("s_sub_u32 s18, s2, s18")
    g("s_mul_i32 s19, s17, 43008")
    g("s_mul_i32 s20, s18, 6144")
    g("s_add_u32 s19, s19, s20")
    g("v_lshlrev_b32 v1, 4, v0")
    g("v_lshrrev_b32 v2, 6, v0")
    g("v_and_b32 v3, 63, v0")
    g("v_readfirstlane_b32 s21, v2")
    g("s_cmp_ge_u32 s21, 3")
    g("s_cselect_b32 s22, 1, 0")
    g("s_mul_i32 s23, s22, 3")
    g("s_sub_u32 s23, s21, s23")
    g("s_and_b32 s24, s17, 31")
    g("s_lshr_b32 s25, s17, 5")
    g("s_mul_i32 s24, s24, 48")
    g("s_lshl_b32 s23, s23, 4")
    g("s_add_u32 s24, s24, s23")
    g("s_mul_i32 s24, s24, 1792")
    g("s_mul_i32 s25, s25, 896")
    g("s_add_u32 s24, s24, s25")
    g("s_lshl_b32 s26, s18, 7")
    g("s_add_u32 s24, s24, s26")
    g("s_lshl_b32 s26, s22, 6")
    g("s_add_u32 s24, s24, s26")
    g("v_and_b32 v4, 15, v3")
    g("v_mul_u32_u24 v4, 1792, v4")
    g("v_lshrrev_b32 v5, 4, v3")
    g("v_lshl_add_u32 v4, v5, 4, v4")
    g.smem_wait()
    srd(8, 6, 7, 22020096)
    srd(12, 4, 5, 2752512)
    for p in range(8):
        if p:
            g(f"s_add_u32 s19, s19, {64*43008}")
        g(f"buffer_load_dwordx4 {vr(8+4*p)}, v1, s[8:11], s19 offen{FL[OPT['ldf']]}")
    for p in range(8):
        for k in range(4):
            src = 8 + 4 * p + k
            if p == 0:
                g(f"v_lshlrev_b32 v{40+2*k}, 16, v{src}")
                g(f"v_and_b32 v{41+2*k}, 0xffff0000, v{src}")
            else:
                g(f"v_lshlrev_b32 v{48+2*k}, 16, v{src}")
                g(f"v_and_b32 v{49+2*k}, 0xffff0000, v{src}")
        if p:
            for k in range(8):
                g(f"v_add_f32 v{40+k}, v{40+k}, v{48+k}")
    for k in range(4):
        g(f"v_cvt_pk_bf16_f32 v{56+k}, v{40+2*k}, v{41+2*k}")
    g("v_permlane32_swap_b32 v56, v58")
    g("v_permlane32_swap_b32 v57, v59")
    g("v_permlane16_swap_b32 v56, v58")
    g("v_permlane16_swap_b32 v57, v59")
    g(f"buffer_store_dwordx4 v[56:59], v4, s[12:15], s24 offen{FL[OPT['osf']]}")
    g.raw("L_red_end:")
    g("s_endpgm")
    g.raw("L_text_end:")

def descriptors():
    g.raw('.section .rodata,"a"')
    for name, nv, acc in ((MAIN, 512, 256), (RED, 64, 64))[:1 if OPT['fuse'] else 2]:
        g.raw(".p2align 6")
        g.raw(f".amdhsa_kernel {name}")
        g.raw(f"  .amdhsa_next_free_vgpr {nv}")
        g.raw("  .amdhsa_next_free_sgpr 102")
        g.raw(f"  .amdhsa_accum_offset {acc}")
        g.raw("  .amdhsa_group_segment_fixed_size 0")
        g.raw("  .amdhsa_kernarg_size 104")
        g.raw("  .amdhsa_user_sgpr_count 2")
        g.raw("  .amdhsa_user_sgpr_kernarg_segment_ptr 1")
        g.raw("  .amdhsa_system_sgpr_workgroup_id_x 1")
        g.raw("  .amdhsa_float_denorm_mode_32 3")
        g.raw(".end_amdhsa_kernel")

header()
main_kernel()
st = dict(g.stats)
if not OPT['fuse']: reduce_kernel()
else: g.raw('L_text_end:')
descriptors()
open(sys.argv[1], "w").write(g.text())
print("main stats", st, "forced", fq.forced)
```

```python
import sys, struct, json
from asmgen import Gen, classify

NAME = "concat_heads__mha_block_cached__gqa_block_cached__near_ridge"
MAIN = NAME + "_kernel"
RED = "reduce_partials_kernel"

OPT = dict(bar_group=10, D=7, stamps=0, code_pf=1, touch=1, ntk=1, ntv=1, nttw=0, nttx=0,
           k0=2, k1=7, k2=10, kw=3, t_wo0=9, t_wo1=14, v1=15, v1b=18, p1=17, t_a=0, t_b=5, v0a=13, nc=1, kstep=1, vstep=1, ntfirst=1, pace=1, diag=0, nok=0, nov=0, now=0, nost=0, nox=0, dbg=0, stf=1, ldf=0, osf=0, tlb=0, cpf_first=1, cpf_red=0, cpf2=0, fuse=0, slp=2, t_xa=0, t_xb=4, ret=0, hw=1, nobar=0, lastb=2, w1pro=1, pack=1, ring=8, spack=1, v0b=14, xdir=0, pw=1, arr=10, ic=2, ia=6, ib=8, ie=11, vup=3, t_v1=99, nttv=0, ntv1=1, v1m=0, rnf=1, rwv=6, rdot=0, sta=0, stb=14, w0dir=1, kw0=0, kw1=2, kw2=0, rs=1, ecv=1, svm=4)
FL = ['', ' sc1', ' sc0 sc1', ' nt', ' sc1 nt', ' sc0 sc1 nt']
for a in sys.argv[2:]:
    k, v = a.split('=')
    assert k in OPT, k
    OPT[k] = int(v)
def NT(k): return ' nt' if OPT[k] else ''

SLOT = 32768
VB = 3 * SLOT
XU = 12288
KA = VB + 65536 - 4 * 8320
PB = VB + 49152
LDS_BYTES = 163840
BIG = 0x7ffff000

S_X, S_K, S_V, S_WQ, S_WO, S_WS = 8, 12, 16, 20, 24, 28
sW, sBSEL, sJ, sBR, sH0, sB0, sB = 32, 33, 34, 35, 36, 37, 38
sWQB = 39
sXB, sXM, sKB, sKM, sXO, sKO, sWQO, sWOO, sWOO2, sVO = 40, 41, 42, 43, 44, 45, 46, 47, 48, 49
sM, sVM, sST, sC = 50, 51, 52, 53
sT0, sT1, sT2, sT3 = 54, 55, 56, 57
sVBASE, sWOBASE = 58, 59
sPC = 60
sTWQ = 63
sTV = 62
sHG, sHP, sWI, sTWO, sCLS = 88, 89, 90, 91, 94
S_FLG, sFLG = 4, 95
sPD = 100
sPX, sPY = 3, 61
STB = 64

def QACC(T, t): return (((T // 2) * 3 + t) * 4) + (96 if T & 1 else 0)
def QFRAG(s, t): return (s * 3 + t) * 4
SACC = 192
vWQR = 192
vWQD = 208
vXR = 216
vXD = 218
vKR = 219
vKD = 223
vTWQ = 224
vTXA = 225
vTXB = 226
vT16 = 227
vWOD = 228
vVD = 232
vVR = 233
vWOR = 237
vSTO = 241
vPW = 242
vPW2 = 243
vT32 = 244
vDUM = 245
vFLAG = 252
vZERO = 179
vSM = 246
def VFRAG(u, s): return (u * 8 + s) * 4
vPOWN = 96
vP32 = [114, 126]
vPU2 = 138
vPA, vPB = 162, 163
vVWB = 150
vEP = 96
def VWACC(par, T, u): return 180 + par * 24 + (T * 3 + u) * 4
aFR, aK, aX, XRING, aOUT = 0, 40, 136, 10, 40
def U2(c, T):
    k = c * 2 + T
    return 32 + 4 * k if k < 2 else 208 + 4 * (k - 2)
def OUTACC(c, T, t): return aOUT + ((c * 2 + T) * 3 + t) * 4

def vr(b, n=4): return f"v[{b}:{b+n-1}]"
def ar(b, n=4): return f"a[{b}:{b+n-1}]"
def sr(b, n=4): return f"s[{b}:{b+n-1}]"

g = Gen()
nstamp = 0
vSTAMP = 255
pending = False
names = []
def stamp_flush():
    global pending
    if pending:
        g(f"v_writelane_b32 v{vSTAMP}, s92, {nstamp-1}")
        pending = False
def stamp(name="", real=False, drained=False):
    global nstamp, pending
    if OPT['stamps']:
        if pending:
            if not drained: g.smem_wait()
            stamp_flush()
        g(f"{'s_memrealtime' if real else 's_memtime'} s[92:93]")
        names.append(name); nstamp += 1; pending = True

def header():
    g.raw("; fused attention block: launch 1 computes per-head-pair partial outputs, launch 2 sums them")
    if OPT['fuse']:
        g.raw(f"; @launch grid=(256,1,1) block=(256,1,1) lds={LDS_BYTES}")
    else:
        g.raw(f"; @launch kernel={MAIN} grid=(256,1,1) block=(256,1,1) lds={LDS_BYTES}")
        g.raw(f"; @launch kernel={RED} grid=({2688 // (OPT['rnf'] * OPT['rwv'])},1,1) block=({64 * OPT['rwv']},1,1) lds=0")
    g.raw('.amdgcn_target "amdgcn-amd-amdhsa--gfx950"')
    g.raw(".text")

def kernel_open(name):
    g.raw(f".globl {name}")
    g.raw(".p2align 8")
    g.raw(f".type {name},@function")
    g.raw(f"{name}:")

def srd(dst, lo, hi, nbytes):
    g(f"s_mov_b32 s{dst}, s{lo}")
    g(f"s_and_b32 s{dst+1}, s{hi}, 0xffff")
    g(f"s_mov_b32 s{dst+2}, {nbytes}")
    g(f"s_mov_b32 s{dst+3}, 0x20000")

def wq_dma(R):
    slot = (R % 3) * SLOT
    out = [(f"s_add_u32 s{sWQO}, s{sWQB}, {R*262144}", None)]
    for i in range(8):
        if i % 4 == 0:
            out.append((f"s_add_u32 m0, s{sM}, {slot + (i//4)*4096}", None))
        out.append((f"buffer_load_dwordx4 v{vWQD+i}, {sr(S_WQ)}, s{sWQO} offen offset:{(i%4)*1024} lds", f"R{R}"))
    return out

def wo_dma(R):
    hh, c = divmod(R - 14, 7)
    slot = (R % 3) * SLOT
    out = [(f"s_add_u32 s{sWOO}, s{sWOBASE}, {hh*229376 + c*128}", None),
           (f"s_add_u32 s{sWOO2}, s{sWOBASE}, {hh*229376 + c*128 + 28672}", None)]
    for i in range(8):
        if i % 4 == 0:
            out.append((f"s_add_u32 m0, s{sM}, {slot + (i//4)*4096}", None))
        so = sWOO if i < 4 else sWOO2
        out.append((f"buffer_load_dwordx4 v{vWOD+(i%4)}, {sr(S_WO)}, s{so} offen offset:{(i%4)*1024} lds", f"R{R}"))
    return out

def ring_dma(R):
    if OPT['now'] and R > 2: return []
    if R < 14: return wq_dma(R)
    if R < 28: return wo_dma(R)
    return []

def x_dma(p, tag):
    out = []
    if OPT['nox'] and p > 1: return out
    for k in range(3):
        out.append((f"s_add_u32 s{sXO}, s{sXB}, {p*128 + k*28672}", None))
        out.append((f"s_add_u32 m0, s{sXM}, {(p % 2)*XU + k*4096}", None))
        out.append((f"buffer_load_dwordx4 v{vXD}, {sr(S_X)}, s{sXO} offen{NT('ntfirst') if (p < 2 or OPT['xdir']) else ''} lds", tag))
    return out

def x_reads(p):
    out = []
    for s2 in range(2):
        s = 2 * p + s2
        for t in range(3):
            d = aX + (s % XRING) * 12 + t * 4
            out.append((f"ds_read_b128 {ar(d)}, v{vXR+s2} offset:{(p % 2)*XU + t*2048}", None))
    return out

def k_dma(u, tag):
    out = []
    if OPT['nok']: return out
    for dh in range(2):
        out.append((f"s_add_u32 m0, s{sKM}, {dh*4160}", None))
        for j in range(4):
            out.append((f"s_add_u32 s{sKO}, s{sKB}, {u*8192 + dh*256 + j*(2048-1040)}", None))
            out.append((f"buffer_load_dwordx4 v{vKD}, {sr(S_K)}, s{sKO} offen offset:{j*1040}{NT('ntk')} lds", tag))
    return out

def k_reads(u):
    out = []
    for dh in range(2):
        for s4 in range(4):
            for p in range(2):
                d = aK + (u * 8 + dh * 4 + s4) * 4 + 2 * p
                out.append((f"ds_read_b64 {ar(d,2)}, v{vKR+s4} offset:{dh*4160 + 32*p}", None))
    return out

def v_dma(hh, subs):
    out = []
    if OPT['nov']: return out
    for sub in subs:
        bb, r = divmod(sub, 6); u, dh = divmod(r, 2)
        out.append((f"s_add_u32 s{sVO}, s{sVBASE}, {hh*24576 + bb*393216 + u*8192 + dh*256}", None))
        out.append((f"s_add_u32 m0, s{sVM}, {sub*4096}", None))
        out.append((f"buffer_load_dwordx4 v{vVD}, {sr(S_V)}, s{sVO} offen{NT('ntv') if hh == 0 else NT('ntv1')} lds", f"V{hh}"))
    return out

def v_read(u, s):
    dh, s4 = divmod(s, 4)
    return (f"ds_read_b128 {vr(VFRAG(u,s))}, v{vVR+s4} offset:{(u*2+dh)*4096}", None)

def touch(vaddr, srd_, sbase, add, plain=False):
    key = {S_WQ: 'nttw', S_WO: 'nttw', S_X: 'nttx', S_V: 'nttv'}[srd_]
    if not OPT['touch']: return []
    return [(f"s_add_u32 s{sT1}, s{sbase}, {add}", None),
            (f"buffer_load_dword v{vDUM}, v{vaddr}, {sr(srd_)}, s{sT1} offen{'' if plain else NT(key)}", None, True)]

def touch_table():
    return {'t_a': (vT16, S_WQ, sTWQ, 128 * 8192), 't_xa': (vTXA, S_X, sXB, 256), 't_b': (vTWQ, S_WQ, sTWQ, 256 * 8192),
            't_xb': (vTXB, S_X, sXB, 512), 't_wo0': (vT32, S_WO, sTWO, 0), 't_wo1': (vT32, S_WO, sTWO, 229376)}
def touches(R, shift=0):
    o = []
    for k, a in touch_table().items():
        if OPT['xdir'] and k.startswith('t_x'): continue
        at = OPT[k] + (shift if OPT[k] >= 1 and k != 't_wo1' else 0)
        if at == R: o += touch(*a)
        if OPT['ret'] and max(at, 0) + OPT['ret'] == R: o += touch(*a, plain=True)
    if R == OPT['t_v1']:
        for k in range(3): o += touch(vT32, S_V, sTV, 24576 + 4096 * k)
    return o

class FillQ:
    def __init__(self): self.q = []
    def add(self, items): self.q.extend(items)
    def pop(self):
        it = self.q.pop(0)
        if callable(it): it()
        else: g(it[0], tag=it[1], nodst=(len(it) > 2))
    def __len__(self): return len(self.q)
    def is_vm(self, it):
        return (not callable(it)) and it[0].startswith(('buffer_', 'global_'))
    def nvm(self): return sum(1 for it in self.q if self.is_vm(it))
    def drain(self):
        while self.q: self.pop()
    def drain_mem(self):
        while True:
            idx = [i for i, it in enumerate(self.q) if self.kind(it) not in ('v', 'e')]
            if not idx: return
            j = self.find('mds')
            if j is None: self.pop()
            else: self.pop_at(j)
    def guard(self, text):
        _, _, _, _, rd, wr = classify(text)
        rd = {r for r in rd if r[0] != 's'}; wr = {r for r in wr if r[0] != 's'}
        last = -1
        for i, it in enumerate(self.q):
            if callable(it): continue
            _, _, _, _, frd, fwr = classify(it[0])
            if len(it) > 2: fwr = []
            if (set(fwr) & (rd | wr)) or (set(frd) & wr): last = i
        if last >= 0: self.forced += last + 1
        for _ in range(last + 1): self.pop()
    forced = 0
    def kind(self, it):
        if callable(it): return 'call'
        t = it[0]
        if t.startswith(('buffer_', 'global_')): return 'm'
        if t.startswith('ds_'): return 'd'
        if t.startswith(('v_exp', 'v_rcp', 'v_log', 'v_rsq', 'v_sqrt')): return 'e'
        if t.startswith('v_'): return 'v'
        return 's'
    def find(self, kinds, depth=200):
        seen_r, seen_w = set(), set()
        for i, it in enumerate(self.q[:depth]):
            if callable(it): return None
            k = self.kind(it)
            _, _, _, _, rd_, wr_ = classify(it[0])
            if len(it) > 2: wr_ = []
            rd_, wr_ = set(rd_), set(wr_)
            if k == 's': wr_ = wr_ | {('scc', 0)} if False else wr_
            if k in kinds:
                order_ok = not (k in 'md' and any(self.kind(e) == k for e in self.q[:i]))
                if order_ok and not (wr_ & (seen_r | seen_w)) and not (rd_ & seen_w): return i
            seen_r |= rd_; seen_w |= wr_
        return None
    def pop_at(self, i):
        it = self.q.pop(i)
        g(it[0], tag=it[1], nodst=(len(it) > 2))
fq = FillQ()

def fill_gap(ring_read, vm_due, reserve):
    if len(fq) and callable(fq.q[0]):
        fq.pop(); return False
    if vm_due and not reserve:
        i = fq.find('m')
        if i is not None:
            fq.pop_at(i); return True
    slots = 2 - (1 if reserve else 0)
    if ring_read:
        ring_read(); slots -= 1
    else:
        i = fq.find('d')
        if i is not None:
            fq.pop_at(i); slots -= 1
    while slots > 0:
        i = fq.find('vse' if slots == 2 else 'vs')
        if i is None: break
        slots -= 2 if fq.kind(fq.q[i]) == 'e' else 1
        fq.pop_at(i)
    return False
def emit_list(l):
    for it in l: g(it[0], tag=it[1], nodst=(len(it) > 2))

def run_stages(groups, after_barrier, wait_tags, tail_barrier=None, nreg=4):
    ring = OPT['ring']
    D = min(OPT['D'], ring - 1)
    open_stage = groups[0]['stage']
    pend = []
    fr = 0
    for n, gr in enumerate(groups):
        gr['fr'] = fr
        if gr['reads']:
            d = aFR + (fr % ring) * nreg
            for k, rt in enumerate(gr['reads']):
                pend.append((fr, gr['stage'], rt.format(d=ar(d + 2 * k, 2))))
            fr += 1
    rp = 0
    def can_read(f_cur):
        if rp >= len(pend): return False
        f, st, _ = pend[rp]
        return st <= open_stage and f <= f_cur + D
    while rp < len(pend) and pend[rp][0] < D and pend[rp][1] <= open_stage:
        g(pend[rp][2]); rp += 1
    last_stage = groups[-1]['stage']
    left = [0] * len(groups)
    acc = 0
    for n in range(len(groups) - 1, -1, -1):
        if groups[n].get('idx') == OPT['bar_group']: acc = 0
        acc += len(groups[n]['mfmas'])
        left[n] = acc
    since_vm = 1000
    for n, gr in enumerate(groups):
        f = gr['fr']
        d = aFR + (f % ring) * nreg
        if gr['reads']:
            while rp < len(pend) and pend[rp][0] <= f:
                assert pend[rp][1] <= open_stage
                g(pend[rp][2]); rp += 1
        if gr['reads'] and OPT['hw'] and f % 2 == 0 and any(p[0] == f + 1 for p in pend[:rp]) and sum(1 for p in pend[:rp] if p[0] == f + 1) == 2:
            d2 = aFR + ((f + 1) % ring) * nreg
            g.need([('a', d + i) for i in range(4)] + [('a', d2 + i) for i in range(4)])
        fcur = f if gr['reads'] else f - 1
        R = gr['stage']
        for it in gr.get('pre', []): fq.q.insert(0, it) if False else None
        if gr.get('front'):
            fq.q[0:0] = gr['front']
        for k, mt in enumerate(gr['mfmas']):
            fq.guard(mt.format(a=ar(d)))
            g(mt.format(a=ar(d)))
            since_vm += 1
            rem = left[n] - k - 1
            if OPT['pack']:
                nxt = groups[n+1] if n + 1 < len(groups) else None
                reserve = (k == len(gr['mfmas']) - 1 and nxt is not None and bool(nxt['reads']) and nxt['fr'] % 2 == 0)
                nv = fq.nvm()
                gap = max(1, (rem - 1) // max(1, nv))
                behind = rp < len(pend) and can_read(fcur) and pend[rp][0] <= fcur + OPT['D'] - 3
                vm_due = nv > 0 and since_vm >= min(gap, 6) and not behind
                def rr():
                    nonlocal rp
                    g(pend[rp][2]); rp += 1
                if fill_gap(rr if can_read(fcur) else None, vm_due, reserve): since_vm = 0
                continue
            budget = 2
            if k == len(gr['mfmas']) - 1 and n + 1 < len(groups) and groups[n+1]['reads'] and (groups[n+1]['fr'] % 2 == 0 or not OPT['hw']):
                budget = OPT['lastb']
            while budget:
                if can_read(fcur):
                    g(pend[rp][2]); rp += 1; budget -= 1
                elif len(fq):
                    j = None
                    if fq.is_vm(fq.q[0]) and OPT['pace']:
                        gap = max(1, (rem - 2) // max(1, fq.nvm()))
                        if since_vm >= min(gap, OPT['pace'] * 6): j = 0
                        else:
                            for i, it in enumerate(fq.q):
                                if callable(it): break
                                if fq.is_vm(it) or it[0].startswith('s_'): continue
                                _, _, _, _, rd_, wr_ = classify(it[0])
                                clash = False
                                for e in fq.q[:i]:
                                    _, _, _, _, erd, ewr = classify(e[0])
                                    if (set(erd) | set(ewr)) & set(wr_) or set(ewr) & set(rd_): clash = True
                                if not clash: j = i
                                break
                    else:
                        j = 0
                    if j is None: break
                    if j == 0:
                        if fq.is_vm(fq.q[0]): since_vm = 0
                        fq.pop()
                    else:
                        it = fq.q.pop(j); g(it[0], tag=it[1], nodst=(len(it) > 2))
                    budget -= 1
                else:
                    break
        for it in gr.get('post', []):
            fq.add([it])
        if gr.get('hook'):
            assert not any((not callable(it)) and it[1] == 'ST4' for it in fq.q)
            g.wait_tag("ST4")
            g.barrier()
            wave0("L_w0_%d" % CLS[0], lambda: arrive(0))
            CLS[1] = g.vmtot
        if gr.get('idx') == OPT['bar_group'] and (R < last_stage or tail_barrier):
            while rp < len(pend) and pend[rp][1] <= R:
                g(pend[rp][2]); rp += 1
            fq.drain_mem()
            g.wait_tag(wait_tags(R + 1), lg=0)
            if OPT['stamps'] > 1: g.smem_wait()
            if not OPT['nobar']: g.barrier()
            if OPT['stamps'] > 1: stamp(f"b{R+1}", drained=True)
            open_stage = R + 1
            fq.add(after_barrier(R + 1))

def interleave(mf, fill, per=2):
    fill = list(fill)
    for m in mf:
        g(m)
        for _ in range(per):
            if fill: g(fill.pop(0))
            elif len(fq): fq.pop()
    for f in fill: g(f)

def softmax_ops(t):
    S = [SACC + 12 * t + k for k in range(12)]
    m, x = vSM + 2 * t, vSM + 2 * t + 1
    o = []
    if OPT['rs']:
        for k in range(0, 12, 2):
            r = (m, x)[(k // 2) % 2]
            o.append(f"v_cvt_pk_bf16_f32 v{r}, v{S[k]}, v{S[k+1]}")
            o.append(f"v_lshlrev_b32 v{S[k]}, 16, v{r}")
            o.append(f"v_and_b32 v{S[k+1]}, 0xffff0000, v{r}")
    o.append(f"v_max3_f32 v{m}, v{S[0]}, v{S[1]}, v{S[2]}")
    o.append(f"v_max3_f32 v{x}, v{S[3]}, v{S[4]}, v{S[5]}")
    o.append(f"v_max3_f32 v{m}, v{m}, v{S[6]}, v{S[7]}")
    o.append(f"v_max3_f32 v{x}, v{x}, v{S[8]}, v{S[9]}")
    o.append(f"v_max3_f32 v{m}, v{m}, v{S[10]}, v{S[11]}")
    o.append(f"v_max_f32 v{m}, v{m}, v{x}")
    for sw in ("v_permlane32_swap_b32", "v_permlane16_swap_b32"):
        o.append(f"v_mov_b32 v{x}, v{m}")
        o.append(f"{sw} v{m}, v{x}")
        o.append(f"v_max_f32 v{m}, v{m}, v{x}")
    o.append(f"v_mul_f32 v{m}, s{sC}, v{m}")
    for k in range(12):
        o.append(f"v_fma_f32 v{S[k]}, v{S[k]}, s{sC}, -v{m}")
    for k in range(12):
        o.append(f"v_exp_f32 v{S[k]}, v{S[k]}")
    o.append(f"v_add_f32 v{m}, v{S[0]}, v{S[1]}")
    o.append(f"v_add_f32 v{x}, v{S[2]}, v{S[3]}")
    for k in range(4, 12, 2):
        o.append(f"v_add_f32 v{m}, v{m}, v{S[k]}")
        o.append(f"v_add_f32 v{x}, v{x}, v{S[k+1]}")
    o.append(f"v_add_f32 v{m}, v{m}, v{x}")
    for sw in ("v_permlane32_swap_b32", "v_permlane16_swap_b32"):
        o.append(f"v_mov_b32 v{x}, v{m}")
        o.append(f"{sw} v{m}, v{x}")
        o.append(f"v_add_f32 v{m}, v{m}, v{x}")
    o.append(f"v_rcp_f32 v{m}, v{m}")
    for k in range(12):
        o.append(f"v_mul_f32 v{S[k]}, v{S[k]}, v{m}")
    for k in range(6):
        o.append(f"v_cvt_pk_bf16_f32 v{vPOWN + 6*t + k}, v{S[2*k]}, v{S[2*k+1]}")
    return o

def merge(*lists):
    out = []
    n = max(len(l) for l in lists)
    for i in range(n):
        for l in lists:
            if i < len(l): out.append(l[i])
    return out

def cvt_pairs(acc, s_list, t):
    o = []
    for s in s_list:
        b, b2 = acc(2 * s, t), acc(2 * s + 1, t)
        o.append(f"v_cvt_pk_bf16_f32 v{b}, v{b}, v{b+1}")
        o.append(f"v_cvt_pk_bf16_f32 v{b+1}, v{b+2}, v{b+3}")
        o.append(f"v_cvt_pk_bf16_f32 v{b+2}, v{b2}, v{b2+1}")
        o.append(f"v_cvt_pk_bf16_f32 v{b+3}, v{b2+2}, v{b2+3}")
    return o

def p_write0():
    for t in range(3):
        g(f"ds_write_b128 v{vPA}, {vr(vPOWN+6*t)} offset:{t*1024}")
    g(f"s_mov_b64 exec, s[{sPD}:{sPD+1}]")
    for t in range(3):
        g(f"ds_write_b64 v{vPW2}, {vr(vPOWN+6*t+4,2)} offset:{t*512}")
    g("s_mov_b64 exec, -1")

def p_write1():
    return [(f"ds_write_b64 v{vPB}, {vr(vPOWN+6*t+4,2)} offset:{t*512}", None) for t in range(3)]

def p_reads32(hh):
    return [(f"ds_read_b128 {vr(vP32[hh]+4*t)}, v{vPW} offset:{hh*6144 + t*1024}", None) for t in range(3)]
def p_readsu2(hh):
    return [(f"ds_read_b64 {vr(vPU2+4*t+2*hh,2)}, v{vPW2} offset:{t*512}", None) for t in range(3)]

def q_groups():
    gs = []
    for s in range(14):
        slot = s % 3
        win, base = (1, 0) if slot == 2 else (0, slot * SLOT)
        for T in range(16):
            reads = [f"ds_read_b64_tr_b16 {{d}}, v{vWQR + win*8 + (T & 7)} offset:{base + rd*16384 + (T>>3)*256}" for rd in range(2)]
            mf = []
            for t in range(3):
                acc = vr(QACC(T, t))
                xb = ar(aX + (s % XRING) * 12 + t * 4)
                mf.append(f"v_mfma_f32_16x16x32_bf16 {acc}, {{a}}, {xb}, {acc if s else 0}")
            gr = dict(stage=s, reads=reads, mfmas=mf, idx=T)
            if s == 13 and OPT['ecv'] and T >= 3 and T % 2 == 1:
                gr['post'] = [(i, None) for t in range(3) for i in cvt_pairs(QACC, [(T - 3) // 2], t)]
            gs.append(gr)
    return gs

def vw_cvt(R):
    par = R % 2
    hh, c = divmod(R - 14, 7)
    o = []
    for T in range(2):
        for u in range(3):
            b = VWACC(par, T, u)
            d = vVWB + 4 * T + 2 * u if u < 2 else vVWB + 8 + 2 * T
            o.append((f"v_cvt_pk_bf16_f32 v{d}, v{b}, v{b+1}", None))
            o.append((f"v_cvt_pk_bf16_f32 v{d+1}, v{b+2}, v{b+3}", None))
    for T in range(2):
        for i in range(2):
            o.append((f"v_accvgpr_write_b32 a{U2(c,T)+2*hh+i}, v{vVWB+8+2*T+i}", None))
    return o

def final_groups(R, stage):
    hh, c = divmod(R - 14, 7)
    a, b = [], []
    for T in range(2):
        for t in range(3):
            acc = ar(OUTACC(c, T, t))
            a.append(f"v_mfma_f32_16x16x32_bf16 {acc}, {vr(vVWB+4*T)}, {vr(vP32[hh]+4*t)}, {acc if hh else 0}")
            if hh: b.append(f"v_mfma_f32_16x16x32_bf16 {acc}, {ar(U2(c,T))}, {vr(vPU2+4*t)}, {acc}")
    return dict(stage=stage, reads=[], mfmas=a), dict(stage=stage, reads=[], mfmas=b)

def epilogue_ops(c):
    o = [(f"s_add_u32 s{sT0}, s{sST}, {c*6144}", None)]
    for t in range(3):
        tb = vEP + t * 8
        for T in range(2):
            for r in range(4):
                o.append((f"v_accvgpr_read_b32 v{tb + T*4 + r}, a{OUTACC(c,T,t)+r}", None))
        for k in range(4):
            o.append((f"v_cvt_pk_bf16_f32 v{tb+k}, v{tb+2*k}, v{tb+2*k+1}", None))
        if not OPT['nost']: o.append((f"buffer_store_dwordx4 {vr(tb)}, v{vSTO}, {sr(S_WS)}, s{sT0} offen offset:{t*1024}{FL[OPT['stf']]}", f"ST{c}"))
    return o

def o_groups():
    gs = []
    for R in range(14, 28):
        hh, c = divmod(R - 14, 7)
        slot = R % 3
        win, base = (1, 0) if slot == 2 else (0, slot * SLOT)
        for s in range(8):
            for T in range(2):
                idx = 2 * s + T
                reads = [f"ds_read_b64_tr_b16 {{d}}, v{vWOR + win*2 + T} offset:{base + s*4096 + rd*2048}" for rd in range(2)]
                mf = []
                for u in range(3):
                    acc = vr(VWACC(R % 2, T, u))
                    mf.append(f"v_mfma_f32_16x16x32_bf16 {acc}, {vr(VFRAG(u,s))}, {{a}}, {acc if s else 0}")
                gr = dict(stage=R, reads=reads, mfmas=mf, idx=idx)
                if R > 14 and idx == OPT['ic']: gr['front'] = vw_cvt(R - 1)
                if R == 20 and T == 1:
                    gr['post'] = [v_read(u, s) for u in range(3)]
                gs.append(gr)
                if R > 14 and idx == OPT['ia']: gs.append(final_groups(R - 1, R)[0])
                if R > 14 and idx == OPT['ib']:
                    gb = final_groups(R - 1, R)[1]
                    if gb['mfmas']: gs.append(gb)
                if R > 21 and idx == OPT['ie']: gs[-1]['post'] = epilogue_ops(R - 22)
                if R == 27 and idx == OPT['arr'] and OPT['fuse']: gs[-1]['hook'] = True
    return gs

def finish_stamps(cls):
    if OPT['stamps']:
        stamp("real_end", real=True)
        g.smem_wait(); stamp_flush()
        g(f"v_writelane_b32 v{vSTAMP}, s98, 62")
        g(f"v_writelane_b32 v{vSTAMP}, s96, 63")
        g(f"s_lshl_b32 s{sT0}, s2, 2")
        g(f"s_add_u32 s{sT0}, s{sT0}, s{sW}")
        g(f"s_lshl_b32 s{sT0}, s{sT0}, 8")
        g(f"s_add_u32 s{sT0}, s{sT0}, {24<<20}")
        g(f"s_mov_b32 s{S_WS+2}, 0x10000000")
        g(f"v_lshrrev_b32 v1, 2, v{vSTO}")
        if OPT['dbg']:
            g(f"s_cmp_lg_u32 s2, {OPT['dbg']}")
            g(f"s_cbranch_scc1 L_nodbg_{cls}")
            g(f"s_cmp_lg_u32 s{sW}, 1")
            g(f"s_cbranch_scc1 L_nodbg_{cls}")
            g(f"v_subrev_u32 v2, s98, v{vSTAMP}")
            g(f"s_mov_b64 exec, 0xffff")
            g(f"buffer_store_dword v2, v1, {sr(S_K)}, 0 offen")
            g.raw(f"L_nodbg_{cls}:")
        else:
            g(f"buffer_store_dword v{vSTAMP}, v1, {sr(S_WS)}, s{sT0} offen")
        json.dump(names, open(sys.argv[1] + ".names", "w"))
    g("s_endpgm")

def main_kernel():
    kernel_open(MAIN)
    g(f"s_cmp_ge_u32 s2, 256")
    g(f"s_cbranch_scc1 L_main_end")
    if OPT['stamps']:
        g("s_memrealtime s[96:97]")
        g("s_memtime s[98:99]")
    if OPT['cpf_first']:
        g(f"s_getpc_b64 s[{sPC}:{sPC+1}]")
        g.raw("L_pc0:")
        g(f"s_lshr_b32 s{sT0}, s2, 3")
        g(f"s_lshl_b32 s{sT0}, s{sT0}, 12")
        g(f"v_lshl_add_u32 v2, v0, 4, s{sT0}")
        g(f"v_min_u32 v2, (L_{'text' if OPT['cpf_red'] else 'main'}_end-L_pc0)/16*16-16, v2")
        g(f"global_load_dword v{vDUM}, v2, s[{sPC}:{sPC+1}]", nodst=True)
    g("s_load_dwordx8 s[64:71], s[0:1], 0")
    g("s_load_dwordx2 s[72:73], s[0:1], 32")
    g("s_load_dwordx8 s[76:83], s[0:1], 40")
    g("s_load_dwordx2 s[84:85], s[0:1], 72")
    g("s_load_dwordx2 s[86:87], s[0:1], 96")
    g(f"s_getpc_b64 s[{sPC}:{sPC+1}]")
    g.raw("L_pc:")
    L = 1
    t0, t1, t2, t3, t4, t5 = 2, 3, 4, 5, 6, 7
    g(f"v_lshrrev_b32 v{t0}, 6, v0")
    g(f"v_and_b32 v{L}, 63, v0")
    g(f"v_readfirstlane_b32 s{sW}, v{t0}")
    g(f"s_and_b32 s{sT0}, s2, 7")
    g(f"s_lshr_b32 s{sT1}, s2, 3")
    g(f"s_lshr_b32 s{sBR}, s{sT0}, 2")
    g(f"s_and_b32 s{sHG}, s{sT0}, 3")
    g(f"s_lshl_b32 s{sT0}, s{sHG}, 2")
    g(f"s_and_b32 s{sHP}, s{sT1}, 1")
    g(f"s_lshl_b32 s{sT2}, s{sHP}, 1")
    g(f"s_add_u32 s{sH0}, s{sT0}, s{sT2}")
    g(f"s_lshr_b32 s{sB0}, s{sT1}, 1")
    if OPT['nc'] == 3:
        g(f"s_mul_i32 s{sCLS}, s{sB0}, 11")
        g(f"s_lshr_b32 s{sCLS}, s{sCLS}, 5")
        g(f"s_mul_i32 s{sCLS}, s{sCLS}, 3")
        g(f"s_sub_u32 s{sCLS}, s{sB0}, s{sCLS}")
    else:
        g(f"s_and_b32 s{sCLS}, s{sB0}, {OPT['nc']-1}")
    g(f"s_lshl_b32 s{sB0}, s{sB0}, 1")
    g(f"s_lshl_b32 s{sWI}, s{sT1}, 2")
    g(f"s_add_u32 s{sWI}, s{sWI}, s{sW}")
    g(f"s_and_b32 s{sBSEL}, s{sW}, 1")
    g(f"s_lshr_b32 s{sJ}, s{sW}, 1")
    g(f"s_add_u32 s{sB}, s{sB0}, s{sBSEL}")
    g(f"s_lshl_b32 s{sM}, s{sW}, 13")
    g(f"s_lshl_b32 s{sVM}, s{sW}, 10")
    g(f"s_add_u32 s{sVM}, s{sVM}, {VB}")
    g(f"s_mov_b32 s{sXM}, s{sVM}")
    g(f"s_lshl_b32 s{sWQB}, s{sH0}, 9")
    g(f"s_mul_i32 s{sXB}, s{sB0}, 43008")
    g(f"s_lshl_b32 s{sT0}, s{sBSEL}, 4")
    g(f"s_lshl_b32 s{sT1}, s{sJ}, 2")
    g(f"s_add_u32 s{sT0}, s{sT0}, s{sT1}")
    g(f"s_lshl_b32 s{sT0}, s{sT0}, 13")
    g(f"v_lshlrev_b32 v{vSTO}, 4, v{L}")
    g(f"v_add_u32 v{t1}, s{sT0}, v{vSTO}")
    for i in range(8):
        const = (8 * (i >> 2) + (i & 3)) * 8192 - (i & 3) * 1024
        g(f"v_xor_b32 v{t0}, {32*i}, v{t1}")
        g(f"v_add_u32 v{vWQD+i}, {const}, v{t0}")
    g(f"v_lshrrev_b32 v{t0}, 3, v{L}")
    g(f"v_mul_u32_u24 v{t0}, 896, v{t0}")
    g(f"v_lshrrev_b32 v{t1}, 4, v{L}")
    g(f"s_lshl_b32 s{sT0}, s{sBSEL}, 2")
    g(f"v_add_u32 v{t1}, s{sT0}, v{t1}")
    g(f"v_and_b32 v{t2}, 7, v{L}")
    g(f"v_xor_b32 v{t1}, v{t1}, v{t2}")
    g(f"v_lshl_add_u32 v{t0}, v{t1}, 4, v{t0}")
    g(f"s_mul_i32 s{sT0}, s{sW}, 7168")
    g(f"v_add_u32 v{vXD}, s{sT0}, v{t0}")
    g(f"v_and_b32 v{t0}, 15, v{L}")
    g(f"v_lshrrev_b32 v{t1}, 4, v{L}")
    g(f"v_mov_b32 v{t5}, {BIG}")
    g(f"v_lshlrev_b32 v{t2}, 7, v{t0}")
    g(f"v_cmp_gt_u32 vcc, 16, v{L}")
    g(f"s_lshl_b32 s{sTWQ}, s{sWI}, 13")
    g(f"s_lshl_b32 s{sT0}, s{sHG}, 11")
    g(f"v_cndmask_b32 v9, v{t5}, v{t2}, vcc")
    g(f"s_add_u32 s{sTWQ}, s{sTWQ}, s{sT0}")
    g(f"v_lshl_add_u32 v{t2}, v{t1}, 20, v{t2}")
    g(f"v_cmp_gt_u32 vcc, 32, v{L}")
    g(f"s_lshl_b32 s{sT0}, s{sHP}, 2")
    g(f"s_add_u32 s{sT0}, s{sT0}, s{sW}")
    g(f"v_cndmask_b32 v{vTWQ}, v{t5}, v{t2}, vcc")
    g(f"s_mul_i32 s{sT1}, s{sT0}, 24")
    g(f"s_mul_i32 s{sT2}, s{sT0}, 36")
    g(f"v_add_u32 v{t2}, s{sT1}, v{L}")
    g(f"v_lshrrev_b32 v{t3}, 1, v{t2}")
    g(f"v_mul_u32_u24 v{t3}, 896, v{t3}")
    g(f"v_and_b32 v{t2}, 1, v{t2}")
    g(f"v_lshl_add_u32 v{t2}, v{t2}, 7, v{t3}")
    g(f"v_cmp_gt_u32 vcc, 24, v{L}")
    g(f"v_add_u32 v{t3}, s{sT2}, v{L}")
    g(f"v_mul_u32_u24 v{t4}, 21846, v{t3}")
    g(f"v_cndmask_b32 v{vTXA}, v{t5}, v{t2}, vcc")
    g(f"v_lshrrev_b32 v{t4}, 16, v{t4}")
    g(f"v_mul_u32_u24 v{t2}, 3, v{t4}")
    g(f"v_sub_u32 v{t3}, v{t3}, v{t2}")
    g(f"v_mul_u32_u24 v{t4}, 896, v{t4}")
    g(f"v_lshl_add_u32 v{t3}, v{t3}, 7, v{t4}")
    g(f"v_cmp_gt_u32 vcc, 36, v{L}")
    g(f"s_nop 1")
    g(f"v_cndmask_b32 v{vTXB}, v{t5}, v{t3}, vcc")
    g.smem_wait()
    g(f"s_cmp_eq_u32 s{sBR}, 0")
    for k in (0, 3, 1, 2, 4):
        g(f"s_cselect_b64 s[{64+2*k}:{65+2*k}], s[{64+2*k}:{65+2*k}], s[{76+2*k}:{77+2*k}]")
    srd(S_X, 64, 65, 1376256)
    srd(S_WQ, 70, 71, 3670016)
    if OPT['w0dir'] == 1:
        emit_list(x_dma(0, "R0")); emit_list(ring_dma(0))
    emit_list(touch(9, S_WQ, sTWQ, 0))
    if OPT['w0dir'] == 2:
        emit_list(x_dma(0, "R0")); emit_list(ring_dma(0))
    if OPT['code_pf'] and not OPT['cpf_first']:
        g(f"s_min_u32 s{sT0}, s{sWI}, (L_main_end-L_pc)/1024-1")
        g(f"s_lshl_b32 s{sT0}, s{sT0}, 10")
        g(f"v_add_u32 v{t2}, s{sT0}, v{vSTO}")
        g(f"global_load_dword v{vDUM}, v{t2}, s[{sPC}:{sPC+1}]", nodst=True)
    if not OPT['w0dir']: emit_list(x_dma(0, "R0"))
    emit_list(x_dma(1, "R1" if OPT['w0dir'] else "R0"))
    g(f"v_mov_b32 v{vT16}, v9")
    sl = []
    if OPT['sta']:
        g(f"s_add_u32 s{sT0}, s{sTWQ}, {128*8192}")
        g(f"s_add_u32 s76, s70, s{sT0}")
        g(f"s_addc_u32 s77, s71, 0")
        g(f"s_lshl_b32 s{sT0}, s{sHP}, 2")
        g(f"s_add_u32 s{sT0}, s{sT0}, s{sW}")
        g(f"s_mul_i32 s{sT0}, s{sT0}, {12*896}")
        g(f"s_add_u32 s{sT0}, s{sT0}, s{sXB}")
        g(f"s_add_u32 s78, s64, s{sT0}")
        g(f"s_addc_u32 s79, s65, 0")
        sl = [f"s_load_dword s80, s[76:77], {k*128}" for k in range(16)]
        sl += [f"s_load_dword s80, s[78:79], {r*896 + 256 + c*128}" for r in range(12) for c in range(2)]
        sl = sl[:OPT['sta']]
        for i in sl[:OPT['stb']]: g(i)
        sl = sl[OPT['stb']:]
    g(f"v_lshrrev_b32 v{t2}, 1, v{t0}")
    g(f"v_xor_b32 v{t2}, v{t2}, v{t1}")
    g(f"v_lshlrev_b32 v{t2}, 4, v{t2}")
    g(f"v_lshl_add_u32 v{t2}, v{t0}, 7, v{t2}")
    g(f"s_mul_i32 s{sT0}, s{sBSEL}, 6144")
    g(f"s_add_u32 s{sT0}, s{sT0}, {VB}")
    g(f"v_add_u32 v{vXR}, s{sT0}, v{t2}")
    g(f"v_xor_b32 v{vXR+1}, 64, v{vXR}")
    g(f"v_lshlrev_b32 v{t2}, 7, v{L}")
    g(f"v_cmp_gt_u32 vcc, 32, v{L}")
    srd(S_K, 66, 67, 12582912)
    g(f"v_cndmask_b32 v{vT32}, v{t5}, v{t2}, vcc")
    srd(S_V, 68, 69, 12582912)
    srd(S_WO, 72, 73, 3670016)
    srd(S_WS, 86, 87, 22020096)
    u0, u1, u2 = 10, 11, 12
    g(f"v_lshrrev_b32 v{u0}, 2, v{L}")
    g(f"v_and_b32 v{u1}, 7, v{u0}")
    g(f"v_and_b32 v{u2}, 3, v{L}")
    g(f"v_lshlrev_b32 v{u2}, 3, v{u2}")
    g(f"s_lshl_b32 s{sT0}, s{sJ}, 9")
    g(f"v_lshl_add_u32 v{t3}, v{u0}, 10, v{u2}")
    g(f"v_add_u32 v{t3}, s{sT0}, v{t3}")
    for T in range(8):
        g(f"v_xor_b32 v{t4}, {T}, v{u1}")
        g(f"v_lshl_add_u32 v{vWQR+T}, v{t4}, 5, v{t3}")
        g(f"v_add_u32 v{vWQR+8+T}, 0x10000, v{vWQR+T}")
    g(f"s_lshl_b32 s{sT0}, s{sB}, 4")
    g(f"s_add_u32 s{sT0}, s{sT0}, s{sH0}")
    g(f"s_add_u32 s{sT0}, s{sT0}, s{sJ}")
    g(f"s_mul_i32 s{sKB}, s{sT0}, 24576")
    g(f"s_mul_i32 s{sKM}, s{sW}, 8320")
    g(f"s_add_u32 s{sKM}, s{sKM}, {KA}")
    g(f"v_lshlrev_b32 v{t2}, 2, v{t1}")
    g(f"v_xor_b32 v{t2}, v{t2}, v{t0}")
    g(f"v_lshlrev_b32 v{t2}, 4, v{t2}")
    g(f"v_lshl_add_u32 v{vKD}, v{t1}, 9, v{t2}")
    g(f"v_lshrrev_b32 v{t2}, 2, v{t0}")
    g(f"v_mul_u32_u24 v{t2}, 1040, v{t2}")
    g(f"v_and_b32 v{t3}, 3, v{t0}")
    g(f"v_lshl_add_u32 v{t2}, v{t3}, 8, v{t2}")
    g(f"v_lshl_add_u32 v{t2}, v{t1}, 3, v{t2}")
    g(f"v_add_u32 v{t2}, s{sKM}, v{t2}")
    for s4 in range(4):
        g(f"v_xor_b32 v{t4}, {s4}, v{t3}")
        g(f"v_lshl_add_u32 v{vKR+s4}, v{t4}, 6, v{t2}")
    g(f"s_mul_i32 s{sWOBASE}, s{sH0}, 229376")
    g(f"s_lshl_b32 s{sT0}, s{sB0}, 4")
    g(f"s_add_u32 s{sT0}, s{sT0}, s{sH0}")
    g(f"s_mul_i32 s{sVBASE}, s{sT0}, 24576")
    g(f"s_mul_i32 s{sT0}, s{sJ}, 393216")
    g(f"s_mul_i32 s{sT1}, s{sBSEL}, 12288")
    g(f"s_add_u32 s{sTV}, s{sVBASE}, s{sT0}")
    g(f"s_add_u32 s{sTV}, s{sTV}, s{sT1}")
    g(f"s_add_u32 s{sT0}, s{sH0}, s{sBR}")
    g(f"s_lshl_b32 s{sT0}, s{sT0}, 5")
    g(f"s_add_u32 s{sT0}, s{sT0}, s{sB}")
    g(f"s_mul_i32 s{sST}, s{sT0}, 43008")
    g(f"s_mul_i32 s{sT0}, s{sJ}, 3072")
    g(f"s_add_u32 s{sST}, s{sST}, s{sT0}")
    g(f"s_mov_b32 s{sC}, 0x{struct.unpack('<I', struct.pack('<f', 1.4426950408889634/16.0))[0]:08x}")
    g(f"s_lshr_b32 s{sT0}, s{sWI}, 6")
    g(f"s_lshl_b32 s{sT1}, s{sHG}, 1")
    g(f"s_add_u32 s{sT0}, s{sT0}, s{sT1}")
    g(f"s_mul_i32 s{sTWO}, s{sT0}, 458752")
    g(f"s_and_b32 s{sT0}, s{sWI}, 63")
    g(f"s_mul_i32 s{sT0}, s{sT0}, 3584")
    g(f"s_add_u32 s{sTWO}, s{sTWO}, s{sT0}")
    g(f"s_mul_i32 s{sT0}, s{sBSEL}, 24576")
    g(f"s_add_u32 s{sT0}, s{sT0}, {VB}")
    g(f"v_xor_b32 v{t3}, v{t1}, v{t0}")
    g(f"v_lshlrev_b32 v{t3}, 4, v{t3}")
    g(f"v_lshl_add_u32 v{t3}, v{t0}, 8, v{t3}")
    g(f"v_add_u32 v{vVR}, s{sT0}, v{t3}")
    for s4 in range(1, 4):
        g(f"v_xor_b32 v{vVR+s4}, {64*s4}, v{vVR}")
    g(f"s_lshl_b32 s{sT0}, s{sW}, 2")
    g(f"v_add_u32 v{t3}, s{sT0}, v{t1}")
    g(f"v_xor_b32 v{t3}, v{t3}, v{t0}")
    g(f"v_lshlrev_b32 v{t3}, 4, v{t3}")
    g(f"v_lshl_add_u32 v{t3}, v{t1}, 9, v{t3}")
    g(f"s_lshl_b32 s{sT0}, s{sW}, 11")
    g(f"v_add_u32 v{vVD}, s{sT0}, v{t3}")
    g(f"v_lshl_add_u32 v{t3}, v{u0}, 7, v{u2}")
    g(f"v_bfe_u32 v{t2}, v{L}, 3, 2")
    g(f"s_lshl_b32 s{sT0}, s{sJ}, 1")
    for T in range(2):
        g(f"s_add_u32 s{sT3}, s{sT0}, {T}")
        g(f"v_xor_b32 v{t4}, s{sT3}, v{t2}")
        g(f"v_lshl_add_u32 v{vWOR+T}, v{t4}, 5, v{t3}")
        g(f"v_add_u32 v{vWOR+2+T}, 0x10000, v{vWOR+T}")
    g(f"v_lshrrev_b32 v{t3}, 5, v{L}")
    g(f"v_lshl_add_u32 v{t2}, v{t3}, 3, v{t2}")
    g(f"v_mul_u32_u24 v{t2}, 896, v{t2}")
    g(f"v_lshlrev_b32 v{t3}, 1, v{t1}")
    g(f"v_and_b32 v{t4}, 7, v{L}")
    g(f"v_xor_b32 v{t3}, v{t3}, v{t4}")
    g(f"v_lshl_add_u32 v{t2}, v{t3}, 4, v{t2}")
    g(f"s_mul_i32 s{sT0}, s{sW}, 57344")
    g(f"v_add_u32 v{vWOD}, s{sT0}, v{t2}")
    for k in range(1, 4):
        g(f"v_add_u32 v{vWOD+k}, {(16*(k&1) + 4*(k>>1))*896 - k*1024}, v{vWOD}")
    g(f"s_mul_i32 s{sT0}, s{sBSEL}, 3072")
    g(f"s_add_u32 s{sT0}, s{sT0}, {PB}")
    g(f"v_add_u32 v{vPW}, s{sT0}, v{vSTO}")
    g(f"s_mul_i32 s{sT1}, s{sBSEL}, 1536")
    g(f"s_add_u32 s{sT1}, s{sT1}, {PB + 12288}")
    g(f"v_lshl_add_u32 v{vPW2}, v{L}, 3, s{sT1}")
    g(f"s_mul_i32 s{sPX}, s{sJ}, 6144")
    g(f"s_cmp_eq_u32 s{sJ}, 0")
    g(f"s_cselect_b64 s[{sPD}:{sPD+1}], -1, 0")
    g(f"s_sub_u32 s{sT0}, s{sT0}, s{sT1}")
    g(f"s_cmp_eq_u32 s{sJ}, 0")
    g(f"s_cselect_b32 s{sPY}, s{sT0}, 0")
    if OPT['tlb']:
        g(f"v_and_b32 v{t2}, 1, v{L}")
        g(f"v_mul_u32_u24 v{t2}, 393216, v{t2}")
        g(f"v_lshrrev_b32 v{t3}, 1, v{L}")
        g(f"v_mul_u32_u24 v{t3}, 49024, v{t3}")
        g(f"v_add_u32 v{t2}, v{t2}, v{t3}")
        g(f"v_cmp_gt_u32 vcc, 4, v{L}")
        g(f"v_lshlrev_b32 v{t3}, 17, v{L}")
        g(f"v_mul_u32_u24 v{t4}, 39808, v{L}")
        g(f"v_cndmask_b32 v{t2}, v{t5}, v{t2}, vcc")
        g(f"v_cndmask_b32 v{t3}, v{t5}, v{t3}, vcc")
        g(f"v_cmp_gt_u32 vcc, 2, v{L}")
        g(f"buffer_load_dword v{vDUM}, v{t2}, {sr(S_K)}, s{sVBASE} offen nt", nodst=True)
        g(f"v_cndmask_b32 v{t4}, v{t5}, v{t4}, vcc")
        g(f"buffer_load_dword v{vDUM}, v{t2}, {sr(S_V)}, s{sVBASE} offen nt", nodst=True)
        g(f"buffer_load_dword v{vDUM}, v{t3}, {sr(S_WO)}, s{sWOBASE} offen", nodst=True)
        g(f"buffer_load_dword v{vDUM}, v{t4}, {sr(S_WS)}, s{sST} offen nt", nodst=True)
    while sl:
        g.smem_wait()
        for i in sl[:OPT['stb']]: g(i)
        sl = sl[OPT['stb']:]
    emit_list(touches(-1))
    if not OPT['w0dir']: emit_list(ring_dma(0))
    if OPT['w1pro']: emit_list(ring_dma(1))
    if OPT['fuse']: fuse_setup()
    stamp('pro')
    if OPT['sta']: g.smem_wait()
    g.wait_tag("R0")
    g.barrier()
    stamp('b0')
    import copy
    NC = OPT['nc']
    for cls in range(1, NC):
        g(f"s_cmp_eq_u32 s{sCLS}, {cls}")
        g(f"s_cbranch_scc1 L_body_{cls}")
    saved = copy.deepcopy({k: v for k, v in g.__dict__.items() if k != 'lines'})
    st0 = (nstamp, pending, list(names))
    for cls in range(NC):
        for k, v in copy.deepcopy(saved).items(): setattr(g, k, v)
        globals().update(nstamp=st0[0], pending=st0[1], names=list(st0[2]))
        if cls: g.raw(".p2align 6"); g.raw(f"L_body_{cls}:")
        body(cls)
    g.raw("L_main_end:")
    g("s_endpgm")

S_OUT, S_DBG = 64, 68
sLD, sSTO, sCNT, sLASTA, sLASTB = 72, 75, 78, 79, 80
vARR = 254
def fuse_setup():
    srd(S_FLG, 86, 87, 22020096 + 32 * 256)
    g(f"s_lshl_b32 s{sT0}, s{sBR}, 5")
    g(f"s_add_u32 s{sT0}, s{sT0}, s{sB0}")
    g(f"s_lshl_b32 s{sFLG}, s{sT0}, 7")
    g(f"s_add_u32 s{sFLG}, s{sFLG}, 22020096")
    g(f"s_lshl_b32 s{sCNT}, s{sT0}, 1")
    g(f"s_mul_i32 s81, s{sT0}, 43008")
    g(f"v_mov_b32 v2, 0")
    g(f"buffer_load_dword v{vFLAG}, v2, {sr(S_FLG)}, s{sFLG} offen sc1")
    g(f"buffer_load_dword v{vFLAG+1}, v2, {sr(S_FLG)}, s{sFLG} offen offset:128 sc1")
    srd(S_OUT, 100, 101, 2752512) if False else None
    g(f"s_lshl_b32 s82, s{sH0}, 1")
    g(f"s_add_u32 s82, s82, s{sW}")
    for k, (add, lim) in enumerate(((0, 60), (32, 60), (60, 84))):
        ld, st = sLD + k, sSTO + k
        g(f"s_add_u32 s83, s82, {add}")
        g(f"s_mul_i32 s84, s83, 43")
        g(f"s_lshr_b32 s84, s84, 9")
        g(f"s_mul_i32 s85, s84, 12")
        g(f"s_sub_u32 s85, s83, s85")
        g(f"s_cmp_ge_u32 s85, 6")
        g(f"s_cselect_b32 s{sT0}, 1, 0")
        g(f"s_mul_i32 s{sT1}, s{sT0}, 6")
        g(f"s_sub_u32 s85, s85, s{sT1}")
        g(f"s_mul_i32 s{ld}, s84, 6")
        g(f"s_add_u32 s{ld}, s{ld}, s85")
        g(f"s_lshl_b32 s{ld}, s{ld}, 10")
        g(f"s_mul_i32 s{sT1}, s{sT0}, 43008")
        g(f"s_add_u32 s{ld}, s{ld}, s{sT1}")
        g(f"s_add_u32 s{ld}, s{ld}, s81")
        g(f"s_cmp_ge_u32 s85, 3")
        g(f"s_cselect_b32 s{sT1}, 1, 0")
        g(f"s_mul_i32 s{sT2}, s{sT1}, 3")
        g(f"s_sub_u32 s85, s85, s{sT2}")
        g(f"s_lshl_b32 s84, s84, 1")
        g(f"s_add_u32 s84, s84, s{sT1}")
        g(f"s_lshl_b32 s84, s84, 6")
        g(f"s_add_u32 s{sT0}, s{sT0}, s{sB0}")
        g(f"s_mul_i32 s{sT0}, s{sT0}, 3")
        g(f"s_add_u32 s{sT0}, s{sT0}, s85")
        g(f"s_mul_i32 s{st}, s{sT0}, {16*1792}")
        g(f"s_add_u32 s{st}, s{st}, s84")
        g(f"s_mul_i32 s{sT0}, s{sBR}, 896")
        g(f"s_add_u32 s{st}, s{st}, s{sT0}")
        if k:
            g(f"s_cmp_lt_u32 s83, {lim}")
            g(f"s_cselect_b32 s{ld}, s{ld}, {BIG}")
            g(f"s_cselect_b32 s{st}, s{st}, {BIG}")
    g("s_load_dwordx4 s[84:87], s[0:1], 80")
    g.smem_wait()
    srd(S_OUT, 84, 85, 2752512)
    srd(S_DBG, 86, 87, 256)

def wave0(lbl, fn):
    g(f"s_cmp_lg_u32 s{sW}, 0")
    g(f"s_cbranch_scc1 {lbl}")
    n0, vm0, lg0 = g.n, list(g.vm), list(g.lgkm)
    g("s_mov_b64 exec, 1")
    fn()
    g("s_mov_b64 exec, -1")
    g.raw(f"{lbl}:")
    g.n, g.vm, g.lgkm = n0, vm0, lg0

def arrive(which):
    g(f"v_mov_b32 v{vARR}, 1")
    g(f"v_mov_b32 v{vZERO}, 0")
    g(f"buffer_atomic_add v{vARR}, v{vZERO}, {sr(S_DBG)}, s{sCNT} offen offset:{128*which} sc0")

def publish(which, cls, nwait):
    last = (sLASTA, sLASTB)[which]
    g.raw(f"    s_waitcnt vmcnt({nwait})"); g.n += 1
    g(f"v_readfirstlane_b32 s{last}, v{vARR}")
    g(f"s_and_b32 s{last}, s{last}, 7")
    g(f"s_cmp_lg_u32 s{last}, 7")
    g(f"s_cbranch_scc1 L_nl{which}_{cls}")
    g(f"v_add_u32 v{vARR}, 1, v{vFLAG+which}")
    g(f"buffer_store_dword v{vARR}, v{vZERO}, {sr(S_FLG)}, s{sFLG} offen offset:{128*which} sc1")
    g.raw(f"L_nl{which}_{cls}:")

def poll(which, cls):
    last = (sLASTA, sLASTB)[which]
    g(f"s_cmp_eq_u32 s{last}, 7")
    g(f"s_cbranch_scc1 L_got{which}_{cls}")
    g(f"s_mov_b32 s85, 0x40000")
    g(f"v_readfirstlane_b32 s87, v{vFLAG+which}")
    g.raw(f"L_poll{which}_{cls}:")
    g(f"buffer_load_dword v204, v{vZERO}, {sr(S_FLG)}, s{sFLG} offen offset:{128*which} sc1")
    g.raw("    s_waitcnt vmcnt(0)"); g.n += 1; g.vm = []
    g(f"v_readfirstlane_b32 s86, v204")
    g(f"s_cmp_lg_u32 s86, s87")
    g(f"s_cbranch_scc1 L_got{which}_{cls}")
    g(f"s_sleep {OPT['slp']}")
    g(f"s_sub_u32 s85, s85, 1")
    g(f"s_cmp_lg_u32 s85, 0")
    g(f"s_cbranch_scc1 L_poll{which}_{cls}")
    g.raw(f"L_got{which}_{cls}:")

def sum_round(ks):
    for k in ks:
        for p in range(8):
            if p == 0: g(f"s_mov_b32 s{sT0}, s{sLD+k}")
            else: g(f"s_add_u32 s{sT0}, s{sT0}, {64*43008}")
            g(f"buffer_load_dwordx4 {vr((k*8+p)*4)}, v{vSTO}, {sr(S_WS)}, s{sT0} offen sc1")
    for k in ks:
        A, B = 100 + 24 * k, 108 + 24 * k
        for p in range(8):
            for q in range(4):
                src = (k * 8 + p) * 4 + q
                d = A if p == 0 else B
                g(f"v_lshlrev_b32 v{d+2*q}, 16, v{src}")
                g(f"v_and_b32 v{d+2*q+1}, 0xffff0000, v{src}")
            if p:
                for q in range(8):
                    g(f"v_add_f32 v{A+q}, v{A+q}, v{B+q}")
        O = 116 + 24 * k
        for q in range(4):
            g(f"v_cvt_pk_bf16_f32 v{O+q}, v{A+2*q}, v{A+2*q+1}")
        g(f"v_permlane32_swap_b32 v{O}, v{O+2}")
        g(f"v_permlane32_swap_b32 v{O+1}, v{O+3}")
        g(f"v_permlane16_swap_b32 v{O}, v{O+2}")
        g(f"v_permlane16_swap_b32 v{O+1}, v{O+3}")
        g(f"buffer_store_dwordx4 {vr(O)}, v201, {sr(S_OUT)}, s{sSTO+k} offen{FL[OPT['osf']]}")

def fused_reduce(cls):
    g(f"v_lshrrev_b32 v200, 4, v{vSTO}")
    g(f"v_and_b32 v201, 15, v200")
    g(f"v_mul_u32_u24 v201, 1792, v201")
    g(f"v_lshrrev_b32 v200, 4, v200")
    g(f"v_lshl_add_u32 v201, v200, 4, v201")
    g.wait_all()
    g.barrier()
    stamp('stdrain')
    def f():
        arrive(1); publish(1, cls, 0); poll(0, cls)
    wave0(f"L_w1_{cls}", f)
    g.barrier()
    stamp('metA')
    sum_round([0, 1])
    stamp('sumA')
    wave0(f"L_w2_{cls}", lambda: poll(1, cls))
    g.barrier()
    stamp('metB')
    sum_round([2])

CLS = [0, 0]
def body(cls):
    CLS[0] = cls
    KS = [OPT[f'k{u}'] + cls * OPT['kstep'] for u in range(3)]
    TWO0 = OPT['t_wo0'] + cls * OPT['kstep']
    TB = OPT['t_b'] + cls * OPT['kstep']
    V1A = OPT['v1'] + (cls * OPT['vstep']) % 3
    V1B = OPT['v1b'] - 3 + (3 + cls * OPT['vstep']) % 3 + (0 if True else 0)
    V1B = OPT['v1b']
    emit_list(x_reads(0))
    def early_touches(R): return touches(R, cls * OPT['kstep'])
    fq.add(([] if OPT['w0dir'] else x_reads(1)) + ([] if OPT['w1pro'] else ring_dma(1)) + ring_dma(2) + early_touches(0))
    x_issue = {1: (2, "R3"), 2: (3, "R4"), 5: (4, "R7"), 6: (5, "R8"), 8: (6, "R10")}
    x_read = {3: 2, 4: 3, 7: 4, 8: 5, 10: 6}
    if OPT['w0dir']: x_read[1] = 1
    x_issue = {k: [v] for k, v in x_issue.items()}
    x_read = {k: [v] for k, v in x_read.items()}
    if OPT['xdir']:
        kw = OPT['kw']
        x_issue = {KS[0]: [(2, f"R{KS[0]+kw}"), (3, f"R{KS[0]+kw}")], KS[1]: [(4, f"R{KS[1]+kw}"), (5, f"R{KS[1]+kw}")], KS[2]: [(6, f"R{KS[2]+kw}")]}
        x_read = {KS[0] + kw: [2, 3], KS[1] + kw: [4, 5], KS[2] + kw: [6]}
        assert KS[0] >= 1 and KS[0] + kw <= 4 and KS[1] + kw <= 8 and KS[2] + kw <= 12 and OPT['v0a'] > KS[2] + kw
    k_issue = {KS[u]: u for u in range(3)}
    KW = [OPT[f'kw{u}'] or OPT['kw'] for u in range(3)]
    k_read = {KS[u] + KW[u]: u for u in range(3)}
    assert max(k_read) <= 13 and OPT['v0b'] > max(k_read) and OPT['v0a'] >= 11
    for u in range(2): assert KS[u+1] > KS[u] + KW[u]
    if 0 in k_issue: fq.add(k_dma(k_issue[0], f"R{OPT['kw']}"))
    def after1(R):
        out = []
        for p in x_read.get(R, []): out += x_reads(p)
        if R in k_read: out += k_reads(k_read[R])
        out += ring_dma(R + 2)
        for a in x_issue.get(R, []): out += x_dma(*a)
        if R in k_issue: out += k_dma(k_issue[R], f"R{R+KW[k_issue[R]]}")
        if R == OPT['v0a']: out += v_dma(0, range(7))
        if R == OPT['v0b']: out += v_dma(0, range(7, 12))
        out += early_touches(R)
        return out
    run_stages(q_groups(), after1, lambda R: f"R{R}" if R < 14 else "none", tail_barrier=True)
    stamp('G1end')
    def s_mf(t):
        return [f"v_mfma_f32_16x16x32_bf16 {vr(SACC+(t*3+u)*4)}, {ar(aK+(u*8+s)*4)}, {vr(QFRAG(s,t))}, {vr(SACC+(t*3+u)*4) if s else 0}"
                for s in range(8) for u in range(3)]
    if OPT['spack']:
        left_v = [it for it in fq.q if fq.kind(it) == 'v']
        vmq = [it for it in fq.q if fq.kind(it) != 'v']; fq.q = []
        if OPT['ecv']:
            todo = set(it[0] for it in left_v) | set(i for t in range(3) for i in cvt_pairs(QACC, [7], t))
            lists = [[i for t in range(3) for i in cvt_pairs(QACC, range(8), t) if i in todo],
                     softmax_ops(0), softmax_ops(1)]
        else:
            for ins in cvt_pairs(QACC, range(2), 0): g(ins)
            lists = [cvt_pairs(QACC, range(2, 8), 0) + cvt_pairs(QACC, range(8), 1)[:18],
                     cvt_pairs(QACC, range(8), 1)[18:] + cvt_pairs(QACC, range(8), 2),
                     softmax_ops(0)]
        cnt = 0
        for t in range(3):
            fq.add([(i, None) for i in lists[t]])
            if t == 0: fq.q[0:0] = vmq; vmq = []
            for m in s_mf(t):
                fq.guard(m)
                g(m); cnt += 1
                fill_gap(None, cnt % OPT['svm'] == 0, False)
        rest = [it[0] for it in fq.q if fq.kind(it) in 've']
        fq.q = [it for it in fq.q if fq.kind(it) not in 've']
        fq.drain()
        if OPT['ecv']:
            r0 = [i for i in rest if i in set(softmax_ops(0))]
            r1 = [i for i in rest if i not in set(softmax_ops(0))]
            for ins in merge(r0, r1, softmax_ops(2)): g(ins)
        else:
            for ins in merge(rest, softmax_ops(1), softmax_ops(2)): g(ins)
    else:
        def paced(ins_list, every):
            n = 0
            for ins in ins_list:
                g(ins); n += 1
                if n % every == 0:
                    while len(fq) and not fq.is_vm(fq.q[0]): fq.pop()
                    if len(fq): fq.pop()
        paced(cvt_pairs(QACC, range(8), 0), 8)
        def mix(mf, fill):
            o = []; fill = list(fill)
            for m in mf:
                o.append(m)
                for _ in range(2):
                    if fill: o.append(fill.pop(0))
            return o + fill
        paced(mix(s_mf(0), cvt_pairs(QACC, range(8), 1)), 10)
        paced(mix(s_mf(1), cvt_pairs(QACC, range(8), 2)), 10)
        fq.drain()
        sm0 = softmax_ops(0)
        interleave(s_mf(2), sm0[:40])
        for ins in merge(sm0[40:], softmax_ops(1), softmax_ops(2)): g(ins)
    stamp('SM')
    g(f"v_add_u32 v{vPA}, s{sPX}, v{vPW}")
    g(f"v_add_u32 v{vPB}, s{sPY}, v{vPW2}")
    p_write0()
    g.wait_tag(["V0", "R14"], lg=0)
    g.barrier()
    stamp('Pbar')
    for s in range(OPT['vup']):
        for u in range(3): emit_list([v_read(u, s)])
    for s in range(OPT['vup'], 8):
        fq.add([v_read(u, s) for u in range(3)])
    def after2(R):
        out = []
        if R == OPT['p1'] + 1: out += p_readsu2(1) + p_reads32(1)
        if R == 15: out += p_reads32(0) + p_readsu2(0)
        out += ring_dma(R + 2)
        if OPT['v1m']:
            if R == V1A: out += v_dma(1, range(4))
            if R == OPT['v1m']: out += v_dma(1, range(4, 8))
            if R == V1B: out += v_dma(1, range(8, 12))
        else:
            if R == V1A: out += v_dma(1, range(6))
            if R == V1B: out += v_dma(1, range(6, 12))
        out += early_touches(R)
        if R == OPT['p1']: out = p_write1() + out
        return out
    def wt(R):
        return [f"R{R}", "V1"] if R == 20 else f"R{R}"
    run_stages(o_groups(), after2, wt, tail_barrier=False)
    fq.drain()
    stamp('G2end')
    if OPT['fuse']:
        wave0(f"L_wp_{cls}", lambda: publish(0, cls, g.vmtot - CLS[1]))
    emit_list(vw_cvt(27))
    fa, fb = final_groups(27, 27)
    for m in fa['mfmas'] + fb['mfmas']: g(m)
    emit_list(epilogue_ops(6))
    stamp('epi')
    if OPT['fuse']: fused_reduce(cls)
    if OPT['stamps']:
        g.wait_all()
        stamp('drain')
    finish_stamps(cls)

def reduce_kernel():
    global g
    lines = g.lines
    g = Gen(); g.lines = lines
    NF, WV = OPT['rnf'], OPT['rwv']
    nwg = 2688 // (NF * WV)
    kernel_open(RED)
    g(f"s_cmp_ge_u32 s2, {nwg}")
    g("s_cbranch_scc1 L_red_end")
    if OPT['stamps']: g("s_memrealtime s[40:41]")
    g("s_load_dwordx2 s[4:5], s[0:1], 80")
    g("s_load_dwordx2 s[6:7], s[0:1], 96")
    g("v_lshrrev_b32 v2, 6, v0")
    g("v_and_b32 v3, 63, v0")
    g("v_readfirstlane_b32 s21, v2")
    g("v_lshlrev_b32 v1, 4, v3")
    g("v_and_b32 v4, 15, v3")
    g("v_mul_u32_u24 v4, 1792, v4")
    g("v_lshrrev_b32 v5, 4, v3")
    g("v_lshl_add_u32 v4, v5, 4, v4")
    g(f"s_mul_i32 s16, s2, {WV}")
    g("s_add_u32 s16, s16, s21")
    g(f"s_mul_i32 s16, s16, {NF}")
    g("s_lshl_b32 s19, s16, 10")
    g.smem_wait()
    srd(8, 6, 7, 22020096)
    for f in range(NF):
        for p in range(8):
            g(f"s_add_u32 s20, s19, {p*64*43008}")
            g(f"buffer_load_dwordx4 {vr(8+4*(f*8+p))}, v1, s[8:11], s20 offen offset:{f*1024}{FL[OPT['ldf']]}")
    srd(12, 4, 5, 2752512)
    g("s_mov_b32 s30, 0x3f80")
    g("s_mov_b32 s31, 0x3f800000")
    for f in range(NF):
        g(f"s_add_u32 s17, s16, {f}")
        g("s_mul_i32 s18, s17, 6242")
        g("s_lshr_b32 s18, s18, 18")
        g("s_mul_i32 s22, s18, 42")
        g("s_sub_u32 s22, s17, s22")
        g("s_mul_i32 s23, s22, 43")
        g("s_lshr_b32 s23, s23, 7")
        g("s_mul_i32 s24, s23, 3")
        g("s_sub_u32 s24, s22, s24")
        g("s_and_b32 s25, s18, 31")
        g("s_mul_i32 s25, s25, 3")
        g("s_add_u32 s25, s25, s24")
        g(f"s_mul_i32 s{32+f}, s25, {16*1792}")
        g("s_lshr_b32 s25, s18, 5")
        g("s_mul_i32 s25, s25, 896")
        g(f"s_add_u32 s{32+f}, s{32+f}, s25")
        g("s_lshl_b32 s23, s23, 6")
        g(f"s_add_u32 s{32+f}, s{32+f}, s23")
    base = 8 + 32 * NF
    for f in range(NF):
        A, B, O = base, base + 8, base + 16
        for p in range(8):
            for k in range(4):
                src = 8 + 4 * (f * 8 + p) + k
                if OPT['rdot']:
                    for h in range(2):
                        g(f"v_dot2_f32_bf16 v{A+2*k+h}, v{src}, s{30+h}, {'v%d' % (A+2*k+h) if p else 0}")
                else:
                    d = A if p == 0 else B
                    g(f"v_lshlrev_b32 v{d+2*k}, 16, v{src}")
                    g(f"v_and_b32 v{d+2*k+1}, 0xffff0000, v{src}")
            if p and not OPT['rdot']:
                for k in range(8):
                    g(f"v_add_f32 v{A+k}, v{A+k}, v{B+k}")
        if OPT['rdot']: g.nop(3)
        for k in range(4):
            g(f"v_cvt_pk_bf16_f32 v{O+k}, v{A+2*k}, v{A+2*k+1}")
        g(f"v_permlane32_swap_b32 v{O}, v{O+2}")
        g(f"v_permlane32_swap_b32 v{O+1}, v{O+3}")
        g(f"v_permlane16_swap_b32 v{O}, v{O+2}")
        g(f"v_permlane16_swap_b32 v{O+1}, v{O+3}")
        g(f"buffer_store_dwordx4 {vr(O)}, v4, s[12:15], s{32+f} offen{FL[OPT['osf']]}")
    if OPT['stamps']:
        g.wait_all()
        g("s_memrealtime s[42:43]")
        g.smem_wait()
        g("s_mov_b32 s10, 0x10000000")
        g(f"s_lshl_b32 s20, s16, 3")
        g(f"s_add_u32 s20, s20, {25<<20}")
        g("v_mov_b32 v6, s40"); g("v_mov_b32 v7, s42"); g("v_mov_b32 v1, 0")
        g("buffer_store_dwordx2 v[6:7], v1, s[8:11], s20 offen")
    g.raw("L_red_end:")
    g("s_endpgm")
    g.raw("L_text_end:")

def descriptors():
    g.raw('.section .rodata,"a"')
    for name, nv, acc in ((MAIN, 512, 256), (RED, 32 * OPT['rnf'] + 32, 32 * OPT['rnf'] + 32))[:1 if OPT['fuse'] else 2]:
        g.raw(".p2align 6")
        g.raw(f".amdhsa_kernel {name}")
        g.raw(f"  .amdhsa_next_free_vgpr {nv}")
        g.raw("  .amdhsa_next_free_sgpr 102")
        g.raw(f"  .amdhsa_accum_offset {acc}")
        g.raw("  .amdhsa_group_segment_fixed_size 0")
        g.raw("  .amdhsa_kernarg_size 104")
        g.raw("  .amdhsa_user_sgpr_count 2")
        g.raw("  .amdhsa_user_sgpr_kernarg_segment_ptr 1")
        g.raw("  .amdhsa_system_sgpr_workgroup_id_x 1")
        g.raw("  .amdhsa_float_denorm_mode_32 3")
        g.raw(".end_amdhsa_kernel")

header()
main_kernel()
st = dict(g.stats)
if not OPT['fuse']: reduce_kernel()
else: g.raw('L_text_end:')
descriptors()
open(sys.argv[1], "w").write(g.text())
print("main stats", st, "forced", fq.forced)
```

```python
import sys, struct, json
from asmgen import Gen, classify

NAME = "concat_heads__mha_block_cached__gqa_block_cached__near_ridge"
MAIN = NAME + "_kernel"
RED = "reduce_partials_kernel"

OPT = dict(bar_group=10, D=7, stamps=0, code_pf=1, touch=1, ntk=1, ntv=1, nttw=0, nttx=0,
           k0=2, k1=6, k2=10, kw=3, t_wo0=8, t_wo1=16, v1=15, v1b=18, p1=17, t_a=0, t_b=4, v0a=13, nc=1, kstep=1, vstep=1, ntfirst=1, pace=1, diag=0, nok=0, nov=0, now=0, nost=0, nox=0, dbg=0, stf=1, ldf=0, osf=0, tlb=0, cpf_first=1, cpf_red=0, cpf2=0, fuse=0, slp=2, t_xa=0, t_xb=4, ret=0, hw=1, nobar=0, lastb=2, w1pro=1, pack=1, ring=8, spack=1, v0b=14, xdir=0, pw=1, arr=26, pubs=26, pubi=13, ic=2, ia=6, ib=8, ie=11, vup=3, t_v1=99, nttv=0, ntv1=1, v1m=0, rnf=1, rwv=6, rdot=0, sta=0, stb=14, w0dir=1, kw0=0, kw1=0, kw2=0, rs=1, ecv=1, svm=4)
FL = ['', ' sc1', ' sc0 sc1', ' nt', ' sc1 nt', ' sc0 sc1 nt']
for a in sys.argv[2:]:
    k, v = a.split('=')
    assert k in OPT, k
    OPT[k] = int(v)
def NT(k): return ' nt' if OPT[k] else ''

SLOT = 32768
VB = 3 * SLOT
XU = 12288
KA = VB + 65536 - 4 * 8320
PB = VB + 49152
LDS_BYTES = 163840
BIG = 0x7ffff000

S_X, S_K, S_V, S_WQ, S_WO, S_WS = 8, 12, 16, 20, 24, 28
sW, sBSEL, sJ, sBR, sH0, sB0, sB = 32, 33, 34, 35, 36, 37, 38
sWQB = 39
sXB, sXM, sKB, sKM, sXO, sKO, sWQO, sWOO, sWOO2, sVO = 40, 41, 42, 43, 44, 45, 46, 47, 48, 49
sM, sVM, sST, sC = 50, 51, 52, 53
sT0, sT1, sT2, sT3 = 54, 55, 56, 57
sVBASE, sWOBASE = 58, 59
sPC = 60
sTWQ = 63
sTV = 62
sHG, sHP, sWI, sTWO, sCLS = 88, 89, 90, 91, 94
S_FLG, sFLG = 4, 95
sPD = 100
sPX, sPY = 3, 61
STB = 64

def QACC(T, t): return (((T // 2) * 3 + t) * 4) + (96 if T & 1 else 0)
def QFRAG(s, t): return (s * 3 + t) * 4
SACC = 192
vWQR = 192
vWQD = 208
vXR = 216
vXD = 218
vKR = 219
vKD = 223
vTWQ = 224
vTXA = 225
vTXB = 226
vT16 = 227
vWOD = 228
vVD = 232
vVR = 233
vWOR = 237
vSTO = 241
vPW = 242
vPW2 = 243
vT32 = 244
vDUM = 245
vFLAG = 252
vZERO = 179
vSM = 246
def VFRAG(u, s): return (u * 8 + s) * 4
vPOWN = 96
vP32 = [114, 126]
vPU2 = 138
vPA, vPB = 162, 163
vVWB = 150
vEP = 96
def VWACC(par, T, u): return 180 + par * 24 + (T * 3 + u) * 4
aFR, aK, aX, XRING, aOUT = 0, 40, 136, 10, 40
def U2(c, T):
    k = c * 2 + T
    return 32 + 4 * k if k < 2 else 208 + 4 * (k - 2)
def OUTACC(c, T, t): return aOUT + ((c * 2 + T) * 3 + t) * 4

def vr(b, n=4): return f"v[{b}:{b+n-1}]"
def ar(b, n=4): return f"a[{b}:{b+n-1}]"
def sr(b, n=4): return f"s[{b}:{b+n-1}]"

g = Gen()
nstamp = 0
vSTAMP = 255
pending = False
names = []
def stamp_flush():
    global pending
    if pending:
        g(f"v_writelane_b32 v{vSTAMP}, s92, {nstamp-1}")
        pending = False
def stamp(name="", real=False, drained=False):
    global nstamp, pending
    if OPT['stamps']:
        if pending:
            if not drained: g.smem_wait()
            stamp_flush()
        g(f"{'s_memrealtime' if real else 's_memtime'} s[92:93]")
        names.append(name); nstamp += 1; pending = True

def header():
    g.raw("; fused attention block: launch 1 computes per-head-pair partial outputs, launch 2 sums them")
    if OPT['fuse']:
        g.raw(f"; @launch grid=(256,1,1) block=(256,1,1) lds={LDS_BYTES}")
    else:
        g.raw(f"; @launch kernel={MAIN} grid=(256,1,1) block=(256,1,1) lds={LDS_BYTES}")
        g.raw(f"; @launch kernel={RED} grid=({2688 // (OPT['rnf'] * OPT['rwv'])},1,1) block=({64 * OPT['rwv']},1,1) lds=0")
    g.raw('.amdgcn_target "amdgcn-amd-amdhsa--gfx950"')
    g.raw(".text")

def kernel_open(name):
    g.raw(f".globl {name}")
    g.raw(".p2align 8")
    g.raw(f".type {name},@function")
    g.raw(f"{name}:")

def srd(dst, lo, hi, nbytes):
    g(f"s_mov_b32 s{dst}, s{lo}")
    g(f"s_and_b32 s{dst+1}, s{hi}, 0xffff")
    g(f"s_mov_b32 s{dst+2}, {nbytes}")
    g(f"s_mov_b32 s{dst+3}, 0x20000")

def wq_dma(R):
    slot = (R % 3) * SLOT
    out = [(f"s_add_u32 s{sWQO}, s{sWQB}, {R*262144}", None)]
    for i in range(8):
        if i % 4 == 0:
            out.append((f"s_add_u32 m0, s{sM}, {slot + (i//4)*4096}", None))
        out.append((f"buffer_load_dwordx4 v{vWQD+i}, {sr(S_WQ)}, s{sWQO} offen offset:{(i%4)*1024} lds", f"R{R}"))
    return out

def wo_dma(R):
    hh, c = divmod(R - 14, 7)
    slot = (R % 3) * SLOT
    out = [(f"s_add_u32 s{sWOO}, s{sWOBASE}, {hh*229376 + c*128}", None),
           (f"s_add_u32 s{sWOO2}, s{sWOBASE}, {hh*229376 + c*128 + 28672}", None)]
    for i in range(8):
        if i % 4 == 0:
            out.append((f"s_add_u32 m0, s{sM}, {slot + (i//4)*4096}", None))
        so = sWOO if i < 4 else sWOO2
        out.append((f"buffer_load_dwordx4 v{vWOD+(i%4)}, {sr(S_WO)}, s{so} offen offset:{(i%4)*1024} lds", f"R{R}"))
    return out

def ring_dma(R):
    if OPT['now'] and R > 2: return []
    if R < 14: return wq_dma(R)
    if R < 28: return wo_dma(R)
    return []

def x_dma(p, tag):
    out = []
    if OPT['nox'] and p > 1: return out
    for k in range(3):
        out.append((f"s_add_u32 s{sXO}, s{sXB}, {p*128 + k*28672}", None))
        out.append((f"s_add_u32 m0, s{sXM}, {(p % 2)*XU + k*4096}", None))
        out.append((f"buffer_load_dwordx4 v{vXD}, {sr(S_X)}, s{sXO} offen{NT('ntfirst') if (p < 2 or OPT['xdir']) else ''} lds", tag))
    return out

def x_reads(p):
    out = []
    for s2 in range(2):
        s = 2 * p + s2
        for t in range(3):
            d = aX + (s % XRING) * 12 + t * 4
            out.append((f"ds_read_b128 {ar(d)}, v{vXR+s2} offset:{(p % 2)*XU + t*2048}", None))
    return out

def k_dma(u, tag):
    out = []
    if OPT['nok']: return out
    for dh in range(2):
        out.append((f"s_add_u32 m0, s{sKM}, {dh*4160}", None))
        for j in range(4):
            out.append((f"s_add_u32 s{sKO}, s{sKB}, {u*8192 + dh*256 + j*(2048-1040)}", None))
            out.append((f"buffer_load_dwordx4 v{vKD}, {sr(S_K)}, s{sKO} offen offset:{j*1040}{NT('ntk')} lds", tag))
    return out

def k_reads(u):
    out = []
    for dh in range(2):
        for s4 in range(4):
            for p in range(2):
                d = aK + (u * 8 + dh * 4 + s4) * 4 + 2 * p
                out.append((f"ds_read_b64 {ar(d,2)}, v{vKR+s4} offset:{dh*4160 + 32*p}", None))
    return out

def v_dma(hh, subs):
    out = []
    if OPT['nov']: return out
    for sub in subs:
        bb, r = divmod(sub, 6); u, dh = divmod(r, 2)
        out.append((f"s_add_u32 s{sVO}, s{sVBASE}, {hh*24576 + bb*393216 + u*8192 + dh*256}", None))
        out.append((f"s_add_u32 m0, s{sVM}, {sub*4096}", None))
        out.append((f"buffer_load_dwordx4 v{vVD}, {sr(S_V)}, s{sVO} offen{NT('ntv') if hh == 0 else NT('ntv1')} lds", f"V{hh}"))
    return out

def v_read(u, s):
    dh, s4 = divmod(s, 4)
    return (f"ds_read_b128 {vr(VFRAG(u,s))}, v{vVR+s4} offset:{(u*2+dh)*4096}", None)

def touch(vaddr, srd_, sbase, add, plain=False):
    key = {S_WQ: 'nttw', S_WO: 'nttw', S_X: 'nttx', S_V: 'nttv'}[srd_]
    if not OPT['touch']: return []
    return [(f"s_add_u32 s{sT1}, s{sbase}, {add}", None),
            (f"buffer_load_dword v{vDUM}, v{vaddr}, {sr(srd_)}, s{sT1} offen{'' if plain else NT(key)}", None, True)]

def touch_table():
    return {'t_a': (vT16, S_WQ, sTWQ, 128 * 8192), 't_xa': (vTXA, S_X, sXB, 256), 't_b': (vTWQ, S_WQ, sTWQ, 256 * 8192),
            't_xb': (vTXB, S_X, sXB, 512), 't_wo0': (vT32, S_WO, sTWO, 0), 't_wo1': (vT32, S_WO, sTWO, 229376)}
def touches(R, shift=0):
    o = []
    for k, a in touch_table().items():
        if OPT['xdir'] and k.startswith('t_x'): continue
        at = OPT[k] + (shift if OPT[k] >= 1 and k != 't_wo1' else 0)
        if at == R: o += touch(*a)
        if OPT['ret'] and max(at, 0) + OPT['ret'] == R: o += touch(*a, plain=True)
    if R == OPT['t_v1']:
        for k in range(3): o += touch(vT32, S_V, sTV, 24576 + 4096 * k)
    return o

class FillQ:
    def __init__(self): self.q = []
    def add(self, items): self.q.extend(items)
    def pop(self):
        it = self.q.pop(0)
        if callable(it): it()
        else: g(it[0], tag=it[1], nodst=(len(it) > 2))
    def __len__(self): return len(self.q)
    def is_vm(self, it):
        return (not callable(it)) and it[0].startswith(('buffer_', 'global_'))
    def nvm(self): return sum(1 for it in self.q if self.is_vm(it))
    def drain(self):
        while self.q: self.pop()
    def drain_mem(self):
        while True:
            idx = [i for i, it in enumerate(self.q) if self.kind(it) not in ('v', 'e')]
            if not idx: return
            j = self.find('mds')
            if j is None: self.pop()
            else: self.pop_at(j)
    def guard(self, text):
        _, _, _, _, rd, wr = classify(text)
        rd = {r for r in rd if r[0] != 's'}; wr = {r for r in wr if r[0] != 's'}
        last = -1
        for i, it in enumerate(self.q):
            if callable(it): continue
            _, _, _, _, frd, fwr = classify(it[0])
            if len(it) > 2: fwr = []
            if (set(fwr) & (rd | wr)) or (set(frd) & wr): last = i
        if last >= 0: self.forced += last + 1
        for _ in range(last + 1): self.pop()
    forced = 0
    def kind(self, it):
        if callable(it): return 'call'
        t = it[0]
        if t.startswith(('buffer_', 'global_')): return 'm'
        if t.startswith('ds_'): return 'd'
        if t.startswith(('v_exp', 'v_rcp', 'v_log', 'v_rsq', 'v_sqrt')): return 'e'
        if t.startswith('v_'): return 'v'
        return 's'
    def find(self, kinds, depth=200):
        seen_r, seen_w = set(), set()
        for i, it in enumerate(self.q[:depth]):
            if callable(it): return None
            k = self.kind(it)
            _, _, _, _, rd_, wr_ = classify(it[0])
            if len(it) > 2: wr_ = []
            rd_, wr_ = set(rd_), set(wr_)
            if k == 's': wr_ = wr_ | {('scc', 0)} if False else wr_
            if k in kinds:
                order_ok = not (k in 'md' and any(self.kind(e) == k for e in self.q[:i]))
                if order_ok and not (wr_ & (seen_r | seen_w)) and not (rd_ & seen_w): return i
            seen_r |= rd_; seen_w |= wr_
        return None
    def pop_at(self, i):
        it = self.q.pop(i)
        g(it[0], tag=it[1], nodst=(len(it) > 2))
fq = FillQ()

def fill_gap(ring_read, vm_due, reserve):
    if len(fq) and callable(fq.q[0]):
        fq.pop(); return False
    if vm_due and not reserve:
        i = fq.find('m')
        if i is not None:
            fq.pop_at(i); return True
    slots = 2 - (1 if reserve else 0)
    if ring_read:
        ring_read(); slots -= 1
    else:
        i = fq.find('d')
        if i is not None:
            fq.pop_at(i); slots -= 1
    while slots > 0:
        i = fq.find('vse' if slots == 2 else 'vs')
        if i is None: break
        slots -= 2 if fq.kind(fq.q[i]) == 'e' else 1
        fq.pop_at(i)
    return False
def emit_list(l):
    for it in l: g(it[0], tag=it[1], nodst=(len(it) > 2))

def run_stages(groups, after_barrier, wait_tags, tail_barrier=None, nreg=4):
    ring = OPT['ring']
    D = min(OPT['D'], ring - 1)
    open_stage = groups[0]['stage']
    pend = []
    fr = 0
    for n, gr in enumerate(groups):
        gr['fr'] = fr
        if gr['reads']:
            d = aFR + (fr % ring) * nreg
            for k, rt in enumerate(gr['reads']):
                pend.append((fr, gr['stage'], rt.format(d=ar(d + 2 * k, 2))))
            fr += 1
    rp = 0
    def can_read(f_cur):
        if rp >= len(pend): return False
        f, st, _ = pend[rp]
        return st <= open_stage and f <= f_cur + D
    while rp < len(pend) and pend[rp][0] < D and pend[rp][1] <= open_stage:
        g(pend[rp][2]); rp += 1
    last_stage = groups[-1]['stage']
    left = [0] * len(groups)
    acc = 0
    for n in range(len(groups) - 1, -1, -1):
        if groups[n].get('idx') == OPT['bar_group']: acc = 0
        acc += len(groups[n]['mfmas'])
        left[n] = acc
    since_vm = 1000
    for n, gr in enumerate(groups):
        f = gr['fr']
        d = aFR + (f % ring) * nreg
        if gr['reads']:
            while rp < len(pend) and pend[rp][0] <= f:
                assert pend[rp][1] <= open_stage
                g(pend[rp][2]); rp += 1
        if gr['reads'] and OPT['hw'] and f % 2 == 0 and any(p[0] == f + 1 for p in pend[:rp]) and sum(1 for p in pend[:rp] if p[0] == f + 1) == 2:
            d2 = aFR + ((f + 1) % ring) * nreg
            g.need([('a', d + i) for i in range(4)] + [('a', d2 + i) for i in range(4)])
        fcur = f if gr['reads'] else f - 1
        R = gr['stage']
        for it in gr.get('pre', []): fq.q.insert(0, it) if False else None
        if gr.get('front'):
            fq.q[0:0] = gr['front']
        for k, mt in enumerate(gr['mfmas']):
            fq.guard(mt.format(a=ar(d)))
            g(mt.format(a=ar(d)))
            since_vm += 1
            rem = left[n] - k - 1
            if OPT['pack']:
                nxt = groups[n+1] if n + 1 < len(groups) else None
                reserve = (k == len(gr['mfmas']) - 1 and nxt is not None and bool(nxt['reads']) and nxt['fr'] % 2 == 0)
                nv = fq.nvm()
                gap = max(1, (rem - 1) // max(1, nv))
                behind = rp < len(pend) and can_read(fcur) and pend[rp][0] <= fcur + OPT['D'] - 3
                vm_due = nv > 0 and since_vm >= min(gap, 6) and not behind
                def rr():
                    nonlocal rp
                    g(pend[rp][2]); rp += 1
                if fill_gap(rr if can_read(fcur) else None, vm_due, reserve): since_vm = 0
                continue
            budget = 2
            if k == len(gr['mfmas']) - 1 and n + 1 < len(groups) and groups[n+1]['reads'] and (groups[n+1]['fr'] % 2 == 0 or not OPT['hw']):
                budget = OPT['lastb']
            while budget:
                if can_read(fcur):
                    g(pend[rp][2]); rp += 1; budget -= 1
                elif len(fq):
                    j = None
                    if fq.is_vm(fq.q[0]) and OPT['pace']:
                        gap = max(1, (rem - 2) // max(1, fq.nvm()))
                        if since_vm >= min(gap, OPT['pace'] * 6): j = 0
                        else:
                            for i, it in enumerate(fq.q):
                                if callable(it): break
                                if fq.is_vm(it) or it[0].startswith('s_'): continue
                                _, _, _, _, rd_, wr_ = classify(it[0])
                                clash = False
                                for e in fq.q[:i]:
                                    _, _, _, _, erd, ewr = classify(e[0])
                                    if (set(erd) | set(ewr)) & set(wr_) or set(ewr) & set(rd_): clash = True
                                if not clash: j = i
                                break
                    else:
                        j = 0
                    if j is None: break
                    if j == 0:
                        if fq.is_vm(fq.q[0]): since_vm = 0
                        fq.pop()
                    else:
                        it = fq.q.pop(j); g(it[0], tag=it[1], nodst=(len(it) > 2))
                    budget -= 1
                else:
                    break
        for it in gr.get('post', []):
            fq.add([it])
        if gr.get('hook'):
            wave0("L_wp_%d" % CLS[0], lambda: publish(0, CLS[0], g.vmtot - CLS[1]))
        if gr.get('idx') == OPT['bar_group'] and (R < last_stage or tail_barrier):
            while rp < len(pend) and pend[rp][1] <= R:
                g(pend[rp][2]); rp += 1
            fq.drain_mem()
            g.wait_tag(wait_tags(R + 1), lg=0)
            if OPT['stamps'] > 1: g.smem_wait()
            if not OPT['nobar']: g.barrier()
            if OPT['stamps'] > 1: stamp(f"b{R+1}", drained=True)
            if OPT['fuse'] and R + 1 == OPT['arr']:
                wave0("L_w0_%d" % CLS[0], lambda: arrive(0))
                CLS[1] = g.vmtot
            open_stage = R + 1
            fq.add(after_barrier(R + 1))

def interleave(mf, fill, per=2):
    fill = list(fill)
    for m in mf:
        g(m)
        for _ in range(per):
            if fill: g(fill.pop(0))
            elif len(fq): fq.pop()
    for f in fill: g(f)

def softmax_ops(t):
    S = [SACC + 12 * t + k for k in range(12)]
    m, x = vSM + 2 * t, vSM + 2 * t + 1
    o = []
    if OPT['rs']:
        for k in range(0, 12, 2):
            r = (m, x)[(k // 2) % 2]
            o.append(f"v_cvt_pk_bf16_f32 v{r}, v{S[k]}, v{S[k+1]}")
            o.append(f"v_lshlrev_b32 v{S[k]}, 16, v{r}")
            o.append(f"v_and_b32 v{S[k+1]}, 0xffff0000, v{r}")
    o.append(f"v_max3_f32 v{m}, v{S[0]}, v{S[1]}, v{S[2]}")
    o.append(f"v_max3_f32 v{x}, v{S[3]}, v{S[4]}, v{S[5]}")
    o.append(f"v_max3_f32 v{m}, v{m}, v{S[6]}, v{S[7]}")
    o.append(f"v_max3_f32 v{x}, v{x}, v{S[8]}, v{S[9]}")
    o.append(f"v_max3_f32 v{m}, v{m}, v{S[10]}, v{S[11]}")
    o.append(f"v_max_f32 v{m}, v{m}, v{x}")
    for sw in ("v_permlane32_swap_b32", "v_permlane16_swap_b32"):
        o.append(f"v_mov_b32 v{x}, v{m}")
        o.append(f"{sw} v{m}, v{x}")
        o.append(f"v_max_f32 v{m}, v{m}, v{x}")
    o.append(f"v_mul_f32 v{m}, s{sC}, v{m}")
    for k in range(12):
        o.append(f"v_fma_f32 v{S[k]}, v{S[k]}, s{sC}, -v{m}")
    for k in range(12):
        o.append(f"v_exp_f32 v{S[k]}, v{S[k]}")
    o.append(f"v_add_f32 v{m}, v{S[0]}, v{S[1]}")
    o.append(f"v_add_f32 v{x}, v{S[2]}, v{S[3]}")
    for k in range(4, 12, 2):
        o.append(f"v_add_f32 v{m}, v{m}, v{S[k]}")
        o.append(f"v_add_f32 v{x}, v{x}, v{S[k+1]}")
    o.append(f"v_add_f32 v{m}, v{m}, v{x}")
    for sw in ("v_permlane32_swap_b32", "v_permlane16_swap_b32"):
        o.append(f"v_mov_b32 v{x}, v{m}")
        o.append(f"{sw} v{m}, v{x}")
        o.append(f"v_add_f32 v{m}, v{m}, v{x}")
    o.append(f"v_rcp_f32 v{m}, v{m}")
    for k in range(12):
        o.append(f"v_mul_f32 v{S[k]}, v{S[k]}, v{m}")
    for k in range(6):
        o.append(f"v_cvt_pk_bf16_f32 v{vPOWN + 6*t + k}, v{S[2*k]}, v{S[2*k+1]}")
    return o

def merge(*lists):
    out = []
    n = max(len(l) for l in lists)
    for i in range(n):
        for l in lists:
            if i < len(l): out.append(l[i])
    return out

def cvt_pairs(acc, s_list, t):
    o = []
    for s in s_list:
        b, b2 = acc(2 * s, t), acc(2 * s + 1, t)
        o.append(f"v_cvt_pk_bf16_f32 v{b}, v{b}, v{b+1}")
        o.append(f"v_cvt_pk_bf16_f32 v{b+1}, v{b+2}, v{b+3}")
        o.append(f"v_cvt_pk_bf16_f32 v{b+2}, v{b2}, v{b2+1}")
        o.append(f"v_cvt_pk_bf16_f32 v{b+3}, v{b2+2}, v{b2+3}")
    return o

def p_write0():
    for t in range(3):
        g(f"ds_write_b128 v{vPA}, {vr(vPOWN+6*t)} offset:{t*1024}")
    g(f"s_mov_b64 exec, s[{sPD}:{sPD+1}]")
    for t in range(3):
        g(f"ds_write_b64 v{vPW2}, {vr(vPOWN+6*t+4,2)} offset:{t*512}")
    g("s_mov_b64 exec, -1")

def p_write1():
    return [(f"ds_write_b64 v{vPB}, {vr(vPOWN+6*t+4,2)} offset:{t*512}", None) for t in range(3)]

def p_reads32(hh):
    return [(f"ds_read_b128 {vr(vP32[hh]+4*t)}, v{vPW} offset:{hh*6144 + t*1024}", None) for t in range(3)]
def p_readsu2(hh):
    return [(f"ds_read_b64 {vr(vPU2+4*t+2*hh,2)}, v{vPW2} offset:{t*512}", None) for t in range(3)]

def q_groups():
    gs = []
    for s in range(14):
        slot = s % 3
        win, base = (1, 0) if slot == 2 else (0, slot * SLOT)
        for T in range(16):
            reads = [f"ds_read_b64_tr_b16 {{d}}, v{vWQR + win*8 + (T & 7)} offset:{base + rd*16384 + (T>>3)*256}" for rd in range(2)]
            mf = []
            for t in range(3):
                acc = vr(QACC(T, t))
                xb = ar(aX + (s % XRING) * 12 + t * 4)
                mf.append(f"v_mfma_f32_16x16x32_bf16 {acc}, {{a}}, {xb}, {acc if s else 0}")
            gr = dict(stage=s, reads=reads, mfmas=mf, idx=T)
            if s == 13 and OPT['ecv'] and T >= 3 and T % 2 == 1:
                gr['post'] = [(i, None) for t in range(3) for i in cvt_pairs(QACC, [(T - 3) // 2], t)]
            gs.append(gr)
    return gs

def vw_cvt(R):
    par = R % 2
    hh, c = divmod(R - 14, 7)
    o = []
    for T in range(2):
        for u in range(3):
            b = VWACC(par, T, u)
            d = vVWB + 4 * T + 2 * u if u < 2 else vVWB + 8 + 2 * T
            o.append((f"v_cvt_pk_bf16_f32 v{d}, v{b}, v{b+1}", None))
            o.append((f"v_cvt_pk_bf16_f32 v{d+1}, v{b+2}, v{b+3}", None))
    for T in range(2):
        for i in range(2):
            o.append((f"v_accvgpr_write_b32 a{U2(c,T)+2*hh+i}, v{vVWB+8+2*T+i}", None))
    return o

def final_groups(R, stage):
    hh, c = divmod(R - 14, 7)
    a, b = [], []
    for T in range(2):
        for t in range(3):
            acc = ar(OUTACC(c, T, t))
            a.append(f"v_mfma_f32_16x16x32_bf16 {acc}, {vr(vVWB+4*T)}, {vr(vP32[hh]+4*t)}, {acc if hh else 0}")
            if hh: b.append(f"v_mfma_f32_16x16x32_bf16 {acc}, {ar(U2(c,T))}, {vr(vPU2+4*t)}, {acc}")
    return dict(stage=stage, reads=[], mfmas=a), dict(stage=stage, reads=[], mfmas=b)

def epilogue_ops(c):
    o = [(f"s_add_u32 s{sT0}, s{sST}, {c*6144}", None)]
    for t in range(3):
        tb = vEP + t * 8
        for T in range(2):
            for r in range(4):
                o.append((f"v_accvgpr_read_b32 v{tb + T*4 + r}, a{OUTACC(c,T,t)+r}", None))
        for k in range(4):
            o.append((f"v_cvt_pk_bf16_f32 v{tb+k}, v{tb+2*k}, v{tb+2*k+1}", None))
        if not OPT['nost']: o.append((f"buffer_store_dwordx4 {vr(tb)}, v{vSTO}, {sr(S_WS)}, s{sT0} offen offset:{t*1024}{FL[OPT['stf']]}", f"ST{c}"))
    return o

def o_groups():
    gs = []
    for R in range(14, 28):
        hh, c = divmod(R - 14, 7)
        slot = R % 3
        win, base = (1, 0) if slot == 2 else (0, slot * SLOT)
        for s in range(8):
            for T in range(2):
                idx = 2 * s + T
                reads = [f"ds_read_b64_tr_b16 {{d}}, v{vWOR + win*2 + T} offset:{base + s*4096 + rd*2048}" for rd in range(2)]
                mf = []
                for u in range(3):
                    acc = vr(VWACC(R % 2, T, u))
                    mf.append(f"v_mfma_f32_16x16x32_bf16 {acc}, {vr(VFRAG(u,s))}, {{a}}, {acc if s else 0}")
                gr = dict(stage=R, reads=reads, mfmas=mf, idx=idx)
                if R > 14 and idx == OPT['ic']: gr['front'] = vw_cvt(R - 1)
                if R == 20 and T == 1:
                    gr['post'] = [v_read(u, s) for u in range(3)]
                gs.append(gr)
                if R > 14 and idx == OPT['ia']: gs.append(final_groups(R - 1, R)[0])
                if R > 14 and idx == OPT['ib']:
                    gb = final_groups(R - 1, R)[1]
                    if gb['mfmas']: gs.append(gb)
                if R > 21 and idx == OPT['ie']: gs[-1]['post'] = epilogue_ops(R - 22)
                if R == OPT['pubs'] and idx == OPT['pubi'] and OPT['fuse']: gs[-1]['hook'] = True
    return gs

def finish_stamps(cls):
    if OPT['stamps']:
        stamp("real_end", real=True)
        g.smem_wait(); stamp_flush()
        g(f"v_writelane_b32 v{vSTAMP}, s98, 62")
        g(f"v_writelane_b32 v{vSTAMP}, s96, 63")
        g(f"s_lshl_b32 s{sT0}, s2, 2")
        g(f"s_add_u32 s{sT0}, s{sT0}, s{sW}")
        g(f"s_lshl_b32 s{sT0}, s{sT0}, 8")
        g(f"s_add_u32 s{sT0}, s{sT0}, {24<<20}")
        g(f"s_mov_b32 s{S_WS+2}, 0x10000000")
        g(f"v_lshrrev_b32 v1, 2, v{vSTO}")
        if OPT['dbg']:
            g(f"s_cmp_lg_u32 s2, {OPT['dbg']}")
            g(f"s_cbranch_scc1 L_nodbg_{cls}")
            g(f"s_cmp_lg_u32 s{sW}, 1")
            g(f"s_cbranch_scc1 L_nodbg_{cls}")
            g(f"v_subrev_u32 v2, s98, v{vSTAMP}")
            g(f"s_mov_b64 exec, 0xffff")
            g(f"buffer_store_dword v2, v1, {sr(S_K)}, 0 offen")
            g.raw(f"L_nodbg_{cls}:")
        else:
            g(f"buffer_store_dword v{vSTAMP}, v1, {sr(S_WS)}, s{sT0} offen")
        json.dump(names, open(sys.argv[1] + ".names", "w"))
    g("s_endpgm")

def main_kernel():
    kernel_open(MAIN)
    g(f"s_cmp_ge_u32 s2, 256")
    g(f"s_cbranch_scc1 L_main_end")
    if OPT['stamps']:
        g("s_memrealtime s[96:97]")
        g("s_memtime s[98:99]")
    if OPT['cpf_first']:
        g(f"s_getpc_b64 s[{sPC}:{sPC+1}]")
        g.raw("L_pc0:")
        g(f"s_lshr_b32 s{sT0}, s2, 3")
        g(f"s_lshl_b32 s{sT0}, s{sT0}, 12")
        g(f"v_lshl_add_u32 v2, v0, 4, s{sT0}")
        g(f"v_min_u32 v2, (L_{'text' if OPT['cpf_red'] else 'main'}_end-L_pc0)/16*16-16, v2")
        g(f"global_load_dword v{vDUM}, v2, s[{sPC}:{sPC+1}]", nodst=True)
    g("s_load_dwordx8 s[64:71], s[0:1], 0")
    g("s_load_dwordx2 s[72:73], s[0:1], 32")
    g("s_load_dwordx8 s[76:83], s[0:1], 40")
    g("s_load_dwordx2 s[74:75], s[0:1], 72")
    g("s_load_dwordx4 s[84:87], s[0:1], 80")
    g("s_load_dwordx2 s[4:5], s[0:1], 96")
    g(f"s_getpc_b64 s[{sPC}:{sPC+1}]")
    g.raw("L_pc:")
    L = 1
    t0, t1, t2, t3, t4, t5 = 2, 3, 4, 5, 6, 7
    g(f"v_lshrrev_b32 v{t0}, 6, v0")
    g(f"v_and_b32 v{L}, 63, v0")
    g(f"v_readfirstlane_b32 s{sW}, v{t0}")
    g(f"s_and_b32 s{sT0}, s2, 7")
    g(f"s_lshr_b32 s{sT1}, s2, 3")
    g(f"s_lshr_b32 s{sBR}, s{sT0}, 2")
    g(f"s_and_b32 s{sHG}, s{sT0}, 3")
    g(f"s_lshl_b32 s{sT0}, s{sHG}, 2")
    g(f"s_and_b32 s{sHP}, s{sT1}, 1")
    g(f"s_lshl_b32 s{sT2}, s{sHP}, 1")
    g(f"s_add_u32 s{sH0}, s{sT0}, s{sT2}")
    g(f"s_lshr_b32 s{sB0}, s{sT1}, 1")
    if OPT['nc'] == 3:
        g(f"s_mul_i32 s{sCLS}, s{sB0}, 11")
        g(f"s_lshr_b32 s{sCLS}, s{sCLS}, 5")
        g(f"s_mul_i32 s{sCLS}, s{sCLS}, 3")
        g(f"s_sub_u32 s{sCLS}, s{sB0}, s{sCLS}")
    else:
        g(f"s_and_b32 s{sCLS}, s{sB0}, {OPT['nc']-1}")
    g(f"s_lshl_b32 s{sB0}, s{sB0}, 1")
    g(f"s_lshl_b32 s{sWI}, s{sT1}, 2")
    g(f"s_add_u32 s{sWI}, s{sWI}, s{sW}")
    g(f"s_and_b32 s{sBSEL}, s{sW}, 1")
    g(f"s_lshr_b32 s{sJ}, s{sW}, 1")
    g(f"s_add_u32 s{sB}, s{sB0}, s{sBSEL}")
    g(f"s_lshl_b32 s{sM}, s{sW}, 13")
    g(f"s_lshl_b32 s{sVM}, s{sW}, 10")
    g(f"s_add_u32 s{sVM}, s{sVM}, {VB}")
    g(f"s_mov_b32 s{sXM}, s{sVM}")
    g(f"s_lshl_b32 s{sWQB}, s{sH0}, 9")
    g(f"s_mul_i32 s{sXB}, s{sB0}, 43008")
    g(f"s_lshl_b32 s{sT0}, s{sBSEL}, 4")
    g(f"s_lshl_b32 s{sT1}, s{sJ}, 2")
    g(f"s_add_u32 s{sT0}, s{sT0}, s{sT1}")
    g(f"s_lshl_b32 s{sT0}, s{sT0}, 13")
    g(f"v_lshlrev_b32 v{vSTO}, 4, v{L}")
    g(f"v_add_u32 v{t1}, s{sT0}, v{vSTO}")
    for i in range(8):
        const = (8 * (i >> 2) + (i & 3)) * 8192 - (i & 3) * 1024
        g(f"v_xor_b32 v{t0}, {32*i}, v{t1}")
        g(f"v_add_u32 v{vWQD+i}, {const}, v{t0}")
    g(f"v_lshrrev_b32 v{t0}, 3, v{L}")
    g(f"v_mul_u32_u24 v{t0}, 896, v{t0}")
    g(f"v_lshrrev_b32 v{t1}, 4, v{L}")
    g(f"s_lshl_b32 s{sT0}, s{sBSEL}, 2")
    g(f"v_add_u32 v{t1}, s{sT0}, v{t1}")
    g(f"v_and_b32 v{t2}, 7, v{L}")
    g(f"v_xor_b32 v{t1}, v{t1}, v{t2}")
    g(f"v_lshl_add_u32 v{t0}, v{t1}, 4, v{t0}")
    g(f"s_mul_i32 s{sT0}, s{sW}, 7168")
    g(f"v_add_u32 v{vXD}, s{sT0}, v{t0}")
    g(f"v_and_b32 v{t0}, 15, v{L}")
    g(f"v_lshrrev_b32 v{t1}, 4, v{L}")
    g(f"v_mov_b32 v{t5}, {BIG}")
    g(f"v_lshlrev_b32 v{t2}, 7, v{t0}")
    g(f"v_cmp_gt_u32 vcc, 16, v{L}")
    g(f"s_lshl_b32 s{sTWQ}, s{sWI}, 13")
    g(f"s_lshl_b32 s{sT0}, s{sHG}, 11")
    g(f"v_cndmask_b32 v9, v{t5}, v{t2}, vcc")
    g(f"s_add_u32 s{sTWQ}, s{sTWQ}, s{sT0}")
    g(f"v_lshl_add_u32 v{t2}, v{t1}, 20, v{t2}")
    g(f"v_cmp_gt_u32 vcc, 32, v{L}")
    g(f"s_lshl_b32 s{sT0}, s{sHP}, 2")
    g(f"s_add_u32 s{sT0}, s{sT0}, s{sW}")
    g(f"v_cndmask_b32 v{vTWQ}, v{t5}, v{t2}, vcc")
    g(f"s_mul_i32 s{sT1}, s{sT0}, 24")
    g(f"s_mul_i32 s{sT2}, s{sT0}, 36")
    g(f"v_add_u32 v{t2}, s{sT1}, v{L}")
    g(f"v_lshrrev_b32 v{t3}, 1, v{t2}")
    g(f"v_mul_u32_u24 v{t3}, 896, v{t3}")
    g(f"v_and_b32 v{t2}, 1, v{t2}")
    g(f"v_lshl_add_u32 v{t2}, v{t2}, 7, v{t3}")
    g(f"v_cmp_gt_u32 vcc, 24, v{L}")
    g(f"v_add_u32 v{t3}, s{sT2}, v{L}")
    g(f"v_mul_u32_u24 v{t4}, 21846, v{t3}")
    g(f"v_cndmask_b32 v{vTXA}, v{t5}, v{t2}, vcc")
    g(f"v_lshrrev_b32 v{t4}, 16, v{t4}")
    g(f"v_mul_u32_u24 v{t2}, 3, v{t4}")
    g(f"v_sub_u32 v{t3}, v{t3}, v{t2}")
    g(f"v_mul_u32_u24 v{t4}, 896, v{t4}")
    g(f"v_lshl_add_u32 v{t3}, v{t3}, 7, v{t4}")
    g(f"v_cmp_gt_u32 vcc, 36, v{L}")
    g(f"s_nop 1")
    g(f"v_cndmask_b32 v{vTXB}, v{t5}, v{t3}, vcc")
    g.smem_wait()
    g(f"s_cmp_eq_u32 s{sBR}, 0")
    for k in (0, 3, 1, 2, 4):
        bsrc = 76 + 2 * k if k < 4 else 74
        g(f"s_cselect_b64 s[{64+2*k}:{65+2*k}], s[{64+2*k}:{65+2*k}], s[{bsrc}:{bsrc+1}]")
    srd(S_X, 64, 65, 1376256)
    srd(S_WQ, 70, 71, 3670016)
    if OPT['w0dir'] == 1:
        emit_list(x_dma(0, "R0")); emit_list(ring_dma(0))
    emit_list(touch(9, S_WQ, sTWQ, 0))
    if OPT['w0dir'] == 2:
        emit_list(x_dma(0, "R0")); emit_list(ring_dma(0))
    if OPT['code_pf'] and not OPT['cpf_first']:
        g(f"s_min_u32 s{sT0}, s{sWI}, (L_main_end-L_pc)/1024-1")
        g(f"s_lshl_b32 s{sT0}, s{sT0}, 10")
        g(f"v_add_u32 v{t2}, s{sT0}, v{vSTO}")
        g(f"global_load_dword v{vDUM}, v{t2}, s[{sPC}:{sPC+1}]", nodst=True)
    if not OPT['w0dir']: emit_list(x_dma(0, "R0"))
    emit_list(x_dma(1, "R1" if OPT['w0dir'] else "R0"))
    g(f"v_mov_b32 v{vT16}, v9")
    sl = []
    if OPT['sta']:
        g(f"s_add_u32 s{sT0}, s{sTWQ}, {128*8192}")
        g(f"s_add_u32 s76, s70, s{sT0}")
        g(f"s_addc_u32 s77, s71, 0")
        g(f"s_lshl_b32 s{sT0}, s{sHP}, 2")
        g(f"s_add_u32 s{sT0}, s{sT0}, s{sW}")
        g(f"s_mul_i32 s{sT0}, s{sT0}, {12*896}")
        g(f"s_add_u32 s{sT0}, s{sT0}, s{sXB}")
        g(f"s_add_u32 s78, s64, s{sT0}")
        g(f"s_addc_u32 s79, s65, 0")
        sl = [f"s_load_dword s80, s[76:77], {k*128}" for k in range(16)]
        sl += [f"s_load_dword s80, s[78:79], {r*896 + 256 + c*128}" for r in range(12) for c in range(2)]
        sl = sl[:OPT['sta']]
        for i in sl[:OPT['stb']]: g(i)
        sl = sl[OPT['stb']:]
    g(f"v_lshrrev_b32 v{t2}, 1, v{t0}")
    g(f"v_xor_b32 v{t2}, v{t2}, v{t1}")
    g(f"v_lshlrev_b32 v{t2}, 4, v{t2}")
    g(f"v_lshl_add_u32 v{t2}, v{t0}, 7, v{t2}")
    g(f"s_mul_i32 s{sT0}, s{sBSEL}, 6144")
    g(f"s_add_u32 s{sT0}, s{sT0}, {VB}")
    g(f"v_add_u32 v{vXR}, s{sT0}, v{t2}")
    g(f"v_xor_b32 v{vXR+1}, 64, v{vXR}")
    g(f"v_lshlrev_b32 v{t2}, 7, v{L}")
    g(f"v_cmp_gt_u32 vcc, 32, v{L}")
    srd(S_K, 66, 67, 12582912)
    g(f"v_cndmask_b32 v{vT32}, v{t5}, v{t2}, vcc")
    srd(S_V, 68, 69, 12582912)
    srd(S_WO, 72, 73, 3670016)
    srd(S_WS, 4, 5, 22020096)
    u0, u1, u2 = 10, 11, 12
    g(f"v_lshrrev_b32 v{u0}, 2, v{L}")
    g(f"v_and_b32 v{u1}, 7, v{u0}")
    g(f"v_and_b32 v{u2}, 3, v{L}")
    g(f"v_lshlrev_b32 v{u2}, 3, v{u2}")
    g(f"s_lshl_b32 s{sT0}, s{sJ}, 9")
    g(f"v_lshl_add_u32 v{t3}, v{u0}, 10, v{u2}")
    g(f"v_add_u32 v{t3}, s{sT0}, v{t3}")
    for T in range(8):
        g(f"v_xor_b32 v{t4}, {T}, v{u1}")
        g(f"v_lshl_add_u32 v{vWQR+T}, v{t4}, 5, v{t3}")
        g(f"v_add_u32 v{vWQR+8+T}, 0x10000, v{vWQR+T}")
    g(f"s_lshl_b32 s{sT0}, s{sB}, 4")
    g(f"s_add_u32 s{sT0}, s{sT0}, s{sH0}")
    g(f"s_add_u32 s{sT0}, s{sT0}, s{sJ}")
    g(f"s_mul_i32 s{sKB}, s{sT0}, 24576")
    g(f"s_mul_i32 s{sKM}, s{sW}, 8320")
    g(f"s_add_u32 s{sKM}, s{sKM}, {KA}")
    g(f"v_lshlrev_b32 v{t2}, 2, v{t1}")
    g(f"v_xor_b32 v{t2}, v{t2}, v{t0}")
    g(f"v_lshlrev_b32 v{t2}, 4, v{t2}")
    g(f"v_lshl_add_u32 v{vKD}, v{t1}, 9, v{t2}")
    g(f"v_lshrrev_b32 v{t2}, 2, v{t0}")
    g(f"v_mul_u32_u24 v{t2}, 1040, v{t2}")
    g(f"v_and_b32 v{t3}, 3, v{t0}")
    g(f"v_lshl_add_u32 v{t2}, v{t3}, 8, v{t2}")
    g(f"v_lshl_add_u32 v{t2}, v{t1}, 3, v{t2}")
    g(f"v_add_u32 v{t2}, s{sKM}, v{t2}")
    for s4 in range(4):
        g(f"v_xor_b32 v{t4}, {s4}, v{t3}")
        g(f"v_lshl_add_u32 v{vKR+s4}, v{t4}, 6, v{t2}")
    g(f"s_mul_i32 s{sWOBASE}, s{sH0}, 229376")
    g(f"s_lshl_b32 s{sT0}, s{sB0}, 4")
    g(f"s_add_u32 s{sT0}, s{sT0}, s{sH0}")
    g(f"s_mul_i32 s{sVBASE}, s{sT0}, 24576")
    g(f"s_mul_i32 s{sT0}, s{sJ}, 393216")
    g(f"s_mul_i32 s{sT1}, s{sBSEL}, 12288")
    g(f"s_add_u32 s{sTV}, s{sVBASE}, s{sT0}")
    g(f"s_add_u32 s{sTV}, s{sTV}, s{sT1}")
    g(f"s_add_u32 s{sT0}, s{sH0}, s{sBR}")
    g(f"s_lshl_b32 s{sT0}, s{sT0}, 5")
    g(f"s_add_u32 s{sT0}, s{sT0}, s{sB}")
    g(f"s_mul_i32 s{sST}, s{sT0}, 43008")
    g(f"s_mul_i32 s{sT0}, s{sJ}, 3072")
    g(f"s_add_u32 s{sST}, s{sST}, s{sT0}")
    g(f"s_mov_b32 s{sC}, 0x{struct.unpack('<I', struct.pack('<f', 1.4426950408889634/16.0))[0]:08x}")
    g(f"s_lshr_b32 s{sT0}, s{sWI}, 6")
    g(f"s_lshl_b32 s{sT1}, s{sHG}, 1")
    g(f"s_add_u32 s{sT0}, s{sT0}, s{sT1}")
    g(f"s_mul_i32 s{sTWO}, s{sT0}, 458752")
    g(f"s_and_b32 s{sT0}, s{sWI}, 63")
    g(f"s_mul_i32 s{sT0}, s{sT0}, 3584")
    g(f"s_add_u32 s{sTWO}, s{sTWO}, s{sT0}")
    g(f"s_mul_i32 s{sT0}, s{sBSEL}, 24576")
    g(f"s_add_u32 s{sT0}, s{sT0}, {VB}")
    g(f"v_xor_b32 v{t3}, v{t1}, v{t0}")
    g(f"v_lshlrev_b32 v{t3}, 4, v{t3}")
    g(f"v_lshl_add_u32 v{t3}, v{t0}, 8, v{t3}")
    g(f"v_add_u32 v{vVR}, s{sT0}, v{t3}")
    for s4 in range(1, 4):
        g(f"v_xor_b32 v{vVR+s4}, {64*s4}, v{vVR}")
    g(f"s_lshl_b32 s{sT0}, s{sW}, 2")
    g(f"v_add_u32 v{t3}, s{sT0}, v{t1}")
    g(f"v_xor_b32 v{t3}, v{t3}, v{t0}")
    g(f"v_lshlrev_b32 v{t3}, 4, v{t3}")
    g(f"v_lshl_add_u32 v{t3}, v{t1}, 9, v{t3}")
    g(f"s_lshl_b32 s{sT0}, s{sW}, 11")
    g(f"v_add_u32 v{vVD}, s{sT0}, v{t3}")
    g(f"v_lshl_add_u32 v{t3}, v{u0}, 7, v{u2}")
    g(f"v_bfe_u32 v{t2}, v{L}, 3, 2")
    g(f"s_lshl_b32 s{sT0}, s{sJ}, 1")
    for T in range(2):
        g(f"s_add_u32 s{sT3}, s{sT0}, {T}")
        g(f"v_xor_b32 v{t4}, s{sT3}, v{t2}")
        g(f"v_lshl_add_u32 v{vWOR+T}, v{t4}, 5, v{t3}")
        g(f"v_add_u32 v{vWOR+2+T}, 0x10000, v{vWOR+T}")
    g(f"v_lshrrev_b32 v{t3}, 5, v{L}")
    g(f"v_lshl_add_u32 v{t2}, v{t3}, 3, v{t2}")
    g(f"v_mul_u32_u24 v{t2}, 896, v{t2}")
    g(f"v_lshlrev_b32 v{t3}, 1, v{t1}")
    g(f"v_and_b32 v{t4}, 7, v{L}")
    g(f"v_xor_b32 v{t3}, v{t3}, v{t4}")
    g(f"v_lshl_add_u32 v{t2}, v{t3}, 4, v{t2}")
    g(f"s_mul_i32 s{sT0}, s{sW}, 57344")
    g(f"v_add_u32 v{vWOD}, s{sT0}, v{t2}")
    for k in range(1, 4):
        g(f"v_add_u32 v{vWOD+k}, {(16*(k&1) + 4*(k>>1))*896 - k*1024}, v{vWOD}")
    g(f"s_mul_i32 s{sT0}, s{sBSEL}, 3072")
    g(f"s_add_u32 s{sT0}, s{sT0}, {PB}")
    g(f"v_add_u32 v{vPW}, s{sT0}, v{vSTO}")
    g(f"s_mul_i32 s{sT1}, s{sBSEL}, 1536")
    g(f"s_add_u32 s{sT1}, s{sT1}, {PB + 12288}")
    g(f"v_lshl_add_u32 v{vPW2}, v{L}, 3, s{sT1}")
    g(f"s_mul_i32 s{sPX}, s{sJ}, 6144")
    g(f"s_cmp_eq_u32 s{sJ}, 0")
    g(f"s_cselect_b64 s[{sPD}:{sPD+1}], -1, 0")
    g(f"s_sub_u32 s{sT0}, s{sT0}, s{sT1}")
    g(f"s_cmp_eq_u32 s{sJ}, 0")
    g(f"s_cselect_b32 s{sPY}, s{sT0}, 0")
    if OPT['tlb']:
        g(f"v_and_b32 v{t2}, 1, v{L}")
        g(f"v_mul_u32_u24 v{t2}, 393216, v{t2}")
        g(f"v_lshrrev_b32 v{t3}, 1, v{L}")
        g(f"v_mul_u32_u24 v{t3}, 49024, v{t3}")
        g(f"v_add_u32 v{t2}, v{t2}, v{t3}")
        g(f"v_cmp_gt_u32 vcc, 4, v{L}")
        g(f"v_lshlrev_b32 v{t3}, 17, v{L}")
        g(f"v_mul_u32_u24 v{t4}, 39808, v{L}")
        g(f"v_cndmask_b32 v{t2}, v{t5}, v{t2}, vcc")
        g(f"v_cndmask_b32 v{t3}, v{t5}, v{t3}, vcc")
        g(f"v_cmp_gt_u32 vcc, 2, v{L}")
        g(f"buffer_load_dword v{vDUM}, v{t2}, {sr(S_K)}, s{sVBASE} offen nt", nodst=True)
        g(f"v_cndmask_b32 v{t4}, v{t5}, v{t4}, vcc")
        g(f"buffer_load_dword v{vDUM}, v{t2}, {sr(S_V)}, s{sVBASE} offen nt", nodst=True)
        g(f"buffer_load_dword v{vDUM}, v{t3}, {sr(S_WO)}, s{sWOBASE} offen", nodst=True)
        g(f"buffer_load_dword v{vDUM}, v{t4}, {sr(S_WS)}, s{sST} offen nt", nodst=True)
    while sl:
        g.smem_wait()
        for i in sl[:OPT['stb']]: g(i)
        sl = sl[OPT['stb']:]
    emit_list(touches(-1))
    if not OPT['w0dir']: emit_list(ring_dma(0))
    if OPT['w1pro']: emit_list(ring_dma(1))
    if OPT['fuse']:
        srd(S_FLG, 4, 5, 22020096 + 32 * 256)
        srd(S_OUT, 84, 85, 2752512)
        srd(S_DBG, 86, 87, 256)
        g(f"s_lshl_b32 s{sT0}, s{sBR}, 5")
        g(f"s_add_u32 s{sT0}, s{sT0}, s{sB0}")
        g(f"s_lshl_b32 s{sFLG}, s{sT0}, 7")
        g(f"s_add_u32 s{sFLG}, s{sFLG}, 22020096")
    stamp('pro')
    if OPT['sta']: g.smem_wait()
    g.wait_tag("R0")
    g.barrier()
    stamp('b0')
    import copy
    NC = OPT['nc']
    for cls in range(1, NC):
        g(f"s_cmp_eq_u32 s{sCLS}, {cls}")
        g(f"s_cbranch_scc1 L_body_{cls}")
    saved = copy.deepcopy({k: v for k, v in g.__dict__.items() if k != 'lines'})
    st0 = (nstamp, pending, list(names))
    for cls in range(NC):
        for k, v in copy.deepcopy(saved).items(): setattr(g, k, v)
        globals().update(nstamp=st0[0], pending=st0[1], names=list(st0[2]))
        if cls: g.raw(".p2align 6"); g.raw(f"L_body_{cls}:")
        body(cls)
    g.raw("L_main_end:")
    g("s_endpgm")

S_OUT, S_DBG = 76, 80
sLD, sSTO, sCNT, sLASTA, sLASTB = 64, 67, 70, 71, 72
vARR = 254
def fuse_flag_loads():
    return [(f"v_mov_b32 v{vFLAG}, 0", None),
            (f"buffer_load_dword v{vFLAG+1}, v{vFLAG}, {sr(S_FLG)}, s{sFLG} offen offset:128 sc1", None),
            (f"buffer_load_dword v{vFLAG}, v{vFLAG}, {sr(S_FLG)}, s{sFLG} offen sc1", None)]

def fuse_setup():
    o = []
    e = lambda t: o.append((t, None))
    A, C, Rr, T0, T1, TB, WN = 73, 74, 75, 86, 87, 84, 85
    e(f"s_lshl_b32 s{T0}, s{sBR}, 5")
    e(f"s_add_u32 s{T0}, s{T0}, s{sB0}")
    e(f"s_lshl_b32 s{sCNT}, s{T0}, 1")
    e(f"s_mul_i32 s{TB}, s{T0}, 43008")
    e(f"s_lshl_b32 s{WN}, s{sH0}, 1")
    e(f"s_add_u32 s{WN}, s{WN}, s{sW}")
    for k, add in enumerate((0, 24, 56)):
        ld, st = sLD + k, sSTO + k
        e(f"s_add_u32 s{A}, s{WN}, {add}")
        e(f"s_mul_i32 s{C}, s{A}, 43")
        e(f"s_lshr_b32 s{C}, s{C}, 9")
        e(f"s_mul_i32 s{Rr}, s{C}, 12")
        e(f"s_sub_u32 s{Rr}, s{A}, s{Rr}")
        e(f"s_mul_i32 s{T0}, s{Rr}, 43")
        e(f"s_lshr_b32 s{T0}, s{T0}, 8")
        e(f"s_mul_i32 s{T1}, s{T0}, 6")
        e(f"s_sub_u32 s{Rr}, s{Rr}, s{T1}")
        e(f"s_mul_i32 s{ld}, s{C}, 6")
        e(f"s_add_u32 s{ld}, s{ld}, s{Rr}")
        e(f"s_lshl_b32 s{ld}, s{ld}, 10")
        e(f"s_mul_i32 s{T1}, s{T0}, 43008")
        e(f"s_add_u32 s{ld}, s{ld}, s{T1}")
        e(f"s_add_u32 s{ld}, s{ld}, s{TB}")
        e(f"s_mul_i32 s{T1}, s{Rr}, 43")
        e(f"s_lshr_b32 s{T1}, s{T1}, 7")
        e(f"s_lshl_b32 s{C}, s{C}, 1")
        e(f"s_add_u32 s{C}, s{C}, s{T1}")
        e(f"s_lshl_b32 s{C}, s{C}, 6")
        e(f"s_mul_i32 s{T1}, s{T1}, 3")
        e(f"s_sub_u32 s{Rr}, s{Rr}, s{T1}")
        e(f"s_add_u32 s{T0}, s{T0}, s{sB0}")
        e(f"s_mul_i32 s{T0}, s{T0}, 3")
        e(f"s_add_u32 s{T0}, s{T0}, s{Rr}")
        e(f"s_mul_i32 s{st}, s{T0}, {16*1792}")
        e(f"s_add_u32 s{st}, s{st}, s{C}")
        e(f"s_mul_i32 s{T0}, s{sBR}, 896")
        e(f"s_add_u32 s{st}, s{st}, s{T0}")
        if k != 1:
            mul, sh = ((11, 8), None, (37, 10))[k]
            e(f"s_mul_i32 s{T0}, s{WN}, {mul}")
            e(f"s_lshr_b32 s{T0}, s{T0}, {sh}")
            e(f"s_mul_i32 s{T0}, s{T0}, {BIG}")
            e(f"s_add_u32 s{ld}, s{ld}, s{T0}")
            e(f"s_add_u32 s{st}, s{st}, s{T0}")
    return o

def wave0(lbl, fn):
    g(f"s_cmp_lg_u32 s{sW}, 0")
    g(f"s_cbranch_scc1 {lbl}")
    n0, vm0, lg0 = g.n, list(g.vm), list(g.lgkm)
    g("s_mov_b64 exec, 1")
    fn()
    g("s_mov_b64 exec, -1")
    g.raw(f"{lbl}:")
    g.n, g.vm, g.lgkm = n0, vm0, lg0

def arrive(which):
    g(f"v_mov_b32 v{vARR}, 1")
    g(f"v_mov_b32 v{vZERO}, 0")
    g(f"buffer_atomic_add v{vARR}, v{vZERO}, {sr(S_DBG)}, s{sCNT} offen offset:{128*which} sc0")

def publish(which, cls, nwait):
    last = (sLASTA, sLASTB)[which]
    g.raw(f"    s_waitcnt vmcnt({nwait})"); g.n += 1
    g(f"v_readfirstlane_b32 s{last}, v{vARR}")
    g(f"s_and_b32 s{last}, s{last}, 7")
    g(f"s_cmp_lg_u32 s{last}, 7")
    g(f"s_cbranch_scc1 L_nl{which}_{cls}")
    g(f"v_add_u32 v{vARR}, 1, v{vFLAG+which}")
    g(f"buffer_store_dword v{vARR}, v{vZERO}, {sr(S_FLG)}, s{sFLG} offen offset:{128*which} sc1")
    g.raw(f"L_nl{which}_{cls}:")

def poll(which, cls):
    last = (sLASTA, sLASTB)[which]
    g(f"s_cmp_eq_u32 s{last}, 7")
    g(f"s_cbranch_scc1 L_got{which}_{cls}")
    g(f"s_mov_b32 s85, 0x40000")
    g(f"v_readfirstlane_b32 s87, v{vFLAG+which}")
    g.raw(f"L_poll{which}_{cls}:")
    g(f"buffer_load_dword v204, v{vZERO}, {sr(S_FLG)}, s{sFLG} offen offset:{128*which} sc1")
    g.raw("    s_waitcnt vmcnt(0)"); g.n += 1; g.vm = []
    g(f"v_readfirstlane_b32 s86, v204")
    g(f"s_cmp_lg_u32 s86, s87")
    g(f"s_cbranch_scc1 L_got{which}_{cls}")
    g(f"s_sleep {OPT['slp']}")
    g(f"s_sub_u32 s85, s85, 1")
    g(f"s_cmp_lg_u32 s85, 0")
    g(f"s_cbranch_scc1 L_poll{which}_{cls}")
    g.raw(f"L_got{which}_{cls}:")

def sum_round(ks, mid=None):
    for k in ks:
        for p in range(8):
            if p == 0: g(f"s_mov_b32 s{sT0}, s{sLD+k}")
            else: g(f"s_add_u32 s{sT0}, s{sT0}, {64*43008}")
            g(f"buffer_load_dwordx4 {vr((k*8+p)*4)}, v{vSTO}, {sr(S_WS)}, s{sT0} offen sc1")
    if mid: mid()
    for k in ks:
        A, B = 100 + 24 * k, 108 + 24 * k
        for p in range(8):
            for q in range(4):
                src = (k * 8 + p) * 4 + q
                d = A if p == 0 else B
                g(f"v_lshlrev_b32 v{d+2*q}, 16, v{src}")
                g(f"v_and_b32 v{d+2*q+1}, 0xffff0000, v{src}")
            if p:
                for q in range(8):
                    g(f"v_add_f32 v{A+q}, v{A+q}, v{B+q}")
        O = 116 + 24 * k
        for q in range(4):
            g(f"v_cvt_pk_bf16_f32 v{O+q}, v{A+2*q}, v{A+2*q+1}")
        g(f"v_permlane32_swap_b32 v{O}, v{O+2}")
        g(f"v_permlane32_swap_b32 v{O+1}, v{O+3}")
        g(f"v_permlane16_swap_b32 v{O}, v{O+2}")
        g(f"v_permlane16_swap_b32 v{O+1}, v{O+3}")
        g(f"buffer_store_dwordx4 {vr(O)}, v201, {sr(S_OUT)}, s{sSTO+k} offen{FL[OPT['osf']]}")

def fused_reduce(cls):
    g(f"v_lshrrev_b32 v200, 4, v{vSTO}")
    g(f"v_and_b32 v201, 15, v200")
    g(f"v_mul_u32_u24 v201, 1792, v201")
    g(f"v_lshrrev_b32 v200, 4, v200")
    g(f"v_lshl_add_u32 v201, v200, 4, v201")
    wave0(f"L_w1_{cls}", lambda: poll(0, cls))
    g.wait_all()
    g.barrier()
    stamp('stdrain')
    wave0(f"L_w2_{cls}", lambda: arrive(1))
    n0 = g.vmtot
    sum_round([0], mid=lambda: wave0(f"L_w3_{cls}", lambda: publish(1, cls, g.vmtot - n0)))
    stamp('sumA')
    wave0(f"L_w4_{cls}", lambda: poll(1, cls))
    g.barrier()
    stamp('metB')
    sum_round([1, 2])

CLS = [0, 0]
def body(cls):
    CLS[0] = cls
    KS = [OPT[f'k{u}'] + cls * OPT['kstep'] for u in range(3)]
    TWO0 = OPT['t_wo0'] + cls * OPT['kstep']
    TB = OPT['t_b'] + cls * OPT['kstep']
    V1A = OPT['v1'] + (cls * OPT['vstep']) % 3
    V1B = OPT['v1b'] - 3 + (3 + cls * OPT['vstep']) % 3 + (0 if True else 0)
    V1B = OPT['v1b']
    emit_list(x_reads(0))
    def early_touches(R): return touches(R, cls * OPT['kstep'])
    fq.add(([] if OPT['w0dir'] else x_reads(1)) + ([] if OPT['w1pro'] else ring_dma(1)) + ring_dma(2) + early_touches(0))
    x_issue = {1: (2, "R3"), 2: (3, "R4"), 5: (4, "R7"), 6: (5, "R8"), 8: (6, "R10")}
    x_read = {3: 2, 4: 3, 7: 4, 8: 5, 10: 6}
    if OPT['w0dir']: x_read[1] = 1
    x_issue = {k: [v] for k, v in x_issue.items()}
    x_read = {k: [v] for k, v in x_read.items()}
    if OPT['xdir']:
        kw = OPT['kw']
        x_issue = {KS[0]: [(2, f"R{KS[0]+kw}"), (3, f"R{KS[0]+kw}")], KS[1]: [(4, f"R{KS[1]+kw}"), (5, f"R{KS[1]+kw}")], KS[2]: [(6, f"R{KS[2]+kw}")]}
        x_read = {KS[0] + kw: [2, 3], KS[1] + kw: [4, 5], KS[2] + kw: [6]}
        assert KS[0] >= 1 and KS[0] + kw <= 4 and KS[1] + kw <= 8 and KS[2] + kw <= 12 and OPT['v0a'] > KS[2] + kw
    k_issue = {KS[u]: u for u in range(3)}
    KW = [OPT[f'kw{u}'] or OPT['kw'] for u in range(3)]
    k_read = {KS[u] + KW[u]: u for u in range(3)}
    assert max(k_read) <= 13 and OPT['v0b'] > max(k_read) and OPT['v0a'] >= 11
    for u in range(2): assert KS[u+1] > KS[u] + KW[u]
    if 0 in k_issue: fq.add(k_dma(k_issue[0], f"R{OPT['kw']}"))
    def after1(R):
        out = []
        for p in x_read.get(R, []): out += x_reads(p)
        if R in k_read: out += k_reads(k_read[R])
        out += ring_dma(R + 2)
        for a in x_issue.get(R, []): out += x_dma(*a)
        if R in k_issue: out += k_dma(k_issue[R], f"R{R+KW[k_issue[R]]}")
        if OPT['fuse'] and R == KS[0]: out += fuse_flag_loads()
        if OPT['fuse'] and R in (3, 4, 6, 8):
            fs = fuse_setup(); q = (len(fs) + 3) // 4; i = (3, 4, 6, 8).index(R)
            out += fs[i*q:(i+1)*q]
        if R == OPT['v0a']: out += v_dma(0, range(7))
        if R == OPT['v0b']: out += v_dma(0, range(7, 12))
        out += early_touches(R)
        return out
    run_stages(q_groups(), after1, lambda R: f"R{R}" if R < 14 else "none", tail_barrier=True)
    stamp('G1end')
    def s_mf(t):
        return [f"v_mfma_f32_16x16x32_bf16 {vr(SACC+(t*3+u)*4)}, {ar(aK+(u*8+s)*4)}, {vr(QFRAG(s,t))}, {vr(SACC+(t*3+u)*4) if s else 0}"
                for s in range(8) for u in range(3)]
    if OPT['spack']:
        left_v = [it for it in fq.q if fq.kind(it) == 'v']
        vmq = [it for it in fq.q if fq.kind(it) != 'v']; fq.q = []
        if OPT['ecv']:
            todo = set(it[0] for it in left_v) | set(i for t in range(3) for i in cvt_pairs(QACC, [7], t))
            lists = [[i for t in range(3) for i in cvt_pairs(QACC, range(8), t) if i in todo],
                     softmax_ops(0), softmax_ops(1)]
        else:
            for ins in cvt_pairs(QACC, range(2), 0): g(ins)
            lists = [cvt_pairs(QACC, range(2, 8), 0) + cvt_pairs(QACC, range(8), 1)[:18],
                     cvt_pairs(QACC, range(8), 1)[18:] + cvt_pairs(QACC, range(8), 2),
                     softmax_ops(0)]
        cnt = 0
        for t in range(3):
            fq.add([(i, None) for i in lists[t]])
            if t == 0: fq.q[0:0] = vmq; vmq = []
            for m in s_mf(t):
                fq.guard(m)
                g(m); cnt += 1
                fill_gap(None, cnt % OPT['svm'] == 0, False)
        rest = [it[0] for it in fq.q if fq.kind(it) in 've']
        fq.q = [it for it in fq.q if fq.kind(it) not in 've']
        fq.drain()
        if OPT['ecv']:
            r0 = [i for i in rest if i in set(softmax_ops(0))]
            r1 = [i for i in rest if i not in set(softmax_ops(0))]
            for ins in merge(r0, r1, softmax_ops(2)): g(ins)
        else:
            for ins in merge(rest, softmax_ops(1), softmax_ops(2)): g(ins)
    else:
        def paced(ins_list, every):
            n = 0
            for ins in ins_list:
                g(ins); n += 1
                if n % every == 0:
                    while len(fq) and not fq.is_vm(fq.q[0]): fq.pop()
                    if len(fq): fq.pop()
        paced(cvt_pairs(QACC, range(8), 0), 8)
        def mix(mf, fill):
            o = []; fill = list(fill)
            for m in mf:
                o.append(m)
                for _ in range(2):
                    if fill: o.append(fill.pop(0))
            return o + fill
        paced(mix(s_mf(0), cvt_pairs(QACC, range(8), 1)), 10)
        paced(mix(s_mf(1), cvt_pairs(QACC, range(8), 2)), 10)
        fq.drain()
        sm0 = softmax_ops(0)
        interleave(s_mf(2), sm0[:40])
        for ins in merge(sm0[40:], softmax_ops(1), softmax_ops(2)): g(ins)
    stamp('SM')
    g(f"v_add_u32 v{vPA}, s{sPX}, v{vPW}")
    g(f"v_add_u32 v{vPB}, s{sPY}, v{vPW2}")
    p_write0()
    g.wait_tag(["V0", "R14"], lg=0)
    g.barrier()
    stamp('Pbar')
    for s in range(OPT['vup']):
        for u in range(3): emit_list([v_read(u, s)])
    for s in range(OPT['vup'], 8):
        fq.add([v_read(u, s) for u in range(3)])
    def after2(R):
        out = []
        if R == OPT['p1'] + 1: out += p_readsu2(1) + p_reads32(1)
        if R == 15: out += p_reads32(0) + p_readsu2(0)
        out += ring_dma(R + 2)
        if OPT['v1m']:
            if R == V1A: out += v_dma(1, range(4))
            if R == OPT['v1m']: out += v_dma(1, range(4, 8))
            if R == V1B: out += v_dma(1, range(8, 12))
        else:
            if R == V1A: out += v_dma(1, range(6))
            if R == V1B: out += v_dma(1, range(6, 12))
        out += early_touches(R)
        if R == OPT['p1']: out = p_write1() + out
        return out
    def wt(R):
        if OPT['fuse'] and R == OPT['arr']: return [f"R{R}", "ST0", "ST1"]
        return [f"R{R}", "V1"] if R == 20 else f"R{R}"
    run_stages(o_groups(), after2, wt, tail_barrier=False)
    fq.drain()
    stamp('G2end')
    emit_list(vw_cvt(27))
    fa, fb = final_groups(27, 27)
    for m in fa['mfmas'] + fb['mfmas']: g(m)
    emit_list(epilogue_ops(6))
    stamp('epi')
    if OPT['fuse']: fused_reduce(cls)
    if OPT['stamps']:
        g.wait_all()
        stamp('drain')
    finish_stamps(cls)

def reduce_kernel():
    global g
    lines = g.lines
    g = Gen(); g.lines = lines
    NF, WV = OPT['rnf'], OPT['rwv']
    nwg = 2688 // (NF * WV)
    kernel_open(RED)
    g(f"s_cmp_ge_u32 s2, {nwg}")
    g("s_cbranch_scc1 L_red_end")
    if OPT['stamps']: g("s_memrealtime s[40:41]")
    g("s_load_dwordx2 s[4:5], s[0:1], 80")
    g("s_load_dwordx2 s[6:7], s[0:1], 96")
    g("v_lshrrev_b32 v2, 6, v0")
    g("v_and_b32 v3, 63, v0")
    g("v_readfirstlane_b32 s21, v2")
    g("v_lshlrev_b32 v1, 4, v3")
    g("v_and_b32 v4, 15, v3")
    g("v_mul_u32_u24 v4, 1792, v4")
    g("v_lshrrev_b32 v5, 4, v3")
    g("v_lshl_add_u32 v4, v5, 4, v4")
    g(f"s_mul_i32 s16, s2, {WV}")
    g("s_add_u32 s16, s16, s21")
    g(f"s_mul_i32 s16, s16, {NF}")
    g("s_lshl_b32 s19, s16, 10")
    g.smem_wait()
    srd(8, 6, 7, 22020096)
    for f in range(NF):
        for p in range(8):
            g(f"s_add_u32 s20, s19, {p*64*43008}")
            g(f"buffer_load_dwordx4 {vr(8+4*(f*8+p))}, v1, s[8:11], s20 offen offset:{f*1024}{FL[OPT['ldf']]}")
    srd(12, 4, 5, 2752512)
    g("s_mov_b32 s30, 0x3f80")
    g("s_mov_b32 s31, 0x3f800000")
    for f in range(NF):
        g(f"s_add_u32 s17, s16, {f}")
        g("s_mul_i32 s18, s17, 6242")
        g("s_lshr_b32 s18, s18, 18")
        g("s_mul_i32 s22, s18, 42")
        g("s_sub_u32 s22, s17, s22")
        g("s_mul_i32 s23, s22, 43")
        g("s_lshr_b32 s23, s23, 7")
        g("s_mul_i32 s24, s23, 3")
        g("s_sub_u32 s24, s22, s24")
        g("s_and_b32 s25, s18, 31")
        g("s_mul_i32 s25, s25, 3")
        g("s_add_u32 s25, s25, s24")
        g(f"s_mul_i32 s{32+f}, s25, {16*1792}")
        g("s_lshr_b32 s25, s18, 5")
        g("s_mul_i32 s25, s25, 896")
        g(f"s_add_u32 s{32+f}, s{32+f}, s25")
        g("s_lshl_b32 s23, s23, 6")
        g(f"s_add_u32 s{32+f}, s{32+f}, s23")
    base = 8 + 32 * NF
    for f in range(NF):
        A, B, O = base, base + 8, base + 16
        for p in range(8):
            for k in range(4):
                src = 8 + 4 * (f * 8 + p) + k
                if OPT['rdot']:
                    for h in range(2):
                        g(f"v_dot2_f32_bf16 v{A+2*k+h}, v{src}, s{30+h}, {'v%d' % (A+2*k+h) if p else 0}")
                else:
                    d = A if p == 0 else B
                    g(f"v_lshlrev_b32 v{d+2*k}, 16, v{src}")
                    g(f"v_and_b32 v{d+2*k+1}, 0xffff0000, v{src}")
            if p and not OPT['rdot']:
                for k in range(8):
                    g(f"v_add_f32 v{A+k}, v{A+k}, v{B+k}")
        if OPT['rdot']: g.nop(3)
        for k in range(4):
            g(f"v_cvt_pk_bf16_f32 v{O+k}, v{A+2*k}, v{A+2*k+1}")
        g(f"v_permlane32_swap_b32 v{O}, v{O+2}")
        g(f"v_permlane32_swap_b32 v{O+1}, v{O+3}")
        g(f"v_permlane16_swap_b32 v{O}, v{O+2}")
        g(f"v_permlane16_swap_b32 v{O+1}, v{O+3}")
        g(f"buffer_store_dwordx4 {vr(O)}, v4, s[12:15], s{32+f} offen{FL[OPT['osf']]}")
    if OPT['stamps']:
        g.wait_all()
        g("s_memrealtime s[42:43]")
        g.smem_wait()
        g("s_mov_b32 s10, 0x10000000")
        g(f"s_lshl_b32 s20, s16, 3")
        g(f"s_add_u32 s20, s20, {25<<20}")
        g("v_mov_b32 v6, s40"); g("v_mov_b32 v7, s42"); g("v_mov_b32 v1, 0")
        g("buffer_store_dwordx2 v[6:7], v1, s[8:11], s20 offen")
    g.raw("L_red_end:")
    g("s_endpgm")
    g.raw("L_text_end:")

def descriptors():
    g.raw('.section .rodata,"a"')
    for name, nv, acc in ((MAIN, 512, 256), (RED, 32 * OPT['rnf'] + 32, 32 * OPT['rnf'] + 32))[:1 if OPT['fuse'] else 2]:
        g.raw(".p2align 6")
        g.raw(f".amdhsa_kernel {name}")
        g.raw(f"  .amdhsa_next_free_vgpr {nv}")
        g.raw("  .amdhsa_next_free_sgpr 102")
        g.raw(f"  .amdhsa_accum_offset {acc}")
        g.raw("  .amdhsa_group_segment_fixed_size 0")
        g.raw("  .amdhsa_kernarg_size 104")
        g.raw("  .amdhsa_user_sgpr_count 2")
        g.raw("  .amdhsa_user_sgpr_kernarg_segment_ptr 1")
        g.raw("  .amdhsa_system_sgpr_workgroup_id_x 1")
        g.raw("  .amdhsa_float_denorm_mode_32 3")
        g.raw(".end_amdhsa_kernel")

header()
main_kernel()
st = dict(g.stats)
if not OPT['fuse']: reduce_kernel()
else: g.raw('L_text_end:')
descriptors()
open(sys.argv[1], "w").write(g.text())
print("main stats", st, "forced", fq.forced)
```

```python
import sys, struct, json
from asmgen import Gen, classify

NAME = "concat_heads__mha_block_cached__gqa_block_cached__near_ridge"
MAIN = NAME + "_kernel"
RED = "reduce_partials_kernel"

OPT = dict(bar_group=10, D=7, stamps=0, code_pf=1, touch=1, ntk=1, ntv=1, nttw=0, nttx=0,
           k0=2, k1=6, k2=10, kw=3, t_wo0=8, t_wo1=16, v1=15, v1b=18, p1=17, t_a=0, t_b=4, v0a=13, nc=1, kstep=1, vstep=1, ntfirst=1, pace=1, diag=0, nok=0, nov=0, now=0, nost=0, nox=0, dbg=0, stf=1, ldf=0, osf=0, tlb=0, cpf_first=1, cpf_red=0, cpf2=0, fuse=1, slp=2, t_xa=0, t_xb=4, ret=0, hw=1, nobar=0, lastb=2, w1pro=1, pack=1, ring=8, spack=1, v0b=14, xdir=0, pw=1, arr=26, pubs=26, pubi=13, ic=2, ia=6, ib=8, ie=11, vup=3, t_v1=99, nttv=0, ntv1=1, v1m=0, rnf=1, rwv=6, rdot=0, sta=0, stb=14, w0dir=1, kw0=0, kw1=0, kw2=0, rs=1, ecv=1, svm=4, vearly=0, vpos=0, wdel=0, syncw=0, na=24, arri=2, wsb=1, prep=1)
FL = ['', ' sc1', ' sc0 sc1', ' nt', ' sc1 nt', ' sc0 sc1 nt']
for a in sys.argv[2:]:
    k, v = a.split('=')
    assert k in OPT, k
    OPT[k] = int(v)
def NT(k): return ' nt' if OPT[k] else ''

SLOT = 32768
VB = 3 * SLOT
XU = 12288
KA = VB + 65536 - 4 * 8320
PB = VB + 49152
LDS_BYTES = 163840
BIG = 0x7ffff000

S_X, S_K, S_V, S_WQ, S_WO, S_WS = 8, 12, 16, 20, 24, 28
sW, sBSEL, sJ, sBR, sH0, sB0, sB = 32, 33, 34, 35, 36, 37, 38
sWQB = 39
sXB, sXM, sKB, sKM, sXO, sKO, sWQO, sWOO, sWOO2, sVO = 40, 41, 42, 43, 44, 45, 46, 47, 48, 49
sM, sVM, sST, sC = 50, 51, 52, 53
sT0, sT1, sT2, sT3 = 54, 55, 56, 57
sVBASE, sWOBASE = 58, 59
sPC = 60
sTWQ = 63
sTV = 62
sHG, sHP, sWI, sTWO, sCLS = 88, 89, 90, 91, 94
S_FLG, sFLG = 4, 95
sPD = 100
sPX, sPY = 3, 61
STB = 64

def QACC(T, t): return (((T // 2) * 3 + t) * 4) + (96 if T & 1 else 0)
def QFRAG(s, t): return (s * 3 + t) * 4
SACC = 192
vWQR = 192
vWQD = 208
vXR = 216
vXD = 218
vKR = 219
vKD = 223
vTWQ = 224
vTXA = 225
vTXB = 226
vT16 = 227
vWOD = 228
vVD = 232
vVR = 233
vWOR = 237
vSTO = 241
vPW = 242
vPW2 = 243
vT32 = 244
vDUM = 245
vFLAG = 252
vZERO = 179
vPUB = 176
vSM = 246
def VFRAG(u, s): return (u * 8 + s) * 4
vPOWN = 96
vP32 = [114, 126]
vPU2 = 138
vPA, vPB = 162, 163
vVWB = 150
vEP = 96
def VWACC(par, T, u): return 180 + par * 24 + (T * 3 + u) * 4
aFR, aK, aX, XRING, aOUT = 0, 40, 136, 10, 40
def U2(c, T):
    k = c * 2 + T
    return 32 + 4 * k if k < 2 else 208 + 4 * (k - 2)
def OUTACC(c, T, t): return aOUT + ((c * 2 + T) * 3 + t) * 4

def vr(b, n=4): return f"v[{b}:{b+n-1}]"
def ar(b, n=4): return f"a[{b}:{b+n-1}]"
def sr(b, n=4): return f"s[{b}:{b+n-1}]"

g = Gen()
nstamp = 0
vSTAMP = 255
pending = False
names = []
def stamp_flush():
    global pending
    if pending:
        g(f"v_writelane_b32 v{vSTAMP}, s92, {nstamp-1}")
        pending = False
def stamp(name="", real=False, drained=False):
    global nstamp, pending
    if OPT['stamps']:
        if pending:
            if not drained: g.smem_wait()
            stamp_flush()
        g(f"{'s_memrealtime' if real else 's_memtime'} s[92:93]")
        names.append(name); nstamp += 1; pending = True

def header():
    g.raw("; fused attention block: each workgroup (2 batches x 2 heads of one branch) computes q-proj, softmax and a partial out-proj;")
    g.raw("; the 8 workgroups of a (branch, batch pair) then meet on counters and each sums 1/8 of the output tile")
    if OPT['fuse']:
        g.raw(f"; @launch grid=(256,1,1) block=(256,1,1) lds={LDS_BYTES}")
    else:
        g.raw(f"; @launch kernel={MAIN} grid=(256,1,1) block=(256,1,1) lds={LDS_BYTES}")
        g.raw(f"; @launch kernel={RED} grid=({2688 // (OPT['rnf'] * OPT['rwv'])},1,1) block=({64 * OPT['rwv']},1,1) lds=0")
    g.raw('.amdgcn_target "amdgcn-amd-amdhsa--gfx950"')
    g.raw(".text")

def kernel_open(name):
    g.raw(f".globl {name}")
    g.raw(".p2align 8")
    g.raw(f".type {name},@function")
    g.raw(f"{name}:")

def srd(dst, lo, hi, nbytes):
    g(f"s_mov_b32 s{dst}, s{lo}")
    g(f"s_and_b32 s{dst+1}, s{hi}, 0xffff")
    g(f"s_mov_b32 s{dst+2}, {nbytes}")
    g(f"s_mov_b32 s{dst+3}, 0x20000")

def wq_dma(R):
    slot = (R % 3) * SLOT
    out = [(f"s_add_u32 s{sWQO}, s{sWQB}, {R*262144}", None)]
    for i in range(8):
        if i % 4 == 0:
            out.append((f"s_add_u32 m0, s{sM}, {slot + (i//4)*4096}", None))
        out.append((f"buffer_load_dwordx4 v{vWQD+i}, {sr(S_WQ)}, s{sWQO} offen offset:{(i%4)*1024} lds", f"R{R}"))
    return out

def wo_dma(R):
    hh, c = divmod(R - 14, 7)
    slot = (R % 3) * SLOT
    out = [(f"s_add_u32 s{sWOO}, s{sWOBASE}, {hh*229376 + c*128}", None),
           (f"s_add_u32 s{sWOO2}, s{sWOBASE}, {hh*229376 + c*128 + 28672}", None)]
    for i in range(8):
        if i % 4 == 0:
            out.append((f"s_add_u32 m0, s{sM}, {slot + (i//4)*4096}", None))
        so = sWOO if i < 4 else sWOO2
        out.append((f"buffer_load_dwordx4 v{vWOD+(i%4)}, {sr(S_WO)}, s{so} offen offset:{(i%4)*1024} lds", f"R{R}"))
    return out

def ring_dma(R):
    if OPT['now'] and R > 2: return []
    if R < 14: return wq_dma(R)
    if R < 28: return wo_dma(R)
    return []

def x_dma(p, tag):
    out = []
    if OPT['nox'] and p > 1: return out
    for k in range(3):
        out.append((f"s_add_u32 s{sXO}, s{sXB}, {p*128 + k*28672}", None))
        out.append((f"s_add_u32 m0, s{sXM}, {(p % 2)*XU + k*4096}", None))
        out.append((f"buffer_load_dwordx4 v{vXD}, {sr(S_X)}, s{sXO} offen{NT('ntfirst') if (p < 2 or OPT['xdir']) else ''} lds", tag))
    return out

def x_reads(p):
    out = []
    for s2 in range(2):
        s = 2 * p + s2
        for t in range(3):
            d = aX + (s % XRING) * 12 + t * 4
            out.append((f"ds_read_b128 {ar(d)}, v{vXR+s2} offset:{(p % 2)*XU + t*2048}", None))
    return out

def k_dma(u, tag):
    out = []
    if OPT['nok']: return out
    for dh in range(2):
        out.append((f"s_add_u32 m0, s{sKM}, {dh*4160}", None))
        for j in range(4):
            out.append((f"s_add_u32 s{sKO}, s{sKB}, {u*8192 + dh*256 + j*(2048-1040)}", None))
            out.append((f"buffer_load_dwordx4 v{vKD}, {sr(S_K)}, s{sKO} offen offset:{j*1040}{NT('ntk')} lds", tag))
    return out

def k_reads(u):
    out = []
    for dh in range(2):
        for s4 in range(4):
            for p in range(2):
                d = aK + (u * 8 + dh * 4 + s4) * 4 + 2 * p
                out.append((f"ds_read_b64 {ar(d,2)}, v{vKR+s4} offset:{dh*4160 + 32*p}", None))
    return out

def v_dma(hh, subs):
    out = []
    if OPT['nov']: return out
    for sub in subs:
        bb, r = divmod(sub, 6); u, dh = divmod(r, 2)
        out.append((f"s_add_u32 s{sVO}, s{sVBASE}, {hh*24576 + bb*393216 + u*8192 + dh*256}", None))
        out.append((f"s_add_u32 m0, s{sVM}, {sub*4096}", None))
        out.append((f"buffer_load_dwordx4 v{vVD}, {sr(S_V)}, s{sVO} offen{NT('ntv') if hh == 0 else NT('ntv1')} lds", f"V{hh}"))
    return out

def v_read(u, s):
    dh, s4 = divmod(s, 4)
    return (f"ds_read_b128 {vr(VFRAG(u,s))}, v{vVR+s4} offset:{(u*2+dh)*4096}", None)

def touch(vaddr, srd_, sbase, add, plain=False):
    key = {S_WQ: 'nttw', S_WO: 'nttw', S_X: 'nttx', S_V: 'nttv'}[srd_]
    if not OPT['touch']: return []
    return [(f"s_add_u32 s{sT1}, s{sbase}, {add}", None),
            (f"buffer_load_dword v{vDUM}, v{vaddr}, {sr(srd_)}, s{sT1} offen{'' if plain else NT(key)}", None, True)]

def touch_table():
    return {'t_a': (vT16, S_WQ, sTWQ, 128 * 8192), 't_xa': (vTXA, S_X, sXB, 256), 't_b': (vTWQ, S_WQ, sTWQ, 256 * 8192),
            't_xb': (vTXB, S_X, sXB, 512), 't_wo0': (vT32, S_WO, sTWO, 0), 't_wo1': (vT32, S_WO, sTWO, 229376)}
def touches(R, shift=0):
    o = []
    for k, a in touch_table().items():
        if OPT['xdir'] and k.startswith('t_x'): continue
        at = OPT[k] + (shift if OPT[k] >= 1 and k != 't_wo1' else 0)
        if at == R: o += touch(*a)
        if OPT['ret'] and max(at, 0) + OPT['ret'] == R: o += touch(*a, plain=True)
    if R == OPT['t_v1']:
        for k in range(3): o += touch(vT32, S_V, sTV, 24576 + 4096 * k)
    return o

class FillQ:
    def __init__(self): self.q = []
    def add(self, items): self.q.extend(items)
    def pop(self):
        it = self.q.pop(0)
        if callable(it): it()
        else: g(it[0], tag=it[1], nodst=(len(it) > 2))
    def __len__(self): return len(self.q)
    def is_vm(self, it):
        return (not callable(it)) and it[0].startswith(('buffer_', 'global_'))
    def nvm(self): return sum(1 for it in self.q if self.is_vm(it))
    def drain(self):
        while self.q: self.pop()
    def drain_mem(self):
        while True:
            idx = [i for i, it in enumerate(self.q) if self.kind(it) not in ('v', 'e')]
            if not idx: return
            j = self.find('mds')
            if j is None: self.pop()
            else: self.pop_at(j)
    def guard(self, text):
        _, _, _, _, rd, wr = classify(text)
        rd = {r for r in rd if r[0] != 's'}; wr = {r for r in wr if r[0] != 's'}
        last = -1
        for i, it in enumerate(self.q):
            if callable(it): continue
            _, _, _, _, frd, fwr = classify(it[0])
            if len(it) > 2: fwr = []
            if (set(fwr) & (rd | wr)) or (set(frd) & wr): last = i
        if last >= 0: self.forced += last + 1
        for _ in range(last + 1): self.pop()
    forced = 0
    def kind(self, it):
        if callable(it): return 'call'
        t = it[0]
        if t.startswith(('buffer_', 'global_')): return 'm'
        if t.startswith('ds_'): return 'd'
        if t.startswith(('v_exp', 'v_rcp', 'v_log', 'v_rsq', 'v_sqrt')): return 'e'
        if t.startswith('v_'): return 'v'
        return 's'
    def find(self, kinds, depth=200):
        seen_r, seen_w = set(), set()
        for i, it in enumerate(self.q[:depth]):
            if callable(it): return None
            k = self.kind(it)
            _, _, _, _, rd_, wr_ = classify(it[0])
            if len(it) > 2: wr_ = []
            rd_, wr_ = set(rd_), set(wr_)
            if k == 's': wr_ = wr_ | {('scc', 0)} if False else wr_
            if k in kinds:
                order_ok = not (k in 'md' and any(self.kind(e) == k for e in self.q[:i]))
                if order_ok and not (wr_ & (seen_r | seen_w)) and not (rd_ & seen_w): return i
            seen_r |= rd_; seen_w |= wr_
        return None
    def pop_at(self, i):
        it = self.q.pop(i)
        g(it[0], tag=it[1], nodst=(len(it) > 2))
fq = FillQ()

def fill_gap(ring_read, vm_due, reserve):
    if len(fq) and callable(fq.q[0]):
        fq.pop(); return False
    if vm_due and not reserve:
        i = fq.find('m')
        if i is not None:
            fq.pop_at(i); return True
    slots = 2 - (1 if reserve else 0)
    if ring_read:
        ring_read(); slots -= 1
    else:
        i = fq.find('d')
        if i is not None:
            fq.pop_at(i); slots -= 1
    while slots > 0:
        i = fq.find('vse' if slots == 2 else 'vs')
        if i is None: break
        slots -= 2 if fq.kind(fq.q[i]) == 'e' else 1
        fq.pop_at(i)
    return False
def emit_list(l):
    for it in l: g(it[0], tag=it[1], nodst=(len(it) > 2))

def run_stages(groups, after_barrier, wait_tags, tail_barrier=None, nreg=4):
    ring = OPT['ring']
    D = min(OPT['D'], ring - 1)
    open_stage = groups[0]['stage']
    pend = []
    fr = 0
    for n, gr in enumerate(groups):
        gr['fr'] = fr
        if gr['reads']:
            d = aFR + (fr % ring) * nreg
            for k, rt in enumerate(gr['reads']):
                pend.append((fr, gr['stage'], rt.format(d=ar(d + 2 * k, 2))))
            fr += 1
    rp = 0
    def can_read(f_cur):
        if rp >= len(pend): return False
        f, st, _ = pend[rp]
        return st <= open_stage and f <= f_cur + D
    while rp < len(pend) and pend[rp][0] < D and pend[rp][1] <= open_stage:
        g(pend[rp][2]); rp += 1
    last_stage = groups[-1]['stage']
    left = [0] * len(groups)
    acc = 0
    for n in range(len(groups) - 1, -1, -1):
        if groups[n].get('idx') == OPT['bar_group']: acc = 0
        acc += len(groups[n]['mfmas'])
        left[n] = acc
    since_vm = 1000
    for n, gr in enumerate(groups):
        f = gr['fr']
        d = aFR + (f % ring) * nreg
        if gr['reads']:
            while rp < len(pend) and pend[rp][0] <= f:
                assert pend[rp][1] <= open_stage
                g(pend[rp][2]); rp += 1
        if gr['reads'] and OPT['hw'] and f % 2 == 0 and any(p[0] == f + 1 for p in pend[:rp]) and sum(1 for p in pend[:rp] if p[0] == f + 1) == 2:
            d2 = aFR + ((f + 1) % ring) * nreg
            g.need([('a', d + i) for i in range(4)] + [('a', d2 + i) for i in range(4)])
        fcur = f if gr['reads'] else f - 1
        R = gr['stage']
        for it in gr.get('pre', []): fq.q.insert(0, it) if False else None
        if gr.get('front'):
            fq.q[0:0] = gr['front']
        for k, mt in enumerate(gr['mfmas']):
            fq.guard(mt.format(a=ar(d)))
            g(mt.format(a=ar(d)))
            since_vm += 1
            rem = left[n] - k - 1
            if OPT['pack']:
                nxt = groups[n+1] if n + 1 < len(groups) else None
                reserve = (k == len(gr['mfmas']) - 1 and nxt is not None and bool(nxt['reads']) and nxt['fr'] % 2 == 0)
                nv = fq.nvm()
                gap = max(1, (rem - 1) // max(1, nv))
                behind = rp < len(pend) and can_read(fcur) and pend[rp][0] <= fcur + OPT['D'] - 3
                vm_due = nv > 0 and since_vm >= min(gap, 6) and not behind
                def rr():
                    nonlocal rp
                    g(pend[rp][2]); rp += 1
                if fill_gap(rr if can_read(fcur) else None, vm_due, reserve): since_vm = 0
                continue
            budget = 2
            if k == len(gr['mfmas']) - 1 and n + 1 < len(groups) and groups[n+1]['reads'] and (groups[n+1]['fr'] % 2 == 0 or not OPT['hw']):
                budget = OPT['lastb']
            while budget:
                if can_read(fcur):
                    g(pend[rp][2]); rp += 1; budget -= 1
                elif len(fq):
                    j = None
                    if fq.is_vm(fq.q[0]) and OPT['pace']:
                        gap = max(1, (rem - 2) // max(1, fq.nvm()))
                        if since_vm >= min(gap, OPT['pace'] * 6): j = 0
                        else:
                            for i, it in enumerate(fq.q):
                                if callable(it): break
                                if fq.is_vm(it) or it[0].startswith('s_'): continue
                                _, _, _, _, rd_, wr_ = classify(it[0])
                                clash = False
                                for e in fq.q[:i]:
                                    _, _, _, _, erd, ewr = classify(e[0])
                                    if (set(erd) | set(ewr)) & set(wr_) or set(ewr) & set(rd_): clash = True
                                if not clash: j = i
                                break
                    else:
                        j = 0
                    if j is None: break
                    if j == 0:
                        if fq.is_vm(fq.q[0]): since_vm = 0
                        fq.pop()
                    else:
                        it = fq.q.pop(j); g(it[0], tag=it[1], nodst=(len(it) > 2))
                    budget -= 1
                else:
                    break
        for it in gr.get('post', []):
            fq.add([it])
        if gr.get('hook2'):
            lastc = (OPT['na'] - 1) // 12
            assert not any((not callable(it)) and it[1] in [f"ST{c}" for c in range(lastc + 1)] for it in fq.q)
            g.wait_tag([f"ST{c}" for c in range(lastc + 1)])
            g.barrier()
            wave0("L_w0_%d" % CLS[0], lambda: arrive(0))
            CLS[1] = g.vmtot
        if gr.get('hook'):
            wave0("L_wp_%d" % CLS[0], lambda: publish(0, CLS[0], g.vmtot - CLS[1]))
        if gr.get('idx') == OPT['bar_group'] and (R < last_stage or tail_barrier):
            while rp < len(pend) and pend[rp][1] <= R:
                g(pend[rp][2]); rp += 1
            fq.drain_mem()
            g.wait_tag(wait_tags(R + 1), lg=0)
            if OPT['stamps'] > 1: g.smem_wait()
            if not OPT['nobar']: g.barrier()
            if OPT['stamps'] > 1: stamp(f"b{R+1}", drained=True)
            if OPT['fuse'] and R + 1 == OPT['arr'] and OPT['na'] <= 24:
                wave0("L_w0_%d" % CLS[0], lambda: arrive(0))
                CLS[1] = g.vmtot
            open_stage = R + 1
            fq.add(after_barrier(R + 1))

def interleave(mf, fill, per=2):
    fill = list(fill)
    for m in mf:
        g(m)
        for _ in range(per):
            if fill: g(fill.pop(0))
            elif len(fq): fq.pop()
    for f in fill: g(f)

def softmax_ops(t):
    S = [SACC + 12 * t + k for k in range(12)]
    m, x = vSM + 2 * t, vSM + 2 * t + 1
    o = []
    if OPT['rs']:
        for k in range(0, 12, 2):
            r = (m, x)[(k // 2) % 2]
            o.append(f"v_cvt_pk_bf16_f32 v{r}, v{S[k]}, v{S[k+1]}")
            o.append(f"v_lshlrev_b32 v{S[k]}, 16, v{r}")
            o.append(f"v_and_b32 v{S[k+1]}, 0xffff0000, v{r}")
    o.append(f"v_max3_f32 v{m}, v{S[0]}, v{S[1]}, v{S[2]}")
    o.append(f"v_max3_f32 v{x}, v{S[3]}, v{S[4]}, v{S[5]}")
    o.append(f"v_max3_f32 v{m}, v{m}, v{S[6]}, v{S[7]}")
    o.append(f"v_max3_f32 v{x}, v{x}, v{S[8]}, v{S[9]}")
    o.append(f"v_max3_f32 v{m}, v{m}, v{S[10]}, v{S[11]}")
    o.append(f"v_max_f32 v{m}, v{m}, v{x}")
    for sw in ("v_permlane32_swap_b32", "v_permlane16_swap_b32"):
        o.append(f"v_mov_b32 v{x}, v{m}")
        o.append(f"{sw} v{m}, v{x}")
        o.append(f"v_max_f32 v{m}, v{m}, v{x}")
    o.append(f"v_mul_f32 v{m}, s{sC}, v{m}")
    for k in range(12):
        o.append(f"v_fma_f32 v{S[k]}, v{S[k]}, s{sC}, -v{m}")
    for k in range(12):
        o.append(f"v_exp_f32 v{S[k]}, v{S[k]}")
    o.append(f"v_add_f32 v{m}, v{S[0]}, v{S[1]}")
    o.append(f"v_add_f32 v{x}, v{S[2]}, v{S[3]}")
    for k in range(4, 12, 2):
        o.append(f"v_add_f32 v{m}, v{m}, v{S[k]}")
        o.append(f"v_add_f32 v{x}, v{x}, v{S[k+1]}")
    o.append(f"v_add_f32 v{m}, v{m}, v{x}")
    for sw in ("v_permlane32_swap_b32", "v_permlane16_swap_b32"):
        o.append(f"v_mov_b32 v{x}, v{m}")
        o.append(f"{sw} v{m}, v{x}")
        o.append(f"v_add_f32 v{m}, v{m}, v{x}")
    o.append(f"v_rcp_f32 v{m}, v{m}")
    for k in range(12):
        o.append(f"v_mul_f32 v{S[k]}, v{S[k]}, v{m}")
    for k in range(6):
        o.append(f"v_cvt_pk_bf16_f32 v{vPOWN + 6*t + k}, v{S[2*k]}, v{S[2*k+1]}")
    return o

def merge(*lists):
    out = []
    n = max(len(l) for l in lists)
    for i in range(n):
        for l in lists:
            if i < len(l): out.append(l[i])
    return out

def cvt_pairs(acc, s_list, t):
    o = []
    for s in s_list:
        b, b2 = acc(2 * s, t), acc(2 * s + 1, t)
        o.append(f"v_cvt_pk_bf16_f32 v{b}, v{b}, v{b+1}")
        o.append(f"v_cvt_pk_bf16_f32 v{b+1}, v{b+2}, v{b+3}")
        o.append(f"v_cvt_pk_bf16_f32 v{b+2}, v{b2}, v{b2+1}")
        o.append(f"v_cvt_pk_bf16_f32 v{b+3}, v{b2+2}, v{b2+3}")
    return o

def p_write0():
    for t in range(3):
        g(f"ds_write_b128 v{vPA}, {vr(vPOWN+6*t)} offset:{t*1024}")
    g(f"s_mov_b64 exec, s[{sPD}:{sPD+1}]")
    for t in range(3):
        g(f"ds_write_b64 v{vPW2}, {vr(vPOWN+6*t+4,2)} offset:{t*512}")
    g("s_mov_b64 exec, -1")

def p_write1():
    return [(f"ds_write_b64 v{vPB}, {vr(vPOWN+6*t+4,2)} offset:{t*512}", None) for t in range(3)]

def p_reads32(hh):
    return [(f"ds_read_b128 {vr(vP32[hh]+4*t)}, v{vPW} offset:{hh*6144 + t*1024}", None) for t in range(3)]
def p_readsu2(hh):
    return [(f"ds_read_b64 {vr(vPU2+4*t+2*hh,2)}, v{vPW2} offset:{t*512}", None) for t in range(3)]

def q_groups():
    gs = []
    for s in range(14):
        slot = s % 3
        win, base = (1, 0) if slot == 2 else (0, slot * SLOT)
        for T in range(16):
            reads = [f"ds_read_b64_tr_b16 {{d}}, v{vWQR + win*8 + (T & 7)} offset:{base + rd*16384 + (T>>3)*256}" for rd in range(2)]
            mf = []
            for t in range(3):
                acc = vr(QACC(T, t))
                xb = ar(aX + (s % XRING) * 12 + t * 4)
                mf.append(f"v_mfma_f32_16x16x32_bf16 {acc}, {{a}}, {xb}, {acc if s else 0}")
            gr = dict(stage=s, reads=reads, mfmas=mf, idx=T)
            if s == 13 and OPT['ecv'] and T >= 3 and T % 2 == 1:
                gr['post'] = [(i, None) for t in range(3) for i in cvt_pairs(QACC, [(T - 3) // 2], t)]
            gs.append(gr)
    return gs

def vw_cvt(R):
    par = R % 2
    hh, c = divmod(R - 14, 7)
    o = []
    for T in range(2):
        for u in range(3):
            b = VWACC(par, T, u)
            d = vVWB + 4 * T + 2 * u if u < 2 else vVWB + 8 + 2 * T
            o.append((f"v_cvt_pk_bf16_f32 v{d}, v{b}, v{b+1}", None))
            o.append((f"v_cvt_pk_bf16_f32 v{d+1}, v{b+2}, v{b+3}", None))
    for T in range(2):
        for i in range(2):
            o.append((f"v_accvgpr_write_b32 a{U2(c,T)+2*hh+i}, v{vVWB+8+2*T+i}", None))
    return o

def final_groups(R, stage):
    hh, c = divmod(R - 14, 7)
    a, b = [], []
    for T in range(2):
        for t in range(3):
            acc = ar(OUTACC(c, T, t))
            a.append(f"v_mfma_f32_16x16x32_bf16 {acc}, {vr(vVWB+4*T)}, {vr(vP32[hh]+4*t)}, {acc if hh else 0}")
            if hh: b.append(f"v_mfma_f32_16x16x32_bf16 {acc}, {ar(U2(c,T))}, {vr(vPU2+4*t)}, {acc}")
    return dict(stage=stage, reads=[], mfmas=a), dict(stage=stage, reads=[], mfmas=b)

def epilogue_ops(c):
    o = [(f"s_add_u32 s{sT0}, s{sST}, {c*6144}", None)]
    for t in range(3):
        tb = vEP + t * 8
        for T in range(2):
            for r in range(4):
                o.append((f"v_accvgpr_read_b32 v{tb + T*4 + r}, a{OUTACC(c,T,t)+r}", None))
        for k in range(4):
            o.append((f"v_cvt_pk_bf16_f32 v{tb+k}, v{tb+2*k}, v{tb+2*k+1}", None))
        if not OPT['nost']: o.append((f"buffer_store_dwordx4 {vr(tb)}, v{vSTO}, {sr(S_WS)}, s{sT0} offen offset:{t*1024}{FL[OPT['stf']]}", f"ST{c}"))
    return o

def o_groups():
    gs = []
    for R in range(14, 28):
        hh, c = divmod(R - 14, 7)
        slot = R % 3
        win, base = (1, 0) if slot == 2 else (0, slot * SLOT)
        for s in range(8):
            for T in range(2):
                idx = 2 * s + T
                reads = [f"ds_read_b64_tr_b16 {{d}}, v{vWOR + win*2 + T} offset:{base + s*4096 + rd*2048}" for rd in range(2)]
                mf = []
                for u in range(3):
                    acc = vr(VWACC(R % 2, T, u))
                    mf.append(f"v_mfma_f32_16x16x32_bf16 {acc}, {vr(VFRAG(u,s))}, {{a}}, {acc if s else 0}")
                gr = dict(stage=R, reads=reads, mfmas=mf, idx=idx)
                if R > 14 and idx == OPT['ic']: gr['front'] = vw_cvt(R - 1)
                if R == 20 and T == 1:
                    gr['post'] = [v_read(u, s) for u in range(3)]
                gs.append(gr)
                if R > 14 and idx == OPT['ia']: gs.append(final_groups(R - 1, R)[0])
                if R > 14 and idx == OPT['ib']:
                    gb = final_groups(R - 1, R)[1]
                    if gb['mfmas']: gs.append(gb)
                if R > 21 and idx == OPT['ie']: gs[-1]['post'] = epilogue_ops(R - 22)
                if OPT['na'] <= 24:
                    if R == OPT['pubs'] and idx == OPT['pubi'] and OPT['fuse']: gs[-1]['hook'] = True
                elif R == 27 and idx == OPT['arri'] and OPT['fuse']: gs[-1]['hook2'] = True
    return gs

def finish_stamps(cls):
    if OPT['stamps']:
        stamp("real_end", real=True)
        g.smem_wait(); stamp_flush()
        g(f"v_writelane_b32 v{vSTAMP}, s98, 62")
        g(f"v_writelane_b32 v{vSTAMP}, s96, 63")
        g(f"s_lshl_b32 s{sT0}, s2, 2")
        g(f"s_add_u32 s{sT0}, s{sT0}, s{sW}")
        g(f"s_lshl_b32 s{sT0}, s{sT0}, 8")
        g(f"s_add_u32 s{sT0}, s{sT0}, {24<<20}")
        g(f"s_mov_b32 s{S_WS+2}, 0x10000000")
        g(f"v_lshrrev_b32 v1, 2, v{vSTO}")
        if OPT['dbg']:
            g(f"s_cmp_lg_u32 s2, {OPT['dbg']}")
            g(f"s_cbranch_scc1 L_nodbg_{cls}")
            g(f"s_cmp_lg_u32 s{sW}, 1")
            g(f"s_cbranch_scc1 L_nodbg_{cls}")
            g(f"v_subrev_u32 v2, s98, v{vSTAMP}")
            g(f"s_mov_b64 exec, 0xffff")
            g(f"buffer_store_dword v2, v1, {sr(S_K)}, 0 offen")
            g.raw(f"L_nodbg_{cls}:")
        else:
            g(f"buffer_store_dword v{vSTAMP}, v1, {sr(S_WS)}, s{sT0} offen")
        json.dump(names, open(sys.argv[1] + ".names", "w"))
    g("s_endpgm")

def main_kernel():
    kernel_open(MAIN)
    g(f"s_cmp_ge_u32 s2, 256")
    g(f"s_cbranch_scc1 L_main_end")
    if OPT['stamps']:
        g("s_memrealtime s[96:97]")
        g("s_memtime s[98:99]")
    if OPT['cpf_first']:
        g(f"s_getpc_b64 s[{sPC}:{sPC+1}]")
        g.raw("L_pc0:")
        g(f"s_lshr_b32 s{sT0}, s2, 3")
        g(f"s_lshl_b32 s{sT0}, s{sT0}, 12")
        g(f"v_lshl_add_u32 v2, v0, 4, s{sT0}")
        g(f"v_min_u32 v2, (L_{'text' if OPT['cpf_red'] else 'main'}_end-L_pc0)/16*16-16, v2")
        g(f"global_load_dword v{vDUM}, v2, s[{sPC}:{sPC+1}]", nodst=True)
    g("s_load_dwordx8 s[64:71], s[0:1], 0")
    g("s_load_dwordx2 s[72:73], s[0:1], 32")
    g("s_load_dwordx8 s[76:83], s[0:1], 40")
    g("s_load_dwordx2 s[74:75], s[0:1], 72")
    g("s_load_dwordx4 s[84:87], s[0:1], 80")
    g("s_load_dwordx2 s[4:5], s[0:1], 96")
    g(f"s_getpc_b64 s[{sPC}:{sPC+1}]")
    g.raw("L_pc:")
    L = 1
    t0, t1, t2, t3, t4, t5 = 2, 3, 4, 5, 6, 7
    g(f"v_lshrrev_b32 v{t0}, 6, v0")
    g(f"v_and_b32 v{L}, 63, v0")
    g(f"v_readfirstlane_b32 s{sW}, v{t0}")
    g(f"s_and_b32 s{sT0}, s2, 7")
    g(f"s_lshr_b32 s{sT1}, s2, 3")
    g(f"s_lshr_b32 s{sBR}, s{sT0}, 2")
    g(f"s_and_b32 s{sHG}, s{sT0}, 3")
    g(f"s_lshl_b32 s{sT0}, s{sHG}, 2")
    g(f"s_and_b32 s{sHP}, s{sT1}, 1")
    g(f"s_lshl_b32 s{sT2}, s{sHP}, 1")
    g(f"s_add_u32 s{sH0}, s{sT0}, s{sT2}")
    g(f"s_lshr_b32 s{sB0}, s{sT1}, 1")
    if OPT['nc'] == 3:
        g(f"s_mul_i32 s{sCLS}, s{sB0}, 11")
        g(f"s_lshr_b32 s{sCLS}, s{sCLS}, 5")
        g(f"s_mul_i32 s{sCLS}, s{sCLS}, 3")
        g(f"s_sub_u32 s{sCLS}, s{sB0}, s{sCLS}")
    else:
        g(f"s_and_b32 s{sCLS}, s{sB0}, {OPT['nc']-1}")
    g(f"s_lshl_b32 s{sB0}, s{sB0}, 1")
    g(f"s_lshl_b32 s{sWI}, s{sT1}, 2")
    g(f"s_add_u32 s{sWI}, s{sWI}, s{sW}")
    g(f"s_and_b32 s{sBSEL}, s{sW}, 1")
    g(f"s_lshr_b32 s{sJ}, s{sW}, 1")
    g(f"s_add_u32 s{sB}, s{sB0}, s{sBSEL}")
    g(f"s_lshl_b32 s{sM}, s{sW}, 13")
    g(f"s_lshl_b32 s{sVM}, s{sW}, 10")
    g(f"s_add_u32 s{sVM}, s{sVM}, {VB}")
    g(f"s_mov_b32 s{sXM}, s{sVM}")
    g(f"s_lshl_b32 s{sWQB}, s{sH0}, 9")
    g(f"s_mul_i32 s{sXB}, s{sB0}, 43008")
    g(f"s_lshl_b32 s{sT0}, s{sBSEL}, 4")
    g(f"s_lshl_b32 s{sT1}, s{sJ}, 2")
    g(f"s_add_u32 s{sT0}, s{sT0}, s{sT1}")
    g(f"s_lshl_b32 s{sT0}, s{sT0}, 13")
    g(f"v_lshlrev_b32 v{vSTO}, 4, v{L}")
    g(f"v_add_u32 v{t1}, s{sT0}, v{vSTO}")
    for i in range(8):
        const = (8 * (i >> 2) + (i & 3)) * 8192 - (i & 3) * 1024
        g(f"v_xor_b32 v{t0}, {32*i}, v{t1}")
        g(f"v_add_u32 v{vWQD+i}, {const}, v{t0}")
    g(f"v_lshrrev_b32 v{t0}, 3, v{L}")
    g(f"v_mul_u32_u24 v{t0}, 896, v{t0}")
    g(f"v_lshrrev_b32 v{t1}, 4, v{L}")
    g(f"s_lshl_b32 s{sT0}, s{sBSEL}, 2")
    g(f"v_add_u32 v{t1}, s{sT0}, v{t1}")
    g(f"v_and_b32 v{t2}, 7, v{L}")
    g(f"v_xor_b32 v{t1}, v{t1}, v{t2}")
    g(f"v_lshl_add_u32 v{t0}, v{t1}, 4, v{t0}")
    g(f"s_mul_i32 s{sT0}, s{sW}, 7168")
    g(f"v_add_u32 v{vXD}, s{sT0}, v{t0}")
    g(f"v_and_b32 v{t0}, 15, v{L}")
    g(f"v_lshrrev_b32 v{t1}, 4, v{L}")
    g(f"v_mov_b32 v{t5}, {BIG}")
    g(f"v_lshlrev_b32 v{t2}, 7, v{t0}")
    g(f"v_cmp_gt_u32 vcc, 16, v{L}")
    g(f"s_lshl_b32 s{sTWQ}, s{sWI}, 13")
    g(f"s_lshl_b32 s{sT0}, s{sHG}, 11")
    g(f"v_cndmask_b32 v9, v{t5}, v{t2}, vcc")
    g(f"s_add_u32 s{sTWQ}, s{sTWQ}, s{sT0}")
    g(f"v_lshl_add_u32 v{t2}, v{t1}, 20, v{t2}")
    g(f"v_cmp_gt_u32 vcc, 32, v{L}")
    g(f"s_lshl_b32 s{sT0}, s{sHP}, 2")
    g(f"s_add_u32 s{sT0}, s{sT0}, s{sW}")
    g(f"v_cndmask_b32 v{vTWQ}, v{t5}, v{t2}, vcc")
    g(f"s_mul_i32 s{sT1}, s{sT0}, 24")
    g(f"s_mul_i32 s{sT2}, s{sT0}, 36")
    g(f"v_add_u32 v{t2}, s{sT1}, v{L}")
    g(f"v_lshrrev_b32 v{t3}, 1, v{t2}")
    g(f"v_mul_u32_u24 v{t3}, 896, v{t3}")
    g(f"v_and_b32 v{t2}, 1, v{t2}")
    g(f"v_lshl_add_u32 v{t2}, v{t2}, 7, v{t3}")
    g(f"v_cmp_gt_u32 vcc, 24, v{L}")
    g(f"v_add_u32 v{t3}, s{sT2}, v{L}")
    g(f"v_mul_u32_u24 v{t4}, 21846, v{t3}")
    g(f"v_cndmask_b32 v{vTXA}, v{t5}, v{t2}, vcc")
    g(f"v_lshrrev_b32 v{t4}, 16, v{t4}")
    g(f"v_mul_u32_u24 v{t2}, 3, v{t4}")
    g(f"v_sub_u32 v{t3}, v{t3}, v{t2}")
    g(f"v_mul_u32_u24 v{t4}, 896, v{t4}")
    g(f"v_lshl_add_u32 v{t3}, v{t3}, 7, v{t4}")
    g(f"v_cmp_gt_u32 vcc, 36, v{L}")
    g(f"s_nop 1")
    g(f"v_cndmask_b32 v{vTXB}, v{t5}, v{t3}, vcc")
    g.smem_wait()
    g(f"s_cmp_eq_u32 s{sBR}, 0")
    for k in (0, 3, 1, 2, 4):
        bsrc = 76 + 2 * k if k < 4 else 74
        g(f"s_cselect_b64 s[{64+2*k}:{65+2*k}], s[{64+2*k}:{65+2*k}], s[{bsrc}:{bsrc+1}]")
    srd(S_X, 64, 65, 1376256)
    srd(S_WQ, 70, 71, 3670016)
    if OPT['w0dir'] == 1:
        emit_list(x_dma(0, "R0")); emit_list(ring_dma(0))
    emit_list(touch(9, S_WQ, sTWQ, 0))
    if OPT['w0dir'] == 2:
        emit_list(x_dma(0, "R0")); emit_list(ring_dma(0))
    if OPT['code_pf'] and not OPT['cpf_first']:
        g(f"s_min_u32 s{sT0}, s{sWI}, (L_main_end-L_pc)/1024-1")
        g(f"s_lshl_b32 s{sT0}, s{sT0}, 10")
        g(f"v_add_u32 v{t2}, s{sT0}, v{vSTO}")
        g(f"global_load_dword v{vDUM}, v{t2}, s[{sPC}:{sPC+1}]", nodst=True)
    if not OPT['w0dir']: emit_list(x_dma(0, "R0"))
    emit_list(x_dma(1, "R1" if OPT['w0dir'] else "R0"))
    g(f"v_mov_b32 v{vT16}, v9")
    sl = []
    if OPT['sta']:
        g(f"s_add_u32 s{sT0}, s{sTWQ}, {128*8192}")
        g(f"s_add_u32 s76, s70, s{sT0}")
        g(f"s_addc_u32 s77, s71, 0")
        g(f"s_lshl_b32 s{sT0}, s{sHP}, 2")
        g(f"s_add_u32 s{sT0}, s{sT0}, s{sW}")
        g(f"s_mul_i32 s{sT0}, s{sT0}, {12*896}")
        g(f"s_add_u32 s{sT0}, s{sT0}, s{sXB}")
        g(f"s_add_u32 s78, s64, s{sT0}")
        g(f"s_addc_u32 s79, s65, 0")
        sl = [f"s_load_dword s80, s[76:77], {k*128}" for k in range(16)]
        sl += [f"s_load_dword s80, s[78:79], {r*896 + 256 + c*128}" for r in range(12) for c in range(2)]
        sl = sl[:OPT['sta']]
        for i in sl[:OPT['stb']]: g(i)
        sl = sl[OPT['stb']:]
    g(f"v_lshrrev_b32 v{t2}, 1, v{t0}")
    g(f"v_xor_b32 v{t2}, v{t2}, v{t1}")
    g(f"v_lshlrev_b32 v{t2}, 4, v{t2}")
    g(f"v_lshl_add_u32 v{t2}, v{t0}, 7, v{t2}")
    g(f"s_mul_i32 s{sT0}, s{sBSEL}, 6144")
    g(f"s_add_u32 s{sT0}, s{sT0}, {VB}")
    g(f"v_add_u32 v{vXR}, s{sT0}, v{t2}")
    g(f"v_xor_b32 v{vXR+1}, 64, v{vXR}")
    g(f"v_lshlrev_b32 v{t2}, 7, v{L}")
    g(f"v_cmp_gt_u32 vcc, 32, v{L}")
    srd(S_K, 66, 67, 12582912)
    g(f"v_cndmask_b32 v{vT32}, v{t5}, v{t2}, vcc")
    srd(S_V, 68, 69, 12582912)
    srd(S_WO, 72, 73, 3670016)
    srd(S_WS, 4, 5, 22020096)
    u0, u1, u2 = 10, 11, 12
    g(f"v_lshrrev_b32 v{u0}, 2, v{L}")
    g(f"v_and_b32 v{u1}, 7, v{u0}")
    g(f"v_and_b32 v{u2}, 3, v{L}")
    g(f"v_lshlrev_b32 v{u2}, 3, v{u2}")
    g(f"s_lshl_b32 s{sT0}, s{sJ}, 9")
    g(f"v_lshl_add_u32 v{t3}, v{u0}, 10, v{u2}")
    g(f"v_add_u32 v{t3}, s{sT0}, v{t3}")
    for T in range(8):
        g(f"v_xor_b32 v{t4}, {T}, v{u1}")
        g(f"v_lshl_add_u32 v{vWQR+T}, v{t4}, 5, v{t3}")
        g(f"v_add_u32 v{vWQR+8+T}, 0x10000, v{vWQR+T}")
    g(f"s_lshl_b32 s{sT0}, s{sB}, 4")
    g(f"s_add_u32 s{sT0}, s{sT0}, s{sH0}")
    g(f"s_add_u32 s{sT0}, s{sT0}, s{sJ}")
    g(f"s_mul_i32 s{sKB}, s{sT0}, 24576")
    g(f"s_mul_i32 s{sKM}, s{sW}, 8320")
    g(f"s_add_u32 s{sKM}, s{sKM}, {KA}")
    g(f"v_lshlrev_b32 v{t2}, 2, v{t1}")
    g(f"v_xor_b32 v{t2}, v{t2}, v{t0}")
    g(f"v_lshlrev_b32 v{t2}, 4, v{t2}")
    g(f"v_lshl_add_u32 v{vKD}, v{t1}, 9, v{t2}")
    g(f"v_lshrrev_b32 v{t2}, 2, v{t0}")
    g(f"v_mul_u32_u24 v{t2}, 1040, v{t2}")
    g(f"v_and_b32 v{t3}, 3, v{t0}")
    g(f"v_lshl_add_u32 v{t2}, v{t3}, 8, v{t2}")
    g(f"v_lshl_add_u32 v{t2}, v{t1}, 3, v{t2}")
    g(f"v_add_u32 v{t2}, s{sKM}, v{t2}")
    for s4 in range(4):
        g(f"v_xor_b32 v{t4}, {s4}, v{t3}")
        g(f"v_lshl_add_u32 v{vKR+s4}, v{t4}, 6, v{t2}")
    g(f"s_mul_i32 s{sWOBASE}, s{sH0}, 229376")
    g(f"s_lshl_b32 s{sT0}, s{sB0}, 4")
    g(f"s_add_u32 s{sT0}, s{sT0}, s{sH0}")
    g(f"s_mul_i32 s{sVBASE}, s{sT0}, 24576")
    g(f"s_mul_i32 s{sT0}, s{sJ}, 393216")
    g(f"s_mul_i32 s{sT1}, s{sBSEL}, 12288")
    g(f"s_add_u32 s{sTV}, s{sVBASE}, s{sT0}")
    g(f"s_add_u32 s{sTV}, s{sTV}, s{sT1}")
    g(f"s_add_u32 s{sT0}, s{sH0}, s{sBR}")
    g(f"s_lshl_b32 s{sT0}, s{sT0}, 5")
    g(f"s_add_u32 s{sT0}, s{sT0}, s{sB}")
    g(f"s_mul_i32 s{sST}, s{sT0}, 43008")
    g(f"s_mul_i32 s{sT0}, s{sJ}, 3072")
    g(f"s_add_u32 s{sST}, s{sST}, s{sT0}")
    g(f"s_mov_b32 s{sC}, 0x{struct.unpack('<I', struct.pack('<f', 1.4426950408889634/16.0))[0]:08x}")
    g(f"s_lshr_b32 s{sT0}, s{sWI}, 6")
    g(f"s_lshl_b32 s{sT1}, s{sHG}, 1")
    g(f"s_add_u32 s{sT0}, s{sT0}, s{sT1}")
    g(f"s_mul_i32 s{sTWO}, s{sT0}, 458752")
    g(f"s_and_b32 s{sT0}, s{sWI}, 63")
    g(f"s_mul_i32 s{sT0}, s{sT0}, 3584")
    g(f"s_add_u32 s{sTWO}, s{sTWO}, s{sT0}")
    g(f"s_mul_i32 s{sT0}, s{sBSEL}, 24576")
    g(f"s_add_u32 s{sT0}, s{sT0}, {VB}")
    g(f"v_xor_b32 v{t3}, v{t1}, v{t0}")
    g(f"v_lshlrev_b32 v{t3}, 4, v{t3}")
    g(f"v_lshl_add_u32 v{t3}, v{t0}, 8, v{t3}")
    g(f"v_add_u32 v{vVR}, s{sT0}, v{t3}")
    for s4 in range(1, 4):
        g(f"v_xor_b32 v{vVR+s4}, {64*s4}, v{vVR}")
    g(f"s_lshl_b32 s{sT0}, s{sW}, 2")
    g(f"v_add_u32 v{t3}, s{sT0}, v{t1}")
    g(f"v_xor_b32 v{t3}, v{t3}, v{t0}")
    g(f"v_lshlrev_b32 v{t3}, 4, v{t3}")
    g(f"v_lshl_add_u32 v{t3}, v{t1}, 9, v{t3}")
    g(f"s_lshl_b32 s{sT0}, s{sW}, 11")
    g(f"v_add_u32 v{vVD}, s{sT0}, v{t3}")
    g(f"v_lshl_add_u32 v{t3}, v{u0}, 7, v{u2}")
    g(f"v_bfe_u32 v{t2}, v{L}, 3, 2")
    g(f"s_lshl_b32 s{sT0}, s{sJ}, 1")
    for T in range(2):
        g(f"s_add_u32 s{sT3}, s{sT0}, {T}")
        g(f"v_xor_b32 v{t4}, s{sT3}, v{t2}")
        g(f"v_lshl_add_u32 v{vWOR+T}, v{t4}, 5, v{t3}")
        g(f"v_add_u32 v{vWOR+2+T}, 0x10000, v{vWOR+T}")
    g(f"v_lshrrev_b32 v{t3}, 5, v{L}")
    g(f"v_lshl_add_u32 v{t2}, v{t3}, 3, v{t2}")
    g(f"v_mul_u32_u24 v{t2}, 896, v{t2}")
    g(f"v_lshlrev_b32 v{t3}, 1, v{t1}")
    g(f"v_and_b32 v{t4}, 7, v{L}")
    g(f"v_xor_b32 v{t3}, v{t3}, v{t4}")
    g(f"v_lshl_add_u32 v{t2}, v{t3}, 4, v{t2}")
    g(f"s_mul_i32 s{sT0}, s{sW}, 57344")
    g(f"v_add_u32 v{vWOD}, s{sT0}, v{t2}")
    for k in range(1, 4):
        g(f"v_add_u32 v{vWOD+k}, {(16*(k&1) + 4*(k>>1))*896 - k*1024}, v{vWOD}")
    g(f"s_mul_i32 s{sT0}, s{sBSEL}, 3072")
    g(f"s_add_u32 s{sT0}, s{sT0}, {PB}")
    g(f"v_add_u32 v{vPW}, s{sT0}, v{vSTO}")
    g(f"s_mul_i32 s{sT1}, s{sBSEL}, 1536")
    g(f"s_add_u32 s{sT1}, s{sT1}, {PB + 12288}")
    g(f"v_lshl_add_u32 v{vPW2}, v{L}, 3, s{sT1}")
    g(f"s_mul_i32 s{sPX}, s{sJ}, 6144")
    g(f"s_cmp_eq_u32 s{sJ}, 0")
    g(f"s_cselect_b64 s[{sPD}:{sPD+1}], -1, 0")
    g(f"s_sub_u32 s{sT0}, s{sT0}, s{sT1}")
    g(f"s_cmp_eq_u32 s{sJ}, 0")
    g(f"s_cselect_b32 s{sPY}, s{sT0}, 0")
    if OPT['tlb']:
        g(f"v_and_b32 v{t2}, 1, v{L}")
        g(f"v_mul_u32_u24 v{t2}, 393216, v{t2}")
        g(f"v_lshrrev_b32 v{t3}, 1, v{L}")
        g(f"v_mul_u32_u24 v{t3}, 49024, v{t3}")
        g(f"v_add_u32 v{t2}, v{t2}, v{t3}")
        g(f"v_cmp_gt_u32 vcc, 4, v{L}")
        g(f"v_lshlrev_b32 v{t3}, 17, v{L}")
        g(f"v_mul_u32_u24 v{t4}, 39808, v{L}")
        g(f"v_cndmask_b32 v{t2}, v{t5}, v{t2}, vcc")
        g(f"v_cndmask_b32 v{t3}, v{t5}, v{t3}, vcc")
        g(f"v_cmp_gt_u32 vcc, 2, v{L}")
        g(f"buffer_load_dword v{vDUM}, v{t2}, {sr(S_K)}, s{sVBASE} offen nt", nodst=True)
        g(f"v_cndmask_b32 v{t4}, v{t5}, v{t4}, vcc")
        g(f"buffer_load_dword v{vDUM}, v{t2}, {sr(S_V)}, s{sVBASE} offen nt", nodst=True)
        g(f"buffer_load_dword v{vDUM}, v{t3}, {sr(S_WO)}, s{sWOBASE} offen", nodst=True)
        g(f"buffer_load_dword v{vDUM}, v{t4}, {sr(S_WS)}, s{sST} offen nt", nodst=True)
    while sl:
        g.smem_wait()
        for i in sl[:OPT['stb']]: g(i)
        sl = sl[OPT['stb']:]
    emit_list(touches(-1))
    if not OPT['w0dir']: emit_list(ring_dma(0))
    if OPT['w1pro']: emit_list(ring_dma(1))
    if OPT['fuse']:
        srd(S_FLG, 4, 5, 22020096 + 32 * 256)
        srd(S_OUT, 84, 85, 2752512)
        srd(S_DBG, 86, 87, 256)
        g(f"s_lshl_b32 s{sT0}, s{sBR}, 5")
        g(f"s_add_u32 s{sT0}, s{sT0}, s{sB0}")
        g(f"s_lshl_b32 s{sFLG}, s{sT0}, 7")
        g(f"s_add_u32 s{sFLG}, s{sFLG}, 22020096")
    stamp('pro')
    if OPT['sta']: g.smem_wait()
    g.wait_tag("R0")
    g.barrier()
    stamp('b0')
    import copy
    NC = OPT['nc']
    for cls in range(1, NC):
        g(f"s_cmp_eq_u32 s{sCLS}, {cls}")
        g(f"s_cbranch_scc1 L_body_{cls}")
    saved = copy.deepcopy({k: v for k, v in g.__dict__.items() if k != 'lines'})
    st0 = (nstamp, pending, list(names))
    for cls in range(NC):
        for k, v in copy.deepcopy(saved).items(): setattr(g, k, v)
        globals().update(nstamp=st0[0], pending=st0[1], names=list(st0[2]))
        if cls: g.raw(".p2align 6"); g.raw(f"L_body_{cls}:")
        body(cls)
    g.raw("L_main_end:")
    g("s_endpgm")

S_OUT, S_DBG = 76, 80
sLD, sSTO, sCNT, sLASTA, sLASTB = 64, 68, 72, 73, 3
vARR = 254
def fuse_flag_loads():
    return [(f"v_mov_b32 v{vFLAG}, 0", None)] + ([] if OPT['wsb'] else [
            (f"buffer_load_dword v{vFLAG+1}, v{vFLAG}, {sr(S_FLG)}, s{sFLG} offen offset:128 sc1", None)]) + [
            (f"buffer_load_dword v{vFLAG}, v{vFLAG}, {sr(S_FLG)}, s{sFLG} offen sc1", None)]

def fuse_setup():
    o = []
    e = lambda t: o.append((t, None))
    A, C, Rr, T0, T1, TB, WN = 60, 74, 75, 86, 87, 84, 85
    e(f"s_lshl_b32 s{T0}, s{sBR}, 5")
    e(f"s_add_u32 s{T0}, s{T0}, s{sB0}")
    e(f"s_lshl_b32 s{sCNT}, s{T0}, {2 if OPT['wsb'] else 1}")
    e(f"s_mul_i32 s{TB}, s{T0}, 43008")
    e(f"s_lshr_b32 s{WN}, s{sH0}, 1")
    e(f"s_lshl_b32 s{T0}, s{sW}, 3")
    e(f"s_add_u32 s{WN}, s{WN}, s{T0}")
    NA = OPT['na']
    for k, add in enumerate((0, 32, NA, NA + 32)):
        ld, st = sLD + k, sSTO + k
        e(f"s_add_u32 s{A}, s{WN}, {add}")
        e(f"s_mul_i32 s{C}, s{A}, 43")
        e(f"s_lshr_b32 s{C}, s{C}, 9")
        e(f"s_mul_i32 s{Rr}, s{C}, 12")
        e(f"s_sub_u32 s{Rr}, s{A}, s{Rr}")
        e(f"s_mul_i32 s{T0}, s{Rr}, 43")
        e(f"s_lshr_b32 s{T0}, s{T0}, 8")
        e(f"s_mul_i32 s{T1}, s{T0}, 6")
        e(f"s_sub_u32 s{Rr}, s{Rr}, s{T1}")
        e(f"s_mul_i32 s{ld}, s{C}, 6")
        e(f"s_add_u32 s{ld}, s{ld}, s{Rr}")
        e(f"s_lshl_b32 s{ld}, s{ld}, 10")
        e(f"s_mul_i32 s{T1}, s{T0}, 43008")
        e(f"s_add_u32 s{ld}, s{ld}, s{T1}")
        e(f"s_add_u32 s{ld}, s{ld}, s{TB}")
        e(f"s_mul_i32 s{T1}, s{Rr}, 43")
        e(f"s_lshr_b32 s{T1}, s{T1}, 7")
        e(f"s_lshl_b32 s{C}, s{C}, 1")
        e(f"s_add_u32 s{C}, s{C}, s{T1}")
        e(f"s_lshl_b32 s{C}, s{C}, 6")
        e(f"s_mul_i32 s{T1}, s{T1}, 3")
        e(f"s_sub_u32 s{Rr}, s{Rr}, s{T1}")
        e(f"s_add_u32 s{T0}, s{T0}, s{sB0}")
        e(f"s_mul_i32 s{T0}, s{T0}, 3")
        e(f"s_add_u32 s{T0}, s{T0}, s{Rr}")
        e(f"s_mul_i32 s{st}, s{T0}, {16*1792}")
        e(f"s_add_u32 s{st}, s{st}, s{C}")
        e(f"s_mul_i32 s{T0}, s{sBR}, 896")
        e(f"s_add_u32 s{st}, s{st}, s{T0}")
        lim = NA if k < 2 else 84
        if add + 31 >= lim:
            e(f"s_add_u32 s{T0}, s{A}, {128 - lim}")
            e(f"s_lshr_b32 s{T0}, s{T0}, 7")
            e(f"s_mul_i32 s{T0}, s{T0}, {BIG}")
            e(f"s_add_u32 s{ld}, s{ld}, s{T0}")
            e(f"s_add_u32 s{st}, s{st}, s{T0}")
    return o

def wave0(lbl, fn):
    g(f"s_cmp_lg_u32 s{sW}, {OPT['syncw']}")
    g(f"s_cbranch_scc1 {lbl}")
    n0, vm0, lg0 = g.n, list(g.vm), list(g.lgkm)
    g("s_mov_b64 exec, 1")
    fn()
    g("s_mov_b64 exec, -1")
    g.raw(f"{lbl}:")
    g.n, g.vm, g.lgkm = n0, vm0, lg0

def arrive(which):
    g(f"v_mov_b32 v{vARR}, 1")
    g(f"v_mov_b32 v{vZERO}, 0")
    if which == 1 and OPT['wsb']:
        g(f"buffer_atomic_add v{vARR}, v{vZERO}, {sr(S_FLG)}, s{sFLG} offen offset:4 sc0")
    else:
        g(f"buffer_atomic_add v{vARR}, v{vZERO}, {sr(S_DBG)}, s{sCNT} offen offset:{128*which} sc0")

def publish(which, cls, nwait):
    last = (sLASTA, sLASTB)[which]
    g.raw(f"    s_waitcnt vmcnt({min(nwait, 63)})"); g.n += 1
    g(f"v_readfirstlane_b32 s{last}, v{vARR}")
    g(f"s_and_b32 s{last}, s{last}, 7")
    if which == 1 and OPT['wsb']: return
    g(f"s_cmp_lg_u32 s{last}, 7")
    g(f"s_cbranch_scc1 L_nl{which}_{cls}")
    if OPT['wsb']:
        g(f"v_add_u32 v{vPUB}, 1, v{vFLAG}")
        g(f"v_mov_b32 v{vPUB+1}, 0")
        g(f"buffer_store_dwordx2 {vr(vPUB,2)}, v{vZERO}, {sr(S_FLG)}, s{sFLG} offen sc1")
    else:
        g(f"v_add_u32 v{vARR}, 1, v{vFLAG+which}")
        g(f"buffer_store_dword v{vARR}, v{vZERO}, {sr(S_FLG)}, s{sFLG} offen offset:{128*which} sc1")
    g.raw(f"L_nl{which}_{cls}:")

def poll(which, cls):
    last = (sLASTA, sLASTB)[which]
    cnt = which == 1 and OPT['wsb']
    g(f"s_cmp_eq_u32 s{last}, 7")
    g(f"s_cbranch_scc1 L_got{which}_{cls}")
    g(f"s_mov_b32 s85, 0x40000")
    if cnt: g(f"s_mov_b32 s87, 8")
    else: g(f"v_readfirstlane_b32 s87, v{vFLAG+which}")
    if which == 0 and OPT['prep']:
        g.raw(f"    s_waitcnt vmcnt({g.vmtot - CLS[-1]})"); g.n += 1
        g(f"v_readfirstlane_b32 s86, v{vPUB+2}")
        g(f"s_cmp_lg_u32 s86, s87")
        g(f"s_cbranch_scc1 L_got{which}_{cls}")
    g.raw(f"L_poll{which}_{cls}:")
    g(f"buffer_load_dword v204, v{vZERO}, {sr(S_FLG)}, s{sFLG} offen offset:{4 if cnt else 128*which} sc1")
    g.raw("    s_waitcnt vmcnt(0)"); g.n += 1; g.vm = []
    g(f"v_readfirstlane_b32 s86, v204")
    g(f"s_cmp_{'eq' if cnt else 'lg'}_u32 s86, s87")
    g(f"s_cbranch_scc1 L_got{which}_{cls}")
    g(f"s_sleep {OPT['slp']}")
    g(f"s_sub_u32 s85, s85, 1")
    g(f"s_cmp_lg_u32 s85, 0")
    g(f"s_cbranch_scc1 L_poll{which}_{cls}")
    g.raw(f"L_got{which}_{cls}:")

def sum_round(ks, mid=None):
    for k in ks:
        for p in range(8):
            if p == 0: g(f"s_mov_b32 s{sT0}, s{sLD+k}")
            else: g(f"s_add_u32 s{sT0}, s{sT0}, {64*43008}")
            g(f"buffer_load_dwordx4 {vr(((k%2)*8+p)*4)}, v{vSTO}, {sr(S_WS)}, s{sT0} offen sc1")
    if mid: mid()
    for k in ks:
        A, B = 100 + 24 * k, 108 + 24 * k
        for p in range(8):
            for q in range(4):
                src = ((k % 2) * 8 + p) * 4 + q
                d = A if p == 0 else B
                g(f"v_lshlrev_b32 v{d+2*q}, 16, v{src}")
                g(f"v_and_b32 v{d+2*q+1}, 0xffff0000, v{src}")
            if p:
                for q in range(8):
                    g(f"v_add_f32 v{A+q}, v{A+q}, v{B+q}")
        O = 116 + 24 * k
        for q in range(4):
            g(f"v_cvt_pk_bf16_f32 v{O+q}, v{A+2*q}, v{A+2*q+1}")
        g(f"v_permlane32_swap_b32 v{O}, v{O+2}")
        g(f"v_permlane32_swap_b32 v{O+1}, v{O+3}")
        g(f"v_permlane16_swap_b32 v{O}, v{O+2}")
        g(f"v_permlane16_swap_b32 v{O+1}, v{O+3}")
        g(f"buffer_store_dwordx4 {vr(O)}, v201, {sr(S_OUT)}, s{sSTO+k} offen{FL[OPT['osf']]}")

def fused_reduce(cls):
    g(f"v_lshrrev_b32 v200, 4, v{vSTO}")
    g(f"v_and_b32 v201, 15, v200")
    g(f"v_mul_u32_u24 v201, 1792, v201")
    g(f"v_lshrrev_b32 v200, 4, v200")
    g(f"v_lshl_add_u32 v201, v200, 4, v201")
    wave0(f"L_w1_{cls}", lambda: poll(0, cls))
    g.wait_all()
    g.barrier()
    stamp('stdrain')
    wave0(f"L_w2_{cls}", lambda: arrive(1))
    n0 = g.vmtot
    sum_round([0, 1] if OPT['na'] > 32 else [0], mid=lambda: wave0(f"L_w3_{cls}", lambda: publish(1, cls, g.vmtot - n0)))
    stamp('sumA')
    wave0(f"L_w4_{cls}", lambda: poll(1, cls))
    g.barrier()
    stamp('metB')
    sum_round([2, 3])

CLS = [0, 0]
def body(cls):
    CLS[0] = cls
    KS = [OPT[f'k{u}'] + cls * OPT['kstep'] for u in range(3)]
    TWO0 = OPT['t_wo0'] + cls * OPT['kstep']
    TB = OPT['t_b'] + cls * OPT['kstep']
    V1A = OPT['v1'] + (cls * OPT['vstep']) % 3
    V1B = OPT['v1b'] - 3 + (3 + cls * OPT['vstep']) % 3 + (0 if True else 0)
    V1B = OPT['v1b']
    emit_list(x_reads(0))
    def early_touches(R): return touches(R, cls * OPT['kstep'])
    fq.add(([] if OPT['w0dir'] else x_reads(1)) + ([] if OPT['w1pro'] else ring_dma(1)) + ring_dma(2) + early_touches(0))
    x_issue = {1: (2, "R3"), 2: (3, "R4"), 5: (4, "R7"), 6: (5, "R8"), 8: (6, "R10")}
    x_read = {3: 2, 4: 3, 7: 4, 8: 5, 10: 6}
    if OPT['w0dir']: x_read[1] = 1
    x_issue = {k: [v] for k, v in x_issue.items()}
    x_read = {k: [v] for k, v in x_read.items()}
    if OPT['xdir']:
        kw = OPT['kw']
        x_issue = {KS[0]: [(2, f"R{KS[0]+kw}"), (3, f"R{KS[0]+kw}")], KS[1]: [(4, f"R{KS[1]+kw}"), (5, f"R{KS[1]+kw}")], KS[2]: [(6, f"R{KS[2]+kw}")]}
        x_read = {KS[0] + kw: [2, 3], KS[1] + kw: [4, 5], KS[2] + kw: [6]}
        assert KS[0] >= 1 and KS[0] + kw <= 4 and KS[1] + kw <= 8 and KS[2] + kw <= 12 and OPT['v0a'] > KS[2] + kw
    k_issue = {KS[u]: u for u in range(3)}
    KW = [OPT[f'kw{u}'] or OPT['kw'] for u in range(3)]
    k_read = {KS[u] + KW[u]: u for u in range(3)}
    assert max(k_read) <= 13 and OPT['v0b'] > max(k_read) and OPT['v0a'] >= 11
    for u in range(2): assert KS[u+1] > KS[u] + KW[u]
    if 0 in k_issue: fq.add(k_dma(k_issue[0], f"R{OPT['kw']}"))
    def after1(R):
        out = []
        for p in x_read.get(R, []): out += x_reads(p)
        if R in k_read: out += k_reads(k_read[R])
        late = []
        if OPT['wdel'] and R >= 13:
            if R == 14: late = ring_dma(15) + ring_dma(16)
            if R == 13 and OPT['wdel'] == 2: late = ring_dma(15)
            if R == 14 and OPT['wdel'] == 2: late = ring_dma(16)
        else:
            out += ring_dma(R + 2)
        for a in x_issue.get(R, []): out += x_dma(*a)
        if R in k_issue: out += k_dma(k_issue[R], f"R{R+KW[k_issue[R]]}")
        if OPT['fuse'] and R == KS[0]: out += fuse_flag_loads()
        if OPT['fuse'] and R in (3, 4, 6, 8):
            fs = fuse_setup(); q = (len(fs) + 3) // 4; i = (3, 4, 6, 8).index(R)
            out += fs[i*q:(i+1)*q]
        if R == OPT['v0a']: out += v_dma(0, range(7))
        if R == OPT['v0b']: out += v_dma(0, range(7, 12))
        out += late
        out += early_touches(R)
        return out
    run_stages(q_groups(), after1, lambda R: f"R{R}" if R < 14 else "none", tail_barrier=True)
    stamp('G1end')
    def s_mf(t):
        return [f"v_mfma_f32_16x16x32_bf16 {vr(SACC+(t*3+u)*4)}, {ar(aK+(u*8+s)*4)}, {vr(QFRAG(s,t))}, {vr(SACC+(t*3+u)*4) if s else 0}"
                for s in range(8) for u in range(3)]
    if OPT['spack']:
        left_v = [it for it in fq.q if fq.kind(it) == 'v']
        vmq = [it for it in fq.q if fq.kind(it) != 'v']; fq.q = []
        if OPT['ecv']:
            todo = set(it[0] for it in left_v) | set(i for t in range(3) for i in cvt_pairs(QACC, [7], t))
            lists = [[i for t in range(3) for i in cvt_pairs(QACC, range(8), t) if i in todo],
                     softmax_ops(0), softmax_ops(1)]
        else:
            for ins in cvt_pairs(QACC, range(2), 0): g(ins)
            lists = [cvt_pairs(QACC, range(2, 8), 0) + cvt_pairs(QACC, range(8), 1)[:18],
                     cvt_pairs(QACC, range(8), 1)[18:] + cvt_pairs(QACC, range(8), 2),
                     softmax_ops(0)]
        cnt = 0
        for t in range(3):
            fq.add([(i, None) for i in lists[t]])
            if t == 0: fq.q[0:0] = vmq; vmq = []
            for m in s_mf(t):
                fq.guard(m)
                g(m); cnt += 1
                fill_gap(None, cnt % OPT['svm'] == 0, False)
        rest = [it[0] for it in fq.q if fq.kind(it) in 've']
        fq.q = [it for it in fq.q if fq.kind(it) not in 've']
        fq.drain()
        if OPT['ecv']:
            r0 = [i for i in rest if i in set(softmax_ops(0))]
            r1 = [i for i in rest if i not in set(softmax_ops(0))]
            tail = merge(r0, r1, softmax_ops(2))
            if OPT['vearly']:
                for ins in tail[:OPT['vpos']]: g(ins)
                tail = tail[OPT['vpos']:]
                g.wait_tag("V0")
                g.barrier()
                vrs = [v_read(u, s_)[0] for s_ in range(8) for u in range(3)]
                step = max(1, (len(tail) - 20) // 24)
                for i, ins in enumerate(tail):
                    if i % step == 0 and vrs: g(vrs.pop(0))
                    g(ins)
                for r_ in vrs: g(r_)
            else:
                for ins in tail: g(ins)
        else:
            for ins in merge(rest, softmax_ops(1), softmax_ops(2)): g(ins)
    else:
        def paced(ins_list, every):
            n = 0
            for ins in ins_list:
                g(ins); n += 1
                if n % every == 0:
                    while len(fq) and not fq.is_vm(fq.q[0]): fq.pop()
                    if len(fq): fq.pop()
        paced(cvt_pairs(QACC, range(8), 0), 8)
        def mix(mf, fill):
            o = []; fill = list(fill)
            for m in mf:
                o.append(m)
                for _ in range(2):
                    if fill: o.append(fill.pop(0))
            return o + fill
        paced(mix(s_mf(0), cvt_pairs(QACC, range(8), 1)), 10)
        paced(mix(s_mf(1), cvt_pairs(QACC, range(8), 2)), 10)
        fq.drain()
        sm0 = softmax_ops(0)
        interleave(s_mf(2), sm0[:40])
        for ins in merge(sm0[40:], softmax_ops(1), softmax_ops(2)): g(ins)
    stamp('SM')
    g(f"v_add_u32 v{vPA}, s{sPX}, v{vPW}")
    g(f"v_add_u32 v{vPB}, s{sPY}, v{vPW2}")
    p_write0()
    g.wait_tag(["V0", "R14"], lg=0)
    g.barrier()
    stamp('Pbar')
    if not OPT['vearly']:
        for s in range(OPT['vup']):
            for u in range(3): emit_list([v_read(u, s)])
        for s in range(OPT['vup'], 8):
            fq.add([v_read(u, s) for u in range(3)])
    elif V1A == 14:
        fq.add(p_reads32(0) + p_readsu2(0) + v_dma(1, range(6)))
    def after2(R):
        out = []
        if R == OPT['p1'] + 1: out += p_readsu2(1) + p_reads32(1)
        if R == 15 and not (OPT['vearly'] and V1A == 14): out += p_reads32(0) + p_readsu2(0)
        out += ring_dma(R + 2)
        if OPT['v1m']:
            if R == V1A: out += v_dma(1, range(4))
            if R == OPT['v1m']: out += v_dma(1, range(4, 8))
            if R == V1B: out += v_dma(1, range(8, 12))
        else:
            if R == V1A: out += v_dma(1, range(6))
            if R == V1B: out += v_dma(1, range(6, 12))
        out += early_touches(R)
        if R == OPT['p1']: out = p_write1() + out
        return out
    def wt(R):
        if OPT['fuse'] and R == OPT['arr']: return [f"R{R}", "ST0", "ST1"]
        return [f"R{R}", "V1"] if R == 20 else f"R{R}"
    run_stages(o_groups(), after2, wt, tail_barrier=False)
    fq.drain()
    stamp('G2end')
    if OPT['fuse'] and OPT['prep']:
        wave0(f"L_wq_{cls}", lambda: g(f"buffer_load_dword v{vPUB+2}, v{vZERO}, {sr(S_FLG)}, s{sFLG} offen sc1"))
        CLS.append(g.vmtot)
    emit_list(vw_cvt(27))
    fa, fb = final_groups(27, 27)
    for m in fa['mfmas'] + fb['mfmas']: g(m)
    emit_list(epilogue_ops(6))
    stamp('epi')
    if OPT['fuse'] and OPT['na'] > 24:
        wave0(f"L_wp_{cls}", lambda: publish(0, cls, g.vmtot - CLS[1]))
    if OPT['fuse']: fused_reduce(cls)
    if OPT['stamps']:
        g.wait_all()
        stamp('drain')
    finish_stamps(cls)

def reduce_kernel():
    global g
    lines = g.lines
    g = Gen(); g.lines = lines
    NF, WV = OPT['rnf'], OPT['rwv']
    nwg = 2688 // (NF * WV)
    kernel_open(RED)
    g(f"s_cmp_ge_u32 s2, {nwg}")
    g("s_cbranch_scc1 L_red_end")
    if OPT['stamps']: g("s_memrealtime s[40:41]")
    g("s_load_dwordx2 s[4:5], s[0:1], 80")
    g("s_load_dwordx2 s[6:7], s[0:1], 96")
    g("v_lshrrev_b32 v2, 6, v0")
    g("v_and_b32 v3, 63, v0")
    g("v_readfirstlane_b32 s21, v2")
    g("v_lshlrev_b32 v1, 4, v3")
    g("v_and_b32 v4, 15, v3")
    g("v_mul_u32_u24 v4, 1792, v4")
    g("v_lshrrev_b32 v5, 4, v3")
    g("v_lshl_add_u32 v4, v5, 4, v4")
    g(f"s_mul_i32 s16, s2, {WV}")
    g("s_add_u32 s16, s16, s21")
    g(f"s_mul_i32 s16, s16, {NF}")
    g("s_lshl_b32 s19, s16, 10")
    g.smem_wait()
    srd(8, 6, 7, 22020096)
    for f in range(NF):
        for p in range(8):
            g(f"s_add_u32 s20, s19, {p*64*43008}")
            g(f"buffer_load_dwordx4 {vr(8+4*(f*8+p))}, v1, s[8:11], s20 offen offset:{f*1024}{FL[OPT['ldf']]}")
    srd(12, 4, 5, 2752512)
    g("s_mov_b32 s30, 0x3f80")
    g("s_mov_b32 s31, 0x3f800000")
    for f in range(NF):
        g(f"s_add_u32 s17, s16, {f}")
        g("s_mul_i32 s18, s17, 6242")
        g("s_lshr_b32 s18, s18, 18")
        g("s_mul_i32 s22, s18, 42")
        g("s_sub_u32 s22, s17, s22")
        g("s_mul_i32 s23, s22, 43")
        g("s_lshr_b32 s23, s23, 7")
        g("s_mul_i32 s24, s23, 3")
        g("s_sub_u32 s24, s22, s24")
        g("s_and_b32 s25, s18, 31")
        g("s_mul_i32 s25, s25, 3")
        g("s_add_u32 s25, s25, s24")
        g(f"s_mul_i32 s{32+f}, s25, {16*1792}")
        g("s_lshr_b32 s25, s18, 5")
        g("s_mul_i32 s25, s25, 896")
        g(f"s_add_u32 s{32+f}, s{32+f}, s25")
        g("s_lshl_b32 s23, s23, 6")
        g(f"s_add_u32 s{32+f}, s{32+f}, s23")
    base = 8 + 32 * NF
    for f in range(NF):
        A, B, O = base, base + 8, base + 16
        for p in range(8):
            for k in range(4):
                src = 8 + 4 * (f * 8 + p) + k
                if OPT['rdot']:
                    for h in range(2):
                        g(f"v_dot2_f32_bf16 v{A+2*k+h}, v{src}, s{30+h}, {'v%d' % (A+2*k+h) if p else 0}")
                else:
                    d = A if p == 0 else B
                    g(f"v_lshlrev_b32 v{d+2*k}, 16, v{src}")
                    g(f"v_and_b32 v{d+2*k+1}, 0xffff0000, v{src}")
            if p and not OPT['rdot']:
                for k in range(8):
                    g(f"v_add_f32 v{A+k}, v{A+k}, v{B+k}")
        if OPT['rdot']: g.nop(3)
        for k in range(4):
            g(f"v_cvt_pk_bf16_f32 v{O+k}, v{A+2*k}, v{A+2*k+1}")
        g(f"v_permlane32_swap_b32 v{O}, v{O+2}")
        g(f"v_permlane32_swap_b32 v{O+1}, v{O+3}")
        g(f"v_permlane16_swap_b32 v{O}, v{O+2}")
        g(f"v_permlane16_swap_b32 v{O+1}, v{O+3}")
        g(f"buffer_store_dwordx4 {vr(O)}, v4, s[12:15], s{32+f} offen{FL[OPT['osf']]}")
    if OPT['stamps']:
        g.wait_all()
        g("s_memrealtime s[42:43]")
        g.smem_wait()
        g("s_mov_b32 s10, 0x10000000")
        g(f"s_lshl_b32 s20, s16, 3")
        g(f"s_add_u32 s20, s20, {25<<20}")
        g("v_mov_b32 v6, s40"); g("v_mov_b32 v7, s42"); g("v_mov_b32 v1, 0")
        g("buffer_store_dwordx2 v[6:7], v1, s[8:11], s20 offen")
    g.raw("L_red_end:")
    g("s_endpgm")
    g.raw("L_text_end:")

def descriptors():
    g.raw('.section .rodata,"a"')
    for name, nv, acc in ((MAIN, 512, 256), (RED, 32 * OPT['rnf'] + 32, 32 * OPT['rnf'] + 32))[:1 if OPT['fuse'] else 2]:
        g.raw(".p2align 6")
        g.raw(f".amdhsa_kernel {name}")
        g.raw(f"  .amdhsa_next_free_vgpr {nv}")
        g.raw("  .amdhsa_next_free_sgpr 102")
        g.raw(f"  .amdhsa_accum_offset {acc}")
        g.raw("  .amdhsa_group_segment_fixed_size 0")
        g.raw("  .amdhsa_kernarg_size 104")
        g.raw("  .amdhsa_user_sgpr_count 2")
        g.raw("  .amdhsa_user_sgpr_kernarg_segment_ptr 1")
        g.raw("  .amdhsa_system_sgpr_workgroup_id_x 1")
        g.raw("  .amdhsa_float_denorm_mode_32 3")
        g.raw(".end_amdhsa_kernel")

header()
main_kernel()
st = dict(g.stats)
if not OPT['fuse']: reduce_kernel()
else: g.raw('L_text_end:')
descriptors()
open(sys.argv[1], "w").write(g.text())
print("main stats", st, "forced", fq.forced)
```

```python
import sys, struct, json
from asmgen import Gen, classify

NAME = "concat_heads__mha_block_cached__gqa_block_cached__near_ridge"
MAIN = NAME + "_kernel"
RED = "reduce_partials_kernel"

OPT = dict(bar_group=10, D=7, stamps=0, code_pf=1, touch=1, ntk=1, ntv=1, nttw=0, nttx=0,
           k0=2, k1=6, k2=10, kw=3, t_wo0=8, t_wo1=16, v1=15, v1b=19, p1=17, t_a=0, t_b=4, v0a=13, nc=1, kstep=1, vstep=1, ntfirst=1, pace=1, diag=0, nok=0, nov=0, now=0, nost=0, nox=0, dbg=0, stf=1, ldf=0, osf=0, tlb=0, cpf_first=1, cpf_red=0, cpf2=0, fuse=1, slp=2, t_xa=0, t_xb=4, ret=0, hw=1, nobar=0, lastb=2, w1pro=1, pack=1, ring=8, spack=1, v0b=14, xdir=0, pw=1, arr=26, pubs=26, pubi=13, ic=2, ia=6, ib=8, ie=11, vup=3, t_v1=99, nttv=0, ntv1=1, v1m=0, rnf=1, rwv=6, rdot=0, sta=0, stb=14, w0dir=1, kw0=0, kw1=0, kw2=0, rs=1, ecv=1, svm=4, vearly=0, vpos=0, wdel=0, syncw=0, na=24, arri=2, wsb=1, prep=1, pcap=6, beh=3, vdh=1)
FL = ['', ' sc1', ' sc0 sc1', ' nt', ' sc1 nt', ' sc0 sc1 nt']
for a in sys.argv[2:]:
    k, v = a.split('=')
    assert k in OPT, k
    OPT[k] = int(v)
def NT(k): return ' nt' if OPT[k] else ''

SLOT = 32768
VB = 3 * SLOT
XU = 12288
KA = VB + 65536 - 4 * 8320
PB = VB + 49152
LDS_BYTES = 163840
BIG = 0x7ffff000

S_X, S_K, S_V, S_WQ, S_WO, S_WS = 8, 12, 16, 20, 24, 28
sW, sBSEL, sJ, sBR, sH0, sB0, sB = 32, 33, 34, 35, 36, 37, 38
sWQB = 39
sXB, sXM, sKB, sKM, sXO, sKO, sWQO, sWOO, sWOO2, sVO = 40, 41, 42, 43, 44, 45, 46, 47, 48, 49
sM, sVM, sST, sC = 50, 51, 52, 53
sT0, sT1, sT2, sT3 = 54, 55, 56, 57
sVBASE, sWOBASE = 58, 59
sPC = 60
sTWQ = 63
sTV = 62
sHG, sHP, sWI, sTWO, sCLS = 88, 89, 90, 91, 94
S_FLG, sFLG = 4, 95
sPD = 100
sPX, sPY = 3, 61
STB = 64

def QACC(T, t): return (((T // 2) * 3 + t) * 4) + (96 if T & 1 else 0)
def QFRAG(s, t): return (s * 3 + t) * 4
SACC = 192
vWQR = 192
vWQD = 208
vXR = 216
vXD = 218
vKR = 219
vKD = 223
vTWQ = 224
vTXA = 225
vTXB = 226
vT16 = 227
vWOD = 228
vVD = 232
vVR = 233
vWOR = 237
vSTO = 241
vPW = 242
vPW2 = 243
vT32 = 244
vDUM = 245
vFLAG = 252
vZERO = 179
vPUB = 176
vSM = 246
def VFRAG(u, s): return (u * 8 + s) * 4
vPOWN = 96
vP32 = [114, 126]
vPU2 = 138
vPA, vPB = 162, 163
vVWB = 150
vEP = 96
def VWACC(par, T, u): return 180 + par * 24 + (T * 3 + u) * 4
aFR, aK, aX, XRING, aOUT = 0, 40, 136, 10, 40
def U2(c, T):
    k = c * 2 + T
    return 32 + 4 * k if k < 2 else 208 + 4 * (k - 2)
def OUTACC(c, T, t): return aOUT + ((c * 2 + T) * 3 + t) * 4

def vr(b, n=4): return f"v[{b}:{b+n-1}]"
def ar(b, n=4): return f"a[{b}:{b+n-1}]"
def sr(b, n=4): return f"s[{b}:{b+n-1}]"

g = Gen()
nstamp = 0
vSTAMP = 255
pending = False
names = []
def stamp_flush():
    global pending
    if pending:
        g(f"v_writelane_b32 v{vSTAMP}, s92, {nstamp-1}")
        pending = False
def stamp(name="", real=False, drained=False):
    global nstamp, pending
    if OPT['stamps']:
        if pending:
            if not drained: g.smem_wait()
            stamp_flush()
        g(f"{'s_memrealtime' if real else 's_memtime'} s[92:93]")
        names.append(name); nstamp += 1; pending = True

def header():
    g.raw("; fused attention block: each workgroup (2 batches x 2 heads of one branch) computes q-proj, softmax and a partial out-proj;")
    g.raw("; the 8 workgroups of a (branch, batch pair) then meet on counters and each sums 1/8 of the output tile")
    if OPT['fuse']:
        g.raw(f"; @launch grid=(256,1,1) block=(256,1,1) lds={LDS_BYTES}")
    else:
        g.raw(f"; @launch kernel={MAIN} grid=(256,1,1) block=(256,1,1) lds={LDS_BYTES}")
        g.raw(f"; @launch kernel={RED} grid=({2688 // (OPT['rnf'] * OPT['rwv'])},1,1) block=({64 * OPT['rwv']},1,1) lds=0")
    g.raw('.amdgcn_target "amdgcn-amd-amdhsa--gfx950"')
    g.raw(".text")

def kernel_open(name):
    g.raw(f".globl {name}")
    g.raw(".p2align 8")
    g.raw(f".type {name},@function")
    g.raw(f"{name}:")

def srd(dst, lo, hi, nbytes):
    g(f"s_mov_b32 s{dst}, s{lo}")
    g(f"s_and_b32 s{dst+1}, s{hi}, 0xffff")
    g(f"s_mov_b32 s{dst+2}, {nbytes}")
    g(f"s_mov_b32 s{dst+3}, 0x20000")

def wq_dma(R):
    slot = (R % 3) * SLOT
    out = [(f"s_add_u32 s{sWQO}, s{sWQB}, {R*262144}", None)]
    for i in range(8):
        if i % 4 == 0:
            out.append((f"s_add_u32 m0, s{sM}, {slot + (i//4)*4096}", None))
        out.append((f"buffer_load_dwordx4 v{vWQD+i}, {sr(S_WQ)}, s{sWQO} offen offset:{(i%4)*1024} lds", f"R{R}"))
    return out

def wo_dma(R):
    hh, c = divmod(R - 14, 7)
    slot = (R % 3) * SLOT
    out = [(f"s_add_u32 s{sWOO}, s{sWOBASE}, {hh*229376 + c*128}", None),
           (f"s_add_u32 s{sWOO2}, s{sWOBASE}, {hh*229376 + c*128 + 28672}", None)]
    for i in range(8):
        if i % 4 == 0:
            out.append((f"s_add_u32 m0, s{sM}, {slot + (i//4)*4096}", None))
        so = sWOO if i < 4 else sWOO2
        out.append((f"buffer_load_dwordx4 v{vWOD+(i%4)}, {sr(S_WO)}, s{so} offen offset:{(i%4)*1024} lds", f"R{R}"))
    return out

def ring_dma(R):
    if OPT['now'] and R > 2: return []
    if R < 14: return wq_dma(R)
    if R < 28: return wo_dma(R)
    return []

def x_dma(p, tag):
    out = []
    if OPT['nox'] and p > 1: return out
    for k in range(3):
        out.append((f"s_add_u32 s{sXO}, s{sXB}, {p*128 + k*28672}", None))
        out.append((f"s_add_u32 m0, s{sXM}, {(p % 2)*XU + k*4096}", None))
        out.append((f"buffer_load_dwordx4 v{vXD}, {sr(S_X)}, s{sXO} offen{NT('ntfirst') if (p < 2 or OPT['xdir']) else ''} lds", tag))
    return out

def x_reads(p):
    out = []
    for s2 in range(2):
        s = 2 * p + s2
        for t in range(3):
            d = aX + (s % XRING) * 12 + t * 4
            out.append((f"ds_read_b128 {ar(d)}, v{vXR+s2} offset:{(p % 2)*XU + t*2048}", None))
    return out

def k_dma(u, tag):
    out = []
    if OPT['nok']: return out
    for dh in range(2):
        out.append((f"s_add_u32 m0, s{sKM}, {dh*4160}", None))
        for j in range(4):
            out.append((f"s_add_u32 s{sKO}, s{sKB}, {u*8192 + dh*256 + j*(2048-1040)}", None))
            out.append((f"buffer_load_dwordx4 v{vKD}, {sr(S_K)}, s{sKO} offen offset:{j*1040}{NT('ntk')} lds", tag))
    return out

def k_reads(u):
    out = []
    for dh in range(2):
        for s4 in range(4):
            for p in range(2):
                d = aK + (u * 8 + dh * 4 + s4) * 4 + 2 * p
                out.append((f"ds_read_b64 {ar(d,2)}, v{vKR+s4} offset:{dh*4160 + 32*p}", None))
    return out

def v_dma(hh, subs, tag=None):
    out = []
    if OPT['nov']: return out
    for sub in subs:
        bb, r = divmod(sub, 6); u, dh = divmod(r, 2)
        out.append((f"s_add_u32 s{sVO}, s{sVBASE}, {hh*24576 + bb*393216 + u*8192 + dh*256}", None))
        out.append((f"s_add_u32 m0, s{sVM}, {sub*4096}", None))
        out.append((f"buffer_load_dwordx4 v{vVD}, {sr(S_V)}, s{sVO} offen{NT('ntv') if hh == 0 else NT('ntv1')} lds", tag or f"V{hh}"))
    return out

def v_read(u, s):
    dh, s4 = divmod(s, 4)
    return (f"ds_read_b128 {vr(VFRAG(u,s))}, v{vVR+s4} offset:{(u*2+dh)*4096}", None)

def touch(vaddr, srd_, sbase, add, plain=False):
    key = {S_WQ: 'nttw', S_WO: 'nttw', S_X: 'nttx', S_V: 'nttv'}[srd_]
    if not OPT['touch']: return []
    return [(f"s_add_u32 s{sT1}, s{sbase}, {add}", None),
            (f"buffer_load_dword v{vDUM}, v{vaddr}, {sr(srd_)}, s{sT1} offen{'' if plain else NT(key)}", None, True)]

def touch_table():
    return {'t_a': (vT16, S_WQ, sTWQ, 128 * 8192), 't_xa': (vTXA, S_X, sXB, 256), 't_b': (vTWQ, S_WQ, sTWQ, 256 * 8192),
            't_xb': (vTXB, S_X, sXB, 512), 't_wo0': (vT32, S_WO, sTWO, 0), 't_wo1': (vT32, S_WO, sTWO, 229376)}
def touches(R, shift=0):
    o = []
    for k, a in touch_table().items():
        if OPT['xdir'] and k.startswith('t_x'): continue
        at = OPT[k] + (shift if OPT[k] >= 1 and k != 't_wo1' else 0)
        if at == R: o += touch(*a)
        if OPT['ret'] and max(at, 0) + OPT['ret'] == R: o += touch(*a, plain=True)
    if R == OPT['t_v1']:
        for k in range(3): o += touch(vT32, S_V, sTV, 24576 + 4096 * k)
    return o

class FillQ:
    def __init__(self): self.q = []
    def add(self, items): self.q.extend(items)
    def pop(self):
        it = self.q.pop(0)
        if callable(it): it()
        else: g(it[0], tag=it[1], nodst=(len(it) > 2))
    def __len__(self): return len(self.q)
    def is_vm(self, it):
        return (not callable(it)) and it[0].startswith(('buffer_', 'global_'))
    def nvm(self): return sum(1 for it in self.q if self.is_vm(it))
    def drain(self):
        while self.q: self.pop()
    def drain_mem(self):
        while True:
            idx = [i for i, it in enumerate(self.q) if self.kind(it) not in ('v', 'e')]
            if not idx: return
            j = self.find('mds')
            if j is None: self.pop()
            else: self.pop_at(j)
    def guard(self, text):
        _, _, _, _, rd, wr = classify(text)
        rd = {r for r in rd if r[0] != 's'}; wr = {r for r in wr if r[0] != 's'}
        last = -1
        for i, it in enumerate(self.q):
            if callable(it): continue
            _, _, _, _, frd, fwr = classify(it[0])
            if len(it) > 2: fwr = []
            if (set(fwr) & (rd | wr)) or (set(frd) & wr): last = i
        if last >= 0: self.forced += last + 1
        for _ in range(last + 1): self.pop()
    forced = 0
    def kind(self, it):
        if callable(it): return 'call'
        t = it[0]
        if t.startswith(('buffer_', 'global_')): return 'm'
        if t.startswith('ds_'): return 'd'
        if t.startswith(('v_exp', 'v_rcp', 'v_log', 'v_rsq', 'v_sqrt')): return 'e'
        if t.startswith('v_'): return 'v'
        return 's'
    def find(self, kinds, depth=200):
        seen_r, seen_w = set(), set()
        for i, it in enumerate(self.q[:depth]):
            if callable(it): return None
            k = self.kind(it)
            _, _, _, _, rd_, wr_ = classify(it[0])
            if len(it) > 2: wr_ = []
            rd_, wr_ = set(rd_), set(wr_)
            if k == 's': wr_ = wr_ | {('scc', 0)} if False else wr_
            if k in kinds:
                order_ok = not (k in 'md' and any(self.kind(e) == k for e in self.q[:i]))
                if order_ok and not (wr_ & (seen_r | seen_w)) and not (rd_ & seen_w): return i
            seen_r |= rd_; seen_w |= wr_
        return None
    def pop_at(self, i):
        it = self.q.pop(i)
        g(it[0], tag=it[1], nodst=(len(it) > 2))
fq = FillQ()

def fill_gap(ring_read, vm_due, reserve):
    if len(fq) and callable(fq.q[0]):
        fq.pop(); return False
    if vm_due and not reserve:
        i = fq.find('m')
        if i is not None:
            fq.pop_at(i); return True
    slots = 2 - (1 if reserve else 0)
    if ring_read:
        ring_read(); slots -= 1
    else:
        i = fq.find('d')
        if i is not None:
            fq.pop_at(i); slots -= 1
    while slots > 0:
        i = fq.find('vse' if slots == 2 else 'vs')
        if i is None: break
        slots -= 2 if fq.kind(fq.q[i]) == 'e' else 1
        fq.pop_at(i)
    return False
def emit_list(l):
    for it in l: g(it[0], tag=it[1], nodst=(len(it) > 2))

def run_stages(groups, after_barrier, wait_tags, tail_barrier=None, nreg=4):
    ring = OPT['ring']
    D = min(OPT['D'], ring - 1)
    open_stage = groups[0]['stage']
    pend = []
    fr = 0
    for n, gr in enumerate(groups):
        gr['fr'] = fr
        if gr['reads']:
            d = aFR + (fr % ring) * nreg
            for k, rt in enumerate(gr['reads']):
                pend.append((fr, gr['stage'], rt.format(d=ar(d + 2 * k, 2))))
            fr += 1
    rp = 0
    def can_read(f_cur):
        if rp >= len(pend): return False
        f, st, _ = pend[rp]
        return st <= open_stage and f <= f_cur + D
    while rp < len(pend) and pend[rp][0] < D and pend[rp][1] <= open_stage:
        g(pend[rp][2]); rp += 1
    last_stage = groups[-1]['stage']
    left = [0] * len(groups)
    acc = 0
    for n in range(len(groups) - 1, -1, -1):
        if groups[n].get('idx') == OPT['bar_group']: acc = 0
        acc += len(groups[n]['mfmas'])
        left[n] = acc
    since_vm = 1000
    for n, gr in enumerate(groups):
        f = gr['fr']
        d = aFR + (f % ring) * nreg
        if gr['reads']:
            while rp < len(pend) and pend[rp][0] <= f:
                assert pend[rp][1] <= open_stage
                g(pend[rp][2]); rp += 1
        if gr['reads'] and OPT['hw'] and f % 2 == 0 and any(p[0] == f + 1 for p in pend[:rp]) and sum(1 for p in pend[:rp] if p[0] == f + 1) == 2:
            d2 = aFR + ((f + 1) % ring) * nreg
            g.need([('a', d + i) for i in range(4)] + [('a', d2 + i) for i in range(4)])
        fcur = f if gr['reads'] else f - 1
        R = gr['stage']
        for it in gr.get('pre', []): fq.q.insert(0, it) if False else None
        if gr.get('front'):
            fq.q[0:0] = gr['front']
        for k, mt in enumerate(gr['mfmas']):
            fq.guard(mt.format(a=ar(d)))
            g(mt.format(a=ar(d)))
            since_vm += 1
            rem = left[n] - k - 1
            if OPT['pack']:
                nxt = groups[n+1] if n + 1 < len(groups) else None
                reserve = (k == len(gr['mfmas']) - 1 and nxt is not None and bool(nxt['reads']) and nxt['fr'] % 2 == 0)
                nv = fq.nvm()
                gap = max(1, (rem - 1) // max(1, nv))
                behind = rp < len(pend) and can_read(fcur) and pend[rp][0] <= fcur + OPT['D'] - OPT['beh']
                vm_due = nv > 0 and since_vm >= min(gap, OPT['pcap']) and not behind
                def rr():
                    nonlocal rp
                    g(pend[rp][2]); rp += 1
                if fill_gap(rr if can_read(fcur) else None, vm_due, reserve): since_vm = 0
                continue
            budget = 2
            if k == len(gr['mfmas']) - 1 and n + 1 < len(groups) and groups[n+1]['reads'] and (groups[n+1]['fr'] % 2 == 0 or not OPT['hw']):
                budget = OPT['lastb']
            while budget:
                if can_read(fcur):
                    g(pend[rp][2]); rp += 1; budget -= 1
                elif len(fq):
                    j = None
                    if fq.is_vm(fq.q[0]) and OPT['pace']:
                        gap = max(1, (rem - 2) // max(1, fq.nvm()))
                        if since_vm >= min(gap, OPT['pace'] * 6): j = 0
                        else:
                            for i, it in enumerate(fq.q):
                                if callable(it): break
                                if fq.is_vm(it) or it[0].startswith('s_'): continue
                                _, _, _, _, rd_, wr_ = classify(it[0])
                                clash = False
                                for e in fq.q[:i]:
                                    _, _, _, _, erd, ewr = classify(e[0])
                                    if (set(erd) | set(ewr)) & set(wr_) or set(ewr) & set(rd_): clash = True
                                if not clash: j = i
                                break
                    else:
                        j = 0
                    if j is None: break
                    if j == 0:
                        if fq.is_vm(fq.q[0]): since_vm = 0
                        fq.pop()
                    else:
                        it = fq.q.pop(j); g(it[0], tag=it[1], nodst=(len(it) > 2))
                    budget -= 1
                else:
                    break
        for it in gr.get('post', []):
            fq.add([it])
        if gr.get('hook2'):
            lastc = (OPT['na'] - 1) // 12
            assert not any((not callable(it)) and it[1] in [f"ST{c}" for c in range(lastc + 1)] for it in fq.q)
            g.wait_tag([f"ST{c}" for c in range(lastc + 1)])
            g.barrier()
            wave0("L_w0_%d" % CLS[0], lambda: arrive(0))
            CLS[1] = g.vmtot
        if gr.get('hook'):
            wave0("L_wp_%d" % CLS[0], lambda: publish(0, CLS[0], g.vmtot - CLS[1]))
        if gr.get('idx') == OPT['bar_group'] and (R < last_stage or tail_barrier):
            while rp < len(pend) and pend[rp][1] <= R:
                g(pend[rp][2]); rp += 1
            fq.drain_mem()
            g.wait_tag(wait_tags(R + 1), lg=0)
            if OPT['stamps'] > 1: g.smem_wait()
            if not OPT['nobar']: g.barrier()
            if OPT['stamps'] > 1: stamp(f"b{R+1}", drained=True)
            if OPT['fuse'] and R + 1 == OPT['arr'] and OPT['na'] <= 24:
                wave0("L_w0_%d" % CLS[0], lambda: arrive(0))
                CLS[1] = g.vmtot
            open_stage = R + 1
            fq.add(after_barrier(R + 1))

def interleave(mf, fill, per=2):
    fill = list(fill)
    for m in mf:
        g(m)
        for _ in range(per):
            if fill: g(fill.pop(0))
            elif len(fq): fq.pop()
    for f in fill: g(f)

def softmax_ops(t):
    S = [SACC + 12 * t + k for k in range(12)]
    m, x = vSM + 2 * t, vSM + 2 * t + 1
    o = []
    if OPT['rs']:
        for k in range(0, 12, 2):
            r = (m, x)[(k // 2) % 2]
            o.append(f"v_cvt_pk_bf16_f32 v{r}, v{S[k]}, v{S[k+1]}")
            o.append(f"v_lshlrev_b32 v{S[k]}, 16, v{r}")
            o.append(f"v_and_b32 v{S[k+1]}, 0xffff0000, v{r}")
    o.append(f"v_max3_f32 v{m}, v{S[0]}, v{S[1]}, v{S[2]}")
    o.append(f"v_max3_f32 v{x}, v{S[3]}, v{S[4]}, v{S[5]}")
    o.append(f"v_max3_f32 v{m}, v{m}, v{S[6]}, v{S[7]}")
    o.append(f"v_max3_f32 v{x}, v{x}, v{S[8]}, v{S[9]}")
    o.append(f"v_max3_f32 v{m}, v{m}, v{S[10]}, v{S[11]}")
    o.append(f"v_max_f32 v{m}, v{m}, v{x}")
    for sw in ("v_permlane32_swap_b32", "v_permlane16_swap_b32"):
        o.append(f"v_mov_b32 v{x}, v{m}")
        o.append(f"{sw} v{m}, v{x}")
        o.append(f"v_max_f32 v{m}, v{m}, v{x}")
    o.append(f"v_mul_f32 v{m}, s{sC}, v{m}")
    for k in range(12):
        o.append(f"v_fma_f32 v{S[k]}, v{S[k]}, s{sC}, -v{m}")
    for k in range(12):
        o.append(f"v_exp_f32 v{S[k]}, v{S[k]}")
    o.append(f"v_add_f32 v{m}, v{S[0]}, v{S[1]}")
    o.append(f"v_add_f32 v{x}, v{S[2]}, v{S[3]}")
    for k in range(4, 12, 2):
        o.append(f"v_add_f32 v{m}, v{m}, v{S[k]}")
        o.append(f"v_add_f32 v{x}, v{x}, v{S[k+1]}")
    o.append(f"v_add_f32 v{m}, v{m}, v{x}")
    for sw in ("v_permlane32_swap_b32", "v_permlane16_swap_b32"):
        o.append(f"v_mov_b32 v{x}, v{m}")
        o.append(f"{sw} v{m}, v{x}")
        o.append(f"v_add_f32 v{m}, v{m}, v{x}")
    o.append(f"v_rcp_f32 v{m}, v{m}")
    for k in range(12):
        o.append(f"v_mul_f32 v{S[k]}, v{S[k]}, v{m}")
    for k in range(6):
        o.append(f"v_cvt_pk_bf16_f32 v{vPOWN + 6*t + k}, v{S[2*k]}, v{S[2*k+1]}")
    return o

def merge(*lists):
    out = []
    n = max(len(l) for l in lists)
    for i in range(n):
        for l in lists:
            if i < len(l): out.append(l[i])
    return out

def cvt_pairs(acc, s_list, t):
    o = []
    for s in s_list:
        b, b2 = acc(2 * s, t), acc(2 * s + 1, t)
        o.append(f"v_cvt_pk_bf16_f32 v{b}, v{b}, v{b+1}")
        o.append(f"v_cvt_pk_bf16_f32 v{b+1}, v{b+2}, v{b+3}")
        o.append(f"v_cvt_pk_bf16_f32 v{b+2}, v{b2}, v{b2+1}")
        o.append(f"v_cvt_pk_bf16_f32 v{b+3}, v{b2+2}, v{b2+3}")
    return o

def p_write0():
    for t in range(3):
        g(f"ds_write_b128 v{vPA}, {vr(vPOWN+6*t)} offset:{t*1024}")
    g(f"s_mov_b64 exec, s[{sPD}:{sPD+1}]")
    for t in range(3):
        g(f"ds_write_b64 v{vPW2}, {vr(vPOWN+6*t+4,2)} offset:{t*512}")
    g("s_mov_b64 exec, -1")

def p_write1():
    return [(f"ds_write_b64 v{vPB}, {vr(vPOWN+6*t+4,2)} offset:{t*512}", None) for t in range(3)]

def p_reads32(hh):
    return [(f"ds_read_b128 {vr(vP32[hh]+4*t)}, v{vPW} offset:{hh*6144 + t*1024}", None) for t in range(3)]
def p_readsu2(hh):
    return [(f"ds_read_b64 {vr(vPU2+4*t+2*hh,2)}, v{vPW2} offset:{t*512}", None) for t in range(3)]

def q_groups():
    gs = []
    for s in range(14):
        slot = s % 3
        win, base = (1, 0) if slot == 2 else (0, slot * SLOT)
        for T in range(16):
            reads = [f"ds_read_b64_tr_b16 {{d}}, v{vWQR + win*8 + (T & 7)} offset:{base + rd*16384 + (T>>3)*256}" for rd in range(2)]
            mf = []
            for t in range(3):
                acc = vr(QACC(T, t))
                xb = ar(aX + (s % XRING) * 12 + t * 4)
                mf.append(f"v_mfma_f32_16x16x32_bf16 {acc}, {{a}}, {xb}, {acc if s else 0}")
            gr = dict(stage=s, reads=reads, mfmas=mf, idx=T)
            if s == 13 and OPT['ecv'] and T >= 3 and T % 2 == 1:
                gr['post'] = [(i, None) for t in range(3) for i in cvt_pairs(QACC, [(T - 3) // 2], t)]
            gs.append(gr)
    return gs

def vw_cvt(R):
    par = R % 2
    hh, c = divmod(R - 14, 7)
    o = []
    for T in range(2):
        for u in range(3):
            b = VWACC(par, T, u)
            d = vVWB + 4 * T + 2 * u if u < 2 else vVWB + 8 + 2 * T
            o.append((f"v_cvt_pk_bf16_f32 v{d}, v{b}, v{b+1}", None))
            o.append((f"v_cvt_pk_bf16_f32 v{d+1}, v{b+2}, v{b+3}", None))
    for T in range(2):
        for i in range(2):
            o.append((f"v_accvgpr_write_b32 a{U2(c,T)+2*hh+i}, v{vVWB+8+2*T+i}", None))
    return o

def final_groups(R, stage):
    hh, c = divmod(R - 14, 7)
    a, b = [], []
    for T in range(2):
        for t in range(3):
            acc = ar(OUTACC(c, T, t))
            a.append(f"v_mfma_f32_16x16x32_bf16 {acc}, {vr(vVWB+4*T)}, {vr(vP32[hh]+4*t)}, {acc if hh else 0}")
            if hh: b.append(f"v_mfma_f32_16x16x32_bf16 {acc}, {ar(U2(c,T))}, {vr(vPU2+4*t)}, {acc}")
    return dict(stage=stage, reads=[], mfmas=a), dict(stage=stage, reads=[], mfmas=b)

def epilogue_ops(c):
    o = [(f"s_add_u32 s{sT0}, s{sST}, {c*6144}", None)]
    for t in range(3):
        tb = vEP + t * 8
        for T in range(2):
            for r in range(4):
                o.append((f"v_accvgpr_read_b32 v{tb + T*4 + r}, a{OUTACC(c,T,t)+r}", None))
        for k in range(4):
            o.append((f"v_cvt_pk_bf16_f32 v{tb+k}, v{tb+2*k}, v{tb+2*k+1}", None))
        if not OPT['nost']: o.append((f"buffer_store_dwordx4 {vr(tb)}, v{vSTO}, {sr(S_WS)}, s{sT0} offen offset:{t*1024}{FL[OPT['stf']]}", f"ST{c}"))
    return o

def o_groups():
    gs = []
    for R in range(14, 28):
        hh, c = divmod(R - 14, 7)
        slot = R % 3
        win, base = (1, 0) if slot == 2 else (0, slot * SLOT)
        for s in range(8):
            for T in range(2):
                idx = 2 * s + T
                reads = [f"ds_read_b64_tr_b16 {{d}}, v{vWOR + win*2 + T} offset:{base + s*4096 + rd*2048}" for rd in range(2)]
                mf = []
                for u in range(3):
                    acc = vr(VWACC(R % 2, T, u))
                    mf.append(f"v_mfma_f32_16x16x32_bf16 {acc}, {vr(VFRAG(u,s))}, {{a}}, {acc if s else 0}")
                gr = dict(stage=R, reads=reads, mfmas=mf, idx=idx)
                if R > 14 and idx == OPT['ic']: gr['front'] = vw_cvt(R - 1)
                if R == 20 and T == 1:
                    ss = [s] if not OPT['vdh'] or s not in (4, 5) else ([] if s == 4 else [4, 5])
                    assert OPT['bar_group'] == 10
                    gr['post'] = [v_read(u, s_) for s_ in ss for u in range(3)]
                gs.append(gr)
                if R > 14 and idx == OPT['ia']: gs.append(final_groups(R - 1, R)[0])
                if R > 14 and idx == OPT['ib']:
                    gb = final_groups(R - 1, R)[1]
                    if gb['mfmas']: gs.append(gb)
                if R > 21 and idx == OPT['ie']: gs[-1]['post'] = epilogue_ops(R - 22)
                if OPT['na'] <= 24:
                    if R == OPT['pubs'] and idx == OPT['pubi'] and OPT['fuse']: gs[-1]['hook'] = True
                elif R == 27 and idx == OPT['arri'] and OPT['fuse']: gs[-1]['hook2'] = True
    return gs

def finish_stamps(cls):
    if OPT['stamps']:
        stamp("real_end", real=True)
        g.smem_wait(); stamp_flush()
        g(f"v_writelane_b32 v{vSTAMP}, s98, 62")
        g(f"v_writelane_b32 v{vSTAMP}, s96, 63")
        g(f"s_lshl_b32 s{sT0}, s2, 2")
        g(f"s_add_u32 s{sT0}, s{sT0}, s{sW}")
        g(f"s_lshl_b32 s{sT0}, s{sT0}, 8")
        g(f"s_add_u32 s{sT0}, s{sT0}, {24<<20}")
        g(f"s_mov_b32 s{S_WS+2}, 0x10000000")
        g(f"v_lshrrev_b32 v1, 2, v{vSTO}")
        if OPT['dbg']:
            g(f"s_cmp_lg_u32 s2, {OPT['dbg']}")
            g(f"s_cbranch_scc1 L_nodbg_{cls}")
            g(f"s_cmp_lg_u32 s{sW}, 1")
            g(f"s_cbranch_scc1 L_nodbg_{cls}")
            g(f"v_subrev_u32 v2, s98, v{vSTAMP}")
            g(f"s_mov_b64 exec, 0xffff")
            g(f"buffer_store_dword v2, v1, {sr(S_K)}, 0 offen")
            g.raw(f"L_nodbg_{cls}:")
        else:
            g(f"buffer_store_dword v{vSTAMP}, v1, {sr(S_WS)}, s{sT0} offen")
        json.dump(names, open(sys.argv[1] + ".names", "w"))
    g("s_endpgm")

def main_kernel():
    kernel_open(MAIN)
    g(f"s_cmp_ge_u32 s2, 256")
    g(f"s_cbranch_scc1 L_main_end")
    if OPT['stamps']:
        g("s_memrealtime s[96:97]")
        g("s_memtime s[98:99]")
    if OPT['cpf_first']:
        g(f"s_getpc_b64 s[{sPC}:{sPC+1}]")
        g.raw("L_pc0:")
        g(f"s_lshr_b32 s{sT0}, s2, 3")
        g(f"s_lshl_b32 s{sT0}, s{sT0}, 12")
        g(f"v_lshl_add_u32 v2, v0, 4, s{sT0}")
        g(f"v_min_u32 v2, (L_{'text' if OPT['cpf_red'] else 'main'}_end-L_pc0)/16*16-16, v2")
        g(f"global_load_dword v{vDUM}, v2, s[{sPC}:{sPC+1}]", nodst=True)
    g("s_load_dwordx8 s[64:71], s[0:1], 0")
    g("s_load_dwordx2 s[72:73], s[0:1], 32")
    g("s_load_dwordx8 s[76:83], s[0:1], 40")
    g("s_load_dwordx2 s[74:75], s[0:1], 72")
    g("s_load_dwordx4 s[84:87], s[0:1], 80")
    g("s_load_dwordx2 s[4:5], s[0:1], 96")
    g(f"s_getpc_b64 s[{sPC}:{sPC+1}]")
    g.raw("L_pc:")
    L = 1
    t0, t1, t2, t3, t4, t5 = 2, 3, 4, 5, 6, 7
    g(f"v_lshrrev_b32 v{t0}, 6, v0")
    g(f"v_and_b32 v{L}, 63, v0")
    g(f"v_readfirstlane_b32 s{sW}, v{t0}")
    g(f"s_and_b32 s{sT0}, s2, 7")
    g(f"s_lshr_b32 s{sT1}, s2, 3")
    g(f"s_lshr_b32 s{sBR}, s{sT0}, 2")
    g(f"s_and_b32 s{sHG}, s{sT0}, 3")
    g(f"s_lshl_b32 s{sT0}, s{sHG}, 2")
    g(f"s_and_b32 s{sHP}, s{sT1}, 1")
    g(f"s_lshl_b32 s{sT2}, s{sHP}, 1")
    g(f"s_add_u32 s{sH0}, s{sT0}, s{sT2}")
    g(f"s_lshr_b32 s{sB0}, s{sT1}, 1")
    if OPT['nc'] == 3:
        g(f"s_mul_i32 s{sCLS}, s{sB0}, 11")
        g(f"s_lshr_b32 s{sCLS}, s{sCLS}, 5")
        g(f"s_mul_i32 s{sCLS}, s{sCLS}, 3")
        g(f"s_sub_u32 s{sCLS}, s{sB0}, s{sCLS}")
    else:
        g(f"s_and_b32 s{sCLS}, s{sB0}, {OPT['nc']-1}")
    g(f"s_lshl_b32 s{sB0}, s{sB0}, 1")
    g(f"s_lshl_b32 s{sWI}, s{sT1}, 2")
    g(f"s_add_u32 s{sWI}, s{sWI}, s{sW}")
    g(f"s_and_b32 s{sBSEL}, s{sW}, 1")
    g(f"s_lshr_b32 s{sJ}, s{sW}, 1")
    g(f"s_add_u32 s{sB}, s{sB0}, s{sBSEL}")
    g(f"s_lshl_b32 s{sM}, s{sW}, 13")
    g(f"s_lshl_b32 s{sVM}, s{sW}, 10")
    g(f"s_add_u32 s{sVM}, s{sVM}, {VB}")
    g(f"s_mov_b32 s{sXM}, s{sVM}")
    g(f"s_lshl_b32 s{sWQB}, s{sH0}, 9")
    g(f"s_mul_i32 s{sXB}, s{sB0}, 43008")
    g(f"s_lshl_b32 s{sT0}, s{sBSEL}, 4")
    g(f"s_lshl_b32 s{sT1}, s{sJ}, 2")
    g(f"s_add_u32 s{sT0}, s{sT0}, s{sT1}")
    g(f"s_lshl_b32 s{sT0}, s{sT0}, 13")
    g(f"v_lshlrev_b32 v{vSTO}, 4, v{L}")
    g(f"v_add_u32 v{t1}, s{sT0}, v{vSTO}")
    for i in range(8):
        const = (8 * (i >> 2) + (i & 3)) * 8192 - (i & 3) * 1024
        g(f"v_xor_b32 v{t0}, {32*i}, v{t1}")
        g(f"v_add_u32 v{vWQD+i}, {const}, v{t0}")
    g(f"v_lshrrev_b32 v{t0}, 3, v{L}")
    g(f"v_mul_u32_u24 v{t0}, 896, v{t0}")
    g(f"v_lshrrev_b32 v{t1}, 4, v{L}")
    g(f"s_lshl_b32 s{sT0}, s{sBSEL}, 2")
    g(f"v_add_u32 v{t1}, s{sT0}, v{t1}")
    g(f"v_and_b32 v{t2}, 7, v{L}")
    g(f"v_xor_b32 v{t1}, v{t1}, v{t2}")
    g(f"v_lshl_add_u32 v{t0}, v{t1}, 4, v{t0}")
    g(f"s_mul_i32 s{sT0}, s{sW}, 7168")
    g(f"v_add_u32 v{vXD}, s{sT0}, v{t0}")
    g(f"v_and_b32 v{t0}, 15, v{L}")
    g(f"v_lshrrev_b32 v{t1}, 4, v{L}")
    g(f"v_mov_b32 v{t5}, {BIG}")
    g(f"v_lshlrev_b32 v{t2}, 7, v{t0}")
    g(f"v_cmp_gt_u32 vcc, 16, v{L}")
    g(f"s_lshl_b32 s{sTWQ}, s{sWI}, 13")
    g(f"s_lshl_b32 s{sT0}, s{sHG}, 11")
    g(f"v_cndmask_b32 v9, v{t5}, v{t2}, vcc")
    g(f"s_add_u32 s{sTWQ}, s{sTWQ}, s{sT0}")
    g(f"v_lshl_add_u32 v{t2}, v{t1}, 20, v{t2}")
    g(f"v_cmp_gt_u32 vcc, 32, v{L}")
    g(f"s_lshl_b32 s{sT0}, s{sHP}, 2")
    g(f"s_add_u32 s{sT0}, s{sT0}, s{sW}")
    g(f"v_cndmask_b32 v{vTWQ}, v{t5}, v{t2}, vcc")
    g(f"s_mul_i32 s{sT1}, s{sT0}, 24")
    g(f"s_mul_i32 s{sT2}, s{sT0}, 36")
    g(f"v_add_u32 v{t2}, s{sT1}, v{L}")
    g(f"v_lshrrev_b32 v{t3}, 1, v{t2}")
    g(f"v_mul_u32_u24 v{t3}, 896, v{t3}")
    g(f"v_and_b32 v{t2}, 1, v{t2}")
    g(f"v_lshl_add_u32 v{t2}, v{t2}, 7, v{t3}")
    g(f"v_cmp_gt_u32 vcc, 24, v{L}")
    g(f"v_add_u32 v{t3}, s{sT2}, v{L}")
    g(f"v_mul_u32_u24 v{t4}, 21846, v{t3}")
    g(f"v_cndmask_b32 v{vTXA}, v{t5}, v{t2}, vcc")
    g(f"v_lshrrev_b32 v{t4}, 16, v{t4}")
    g(f"v_mul_u32_u24 v{t2}, 3, v{t4}")
    g(f"v_sub_u32 v{t3}, v{t3}, v{t2}")
    g(f"v_mul_u32_u24 v{t4}, 896, v{t4}")
    g(f"v_lshl_add_u32 v{t3}, v{t3}, 7, v{t4}")
    g(f"v_cmp_gt_u32 vcc, 36, v{L}")
    g(f"s_nop 1")
    g(f"v_cndmask_b32 v{vTXB}, v{t5}, v{t3}, vcc")
    g.smem_wait()
    g(f"s_cmp_eq_u32 s{sBR}, 0")
    for k in (0, 3, 1, 2, 4):
        bsrc = 76 + 2 * k if k < 4 else 74
        g(f"s_cselect_b64 s[{64+2*k}:{65+2*k}], s[{64+2*k}:{65+2*k}], s[{bsrc}:{bsrc+1}]")
    srd(S_X, 64, 65, 1376256)
    srd(S_WQ, 70, 71, 3670016)
    if OPT['w0dir'] == 1:
        emit_list(x_dma(0, "R0")); emit_list(ring_dma(0))
    emit_list(touch(9, S_WQ, sTWQ, 0))
    if OPT['w0dir'] == 2:
        emit_list(x_dma(0, "R0")); emit_list(ring_dma(0))
    if OPT['code_pf'] and not OPT['cpf_first']:
        g(f"s_min_u32 s{sT0}, s{sWI}, (L_main_end-L_pc)/1024-1")
        g(f"s_lshl_b32 s{sT0}, s{sT0}, 10")
        g(f"v_add_u32 v{t2}, s{sT0}, v{vSTO}")
        g(f"global_load_dword v{vDUM}, v{t2}, s[{sPC}:{sPC+1}]", nodst=True)
    if not OPT['w0dir']: emit_list(x_dma(0, "R0"))
    emit_list(x_dma(1, "R1" if OPT['w0dir'] else "R0"))
    g(f"v_mov_b32 v{vT16}, v9")
    sl = []
    if OPT['sta']:
        g(f"s_add_u32 s{sT0}, s{sTWQ}, {128*8192}")
        g(f"s_add_u32 s76, s70, s{sT0}")
        g(f"s_addc_u32 s77, s71, 0")
        g(f"s_lshl_b32 s{sT0}, s{sHP}, 2")
        g(f"s_add_u32 s{sT0}, s{sT0}, s{sW}")
        g(f"s_mul_i32 s{sT0}, s{sT0}, {12*896}")
        g(f"s_add_u32 s{sT0}, s{sT0}, s{sXB}")
        g(f"s_add_u32 s78, s64, s{sT0}")
        g(f"s_addc_u32 s79, s65, 0")
        sl = [f"s_load_dword s80, s[76:77], {k*128}" for k in range(16)]
        sl += [f"s_load_dword s80, s[78:79], {r*896 + 256 + c*128}" for r in range(12) for c in range(2)]
        sl = sl[:OPT['sta']]
        for i in sl[:OPT['stb']]: g(i)
        sl = sl[OPT['stb']:]
    g(f"v_lshrrev_b32 v{t2}, 1, v{t0}")
    g(f"v_xor_b32 v{t2}, v{t2}, v{t1}")
    g(f"v_lshlrev_b32 v{t2}, 4, v{t2}")
    g(f"v_lshl_add_u32 v{t2}, v{t0}, 7, v{t2}")
    g(f"s_mul_i32 s{sT0}, s{sBSEL}, 6144")
    g(f"s_add_u32 s{sT0}, s{sT0}, {VB}")
    g(f"v_add_u32 v{vXR}, s{sT0}, v{t2}")
    g(f"v_xor_b32 v{vXR+1}, 64, v{vXR}")
    g(f"v_lshlrev_b32 v{t2}, 7, v{L}")
    g(f"v_cmp_gt_u32 vcc, 32, v{L}")
    srd(S_K, 66, 67, 12582912)
    g(f"v_cndmask_b32 v{vT32}, v{t5}, v{t2}, vcc")
    srd(S_V, 68, 69, 12582912)
    srd(S_WO, 72, 73, 3670016)
    srd(S_WS, 4, 5, 22020096)
    u0, u1, u2 = 10, 11, 12
    g(f"v_lshrrev_b32 v{u0}, 2, v{L}")
    g(f"v_and_b32 v{u1}, 7, v{u0}")
    g(f"v_and_b32 v{u2}, 3, v{L}")
    g(f"v_lshlrev_b32 v{u2}, 3, v{u2}")
    g(f"s_lshl_b32 s{sT0}, s{sJ}, 9")
    g(f"v_lshl_add_u32 v{t3}, v{u0}, 10, v{u2}")
    g(f"v_add_u32 v{t3}, s{sT0}, v{t3}")
    for T in range(8):
        g(f"v_xor_b32 v{t4}, {T}, v{u1}")
        g(f"v_lshl_add_u32 v{vWQR+T}, v{t4}, 5, v{t3}")
        g(f"v_add_u32 v{vWQR+8+T}, 0x10000, v{vWQR+T}")
    g(f"s_lshl_b32 s{sT0}, s{sB}, 4")
    g(f"s_add_u32 s{sT0}, s{sT0}, s{sH0}")
    g(f"s_add_u32 s{sT0}, s{sT0}, s{sJ}")
    g(f"s_mul_i32 s{sKB}, s{sT0}, 24576")
    g(f"s_mul_i32 s{sKM}, s{sW}, 8320")
    g(f"s_add_u32 s{sKM}, s{sKM}, {KA}")
    g(f"v_lshlrev_b32 v{t2}, 2, v{t1}")
    g(f"v_xor_b32 v{t2}, v{t2}, v{t0}")
    g(f"v_lshlrev_b32 v{t2}, 4, v{t2}")
    g(f"v_lshl_add_u32 v{vKD}, v{t1}, 9, v{t2}")
    g(f"v_lshrrev_b32 v{t2}, 2, v{t0}")
    g(f"v_mul_u32_u24 v{t2}, 1040, v{t2}")
    g(f"v_and_b32 v{t3}, 3, v{t0}")
    g(f"v_lshl_add_u32 v{t2}, v{t3}, 8, v{t2}")
    g(f"v_lshl_add_u32 v{t2}, v{t1}, 3, v{t2}")
    g(f"v_add_u32 v{t2}, s{sKM}, v{t2}")
    for s4 in range(4):
        g(f"v_xor_b32 v{t4}, {s4}, v{t3}")
        g(f"v_lshl_add_u32 v{vKR+s4}, v{t4}, 6, v{t2}")
    g(f"s_mul_i32 s{sWOBASE}, s{sH0}, 229376")
    g(f"s_lshl_b32 s{sT0}, s{sB0}, 4")
    g(f"s_add_u32 s{sT0}, s{sT0}, s{sH0}")
    g(f"s_mul_i32 s{sVBASE}, s{sT0}, 24576")
    g(f"s_mul_i32 s{sT0}, s{sJ}, 393216")
    g(f"s_mul_i32 s{sT1}, s{sBSEL}, 12288")
    g(f"s_add_u32 s{sTV}, s{sVBASE}, s{sT0}")
    g(f"s_add_u32 s{sTV}, s{sTV}, s{sT1}")
    g(f"s_add_u32 s{sT0}, s{sH0}, s{sBR}")
    g(f"s_lshl_b32 s{sT0}, s{sT0}, 5")
    g(f"s_add_u32 s{sT0}, s{sT0}, s{sB}")
    g(f"s_mul_i32 s{sST}, s{sT0}, 43008")
    g(f"s_mul_i32 s{sT0}, s{sJ}, 3072")
    g(f"s_add_u32 s{sST}, s{sST}, s{sT0}")
    g(f"s_mov_b32 s{sC}, 0x{struct.unpack('<I', struct.pack('<f', 1.4426950408889634/16.0))[0]:08x}")
    g(f"s_lshr_b32 s{sT0}, s{sWI}, 6")
    g(f"s_lshl_b32 s{sT1}, s{sHG}, 1")
    g(f"s_add_u32 s{sT0}, s{sT0}, s{sT1}")
    g(f"s_mul_i32 s{sTWO}, s{sT0}, 458752")
    g(f"s_and_b32 s{sT0}, s{sWI}, 63")
    g(f"s_mul_i32 s{sT0}, s{sT0}, 3584")
    g(f"s_add_u32 s{sTWO}, s{sTWO}, s{sT0}")
    g(f"s_mul_i32 s{sT0}, s{sBSEL}, 24576")
    g(f"s_add_u32 s{sT0}, s{sT0}, {VB}")
    g(f"v_xor_b32 v{t3}, v{t1}, v{t0}")
    g(f"v_lshlrev_b32 v{t3}, 4, v{t3}")
    g(f"v_lshl_add_u32 v{t3}, v{t0}, 8, v{t3}")
    g(f"v_add_u32 v{vVR}, s{sT0}, v{t3}")
    for s4 in range(1, 4):
        g(f"v_xor_b32 v{vVR+s4}, {64*s4}, v{vVR}")
    g(f"s_lshl_b32 s{sT0}, s{sW}, 2")
    g(f"v_add_u32 v{t3}, s{sT0}, v{t1}")
    g(f"v_xor_b32 v{t3}, v{t3}, v{t0}")
    g(f"v_lshlrev_b32 v{t3}, 4, v{t3}")
    g(f"v_lshl_add_u32 v{t3}, v{t1}, 9, v{t3}")
    g(f"s_lshl_b32 s{sT0}, s{sW}, 11")
    g(f"v_add_u32 v{vVD}, s{sT0}, v{t3}")
    g(f"v_lshl_add_u32 v{t3}, v{u0}, 7, v{u2}")
    g(f"v_bfe_u32 v{t2}, v{L}, 3, 2")
    g(f"s_lshl_b32 s{sT0}, s{sJ}, 1")
    for T in range(2):
        g(f"s_add_u32 s{sT3}, s{sT0}, {T}")
        g(f"v_xor_b32 v{t4}, s{sT3}, v{t2}")
        g(f"v_lshl_add_u32 v{vWOR+T}, v{t4}, 5, v{t3}")
        g(f"v_add_u32 v{vWOR+2+T}, 0x10000, v{vWOR+T}")
    g(f"v_lshrrev_b32 v{t3}, 5, v{L}")
    g(f"v_lshl_add_u32 v{t2}, v{t3}, 3, v{t2}")
    g(f"v_mul_u32_u24 v{t2}, 896, v{t2}")
    g(f"v_lshlrev_b32 v{t3}, 1, v{t1}")
    g(f"v_and_b32 v{t4}, 7, v{L}")
    g(f"v_xor_b32 v{t3}, v{t3}, v{t4}")
    g(f"v_lshl_add_u32 v{t2}, v{t3}, 4, v{t2}")
    g(f"s_mul_i32 s{sT0}, s{sW}, 57344")
    g(f"v_add_u32 v{vWOD}, s{sT0}, v{t2}")
    for k in range(1, 4):
        g(f"v_add_u32 v{vWOD+k}, {(16*(k&1) + 4*(k>>1))*896 - k*1024}, v{vWOD}")
    g(f"s_mul_i32 s{sT0}, s{sBSEL}, 3072")
    g(f"s_add_u32 s{sT0}, s{sT0}, {PB}")
    g(f"v_add_u32 v{vPW}, s{sT0}, v{vSTO}")
    g(f"s_mul_i32 s{sT1}, s{sBSEL}, 1536")
    g(f"s_add_u32 s{sT1}, s{sT1}, {PB + 12288}")
    g(f"v_lshl_add_u32 v{vPW2}, v{L}, 3, s{sT1}")
    g(f"s_mul_i32 s{sPX}, s{sJ}, 6144")
    g(f"s_cmp_eq_u32 s{sJ}, 0")
    g(f"s_cselect_b64 s[{sPD}:{sPD+1}], -1, 0")
    g(f"s_sub_u32 s{sT0}, s{sT0}, s{sT1}")
    g(f"s_cmp_eq_u32 s{sJ}, 0")
    g(f"s_cselect_b32 s{sPY}, s{sT0}, 0")
    if OPT['tlb']:
        g(f"v_and_b32 v{t2}, 1, v{L}")
        g(f"v_mul_u32_u24 v{t2}, 393216, v{t2}")
        g(f"v_lshrrev_b32 v{t3}, 1, v{L}")
        g(f"v_mul_u32_u24 v{t3}, 49024, v{t3}")
        g(f"v_add_u32 v{t2}, v{t2}, v{t3}")
        g(f"v_cmp_gt_u32 vcc, 4, v{L}")
        g(f"v_lshlrev_b32 v{t3}, 17, v{L}")
        g(f"v_mul_u32_u24 v{t4}, 39808, v{L}")
        g(f"v_cndmask_b32 v{t2}, v{t5}, v{t2}, vcc")
        g(f"v_cndmask_b32 v{t3}, v{t5}, v{t3}, vcc")
        g(f"v_cmp_gt_u32 vcc, 2, v{L}")
        g(f"buffer_load_dword v{vDUM}, v{t2}, {sr(S_K)}, s{sVBASE} offen nt", nodst=True)
        g(f"v_cndmask_b32 v{t4}, v{t5}, v{t4}, vcc")
        g(f"buffer_load_dword v{vDUM}, v{t2}, {sr(S_V)}, s{sVBASE} offen nt", nodst=True)
        g(f"buffer_load_dword v{vDUM}, v{t3}, {sr(S_WO)}, s{sWOBASE} offen", nodst=True)
        g(f"buffer_load_dword v{vDUM}, v{t4}, {sr(S_WS)}, s{sST} offen nt", nodst=True)
    while sl:
        g.smem_wait()
        for i in sl[:OPT['stb']]: g(i)
        sl = sl[OPT['stb']:]
    emit_list(touches(-1))
    if not OPT['w0dir']: emit_list(ring_dma(0))
    if OPT['w1pro']: emit_list(ring_dma(1))
    if OPT['fuse']:
        srd(S_FLG, 4, 5, 22020096 + 32 * 256)
        srd(S_OUT, 84, 85, 2752512)
        srd(S_DBG, 86, 87, 256)
        g(f"s_lshl_b32 s{sT0}, s{sBR}, 5")
        g(f"s_add_u32 s{sT0}, s{sT0}, s{sB0}")
        g(f"s_lshl_b32 s{sFLG}, s{sT0}, 7")
        g(f"s_add_u32 s{sFLG}, s{sFLG}, 22020096")
    stamp('pro')
    if OPT['sta']: g.smem_wait()
    g.wait_tag("R0")
    g.barrier()
    stamp('b0')
    import copy
    NC = OPT['nc']
    for cls in range(1, NC):
        g(f"s_cmp_eq_u32 s{sCLS}, {cls}")
        g(f"s_cbranch_scc1 L_body_{cls}")
    saved = copy.deepcopy({k: v for k, v in g.__dict__.items() if k != 'lines'})
    st0 = (nstamp, pending, list(names))
    for cls in range(NC):
        for k, v in copy.deepcopy(saved).items(): setattr(g, k, v)
        globals().update(nstamp=st0[0], pending=st0[1], names=list(st0[2]))
        if cls: g.raw(".p2align 6"); g.raw(f"L_body_{cls}:")
        body(cls)
    g.raw("L_main_end:")
    g("s_endpgm")

S_OUT, S_DBG = 76, 80
sLD, sSTO, sCNT, sLASTA, sLASTB = 64, 68, 72, 73, 3
vARR = 254
def fuse_flag_loads():
    return [(f"v_mov_b32 v{vFLAG}, 0", None)] + ([] if OPT['wsb'] else [
            (f"buffer_load_dword v{vFLAG+1}, v{vFLAG}, {sr(S_FLG)}, s{sFLG} offen offset:128 sc1", None)]) + [
            (f"buffer_load_dword v{vFLAG}, v{vFLAG}, {sr(S_FLG)}, s{sFLG} offen sc1", None)]

def fuse_setup():
    o = []
    e = lambda t: o.append((t, None))
    A, C, Rr, T0, T1, TB, WN = 60, 74, 75, 86, 87, 84, 85
    e(f"s_lshl_b32 s{T0}, s{sBR}, 5")
    e(f"s_add_u32 s{T0}, s{T0}, s{sB0}")
    e(f"s_lshl_b32 s{sCNT}, s{T0}, {2 if OPT['wsb'] else 1}")
    e(f"s_mul_i32 s{TB}, s{T0}, 43008")
    e(f"s_lshr_b32 s{WN}, s{sH0}, 1")
    e(f"s_lshl_b32 s{T0}, s{sW}, 3")
    e(f"s_add_u32 s{WN}, s{WN}, s{T0}")
    NA = OPT['na']
    for k, add in enumerate((0, 32, NA, NA + 32)):
        ld, st = sLD + k, sSTO + k
        e(f"s_add_u32 s{A}, s{WN}, {add}")
        e(f"s_mul_i32 s{C}, s{A}, 43")
        e(f"s_lshr_b32 s{C}, s{C}, 9")
        e(f"s_mul_i32 s{Rr}, s{C}, 12")
        e(f"s_sub_u32 s{Rr}, s{A}, s{Rr}")
        e(f"s_mul_i32 s{T0}, s{Rr}, 43")
        e(f"s_lshr_b32 s{T0}, s{T0}, 8")
        e(f"s_mul_i32 s{T1}, s{T0}, 6")
        e(f"s_sub_u32 s{Rr}, s{Rr}, s{T1}")
        e(f"s_mul_i32 s{ld}, s{C}, 6")
        e(f"s_add_u32 s{ld}, s{ld}, s{Rr}")
        e(f"s_lshl_b32 s{ld}, s{ld}, 10")
        e(f"s_mul_i32 s{T1}, s{T0}, 43008")
        e(f"s_add_u32 s{ld}, s{ld}, s{T1}")
        e(f"s_add_u32 s{ld}, s{ld}, s{TB}")
        e(f"s_mul_i32 s{T1}, s{Rr}, 43")
        e(f"s_lshr_b32 s{T1}, s{T1}, 7")
        e(f"s_lshl_b32 s{C}, s{C}, 1")
        e(f"s_add_u32 s{C}, s{C}, s{T1}")
        e(f"s_lshl_b32 s{C}, s{C}, 6")
        e(f"s_mul_i32 s{T1}, s{T1}, 3")
        e(f"s_sub_u32 s{Rr}, s{Rr}, s{T1}")
        e(f"s_add_u32 s{T0}, s{T0}, s{sB0}")
        e(f"s_mul_i32 s{T0}, s{T0}, 3")
        e(f"s_add_u32 s{T0}, s{T0}, s{Rr}")
        e(f"s_mul_i32 s{st}, s{T0}, {16*1792}")
        e(f"s_add_u32 s{st}, s{st}, s{C}")
        e(f"s_mul_i32 s{T0}, s{sBR}, 896")
        e(f"s_add_u32 s{st}, s{st}, s{T0}")
        lim = NA if k < 2 else 84
        if add + 31 >= lim:
            e(f"s_add_u32 s{T0}, s{A}, {128 - lim}")
            e(f"s_lshr_b32 s{T0}, s{T0}, 7")
            e(f"s_mul_i32 s{T0}, s{T0}, {BIG}")
            e(f"s_add_u32 s{ld}, s{ld}, s{T0}")
            e(f"s_add_u32 s{st}, s{st}, s{T0}")
    return o

def wave0(lbl, fn):
    g(f"s_cmp_lg_u32 s{sW}, {OPT['syncw']}")
    g(f"s_cbranch_scc1 {lbl}")
    n0, vm0, lg0 = g.n, list(g.vm), list(g.lgkm)
    g("s_mov_b64 exec, 1")
    fn()
    g("s_mov_b64 exec, -1")
    g.raw(f"{lbl}:")
    g.n, g.vm, g.lgkm = n0, vm0, lg0

def arrive(which):
    g(f"v_mov_b32 v{vARR}, 1")
    g(f"v_mov_b32 v{vZERO}, 0")
    if which == 1 and OPT['wsb']:
        g(f"buffer_atomic_add v{vARR}, v{vZERO}, {sr(S_FLG)}, s{sFLG} offen offset:4 sc0")
    else:
        g(f"buffer_atomic_add v{vARR}, v{vZERO}, {sr(S_DBG)}, s{sCNT} offen offset:{128*which} sc0")

def publish(which, cls, nwait):
    last = (sLASTA, sLASTB)[which]
    g.raw(f"    s_waitcnt vmcnt({min(nwait, 63)})"); g.n += 1
    g(f"v_readfirstlane_b32 s{last}, v{vARR}")
    g(f"s_and_b32 s{last}, s{last}, 7")
    if which == 1 and OPT['wsb']: return
    g(f"s_cmp_lg_u32 s{last}, 7")
    g(f"s_cbranch_scc1 L_nl{which}_{cls}")
    if OPT['wsb']:
        g(f"v_add_u32 v{vPUB}, 1, v{vFLAG}")
        g(f"v_mov_b32 v{vPUB+1}, 0")
        g(f"buffer_store_dwordx2 {vr(vPUB,2)}, v{vZERO}, {sr(S_FLG)}, s{sFLG} offen sc1")
    else:
        g(f"v_add_u32 v{vARR}, 1, v{vFLAG+which}")
        g(f"buffer_store_dword v{vARR}, v{vZERO}, {sr(S_FLG)}, s{sFLG} offen offset:{128*which} sc1")
    g.raw(f"L_nl{which}_{cls}:")

def poll(which, cls):
    last = (sLASTA, sLASTB)[which]
    cnt = which == 1 and OPT['wsb']
    g(f"s_cmp_eq_u32 s{last}, 7")
    g(f"s_cbranch_scc1 L_got{which}_{cls}")
    g(f"s_mov_b32 s85, 0x40000")
    if cnt: g(f"s_mov_b32 s87, 8")
    else: g(f"v_readfirstlane_b32 s87, v{vFLAG+which}")
    if which == 0 and OPT['prep']:
        g.raw(f"    s_waitcnt vmcnt({g.vmtot - CLS[-1]})"); g.n += 1
        g(f"v_readfirstlane_b32 s86, v{vPUB+2}")
        g(f"s_cmp_lg_u32 s86, s87")
        g(f"s_cbranch_scc1 L_got{which}_{cls}")
    g.raw(f"L_poll{which}_{cls}:")
    g(f"buffer_load_dword v204, v{vZERO}, {sr(S_FLG)}, s{sFLG} offen offset:{4 if cnt else 128*which} sc1")
    g.raw("    s_waitcnt vmcnt(0)"); g.n += 1; g.vm = []
    g(f"v_readfirstlane_b32 s86, v204")
    g(f"s_cmp_{'eq' if cnt else 'lg'}_u32 s86, s87")
    g(f"s_cbranch_scc1 L_got{which}_{cls}")
    g(f"s_sleep {OPT['slp']}")
    g(f"s_sub_u32 s85, s85, 1")
    g(f"s_cmp_lg_u32 s85, 0")
    g(f"s_cbranch_scc1 L_poll{which}_{cls}")
    g.raw(f"L_got{which}_{cls}:")

def sum_round(ks, mid=None):
    for k in ks:
        for p in range(8):
            if p == 0: g(f"s_mov_b32 s{sT0}, s{sLD+k}")
            else: g(f"s_add_u32 s{sT0}, s{sT0}, {64*43008}")
            g(f"buffer_load_dwordx4 {vr(((k%2)*8+p)*4)}, v{vSTO}, {sr(S_WS)}, s{sT0} offen sc1")
    if mid: mid()
    for k in ks:
        A, B = 100 + 24 * k, 108 + 24 * k
        for p in range(8):
            for q in range(4):
                src = ((k % 2) * 8 + p) * 4 + q
                d = A if p == 0 else B
                g(f"v_lshlrev_b32 v{d+2*q}, 16, v{src}")
                g(f"v_and_b32 v{d+2*q+1}, 0xffff0000, v{src}")
            if p:
                for q in range(8):
                    g(f"v_add_f32 v{A+q}, v{A+q}, v{B+q}")
        O = 116 + 24 * k
        for q in range(4):
            g(f"v_cvt_pk_bf16_f32 v{O+q}, v{A+2*q}, v{A+2*q+1}")
        g(f"v_permlane32_swap_b32 v{O}, v{O+2}")
        g(f"v_permlane32_swap_b32 v{O+1}, v{O+3}")
        g(f"v_permlane16_swap_b32 v{O}, v{O+2}")
        g(f"v_permlane16_swap_b32 v{O+1}, v{O+3}")
        g(f"buffer_store_dwordx4 {vr(O)}, v201, {sr(S_OUT)}, s{sSTO+k} offen{FL[OPT['osf']]}")

def fused_reduce(cls):
    g(f"v_lshrrev_b32 v200, 4, v{vSTO}")
    g(f"v_and_b32 v201, 15, v200")
    g(f"v_mul_u32_u24 v201, 1792, v201")
    g(f"v_lshrrev_b32 v200, 4, v200")
    g(f"v_lshl_add_u32 v201, v200, 4, v201")
    wave0(f"L_w1_{cls}", lambda: poll(0, cls))
    g.wait_all()
    g.barrier()
    stamp('stdrain')
    wave0(f"L_w2_{cls}", lambda: arrive(1))
    n0 = g.vmtot
    sum_round([0, 1] if OPT['na'] > 32 else [0], mid=lambda: wave0(f"L_w3_{cls}", lambda: publish(1, cls, g.vmtot - n0)))
    stamp('sumA')
    wave0(f"L_w4_{cls}", lambda: poll(1, cls))
    g.barrier()
    stamp('metB')
    sum_round([2, 3])

CLS = [0, 0]
def body(cls):
    CLS[0] = cls
    KS = [OPT[f'k{u}'] + cls * OPT['kstep'] for u in range(3)]
    TWO0 = OPT['t_wo0'] + cls * OPT['kstep']
    TB = OPT['t_b'] + cls * OPT['kstep']
    V1A = OPT['v1'] + (cls * OPT['vstep']) % 3
    V1B = OPT['v1b'] - 3 + (3 + cls * OPT['vstep']) % 3 + (0 if True else 0)
    V1B = OPT['v1b']
    emit_list(x_reads(0))
    def early_touches(R): return touches(R, cls * OPT['kstep'])
    fq.add(([] if OPT['w0dir'] else x_reads(1)) + ([] if OPT['w1pro'] else ring_dma(1)) + ring_dma(2) + early_touches(0))
    x_issue = {1: (2, "R3"), 2: (3, "R4"), 5: (4, "R7"), 6: (5, "R8"), 8: (6, "R10")}
    x_read = {3: 2, 4: 3, 7: 4, 8: 5, 10: 6}
    if OPT['w0dir']: x_read[1] = 1
    x_issue = {k: [v] for k, v in x_issue.items()}
    x_read = {k: [v] for k, v in x_read.items()}
    if OPT['xdir']:
        kw = OPT['kw']
        x_issue = {KS[0]: [(2, f"R{KS[0]+kw}"), (3, f"R{KS[0]+kw}")], KS[1]: [(4, f"R{KS[1]+kw}"), (5, f"R{KS[1]+kw}")], KS[2]: [(6, f"R{KS[2]+kw}")]}
        x_read = {KS[0] + kw: [2, 3], KS[1] + kw: [4, 5], KS[2] + kw: [6]}
        assert KS[0] >= 1 and KS[0] + kw <= 4 and KS[1] + kw <= 8 and KS[2] + kw <= 12 and OPT['v0a'] > KS[2] + kw
    k_issue = {KS[u]: u for u in range(3)}
    KW = [OPT[f'kw{u}'] or OPT['kw'] for u in range(3)]
    k_read = {KS[u] + KW[u]: u for u in range(3)}
    assert max(k_read) <= 13 and OPT['v0b'] > max(k_read) and OPT['v0a'] >= 11
    for u in range(2): assert KS[u+1] > KS[u] + KW[u]
    if 0 in k_issue: fq.add(k_dma(k_issue[0], f"R{OPT['kw']}"))
    def after1(R):
        out = []
        for p in x_read.get(R, []): out += x_reads(p)
        if R in k_read: out += k_reads(k_read[R])
        late = []
        if OPT['wdel'] and R >= 13:
            if R == 14: late = ring_dma(15) + ring_dma(16)
            if R == 13 and OPT['wdel'] == 2: late = ring_dma(15)
            if R == 14 and OPT['wdel'] == 2: late = ring_dma(16)
        else:
            out += ring_dma(R + 2)
        for a in x_issue.get(R, []): out += x_dma(*a)
        if R in k_issue: out += k_dma(k_issue[R], f"R{R+KW[k_issue[R]]}")
        if OPT['fuse'] and R == KS[0]: out += fuse_flag_loads()
        if OPT['fuse'] and R in (3, 4, 6, 8):
            fs = fuse_setup(); q = (len(fs) + 3) // 4; i = (3, 4, 6, 8).index(R)
            out += fs[i*q:(i+1)*q]
        if R == OPT['v0a']: out += v_dma(0, range(7))
        if R == OPT['v0b']: out += v_dma(0, range(7, 12))
        out += late
        out += early_touches(R)
        return out
    run_stages(q_groups(), after1, lambda R: f"R{R}" if R < 14 else "none", tail_barrier=True)
    stamp('G1end')
    def s_mf(t):
        return [f"v_mfma_f32_16x16x32_bf16 {vr(SACC+(t*3+u)*4)}, {ar(aK+(u*8+s)*4)}, {vr(QFRAG(s,t))}, {vr(SACC+(t*3+u)*4) if s else 0}"
                for s in range(8) for u in range(3)]
    if OPT['spack']:
        left_v = [it for it in fq.q if fq.kind(it) == 'v']
        vmq = [it for it in fq.q if fq.kind(it) != 'v']; fq.q = []
        if OPT['ecv']:
            todo = set(it[0] for it in left_v) | set(i for t in range(3) for i in cvt_pairs(QACC, [7], t))
            lists = [[i for t in range(3) for i in cvt_pairs(QACC, range(8), t) if i in todo],
                     softmax_ops(0), softmax_ops(1)]
        else:
            for ins in cvt_pairs(QACC, range(2), 0): g(ins)
            lists = [cvt_pairs(QACC, range(2, 8), 0) + cvt_pairs(QACC, range(8), 1)[:18],
                     cvt_pairs(QACC, range(8), 1)[18:] + cvt_pairs(QACC, range(8), 2),
                     softmax_ops(0)]
        cnt = 0
        for t in range(3):
            fq.add([(i, None) for i in lists[t]])
            if t == 0: fq.q[0:0] = vmq; vmq = []
            for m in s_mf(t):
                fq.guard(m)
                g(m); cnt += 1
                fill_gap(None, cnt % OPT['svm'] == 0, False)
        rest = [it[0] for it in fq.q if fq.kind(it) in 've']
        fq.q = [it for it in fq.q if fq.kind(it) not in 've']
        fq.drain()
        if OPT['ecv']:
            r0 = [i for i in rest if i in set(softmax_ops(0))]
            r1 = [i for i in rest if i not in set(softmax_ops(0))]
            tail = merge(r0, r1, softmax_ops(2))
            if OPT['vearly']:
                for ins in tail[:OPT['vpos']]: g(ins)
                tail = tail[OPT['vpos']:]
                g.wait_tag("V0")
                g.barrier()
                vrs = [v_read(u, s_)[0] for s_ in range(8) for u in range(3)]
                step = max(1, (len(tail) - 20) // 24)
                for i, ins in enumerate(tail):
                    if i % step == 0 and vrs: g(vrs.pop(0))
                    g(ins)
                for r_ in vrs: g(r_)
            else:
                for ins in tail: g(ins)
        else:
            for ins in merge(rest, softmax_ops(1), softmax_ops(2)): g(ins)
    else:
        def paced(ins_list, every):
            n = 0
            for ins in ins_list:
                g(ins); n += 1
                if n % every == 0:
                    while len(fq) and not fq.is_vm(fq.q[0]): fq.pop()
                    if len(fq): fq.pop()
        paced(cvt_pairs(QACC, range(8), 0), 8)
        def mix(mf, fill):
            o = []; fill = list(fill)
            for m in mf:
                o.append(m)
                for _ in range(2):
                    if fill: o.append(fill.pop(0))
            return o + fill
        paced(mix(s_mf(0), cvt_pairs(QACC, range(8), 1)), 10)
        paced(mix(s_mf(1), cvt_pairs(QACC, range(8), 2)), 10)
        fq.drain()
        sm0 = softmax_ops(0)
        interleave(s_mf(2), sm0[:40])
        for ins in merge(sm0[40:], softmax_ops(1), softmax_ops(2)): g(ins)
    stamp('SM')
    g(f"v_add_u32 v{vPA}, s{sPX}, v{vPW}")
    g(f"v_add_u32 v{vPB}, s{sPY}, v{vPW2}")
    p_write0()
    g.wait_tag(["V0", "R14"], lg=0)
    g.barrier()
    stamp('Pbar')
    if not OPT['vearly']:
        for s in range(OPT['vup']):
            for u in range(3): emit_list([v_read(u, s)])
        for s in range(OPT['vup'], 8):
            fq.add([v_read(u, s) for u in range(3)])
    elif V1A == 14:
        fq.add(p_reads32(0) + p_readsu2(0) + v_dma(1, range(6)))
    def after2(R):
        out = []
        if R == OPT['p1'] + 1: out += p_readsu2(1) + p_reads32(1)
        if R == 15 and not (OPT['vearly'] and V1A == 14): out += p_reads32(0) + p_readsu2(0)
        out += ring_dma(R + 2)
        if OPT['v1m']:
            if R == V1A: out += v_dma(1, range(4))
            if R == OPT['v1m']: out += v_dma(1, range(4, 8))
            if R == V1B: out += v_dma(1, range(8, 12))
        elif OPT['vdh']:
            if R == V1A: out += v_dma(1, range(0, 12, 2))
            if R == V1B: out += v_dma(1, range(1, 12, 2), "V1b")
        else:
            if R == V1A: out += v_dma(1, range(6))
            if R == V1B: out += v_dma(1, range(6, 12))
        out += early_touches(R)
        if R == OPT['p1']: out = p_write1() + out
        return out
    def wt(R):
        if OPT['fuse'] and R == OPT['arr']: return [f"R{R}", "ST0", "ST1"]
        if R == 21: return ["R21", "V1b"]
        return [f"R{R}", "V1"] if R == 20 else f"R{R}"
    run_stages(o_groups(), after2, wt, tail_barrier=False)
    fq.drain()
    stamp('G2end')
    if OPT['fuse'] and OPT['prep']:
        wave0(f"L_wq_{cls}", lambda: g(f"buffer_load_dword v{vPUB+2}, v{vZERO}, {sr(S_FLG)}, s{sFLG} offen sc1"))
        CLS.append(g.vmtot)
    emit_list(vw_cvt(27))
    fa, fb = final_groups(27, 27)
    for m in fa['mfmas'] + fb['mfmas']: g(m)
    emit_list(epilogue_ops(6))
    stamp('epi')
    if OPT['fuse'] and OPT['na'] > 24:
        wave0(f"L_wp_{cls}", lambda: publish(0, cls, g.vmtot - CLS[1]))
    if OPT['fuse']: fused_reduce(cls)
    if OPT['stamps']:
        g.wait_all()
        stamp('drain')
    finish_stamps(cls)

def reduce_kernel():
    global g
    lines = g.lines
    g = Gen(); g.lines = lines
    NF, WV = OPT['rnf'], OPT['rwv']
    nwg = 2688 // (NF * WV)
    kernel_open(RED)
    g(f"s_cmp_ge_u32 s2, {nwg}")
    g("s_cbranch_scc1 L_red_end")
    if OPT['stamps']: g("s_memrealtime s[40:41]")
    g("s_load_dwordx2 s[4:5], s[0:1], 80")
    g("s_load_dwordx2 s[6:7], s[0:1], 96")
    g("v_lshrrev_b32 v2, 6, v0")
    g("v_and_b32 v3, 63, v0")
    g("v_readfirstlane_b32 s21, v2")
    g("v_lshlrev_b32 v1, 4, v3")
    g("v_and_b32 v4, 15, v3")
    g("v_mul_u32_u24 v4, 1792, v4")
    g("v_lshrrev_b32 v5, 4, v3")
    g("v_lshl_add_u32 v4, v5, 4, v4")
    g(f"s_mul_i32 s16, s2, {WV}")
    g("s_add_u32 s16, s16, s21")
    g(f"s_mul_i32 s16, s16, {NF}")
    g("s_lshl_b32 s19, s16, 10")
    g.smem_wait()
    srd(8, 6, 7, 22020096)
    for f in range(NF):
        for p in range(8):
            g(f"s_add_u32 s20, s19, {p*64*43008}")
            g(f"buffer_load_dwordx4 {vr(8+4*(f*8+p))}, v1, s[8:11], s20 offen offset:{f*1024}{FL[OPT['ldf']]}")
    srd(12, 4, 5, 2752512)
    g("s_mov_b32 s30, 0x3f80")
    g("s_mov_b32 s31, 0x3f800000")
    for f in range(NF):
        g(f"s_add_u32 s17, s16, {f}")
        g("s_mul_i32 s18, s17, 6242")
        g("s_lshr_b32 s18, s18, 18")
        g("s_mul_i32 s22, s18, 42")
        g("s_sub_u32 s22, s17, s22")
        g("s_mul_i32 s23, s22, 43")
        g("s_lshr_b32 s23, s23, 7")
        g("s_mul_i32 s24, s23, 3")
        g("s_sub_u32 s24, s22, s24")
        g("s_and_b32 s25, s18, 31")
        g("s_mul_i32 s25, s25, 3")
        g("s_add_u32 s25, s25, s24")
        g(f"s_mul_i32 s{32+f}, s25, {16*1792}")
        g("s_lshr_b32 s25, s18, 5")
        g("s_mul_i32 s25, s25, 896")
        g(f"s_add_u32 s{32+f}, s{32+f}, s25")
        g("s_lshl_b32 s23, s23, 6")
        g(f"s_add_u32 s{32+f}, s{32+f}, s23")
    base = 8 + 32 * NF
    for f in range(NF):
        A, B, O = base, base + 8, base + 16
        for p in range(8):
            for k in range(4):
                src = 8 + 4 * (f * 8 + p) + k
                if OPT['rdot']:
                    for h in range(2):
                        g(f"v_dot2_f32_bf16 v{A+2*k+h}, v{src}, s{30+h}, {'v%d' % (A+2*k+h) if p else 0}")
                else:
                    d = A if p == 0 else B
                    g(f"v_lshlrev_b32 v{d+2*k}, 16, v{src}")
                    g(f"v_and_b32 v{d+2*k+1}, 0xffff0000, v{src}")
            if p and not OPT['rdot']:
                for k in range(8):
                    g(f"v_add_f32 v{A+k}, v{A+k}, v{B+k}")
        if OPT['rdot']: g.nop(3)
        for k in range(4):
            g(f"v_cvt_pk_bf16_f32 v{O+k}, v{A+2*k}, v{A+2*k+1}")
        g(f"v_permlane32_swap_b32 v{O}, v{O+2}")
        g(f"v_permlane32_swap_b32 v{O+1}, v{O+3}")
        g(f"v_permlane16_swap_b32 v{O}, v{O+2}")
        g(f"v_permlane16_swap_b32 v{O+1}, v{O+3}")
        g(f"buffer_store_dwordx4 {vr(O)}, v4, s[12:15], s{32+f} offen{FL[OPT['osf']]}")
    if OPT['stamps']:
        g.wait_all()
        g("s_memrealtime s[42:43]")
        g.smem_wait()
        g("s_mov_b32 s10, 0x10000000")
        g(f"s_lshl_b32 s20, s16, 3")
        g(f"s_add_u32 s20, s20, {25<<20}")
        g("v_mov_b32 v6, s40"); g("v_mov_b32 v7, s42"); g("v_mov_b32 v1, 0")
        g("buffer_store_dwordx2 v[6:7], v1, s[8:11], s20 offen")
    g.raw("L_red_end:")
    g("s_endpgm")
    g.raw("L_text_end:")

def descriptors():
    g.raw('.section .rodata,"a"')
    for name, nv, acc in ((MAIN, 512, 256), (RED, 32 * OPT['rnf'] + 32, 32 * OPT['rnf'] + 32))[:1 if OPT['fuse'] else 2]:
        g.raw(".p2align 6")
        g.raw(f".amdhsa_kernel {name}")
        g.raw(f"  .amdhsa_next_free_vgpr {nv}")
        g.raw("  .amdhsa_next_free_sgpr 102")
        g.raw(f"  .amdhsa_accum_offset {acc}")
        g.raw("  .amdhsa_group_segment_fixed_size 0")
        g.raw("  .amdhsa_kernarg_size 104")
        g.raw("  .amdhsa_user_sgpr_count 2")
        g.raw("  .amdhsa_user_sgpr_kernarg_segment_ptr 1")
        g.raw("  .amdhsa_system_sgpr_workgroup_id_x 1")
        g.raw("  .amdhsa_float_denorm_mode_32 3")
        g.raw(".end_amdhsa_kernel")

header()
main_kernel()
st = dict(g.stats)
if not OPT['fuse']: reduce_kernel()
else: g.raw('L_text_end:')
descriptors()
open(sys.argv[1], "w").write(g.text())
print("main stats", st, "forced", fq.forced)
```

```python
import sys, struct, json
from asmgen import Gen, classify

NAME = "concat_heads__mha_block_cached__gqa_block_cached__near_ridge"
MAIN = NAME + "_kernel"
RED = "reduce_partials_kernel"

OPT = dict(bar_group=10, D=7, stamps=0, code_pf=1, touch=1, ntk=1, ntv=1, nttw=0, nttx=0,
           k0=2, k1=6, k2=10, kw=3, t_wo0=8, t_wo1=16, v1=15, v1b=19, p1=17, t_a=0, t_b=4, v0a=13, nc=1, kstep=1, vstep=1, ntfirst=1, pace=1, diag=0, nok=0, nov=0, now=0, nost=0, nox=0, dbg=0, stf=1, ldf=0, osf=0, tlb=0, cpf_first=1, cpf_red=0, cpf2=0, fuse=1, slp=2, t_xa=0, t_xb=4, ret=0, hw=1, nobar=0, lastb=2, w1pro=1, pack=1, ring=8, spack=1, v0b=14, xdir=0, pw=1, arr=26, pubs=26, pubi=13, ic=2, ia=6, ib=8, ie=11, vup=3, t_v1=99, nttv=0, ntv1=1, v1m=0, rnf=1, rwv=6, rdot=0, sta=0, stb=14, w0dir=1, kw0=0, kw1=0, kw2=0, rs=1, ecv=1, svm=4, vearly=0, vpos=0, wdel=0, syncw=0, na=48, arri=7, wsb=1, pub0=10, lk0=24, lk1=6)
FL = ['', ' sc1', ' sc0 sc1', ' nt', ' sc1 nt', ' sc0 sc1 nt']
for a in sys.argv[2:]:
    k, v = a.split('=')
    assert k in OPT, k
    OPT[k] = int(v)
def NT(k): return ' nt' if OPT[k] else ''

SLOT = 32768
VB = 3 * SLOT
XU = 12288
KA = VB + 65536 - 4 * 8320
PB = VB + 49152
LDS_BYTES = 163840
BIG = 0x7ffff000

S_X, S_K, S_V, S_WQ, S_WO, S_WS = 8, 12, 16, 20, 24, 28
sW, sBSEL, sJ, sBR, sH0, sB0, sB = 32, 33, 34, 35, 36, 37, 38
sWQB = 39
sXB, sXM, sKB, sKM, sXO, sKO, sWQO, sWOO, sWOO2, sVO = 40, 41, 42, 43, 44, 45, 46, 47, 48, 49
sM, sVM, sST, sC = 50, 51, 52, 53
sT0, sT1, sT2, sT3 = 54, 55, 56, 57
sVBASE, sWOBASE = 58, 59
sPC = 60
sTWQ = 63
sTV = 62
sHG, sHP, sWI, sTWO, sCLS = 88, 89, 90, 91, 94
S_FLG, sFLG = 4, 95
sPD = 100
sPX, sPY = 3, 61
STB = 64

def QACC(T, t): return (((T // 2) * 3 + t) * 4) + (96 if T & 1 else 0)
def QFRAG(s, t): return (s * 3 + t) * 4
SACC = 192
vWQR = 192
vWQD = 208
vXR = 216
vXD = 218
vKR = 219
vKD = 223
vTWQ = 224
vTXA = 225
vTXB = 226
vT16 = 227
vWOD = 228
vVD = 232
vVR = 233
vWOR = 237
vSTO = 241
vPW = 242
vPW2 = 243
vT32 = 244
vDUM = 245
vFLAG = 252
vZERO = 253
vPUB = 250
vLOOK = 245
vSM = 246
def VFRAG(u, s): return (u * 8 + s) * 4
vPOWN = 96
vP32 = [114, 126]
vPU2 = 138
vPA, vPB = 162, 163
vVWB = 150
vEP = 96
def VWACC(par, T, u): return 180 + par * 24 + (T * 3 + u) * 4
aFR, aK, aX, XRING, aOUT = 0, 40, 136, 10, 40
def U2(c, T):
    k = c * 2 + T
    return 32 + 4 * k if k < 2 else 208 + 4 * (k - 2)
def OUTACC(c, T, t): return aOUT + ((c * 2 + T) * 3 + t) * 4

def vr(b, n=4): return f"v[{b}:{b+n-1}]"
def ar(b, n=4): return f"a[{b}:{b+n-1}]"
def sr(b, n=4): return f"s[{b}:{b+n-1}]"

g = Gen()
nstamp = 0
vSTAMP = 255
pending = False
names = []
def stamp_flush():
    global pending
    if pending:
        g(f"v_writelane_b32 v{vSTAMP}, s92, {nstamp-1}")
        pending = False
def stamp(name="", real=False, drained=False):
    global nstamp, pending
    if OPT['stamps']:
        if pending:
            if not drained: g.smem_wait()
            stamp_flush()
        g(f"{'s_memrealtime' if real else 's_memtime'} s[92:93]")
        names.append(name); nstamp += 1; pending = True

def header():
    g.raw("; fused attention block: each workgroup (2 batches x 2 heads of one branch) computes q-proj, softmax and a partial out-proj;")
    g.raw("; the 8 workgroups of a (branch, batch pair) then meet on counters and each sums 1/8 of the output tile")
    if OPT['fuse']:
        g.raw(f"; @launch grid=(256,1,1) block=(256,1,1) lds={LDS_BYTES}")
    else:
        g.raw(f"; @launch kernel={MAIN} grid=(256,1,1) block=(256,1,1) lds={LDS_BYTES}")
        g.raw(f"; @launch kernel={RED} grid=({2688 // (OPT['rnf'] * OPT['rwv'])},1,1) block=({64 * OPT['rwv']},1,1) lds=0")
    g.raw('.amdgcn_target "amdgcn-amd-amdhsa--gfx950"')
    g.raw(".text")

def kernel_open(name):
    g.raw(f".globl {name}")
    g.raw(".p2align 8")
    g.raw(f".type {name},@function")
    g.raw(f"{name}:")

def srd(dst, lo, hi, nbytes):
    g(f"s_mov_b32 s{dst}, s{lo}")
    g(f"s_and_b32 s{dst+1}, s{hi}, 0xffff")
    g(f"s_mov_b32 s{dst+2}, {nbytes}")
    g(f"s_mov_b32 s{dst+3}, 0x20000")

def wq_dma(R):
    slot = (R % 3) * SLOT
    out = [(f"s_add_u32 s{sWQO}, s{sWQB}, {R*262144}", None)]
    for i in range(8):
        if i % 4 == 0:
            out.append((f"s_add_u32 m0, s{sM}, {slot + (i//4)*4096}", None))
        out.append((f"buffer_load_dwordx4 v{vWQD+i}, {sr(S_WQ)}, s{sWQO} offen offset:{(i%4)*1024} lds", f"R{R}"))
    return out

def wo_dma(R):
    hh, c = divmod(R - 14, 7)
    slot = (R % 3) * SLOT
    out = [(f"s_add_u32 s{sWOO}, s{sWOBASE}, {hh*229376 + c*128}", None),
           (f"s_add_u32 s{sWOO2}, s{sWOBASE}, {hh*229376 + c*128 + 28672}", None)]
    for i in range(8):
        if i % 4 == 0:
            out.append((f"s_add_u32 m0, s{sM}, {slot + (i//4)*4096}", None))
        so = sWOO if i < 4 else sWOO2
        out.append((f"buffer_load_dwordx4 v{vWOD+(i%4)}, {sr(S_WO)}, s{so} offen offset:{(i%4)*1024} lds", f"R{R}"))
    return out

def ring_dma(R):
    if OPT['now'] and R > 2: return []
    if R < 14: return wq_dma(R)
    if R < 28: return wo_dma(R)
    return []

def x_dma(p, tag):
    out = []
    if OPT['nox'] and p > 1: return out
    for k in range(3):
        out.append((f"s_add_u32 s{sXO}, s{sXB}, {p*128 + k*28672}", None))
        out.append((f"s_add_u32 m0, s{sXM}, {(p % 2)*XU + k*4096}", None))
        out.append((f"buffer_load_dwordx4 v{vXD}, {sr(S_X)}, s{sXO} offen{NT('ntfirst') if (p < 2 or OPT['xdir']) else ''} lds", tag))
    return out

def x_reads(p):
    out = []
    for s2 in range(2):
        s = 2 * p + s2
        for t in range(3):
            d = aX + (s % XRING) * 12 + t * 4
            out.append((f"ds_read_b128 {ar(d)}, v{vXR+s2} offset:{(p % 2)*XU + t*2048}", None))
    return out

def k_dma(u, tag):
    out = []
    if OPT['nok']: return out
    for dh in range(2):
        out.append((f"s_add_u32 m0, s{sKM}, {dh*4160}", None))
        for j in range(4):
            out.append((f"s_add_u32 s{sKO}, s{sKB}, {u*8192 + dh*256 + j*(2048-1040)}", None))
            out.append((f"buffer_load_dwordx4 v{vKD}, {sr(S_K)}, s{sKO} offen offset:{j*1040}{NT('ntk')} lds", tag))
    return out

def k_reads(u):
    out = []
    for dh in range(2):
        for s4 in range(4):
            for p in range(2):
                d = aK + (u * 8 + dh * 4 + s4) * 4 + 2 * p
                out.append((f"ds_read_b64 {ar(d,2)}, v{vKR+s4} offset:{dh*4160 + 32*p}", None))
    return out

def v_dma(hh, subs, tag=None):
    out = []
    if OPT['nov']: return out
    for sub in subs:
        bb, r = divmod(sub, 6); u, dh = divmod(r, 2)
        out.append((f"s_add_u32 s{sVO}, s{sVBASE}, {hh*24576 + bb*393216 + u*8192 + dh*256}", None))
        out.append((f"s_add_u32 m0, s{sVM}, {sub*4096}", None))
        out.append((f"buffer_load_dwordx4 v{vVD}, {sr(S_V)}, s{sVO} offen{NT('ntv') if hh == 0 else NT('ntv1')} lds", tag or f"V{hh}"))
    return out

def v_read(u, s):
    dh, s4 = divmod(s, 4)
    return (f"ds_read_b128 {vr(VFRAG(u,s))}, v{vVR+s4} offset:{(u*2+dh)*4096}", None)

def touch(vaddr, srd_, sbase, add, plain=False):
    key = {S_WQ: 'nttw', S_WO: 'nttw', S_X: 'nttx', S_V: 'nttv'}[srd_]
    if not OPT['touch']: return []
    return [(f"s_add_u32 s{sT1}, s{sbase}, {add}", None),
            (f"buffer_load_dword v{vDUM}, v{vaddr}, {sr(srd_)}, s{sT1} offen{'' if plain else NT(key)}", None, True)]

def touch_table():
    return {'t_a': (vT16, S_WQ, sTWQ, 128 * 8192), 't_xa': (vTXA, S_X, sXB, 256), 't_b': (vTWQ, S_WQ, sTWQ, 256 * 8192),
            't_xb': (vTXB, S_X, sXB, 512), 't_wo0': (vT32, S_WO, sTWO, 0), 't_wo1': (vT32, S_WO, sTWO, 229376)}
def touches(R, shift=0):
    o = []
    for k, a in touch_table().items():
        if OPT['xdir'] and k.startswith('t_x'): continue
        at = OPT[k] + (shift if OPT[k] >= 1 and k != 't_wo1' else 0)
        if at == R: o += touch(*a)
        if OPT['ret'] and max(at, 0) + OPT['ret'] == R: o += touch(*a, plain=True)
    if R == OPT['t_v1']:
        for k in range(3): o += touch(vT32, S_V, sTV, 24576 + 4096 * k)
    return o

class FillQ:
    def __init__(self): self.q = []
    def add(self, items): self.q.extend(items)
    def pop(self):
        it = self.q.pop(0)
        if callable(it): it()
        else: g(it[0], tag=it[1], nodst=(len(it) > 2))
    def __len__(self): return len(self.q)
    def is_vm(self, it):
        return (not callable(it)) and it[0].startswith(('buffer_', 'global_'))
    def nvm(self): return sum(1 for it in self.q if self.is_vm(it))
    def drain(self):
        while self.q: self.pop()
    def drain_mem(self):
        while True:
            idx = [i for i, it in enumerate(self.q) if self.kind(it) not in ('v', 'e')]
            if not idx: return
            j = self.find('mds')
            if j is None: self.pop()
            else: self.pop_at(j)
    def guard(self, text):
        _, _, _, _, rd, wr = classify(text)
        rd = {r for r in rd if r[0] != 's'}; wr = {r for r in wr if r[0] != 's'}
        last = -1
        for i, it in enumerate(self.q):
            if callable(it): continue
            _, _, _, _, frd, fwr = classify(it[0])
            if len(it) > 2: fwr = []
            if (set(fwr) & (rd | wr)) or (set(frd) & wr): last = i
        if last >= 0: self.forced += last + 1
        for _ in range(last + 1): self.pop()
    forced = 0
    def kind(self, it):
        if callable(it): return 'call'
        t = it[0]
        if t.startswith(('buffer_', 'global_')): return 'm'
        if t.startswith('ds_'): return 'd'
        if t.startswith(('v_exp', 'v_rcp', 'v_log', 'v_rsq', 'v_sqrt')): return 'e'
        if t.startswith('v_'): return 'v'
        return 's'
    def find(self, kinds, depth=200):
        seen_r, seen_w = set(), set()
        for i, it in enumerate(self.q[:depth]):
            if callable(it): return None
            k = self.kind(it)
            _, _, _, _, rd_, wr_ = classify(it[0])
            if len(it) > 2: wr_ = []
            rd_, wr_ = set(rd_), set(wr_)
            if k == 's': wr_ = wr_ | {('scc', 0)} if False else wr_
            if k in kinds:
                order_ok = not (k in 'md' and any(self.kind(e) == k for e in self.q[:i]))
                if order_ok and not (wr_ & (seen_r | seen_w)) and not (rd_ & seen_w): return i
            seen_r |= rd_; seen_w |= wr_
        return None
    def pop_at(self, i):
        it = self.q.pop(i)
        g(it[0], tag=it[1], nodst=(len(it) > 2))
fq = FillQ()

def fill_gap(ring_read, vm_due, reserve):
    if len(fq) and callable(fq.q[0]):
        fq.pop(); return False
    if vm_due and not reserve:
        i = fq.find('m')
        if i is not None:
            fq.pop_at(i); return True
    slots = 2 - (1 if reserve else 0)
    if ring_read:
        ring_read(); slots -= 1
    else:
        i = fq.find('d')
        if i is not None:
            fq.pop_at(i); slots -= 1
    while slots > 0:
        i = fq.find('vse' if slots == 2 else 'vs')
        if i is None: break
        slots -= 2 if fq.kind(fq.q[i]) == 'e' else 1
        fq.pop_at(i)
    return False
def emit_list(l):
    for it in l: g(it[0], tag=it[1], nodst=(len(it) > 2))

def run_stages(groups, after_barrier, wait_tags, tail_barrier=None, nreg=4):
    ring = OPT['ring']
    D = min(OPT['D'], ring - 1)
    open_stage = groups[0]['stage']
    pend = []
    fr = 0
    for n, gr in enumerate(groups):
        gr['fr'] = fr
        if gr['reads']:
            d = aFR + (fr % ring) * nreg
            for k, rt in enumerate(gr['reads']):
                pend.append((fr, gr['stage'], rt.format(d=ar(d + 2 * k, 2))))
            fr += 1
    rp = 0
    def can_read(f_cur):
        if rp >= len(pend): return False
        f, st, _ = pend[rp]
        return st <= open_stage and f <= f_cur + D
    while rp < len(pend) and pend[rp][0] < D and pend[rp][1] <= open_stage:
        g(pend[rp][2]); rp += 1
    last_stage = groups[-1]['stage']
    left = [0] * len(groups)
    acc = 0
    for n in range(len(groups) - 1, -1, -1):
        if groups[n].get('idx') == OPT['bar_group']: acc = 0
        acc += len(groups[n]['mfmas'])
        left[n] = acc
    since_vm = 1000
    for n, gr in enumerate(groups):
        f = gr['fr']
        d = aFR + (f % ring) * nreg
        if gr['reads']:
            while rp < len(pend) and pend[rp][0] <= f:
                assert pend[rp][1] <= open_stage
                g(pend[rp][2]); rp += 1
        if gr['reads'] and OPT['hw'] and f % 2 == 0 and any(p[0] == f + 1 for p in pend[:rp]) and sum(1 for p in pend[:rp] if p[0] == f + 1) == 2:
            d2 = aFR + ((f + 1) % ring) * nreg
            g.need([('a', d + i) for i in range(4)] + [('a', d2 + i) for i in range(4)])
        fcur = f if gr['reads'] else f - 1
        R = gr['stage']
        for it in gr.get('pre', []): fq.q.insert(0, it) if False else None
        if gr.get('front'):
            fq.q[0:0] = gr['front']
        for k, mt in enumerate(gr['mfmas']):
            fq.guard(mt.format(a=ar(d)))
            g(mt.format(a=ar(d)))
            since_vm += 1
            rem = left[n] - k - 1
            if OPT['pack']:
                nxt = groups[n+1] if n + 1 < len(groups) else None
                reserve = (k == len(gr['mfmas']) - 1 and nxt is not None and bool(nxt['reads']) and nxt['fr'] % 2 == 0)
                nv = fq.nvm()
                gap = max(1, (rem - 1) // max(1, nv))
                behind = rp < len(pend) and can_read(fcur) and pend[rp][0] <= fcur + OPT['D'] - 3
                vm_due = nv > 0 and since_vm >= min(gap, 6) and not behind
                def rr():
                    nonlocal rp
                    g(pend[rp][2]); rp += 1
                if fill_gap(rr if can_read(fcur) else None, vm_due, reserve): since_vm = 0
                continue
            budget = 2
            if k == len(gr['mfmas']) - 1 and n + 1 < len(groups) and groups[n+1]['reads'] and (groups[n+1]['fr'] % 2 == 0 or not OPT['hw']):
                budget = OPT['lastb']
            while budget:
                if can_read(fcur):
                    g(pend[rp][2]); rp += 1; budget -= 1
                elif len(fq):
                    j = None
                    if fq.is_vm(fq.q[0]) and OPT['pace']:
                        gap = max(1, (rem - 2) // max(1, fq.nvm()))
                        if since_vm >= min(gap, OPT['pace'] * 6): j = 0
                        else:
                            for i, it in enumerate(fq.q):
                                if callable(it): break
                                if fq.is_vm(it) or it[0].startswith('s_'): continue
                                _, _, _, _, rd_, wr_ = classify(it[0])
                                clash = False
                                for e in fq.q[:i]:
                                    _, _, _, _, erd, ewr = classify(e[0])
                                    if (set(erd) | set(ewr)) & set(wr_) or set(ewr) & set(rd_): clash = True
                                if not clash: j = i
                                break
                    else:
                        j = 0
                    if j is None: break
                    if j == 0:
                        if fq.is_vm(fq.q[0]): since_vm = 0
                        fq.pop()
                    else:
                        it = fq.q.pop(j); g(it[0], tag=it[1], nodst=(len(it) > 2))
                    budget -= 1
                else:
                    break
        for it in gr.get('post', []):
            fq.add([it])
        if gr.get('hook3'):
            wave0("L_wk_%d" % CLS[0], lambda: look(4))
            CLS[2] = g.vmtot
        if gr.get('hook2'):
            assert not any((not callable(it)) and it[1] in ("ST2", "ST3") for it in fq.q)
            assert not any((not callable(it)) and it[0].startswith("v_cvt_pk_bf16_f32 v15") for it in fq.q)
            wave0("L_wx_%d" % CLS[0], lambda: poll(1, CLS[0], g.vmtot - CLS[2]))
            g.wait_tag(["ST2", "ST3"])
            g.barrier()
            wave0("L_wy_%d" % CLS[0], lambda: arrive(2))
            fq.q[0:0] = part_loads(0)
        if OPT['fuse'] and gr.get('idx') == OPT['bar_group'] and R == 25:
            wave0("L_wf_%d" % CLS[0], lambda: poll(0, CLS[0], g.vmtot - CLS[2]))
        if gr.get('idx') == OPT['bar_group'] and (R < last_stage or tail_barrier):
            while rp < len(pend) and pend[rp][1] <= R:
                g(pend[rp][2]); rp += 1
            fq.drain_mem()
            g.wait_tag(wait_tags(R + 1), lg=0)
            if OPT['stamps'] > 1: g.smem_wait()
            if not OPT['nobar']: g.barrier()
            if OPT['stamps'] > 1: stamp(f"b{R+1}", drained=True)
            if OPT['fuse'] and R + 1 == OPT['pub0']:
                wave0("L_wp_%d" % CLS[0], lambda: publish(CLS[0], g.vmtot - CLS[1]))
            if OPT['fuse'] and R + 1 == 26:
                wave0("L_we_%d" % CLS[0], lambda: arrive(1))
            if OPT['fuse'] and R + 1 == 27 and False:
                pass
            if OPT['fuse'] and R + 1 == OPT['lk0']:
                wave0("L_wl_%d" % CLS[0], lambda: look(0))
                CLS[2] = g.vmtot
            open_stage = R + 1
            fq.add(after_barrier(R + 1))

def interleave(mf, fill, per=2):
    fill = list(fill)
    for m in mf:
        g(m)
        for _ in range(per):
            if fill: g(fill.pop(0))
            elif len(fq): fq.pop()
    for f in fill: g(f)

def softmax_ops(t):
    S = [SACC + 12 * t + k for k in range(12)]
    m, x = vSM + 2 * t, vSM + 2 * t + 1
    o = []
    if OPT['rs']:
        for k in range(0, 12, 2):
            r = (m, x)[(k // 2) % 2]
            o.append(f"v_cvt_pk_bf16_f32 v{r}, v{S[k]}, v{S[k+1]}")
            o.append(f"v_lshlrev_b32 v{S[k]}, 16, v{r}")
            o.append(f"v_and_b32 v{S[k+1]}, 0xffff0000, v{r}")
    o.append(f"v_max3_f32 v{m}, v{S[0]}, v{S[1]}, v{S[2]}")
    o.append(f"v_max3_f32 v{x}, v{S[3]}, v{S[4]}, v{S[5]}")
    o.append(f"v_max3_f32 v{m}, v{m}, v{S[6]}, v{S[7]}")
    o.append(f"v_max3_f32 v{x}, v{x}, v{S[8]}, v{S[9]}")
    o.append(f"v_max3_f32 v{m}, v{m}, v{S[10]}, v{S[11]}")
    o.append(f"v_max_f32 v{m}, v{m}, v{x}")
    for sw in ("v_permlane32_swap_b32", "v_permlane16_swap_b32"):
        o.append(f"v_mov_b32 v{x}, v{m}")
        o.append(f"{sw} v{m}, v{x}")
        o.append(f"v_max_f32 v{m}, v{m}, v{x}")
    o.append(f"v_mul_f32 v{m}, s{sC}, v{m}")
    for k in range(12):
        o.append(f"v_fma_f32 v{S[k]}, v{S[k]}, s{sC}, -v{m}")
    for k in range(12):
        o.append(f"v_exp_f32 v{S[k]}, v{S[k]}")
    o.append(f"v_add_f32 v{m}, v{S[0]}, v{S[1]}")
    o.append(f"v_add_f32 v{x}, v{S[2]}, v{S[3]}")
    for k in range(4, 12, 2):
        o.append(f"v_add_f32 v{m}, v{m}, v{S[k]}")
        o.append(f"v_add_f32 v{x}, v{x}, v{S[k+1]}")
    o.append(f"v_add_f32 v{m}, v{m}, v{x}")
    for sw in ("v_permlane32_swap_b32", "v_permlane16_swap_b32"):
        o.append(f"v_mov_b32 v{x}, v{m}")
        o.append(f"{sw} v{m}, v{x}")
        o.append(f"v_add_f32 v{m}, v{m}, v{x}")
    o.append(f"v_rcp_f32 v{m}, v{m}")
    for k in range(12):
        o.append(f"v_mul_f32 v{S[k]}, v{S[k]}, v{m}")
    for k in range(6):
        o.append(f"v_cvt_pk_bf16_f32 v{vPOWN + 6*t + k}, v{S[2*k]}, v{S[2*k+1]}")
    return o

def merge(*lists):
    out = []
    n = max(len(l) for l in lists)
    for i in range(n):
        for l in lists:
            if i < len(l): out.append(l[i])
    return out

def cvt_pairs(acc, s_list, t):
    o = []
    for s in s_list:
        b, b2 = acc(2 * s, t), acc(2 * s + 1, t)
        o.append(f"v_cvt_pk_bf16_f32 v{b}, v{b}, v{b+1}")
        o.append(f"v_cvt_pk_bf16_f32 v{b+1}, v{b+2}, v{b+3}")
        o.append(f"v_cvt_pk_bf16_f32 v{b+2}, v{b2}, v{b2+1}")
        o.append(f"v_cvt_pk_bf16_f32 v{b+3}, v{b2+2}, v{b2+3}")
    return o

def p_write0():
    for t in range(3):
        g(f"ds_write_b128 v{vPA}, {vr(vPOWN+6*t)} offset:{t*1024}")
    g(f"s_mov_b64 exec, s[{sPD}:{sPD+1}]")
    for t in range(3):
        g(f"ds_write_b64 v{vPW2}, {vr(vPOWN+6*t+4,2)} offset:{t*512}")
    g("s_mov_b64 exec, -1")

def p_write1():
    return [(f"ds_write_b64 v{vPB}, {vr(vPOWN+6*t+4,2)} offset:{t*512}", None) for t in range(3)]

def p_reads32(hh):
    return [(f"ds_read_b128 {vr(vP32[hh]+4*t)}, v{vPW} offset:{hh*6144 + t*1024}", None) for t in range(3)]
def p_readsu2(hh):
    return [(f"ds_read_b64 {vr(vPU2+4*t+2*hh,2)}, v{vPW2} offset:{t*512}", None) for t in range(3)]

def q_groups():
    gs = []
    for s in range(14):
        slot = s % 3
        win, base = (1, 0) if slot == 2 else (0, slot * SLOT)
        for T in range(16):
            reads = [f"ds_read_b64_tr_b16 {{d}}, v{vWQR + win*8 + (T & 7)} offset:{base + rd*16384 + (T>>3)*256}" for rd in range(2)]
            mf = []
            for t in range(3):
                acc = vr(QACC(T, t))
                xb = ar(aX + (s % XRING) * 12 + t * 4)
                mf.append(f"v_mfma_f32_16x16x32_bf16 {acc}, {{a}}, {xb}, {acc if s else 0}")
            gr = dict(stage=s, reads=reads, mfmas=mf, idx=T)
            if s == 13 and OPT['ecv'] and T >= 3 and T % 2 == 1:
                gr['post'] = [(i, None) for t in range(3) for i in cvt_pairs(QACC, [(T - 3) // 2], t)]
            gs.append(gr)
    return gs

def vw_cvt(R):
    par = R % 2
    hh, c = divmod(R - 14, 7)
    o = []
    for T in range(2):
        for u in range(3):
            b = VWACC(par, T, u)
            d = vVWB + 4 * T + 2 * u if u < 2 else vVWB + 8 + 2 * T
            o.append((f"v_cvt_pk_bf16_f32 v{d}, v{b}, v{b+1}", None))
            o.append((f"v_cvt_pk_bf16_f32 v{d+1}, v{b+2}, v{b+3}", None))
    for T in range(2):
        for i in range(2):
            o.append((f"v_accvgpr_write_b32 a{U2(c,T)+2*hh+i}, v{vVWB+8+2*T+i}", None))
    return o

def final_groups(R, stage):
    hh, c = divmod(R - 14, 7)
    a, b = [], []
    for T in range(2):
        for t in range(3):
            acc = ar(OUTACC(c, T, t))
            a.append(f"v_mfma_f32_16x16x32_bf16 {acc}, {vr(vVWB+4*T)}, {vr(vP32[hh]+4*t)}, {acc if hh else 0}")
            if hh: b.append(f"v_mfma_f32_16x16x32_bf16 {acc}, {ar(U2(c,T))}, {vr(vPU2+4*t)}, {acc}")
    return dict(stage=stage, reads=[], mfmas=a), dict(stage=stage, reads=[], mfmas=b)

def epilogue_ops(c):
    o = [(f"s_add_u32 s{sT0}, s{sST}, {c*6144}", None)]
    for t in range(3):
        tb = vEP + t * 8
        for T in range(2):
            for r in range(4):
                o.append((f"v_accvgpr_read_b32 v{tb + T*4 + r}, a{OUTACC(c,T,t)+r}", None))
        for k in range(4):
            o.append((f"v_cvt_pk_bf16_f32 v{tb+k}, v{tb+2*k}, v{tb+2*k+1}", None))
        if not OPT['nost']: o.append((f"buffer_store_dwordx4 {vr(tb)}, v{vSTO}, {sr(S_WS)}, s{sT0} offen offset:{t*1024}{FL[OPT['stf']]}", f"ST{c}"))
    return o

def o_groups():
    gs = []
    for R in range(14, 28):
        hh, c = divmod(R - 14, 7)
        slot = R % 3
        win, base = (1, 0) if slot == 2 else (0, slot * SLOT)
        for s in range(8):
            for T in range(2):
                idx = 2 * s + T
                reads = [f"ds_read_b64_tr_b16 {{d}}, v{vWOR + win*2 + T} offset:{base + s*4096 + rd*2048}" for rd in range(2)]
                mf = []
                for u in range(3):
                    acc = vr(VWACC(R % 2, T, u))
                    mf.append(f"v_mfma_f32_16x16x32_bf16 {acc}, {vr(VFRAG(u,s))}, {{a}}, {acc if s else 0}")
                gr = dict(stage=R, reads=reads, mfmas=mf, idx=idx)
                if R > 14 and idx == OPT['ic']: gr['front'] = vw_cvt(R - 1)
                if R == 20 and T == 1:
                    ss = [s] if s not in (4, 5) else ([] if s == 4 else [4, 5])
                    assert OPT['bar_group'] == 10
                    gr['post'] = [v_read(u, s_) for s_ in ss for u in range(3)]
                gs.append(gr)
                if R > 14 and idx == OPT['ia']: gs.append(final_groups(R - 1, R)[0])
                if R > 14 and idx == OPT['ib']:
                    gb = final_groups(R - 1, R)[1]
                    if gb['mfmas']: gs.append(gb)
                if R > 21 and idx == OPT['ie']: gs[-1]['post'] = epilogue_ops(R - 22)
                if R == 27 and idx == OPT['arri'] and OPT['fuse']: gs[-1]['hook2'] = True
                if R == 27 and idx == OPT['arri'] - OPT['lk1'] and OPT['fuse']: gs[-1]['hook3'] = True
    return gs

def finish_stamps(cls):
    if OPT['stamps']:
        stamp("real_end", real=True)
        g.smem_wait(); stamp_flush()
        g(f"v_writelane_b32 v{vSTAMP}, s98, 62")
        g(f"v_writelane_b32 v{vSTAMP}, s96, 63")
        g(f"s_lshl_b32 s{sT0}, s2, 2")
        g(f"s_add_u32 s{sT0}, s{sT0}, s{sW}")
        g(f"s_lshl_b32 s{sT0}, s{sT0}, 8")
        g(f"s_add_u32 s{sT0}, s{sT0}, {24<<20}")
        g(f"s_mov_b32 s{S_WS+2}, 0x10000000")
        g(f"v_lshrrev_b32 v1, 2, v{vSTO}")
        if OPT['dbg']:
            g(f"s_cmp_lg_u32 s2, {OPT['dbg']}")
            g(f"s_cbranch_scc1 L_nodbg_{cls}")
            g(f"s_cmp_lg_u32 s{sW}, 1")
            g(f"s_cbranch_scc1 L_nodbg_{cls}")
            g(f"v_subrev_u32 v2, s98, v{vSTAMP}")
            g(f"s_mov_b64 exec, 0xffff")
            g(f"buffer_store_dword v2, v1, {sr(S_K)}, 0 offen")
            g.raw(f"L_nodbg_{cls}:")
        else:
            g(f"buffer_store_dword v{vSTAMP}, v1, {sr(S_WS)}, s{sT0} offen")
        json.dump(names, open(sys.argv[1] + ".names", "w"))
    g("s_endpgm")

def main_kernel():
    kernel_open(MAIN)
    g(f"s_cmp_ge_u32 s2, 256")
    g(f"s_cbranch_scc1 L_main_end")
    if OPT['stamps']:
        g("s_memrealtime s[96:97]")
        g("s_memtime s[98:99]")
    if OPT['cpf_first']:
        g(f"s_getpc_b64 s[{sPC}:{sPC+1}]")
        g.raw("L_pc0:")
        g(f"s_lshr_b32 s{sT0}, s2, 3")
        g(f"s_lshl_b32 s{sT0}, s{sT0}, 12")
        g(f"v_lshl_add_u32 v2, v0, 4, s{sT0}")
        g(f"v_min_u32 v2, (L_{'text' if OPT['cpf_red'] else 'main'}_end-L_pc0)/16*16-16, v2")
        g(f"global_load_dword v{vDUM}, v2, s[{sPC}:{sPC+1}]", nodst=True)
    g("s_load_dwordx8 s[64:71], s[0:1], 0")
    g("s_load_dwordx2 s[72:73], s[0:1], 32")
    g("s_load_dwordx8 s[76:83], s[0:1], 40")
    g("s_load_dwordx2 s[74:75], s[0:1], 72")
    g("s_load_dwordx4 s[84:87], s[0:1], 80")
    g("s_load_dwordx2 s[4:5], s[0:1], 96")
    g(f"s_getpc_b64 s[{sPC}:{sPC+1}]")
    g.raw("L_pc:")
    L = 1
    t0, t1, t2, t3, t4, t5 = 2, 3, 4, 5, 6, 7
    g(f"v_lshrrev_b32 v{t0}, 6, v0")
    g(f"v_and_b32 v{L}, 63, v0")
    g(f"v_readfirstlane_b32 s{sW}, v{t0}")
    g(f"s_and_b32 s{sT0}, s2, 7")
    g(f"s_lshr_b32 s{sT1}, s2, 3")
    g(f"s_lshr_b32 s{sBR}, s{sT0}, 2")
    g(f"s_and_b32 s{sHG}, s{sT0}, 3")
    g(f"s_lshl_b32 s{sT0}, s{sHG}, 2")
    g(f"s_and_b32 s{sHP}, s{sT1}, 1")
    g(f"s_lshl_b32 s{sT2}, s{sHP}, 1")
    g(f"s_add_u32 s{sH0}, s{sT0}, s{sT2}")
    g(f"s_lshr_b32 s{sB0}, s{sT1}, 1")
    if OPT['nc'] == 3:
        g(f"s_mul_i32 s{sCLS}, s{sB0}, 11")
        g(f"s_lshr_b32 s{sCLS}, s{sCLS}, 5")
        g(f"s_mul_i32 s{sCLS}, s{sCLS}, 3")
        g(f"s_sub_u32 s{sCLS}, s{sB0}, s{sCLS}")
    else:
        g(f"s_and_b32 s{sCLS}, s{sB0}, {OPT['nc']-1}")
    g(f"s_lshl_b32 s{sB0}, s{sB0}, 1")
    g(f"s_lshl_b32 s{sWI}, s{sT1}, 2")
    g(f"s_add_u32 s{sWI}, s{sWI}, s{sW}")
    g(f"s_and_b32 s{sBSEL}, s{sW}, 1")
    g(f"s_lshr_b32 s{sJ}, s{sW}, 1")
    g(f"s_add_u32 s{sB}, s{sB0}, s{sBSEL}")
    g(f"s_lshl_b32 s{sM}, s{sW}, 13")
    g(f"s_lshl_b32 s{sVM}, s{sW}, 10")
    g(f"s_add_u32 s{sVM}, s{sVM}, {VB}")
    g(f"s_mov_b32 s{sXM}, s{sVM}")
    g(f"s_lshl_b32 s{sWQB}, s{sH0}, 9")
    g(f"s_mul_i32 s{sXB}, s{sB0}, 43008")
    g(f"s_lshl_b32 s{sT0}, s{sBSEL}, 4")
    g(f"s_lshl_b32 s{sT1}, s{sJ}, 2")
    g(f"s_add_u32 s{sT0}, s{sT0}, s{sT1}")
    g(f"s_lshl_b32 s{sT0}, s{sT0}, 13")
    g(f"v_lshlrev_b32 v{vSTO}, 4, v{L}")
    g(f"v_add_u32 v{t1}, s{sT0}, v{vSTO}")
    for i in range(8):
        const = (8 * (i >> 2) + (i & 3)) * 8192 - (i & 3) * 1024
        g(f"v_xor_b32 v{t0}, {32*i}, v{t1}")
        g(f"v_add_u32 v{vWQD+i}, {const}, v{t0}")
    g(f"v_lshrrev_b32 v{t0}, 3, v{L}")
    g(f"v_mul_u32_u24 v{t0}, 896, v{t0}")
    g(f"v_lshrrev_b32 v{t1}, 4, v{L}")
    g(f"s_lshl_b32 s{sT0}, s{sBSEL}, 2")
    g(f"v_add_u32 v{t1}, s{sT0}, v{t1}")
    g(f"v_and_b32 v{t2}, 7, v{L}")
    g(f"v_xor_b32 v{t1}, v{t1}, v{t2}")
    g(f"v_lshl_add_u32 v{t0}, v{t1}, 4, v{t0}")
    g(f"s_mul_i32 s{sT0}, s{sW}, 7168")
    g(f"v_add_u32 v{vXD}, s{sT0}, v{t0}")
    g(f"v_and_b32 v{t0}, 15, v{L}")
    g(f"v_lshrrev_b32 v{t1}, 4, v{L}")
    g(f"v_mov_b32 v{t5}, {BIG}")
    g(f"v_lshlrev_b32 v{t2}, 7, v{t0}")
    g(f"v_cmp_gt_u32 vcc, 16, v{L}")
    g(f"s_lshl_b32 s{sTWQ}, s{sWI}, 13")
    g(f"s_lshl_b32 s{sT0}, s{sHG}, 11")
    g(f"v_cndmask_b32 v9, v{t5}, v{t2}, vcc")
    g(f"s_add_u32 s{sTWQ}, s{sTWQ}, s{sT0}")
    g(f"v_lshl_add_u32 v{t2}, v{t1}, 20, v{t2}")
    g(f"v_cmp_gt_u32 vcc, 32, v{L}")
    g(f"s_lshl_b32 s{sT0}, s{sHP}, 2")
    g(f"s_add_u32 s{sT0}, s{sT0}, s{sW}")
    g(f"v_cndmask_b32 v{vTWQ}, v{t5}, v{t2}, vcc")
    g(f"s_mul_i32 s{sT1}, s{sT0}, 24")
    g(f"s_mul_i32 s{sT2}, s{sT0}, 36")
    g(f"v_add_u32 v{t2}, s{sT1}, v{L}")
    g(f"v_lshrrev_b32 v{t3}, 1, v{t2}")
    g(f"v_mul_u32_u24 v{t3}, 896, v{t3}")
    g(f"v_and_b32 v{t2}, 1, v{t2}")
    g(f"v_lshl_add_u32 v{t2}, v{t2}, 7, v{t3}")
    g(f"v_cmp_gt_u32 vcc, 24, v{L}")
    g(f"v_add_u32 v{t3}, s{sT2}, v{L}")
    g(f"v_mul_u32_u24 v{t4}, 21846, v{t3}")
    g(f"v_cndmask_b32 v{vTXA}, v{t5}, v{t2}, vcc")
    g(f"v_lshrrev_b32 v{t4}, 16, v{t4}")
    g(f"v_mul_u32_u24 v{t2}, 3, v{t4}")
    g(f"v_sub_u32 v{t3}, v{t3}, v{t2}")
    g(f"v_mul_u32_u24 v{t4}, 896, v{t4}")
    g(f"v_lshl_add_u32 v{t3}, v{t3}, 7, v{t4}")
    g(f"v_cmp_gt_u32 vcc, 36, v{L}")
    g(f"s_nop 1")
    g(f"v_cndmask_b32 v{vTXB}, v{t5}, v{t3}, vcc")
    g.smem_wait()
    g(f"s_cmp_eq_u32 s{sBR}, 0")
    for k in (0, 3, 1, 2, 4):
        bsrc = 76 + 2 * k if k < 4 else 74
        g(f"s_cselect_b64 s[{64+2*k}:{65+2*k}], s[{64+2*k}:{65+2*k}], s[{bsrc}:{bsrc+1}]")
    srd(S_X, 64, 65, 1376256)
    srd(S_WQ, 70, 71, 3670016)
    if OPT['w0dir'] == 1:
        emit_list(x_dma(0, "R0")); emit_list(ring_dma(0))
    emit_list(touch(9, S_WQ, sTWQ, 0))
    if OPT['w0dir'] == 2:
        emit_list(x_dma(0, "R0")); emit_list(ring_dma(0))
    if OPT['code_pf'] and not OPT['cpf_first']:
        g(f"s_min_u32 s{sT0}, s{sWI}, (L_main_end-L_pc)/1024-1")
        g(f"s_lshl_b32 s{sT0}, s{sT0}, 10")
        g(f"v_add_u32 v{t2}, s{sT0}, v{vSTO}")
        g(f"global_load_dword v{vDUM}, v{t2}, s[{sPC}:{sPC+1}]", nodst=True)
    if not OPT['w0dir']: emit_list(x_dma(0, "R0"))
    emit_list(x_dma(1, "R1" if OPT['w0dir'] else "R0"))
    g(f"v_mov_b32 v{vT16}, v9")
    sl = []
    if OPT['sta']:
        g(f"s_add_u32 s{sT0}, s{sTWQ}, {128*8192}")
        g(f"s_add_u32 s76, s70, s{sT0}")
        g(f"s_addc_u32 s77, s71, 0")
        g(f"s_lshl_b32 s{sT0}, s{sHP}, 2")
        g(f"s_add_u32 s{sT0}, s{sT0}, s{sW}")
        g(f"s_mul_i32 s{sT0}, s{sT0}, {12*896}")
        g(f"s_add_u32 s{sT0}, s{sT0}, s{sXB}")
        g(f"s_add_u32 s78, s64, s{sT0}")
        g(f"s_addc_u32 s79, s65, 0")
        sl = [f"s_load_dword s80, s[76:77], {k*128}" for k in range(16)]
        sl += [f"s_load_dword s80, s[78:79], {r*896 + 256 + c*128}" for r in range(12) for c in range(2)]
        sl = sl[:OPT['sta']]
        for i in sl[:OPT['stb']]: g(i)
        sl = sl[OPT['stb']:]
    g(f"v_lshrrev_b32 v{t2}, 1, v{t0}")
    g(f"v_xor_b32 v{t2}, v{t2}, v{t1}")
    g(f"v_lshlrev_b32 v{t2}, 4, v{t2}")
    g(f"v_lshl_add_u32 v{t2}, v{t0}, 7, v{t2}")
    g(f"s_mul_i32 s{sT0}, s{sBSEL}, 6144")
    g(f"s_add_u32 s{sT0}, s{sT0}, {VB}")
    g(f"v_add_u32 v{vXR}, s{sT0}, v{t2}")
    g(f"v_xor_b32 v{vXR+1}, 64, v{vXR}")
    g(f"v_lshlrev_b32 v{t2}, 7, v{L}")
    g(f"v_cmp_gt_u32 vcc, 32, v{L}")
    srd(S_K, 66, 67, 12582912)
    g(f"v_cndmask_b32 v{vT32}, v{t5}, v{t2}, vcc")
    srd(S_V, 68, 69, 12582912)
    srd(S_WO, 72, 73, 3670016)
    srd(S_WS, 4, 5, 22020096)
    u0, u1, u2 = 10, 11, 12
    g(f"v_lshrrev_b32 v{u0}, 2, v{L}")
    g(f"v_and_b32 v{u1}, 7, v{u0}")
    g(f"v_and_b32 v{u2}, 3, v{L}")
    g(f"v_lshlrev_b32 v{u2}, 3, v{u2}")
    g(f"s_lshl_b32 s{sT0}, s{sJ}, 9")
    g(f"v_lshl_add_u32 v{t3}, v{u0}, 10, v{u2}")
    g(f"v_add_u32 v{t3}, s{sT0}, v{t3}")
    for T in range(8):
        g(f"v_xor_b32 v{t4}, {T}, v{u1}")
        g(f"v_lshl_add_u32 v{vWQR+T}, v{t4}, 5, v{t3}")
        g(f"v_add_u32 v{vWQR+8+T}, 0x10000, v{vWQR+T}")
    g(f"s_lshl_b32 s{sT0}, s{sB}, 4")
    g(f"s_add_u32 s{sT0}, s{sT0}, s{sH0}")
    g(f"s_add_u32 s{sT0}, s{sT0}, s{sJ}")
    g(f"s_mul_i32 s{sKB}, s{sT0}, 24576")
    g(f"s_mul_i32 s{sKM}, s{sW}, 8320")
    g(f"s_add_u32 s{sKM}, s{sKM}, {KA}")
    g(f"v_lshlrev_b32 v{t2}, 2, v{t1}")
    g(f"v_xor_b32 v{t2}, v{t2}, v{t0}")
    g(f"v_lshlrev_b32 v{t2}, 4, v{t2}")
    g(f"v_lshl_add_u32 v{vKD}, v{t1}, 9, v{t2}")
    g(f"v_lshrrev_b32 v{t2}, 2, v{t0}")
    g(f"v_mul_u32_u24 v{t2}, 1040, v{t2}")
    g(f"v_and_b32 v{t3}, 3, v{t0}")
    g(f"v_lshl_add_u32 v{t2}, v{t3}, 8, v{t2}")
    g(f"v_lshl_add_u32 v{t2}, v{t1}, 3, v{t2}")
    g(f"v_add_u32 v{t2}, s{sKM}, v{t2}")
    for s4 in range(4):
        g(f"v_xor_b32 v{t4}, {s4}, v{t3}")
        g(f"v_lshl_add_u32 v{vKR+s4}, v{t4}, 6, v{t2}")
    g(f"s_mul_i32 s{sWOBASE}, s{sH0}, 229376")
    g(f"s_lshl_b32 s{sT0}, s{sB0}, 4")
    g(f"s_add_u32 s{sT0}, s{sT0}, s{sH0}")
    g(f"s_mul_i32 s{sVBASE}, s{sT0}, 24576")
    g(f"s_mul_i32 s{sT0}, s{sJ}, 393216")
    g(f"s_mul_i32 s{sT1}, s{sBSEL}, 12288")
    g(f"s_add_u32 s{sTV}, s{sVBASE}, s{sT0}")
    g(f"s_add_u32 s{sTV}, s{sTV}, s{sT1}")
    g(f"s_add_u32 s{sT0}, s{sH0}, s{sBR}")
    g(f"s_lshl_b32 s{sT0}, s{sT0}, 5")
    g(f"s_add_u32 s{sT0}, s{sT0}, s{sB}")
    g(f"s_mul_i32 s{sST}, s{sT0}, 43008")
    g(f"s_mul_i32 s{sT0}, s{sJ}, 3072")
    g(f"s_add_u32 s{sST}, s{sST}, s{sT0}")
    g(f"s_mov_b32 s{sC}, 0x{struct.unpack('<I', struct.pack('<f', 1.4426950408889634/16.0))[0]:08x}")
    g(f"s_lshr_b32 s{sT0}, s{sWI}, 6")
    g(f"s_lshl_b32 s{sT1}, s{sHG}, 1")
    g(f"s_add_u32 s{sT0}, s{sT0}, s{sT1}")
    g(f"s_mul_i32 s{sTWO}, s{sT0}, 458752")
    g(f"s_and_b32 s{sT0}, s{sWI}, 63")
    g(f"s_mul_i32 s{sT0}, s{sT0}, 3584")
    g(f"s_add_u32 s{sTWO}, s{sTWO}, s{sT0}")
    g(f"s_mul_i32 s{sT0}, s{sBSEL}, 24576")
    g(f"s_add_u32 s{sT0}, s{sT0}, {VB}")
    g(f"v_xor_b32 v{t3}, v{t1}, v{t0}")
    g(f"v_lshlrev_b32 v{t3}, 4, v{t3}")
    g(f"v_lshl_add_u32 v{t3}, v{t0}, 8, v{t3}")
    g(f"v_add_u32 v{vVR}, s{sT0}, v{t3}")
    for s4 in range(1, 4):
        g(f"v_xor_b32 v{vVR+s4}, {64*s4}, v{vVR}")
    g(f"s_lshl_b32 s{sT0}, s{sW}, 2")
    g(f"v_add_u32 v{t3}, s{sT0}, v{t1}")
    g(f"v_xor_b32 v{t3}, v{t3}, v{t0}")
    g(f"v_lshlrev_b32 v{t3}, 4, v{t3}")
    g(f"v_lshl_add_u32 v{t3}, v{t1}, 9, v{t3}")
    g(f"s_lshl_b32 s{sT0}, s{sW}, 11")
    g(f"v_add_u32 v{vVD}, s{sT0}, v{t3}")
    g(f"v_lshl_add_u32 v{t3}, v{u0}, 7, v{u2}")
    g(f"v_bfe_u32 v{t2}, v{L}, 3, 2")
    g(f"s_lshl_b32 s{sT0}, s{sJ}, 1")
    for T in range(2):
        g(f"s_add_u32 s{sT3}, s{sT0}, {T}")
        g(f"v_xor_b32 v{t4}, s{sT3}, v{t2}")
        g(f"v_lshl_add_u32 v{vWOR+T}, v{t4}, 5, v{t3}")
        g(f"v_add_u32 v{vWOR+2+T}, 0x10000, v{vWOR+T}")
    g(f"v_lshrrev_b32 v{t3}, 5, v{L}")
    g(f"v_lshl_add_u32 v{t2}, v{t3}, 3, v{t2}")
    g(f"v_mul_u32_u24 v{t2}, 896, v{t2}")
    g(f"v_lshlrev_b32 v{t3}, 1, v{t1}")
    g(f"v_and_b32 v{t4}, 7, v{L}")
    g(f"v_xor_b32 v{t3}, v{t3}, v{t4}")
    g(f"v_lshl_add_u32 v{t2}, v{t3}, 4, v{t2}")
    g(f"s_mul_i32 s{sT0}, s{sW}, 57344")
    g(f"v_add_u32 v{vWOD}, s{sT0}, v{t2}")
    for k in range(1, 4):
        g(f"v_add_u32 v{vWOD+k}, {(16*(k&1) + 4*(k>>1))*896 - k*1024}, v{vWOD}")
    g(f"s_mul_i32 s{sT0}, s{sBSEL}, 3072")
    g(f"s_add_u32 s{sT0}, s{sT0}, {PB}")
    g(f"v_add_u32 v{vPW}, s{sT0}, v{vSTO}")
    g(f"s_mul_i32 s{sT1}, s{sBSEL}, 1536")
    g(f"s_add_u32 s{sT1}, s{sT1}, {PB + 12288}")
    g(f"v_lshl_add_u32 v{vPW2}, v{L}, 3, s{sT1}")
    g(f"s_mul_i32 s{sPX}, s{sJ}, 6144")
    g(f"s_cmp_eq_u32 s{sJ}, 0")
    g(f"s_cselect_b64 s[{sPD}:{sPD+1}], -1, 0")
    g(f"s_sub_u32 s{sT0}, s{sT0}, s{sT1}")
    g(f"s_cmp_eq_u32 s{sJ}, 0")
    g(f"s_cselect_b32 s{sPY}, s{sT0}, 0")
    if OPT['tlb']:
        g(f"v_and_b32 v{t2}, 1, v{L}")
        g(f"v_mul_u32_u24 v{t2}, 393216, v{t2}")
        g(f"v_lshrrev_b32 v{t3}, 1, v{L}")
        g(f"v_mul_u32_u24 v{t3}, 49024, v{t3}")
        g(f"v_add_u32 v{t2}, v{t2}, v{t3}")
        g(f"v_cmp_gt_u32 vcc, 4, v{L}")
        g(f"v_lshlrev_b32 v{t3}, 17, v{L}")
        g(f"v_mul_u32_u24 v{t4}, 39808, v{L}")
        g(f"v_cndmask_b32 v{t2}, v{t5}, v{t2}, vcc")
        g(f"v_cndmask_b32 v{t3}, v{t5}, v{t3}, vcc")
        g(f"v_cmp_gt_u32 vcc, 2, v{L}")
        g(f"buffer_load_dword v{vDUM}, v{t2}, {sr(S_K)}, s{sVBASE} offen nt", nodst=True)
        g(f"v_cndmask_b32 v{t4}, v{t5}, v{t4}, vcc")
        g(f"buffer_load_dword v{vDUM}, v{t2}, {sr(S_V)}, s{sVBASE} offen nt", nodst=True)
        g(f"buffer_load_dword v{vDUM}, v{t3}, {sr(S_WO)}, s{sWOBASE} offen", nodst=True)
        g(f"buffer_load_dword v{vDUM}, v{t4}, {sr(S_WS)}, s{sST} offen nt", nodst=True)
    while sl:
        g.smem_wait()
        for i in sl[:OPT['stb']]: g(i)
        sl = sl[OPT['stb']:]
    emit_list(touches(-1))
    if not OPT['w0dir']: emit_list(ring_dma(0))
    if OPT['w1pro']: emit_list(ring_dma(1))
    if OPT['fuse']:
        srd(S_FLG, 4, 5, 22020096 + 32 * 256)
        srd(S_OUT, 84, 85, 2752512)
        srd(S_DBG, 86, 87, 256)
        g(f"v_mov_b32 v{vZERO}, 0")
        g(f"s_lshl_b32 s{sT0}, s{sBR}, 5")
        g(f"s_add_u32 s{sT0}, s{sT0}, s{sB0}")
        g(f"s_lshl_b32 s{sFLG}, s{sT0}, 7")
        g(f"s_add_u32 s{sFLG}, s{sFLG}, 22020096")
    stamp('pro')
    if OPT['sta']: g.smem_wait()
    g.wait_tag("R0")
    g.barrier()
    stamp('b0')
    import copy
    NC = OPT['nc']
    for cls in range(1, NC):
        g(f"s_cmp_eq_u32 s{sCLS}, {cls}")
        g(f"s_cbranch_scc1 L_body_{cls}")
    saved = copy.deepcopy({k: v for k, v in g.__dict__.items() if k != 'lines'})
    st0 = (nstamp, pending, list(names))
    for cls in range(NC):
        for k, v in copy.deepcopy(saved).items(): setattr(g, k, v)
        globals().update(nstamp=st0[0], pending=st0[1], names=list(st0[2]))
        if cls: g.raw(".p2align 6"); g.raw(f"L_body_{cls}:")
        body(cls)
    g.raw("L_main_end:")
    g("s_endpgm")

S_OUT, S_DBG = 76, 80
sLD, sSTO, sCNT, sLASTA, sLASTB = 64, 68, 72, 73, 3
vARR = 254
def fuse_flag_loads():
    return [(f"v_mov_b32 v{vFLAG}, 0", None)] + ([] if OPT['wsb'] else [
            (f"buffer_load_dword v{vFLAG+1}, v{vFLAG}, {sr(S_FLG)}, s{sFLG} offen offset:128 sc1", None)]) + [
            (f"buffer_load_dword v{vFLAG}, v{vFLAG}, {sr(S_FLG)}, s{sFLG} offen sc1", None)]

def fuse_setup():
    o = []
    e = lambda t: o.append((t, None))
    A, C, Rr, T0, T1, TB, WN = 60, 74, 75, 86, 87, 84, 85
    e(f"s_lshl_b32 s{T0}, s{sBR}, 5")
    e(f"s_add_u32 s{T0}, s{T0}, s{sB0}")
    e(f"s_lshl_b32 s{sCNT}, s{T0}, {2 if OPT['wsb'] else 1}")
    e(f"s_mul_i32 s{TB}, s{T0}, 43008")
    e(f"s_lshr_b32 s{WN}, s{sH0}, 1")
    e(f"s_lshl_b32 s{T0}, s{sW}, 3")
    e(f"s_add_u32 s{WN}, s{WN}, s{T0}")
    for k, add in enumerate((0, 24, 48, 80)):
        ld, st = sLD + k, sSTO + k
        e(f"s_add_u32 s{A}, s{WN}, {add}")
        e(f"s_mul_i32 s{C}, s{A}, 43")
        e(f"s_lshr_b32 s{C}, s{C}, 9")
        e(f"s_mul_i32 s{Rr}, s{C}, 12")
        e(f"s_sub_u32 s{Rr}, s{A}, s{Rr}")
        e(f"s_mul_i32 s{T0}, s{Rr}, 43")
        e(f"s_lshr_b32 s{T0}, s{T0}, 8")
        e(f"s_mul_i32 s{T1}, s{T0}, 6")
        e(f"s_sub_u32 s{Rr}, s{Rr}, s{T1}")
        e(f"s_mul_i32 s{ld}, s{C}, 6")
        e(f"s_add_u32 s{ld}, s{ld}, s{Rr}")
        e(f"s_lshl_b32 s{ld}, s{ld}, 10")
        e(f"s_mul_i32 s{T1}, s{T0}, 43008")
        e(f"s_add_u32 s{ld}, s{ld}, s{T1}")
        e(f"s_add_u32 s{ld}, s{ld}, s{TB}")
        e(f"s_mul_i32 s{T1}, s{Rr}, 43")
        e(f"s_lshr_b32 s{T1}, s{T1}, 7")
        e(f"s_lshl_b32 s{C}, s{C}, 1")
        e(f"s_add_u32 s{C}, s{C}, s{T1}")
        e(f"s_lshl_b32 s{C}, s{C}, 6")
        e(f"s_mul_i32 s{T1}, s{T1}, 3")
        e(f"s_sub_u32 s{Rr}, s{Rr}, s{T1}")
        e(f"s_add_u32 s{T0}, s{T0}, s{sB0}")
        e(f"s_mul_i32 s{T0}, s{T0}, 3")
        e(f"s_add_u32 s{T0}, s{T0}, s{Rr}")
        e(f"s_mul_i32 s{st}, s{T0}, {16*1792}")
        e(f"s_add_u32 s{st}, s{st}, s{C}")
        e(f"s_mul_i32 s{T0}, s{sBR}, 896")
        e(f"s_add_u32 s{st}, s{st}, s{T0}")
        lim = (24, 48, 84, 84)[k]
        if add + 31 >= lim:
            e(f"s_add_u32 s{T0}, s{A}, {128 - lim}")
            e(f"s_lshr_b32 s{T0}, s{T0}, 7")
            e(f"s_mul_i32 s{T0}, s{T0}, {BIG}")
            e(f"s_add_u32 s{ld}, s{ld}, s{T0}")
            e(f"s_add_u32 s{st}, s{st}, s{T0}")
    return o

def wave0(lbl, fn):
    g(f"s_cmp_lg_u32 s{sW}, {OPT['syncw']}")
    g(f"s_cbranch_scc1 {lbl}")
    n0, vm0, lg0 = g.n, list(g.vm), list(g.lgkm)
    g("s_mov_b64 exec, 1")
    fn()
    g("s_mov_b64 exec, -1")
    g.raw(f"{lbl}:")
    g.n, g.vm, g.lgkm = n0, vm0, lg0

def arrive(which):
    g(f"v_mov_b32 v{vARR}, {(1, 0x10000, 0x100, 1)[which]}")
    if which == 0:
        g(f"v_mov_b32 v{vPUB}, v{vFLAG}")
        g(f"buffer_atomic_add v{vARR}, v{vZERO}, {sr(S_DBG)}, s{sCNT} offen sc0")
    else:
        g(f"buffer_atomic_add v{vARR}, v{vZERO}, {sr(S_FLG)}, s{sFLG} offen offset:4")

def publish(cls, nwait):
    g.raw(f"    s_waitcnt vmcnt({min(nwait, 63)})"); g.n += 1
    g(f"v_readfirstlane_b32 s{sLASTA}, v{vARR}")
    g(f"s_and_b32 s{sLASTA}, s{sLASTA}, 7")
    g(f"s_cmp_lg_u32 s{sLASTA}, 7")
    g(f"s_cbranch_scc1 L_nl_{cls}")
    g(f"v_add_u32 v{vPUB}, 1, v{vFLAG}")
    g(f"v_mov_b32 v{vPUB+1}, 0")
    g(f"buffer_store_dwordx2 {vr(vPUB,2)}, v{vZERO}, {sr(S_FLG)}, s{sFLG} offen sc1")
    g.raw(f"L_nl_{cls}:")

def look(off):
    g(f"buffer_load_dword v{vLOOK}, v{vZERO}, {sr(S_FLG)}, s{sFLG} offen offset:{off} sc1")

def poll(which, cls, nwait=None):
    off = 0 if which == 0 else 4
    def test():
        g(f"v_readfirstlane_b32 s86, v{vLOOK}")
        if which == 0:
            g(f"s_cmp_lg_u32 s86, s87")
        else:
            g(f"s_bfe_u32 s86, s86, {0x80000 + (0, 16, 8, 0)[which]}")
            g(f"s_cmp_eq_u32 s86, 8")
        g(f"s_cbranch_scc1 L_got{which}_{cls}")
    g(f"s_mov_b32 s85, 0x40000")
    if which == 0: g(f"v_readfirstlane_b32 s87, v{vFLAG}")
    if nwait is not None:
        g.raw(f"    s_waitcnt vmcnt({min(nwait, 63)})"); g.n += 1
        test()
    g.raw(f"L_poll{which}_{cls}:")
    look(off)
    g.raw("    s_waitcnt vmcnt(0)"); g.n += 1; g.vm = []
    test()
    g(f"s_sleep {OPT['slp']}")
    g(f"s_sub_u32 s85, s85, 1")
    g(f"s_cmp_lg_u32 s85, 0")
    g(f"s_cbranch_scc1 L_poll{which}_{cls}")
    g.raw(f"L_got{which}_{cls}:")

Q0 = [180, 184, 188, 192, 196, 200, 164, 168]
def quad(k, p): return Q0[p] if k == 0 else ((k % 2) * 8 + p) * 4
def part_loads(k):
    o = []
    for p in range(8):
        o.append((f"s_add_u32 s{sT2}, s{sLD+k}, {p*64*43008}", None))
        o.append((f"buffer_load_dwordx4 {vr(quad(k,p))}, v{vSTO}, {sr(S_WS)}, s{sT2} offen sc1", None))
    return o
def part_sum(k):
    A, B, O = 100 + 20 * (k % 2), 108 + 20 * (k % 2), 116 + 20 * (k % 2)
    for p in range(8):
        for q in range(4):
            src = quad(k, p) + q
            d = A if p == 0 else B
            g(f"v_lshlrev_b32 v{d+2*q}, 16, v{src}")
            g(f"v_and_b32 v{d+2*q+1}, 0xffff0000, v{src}")
        if p:
            for q in range(8):
                g(f"v_add_f32 v{A+q}, v{A+q}, v{B+q}")
    for q in range(4):
        g(f"v_cvt_pk_bf16_f32 v{O+q}, v{A+2*q}, v{A+2*q+1}")
    g(f"v_permlane32_swap_b32 v{O}, v{O+2}")
    g(f"v_permlane32_swap_b32 v{O+1}, v{O+3}")
    g(f"v_permlane16_swap_b32 v{O}, v{O+2}")
    g(f"v_permlane16_swap_b32 v{O+1}, v{O+3}")
    g(f"buffer_store_dwordx4 {vr(O)}, v{vOUT}, {sr(S_OUT)}, s{sSTO+k} offen{FL[OPT['osf']]}")

vOUT = 172
def fused_reduce(cls):
    g(f"v_lshrrev_b32 v173, 4, v{vSTO}")
    g(f"v_and_b32 v{vOUT}, 15, v173")
    g(f"v_mul_u32_u24 v{vOUT}, 1792, v{vOUT}")
    g(f"v_lshrrev_b32 v173, 4, v173")
    g(f"v_lshl_add_u32 v{vOUT}, v173, 4, v{vOUT}")
    wave0(f"L_w1_{cls}", lambda: poll(2, cls))
    g.wait_all()
    g.barrier()
    stamp('stdrain')
    wave0(f"L_w2_{cls}", lambda: arrive(3))
    emit_list(part_loads(1))
    part_sum(0)
    part_sum(1)
    stamp('sumA')
    wave0(f"L_w4_{cls}", lambda: poll(3, cls))
    g.barrier()
    stamp('metB')
    emit_list(part_loads(2) + part_loads(3))
    part_sum(2)
    part_sum(3)

CLS = [0, 0, 0]
def body(cls):
    CLS[0] = cls
    KS = [OPT[f'k{u}'] + cls * OPT['kstep'] for u in range(3)]
    TWO0 = OPT['t_wo0'] + cls * OPT['kstep']
    TB = OPT['t_b'] + cls * OPT['kstep']
    V1A = OPT['v1'] + (cls * OPT['vstep']) % 3
    V1B = OPT['v1b'] - 3 + (3 + cls * OPT['vstep']) % 3 + (0 if True else 0)
    V1B = OPT['v1b']
    emit_list(x_reads(0))
    def early_touches(R): return touches(R, cls * OPT['kstep'])
    fq.add(([] if OPT['w0dir'] else x_reads(1)) + ([] if OPT['w1pro'] else ring_dma(1)) + ring_dma(2) + early_touches(0))
    x_issue = {1: (2, "R3"), 2: (3, "R4"), 5: (4, "R7"), 6: (5, "R8"), 8: (6, "R10")}
    x_read = {3: 2, 4: 3, 7: 4, 8: 5, 10: 6}
    if OPT['w0dir']: x_read[1] = 1
    x_issue = {k: [v] for k, v in x_issue.items()}
    x_read = {k: [v] for k, v in x_read.items()}
    if OPT['xdir']:
        kw = OPT['kw']
        x_issue = {KS[0]: [(2, f"R{KS[0]+kw}"), (3, f"R{KS[0]+kw}")], KS[1]: [(4, f"R{KS[1]+kw}"), (5, f"R{KS[1]+kw}")], KS[2]: [(6, f"R{KS[2]+kw}")]}
        x_read = {KS[0] + kw: [2, 3], KS[1] + kw: [4, 5], KS[2] + kw: [6]}
        assert KS[0] >= 1 and KS[0] + kw <= 4 and KS[1] + kw <= 8 and KS[2] + kw <= 12 and OPT['v0a'] > KS[2] + kw
    k_issue = {KS[u]: u for u in range(3)}
    KW = [OPT[f'kw{u}'] or OPT['kw'] for u in range(3)]
    k_read = {KS[u] + KW[u]: u for u in range(3)}
    assert max(k_read) <= 13 and OPT['v0b'] > max(k_read) and OPT['v0a'] >= 11
    for u in range(2): assert KS[u+1] > KS[u] + KW[u]
    if 0 in k_issue: fq.add(k_dma(k_issue[0], f"R{OPT['kw']}"))
    def after1(R):
        out = []
        for p in x_read.get(R, []): out += x_reads(p)
        if R in k_read: out += k_reads(k_read[R])
        late = []
        if OPT['wdel'] and R >= 13:
            if R == 14: late = ring_dma(15) + ring_dma(16)
            if R == 13 and OPT['wdel'] == 2: late = ring_dma(15)
            if R == 14 and OPT['wdel'] == 2: late = ring_dma(16)
        else:
            out += ring_dma(R + 2)
        for a in x_issue.get(R, []): out += x_dma(*a)
        if R in k_issue: out += k_dma(k_issue[R], f"R{R+KW[k_issue[R]]}")
        if OPT['fuse'] and R == KS[0]: out += fuse_flag_loads()
        if OPT['fuse'] and R in (3, 4, 6, 8):
            fs = fuse_setup(); q = (len(fs) + 3) // 4; i = (3, 4, 6, 8).index(R)
            out += fs[i*q:(i+1)*q]
        if OPT['fuse'] and R == KS[1]:
            def arr0():
                wave0(f"L_w0_{cls}", lambda: arrive(0)); CLS[1] = g.vmtot
            out.append(arr0)
        if R == OPT['v0a']: out += v_dma(0, range(7))
        if R == OPT['v0b']: out += v_dma(0, range(7, 12))
        out += late
        out += early_touches(R)
        return out
    run_stages(q_groups(), after1, lambda R: f"R{R}" if R < 14 else "none", tail_barrier=True)
    stamp('G1end')
    def s_mf(t):
        return [f"v_mfma_f32_16x16x32_bf16 {vr(SACC+(t*3+u)*4)}, {ar(aK+(u*8+s)*4)}, {vr(QFRAG(s,t))}, {vr(SACC+(t*3+u)*4) if s else 0}"
                for s in range(8) for u in range(3)]
    if OPT['spack']:
        left_v = [it for it in fq.q if fq.kind(it) == 'v']
        vmq = [it for it in fq.q if fq.kind(it) != 'v']; fq.q = []
        if OPT['ecv']:
            todo = set(it[0] for it in left_v) | set(i for t in range(3) for i in cvt_pairs(QACC, [7], t))
            lists = [[i for t in range(3) for i in cvt_pairs(QACC, range(8), t) if i in todo],
                     softmax_ops(0), softmax_ops(1)]
        else:
            for ins in cvt_pairs(QACC, range(2), 0): g(ins)
            lists = [cvt_pairs(QACC, range(2, 8), 0) + cvt_pairs(QACC, range(8), 1)[:18],
                     cvt_pairs(QACC, range(8), 1)[18:] + cvt_pairs(QACC, range(8), 2),
                     softmax_ops(0)]
        cnt = 0
        for t in range(3):
            fq.add([(i, None) for i in lists[t]])
            if t == 0: fq.q[0:0] = vmq; vmq = []
            for m in s_mf(t):
                fq.guard(m)
                g(m); cnt += 1
                fill_gap(None, cnt % OPT['svm'] == 0, False)
        rest = [it[0] for it in fq.q if fq.kind(it) in 've']
        fq.q = [it for it in fq.q if fq.kind(it) not in 've']
        fq.drain()
        if OPT['ecv']:
            r0 = [i for i in rest if i in set(softmax_ops(0))]
            r1 = [i for i in rest if i not in set(softmax_ops(0))]
            tail = merge(r0, r1, softmax_ops(2))
            if OPT['vearly']:
                for ins in tail[:OPT['vpos']]: g(ins)
                tail = tail[OPT['vpos']:]
                g.wait_tag("V0")
                g.barrier()
                vrs = [v_read(u, s_)[0] for s_ in range(8) for u in range(3)]
                step = max(1, (len(tail) - 20) // 24)
                for i, ins in enumerate(tail):
                    if i % step == 0 and vrs: g(vrs.pop(0))
                    g(ins)
                for r_ in vrs: g(r_)
            else:
                for ins in tail: g(ins)
        else:
            for ins in merge(rest, softmax_ops(1), softmax_ops(2)): g(ins)
    else:
        def paced(ins_list, every):
            n = 0
            for ins in ins_list:
                g(ins); n += 1
                if n % every == 0:
                    while len(fq) and not fq.is_vm(fq.q[0]): fq.pop()
                    if len(fq): fq.pop()
        paced(cvt_pairs(QACC, range(8), 0), 8)
        def mix(mf, fill):
            o = []; fill = list(fill)
            for m in mf:
                o.append(m)
                for _ in range(2):
                    if fill: o.append(fill.pop(0))
            return o + fill
        paced(mix(s_mf(0), cvt_pairs(QACC, range(8), 1)), 10)
        paced(mix(s_mf(1), cvt_pairs(QACC, range(8), 2)), 10)
        fq.drain()
        sm0 = softmax_ops(0)
        interleave(s_mf(2), sm0[:40])
        for ins in merge(sm0[40:], softmax_ops(1), softmax_ops(2)): g(ins)
    stamp('SM')
    g(f"v_add_u32 v{vPA}, s{sPX}, v{vPW}")
    g(f"v_add_u32 v{vPB}, s{sPY}, v{vPW2}")
    p_write0()
    g.wait_tag(["V0", "R14"], lg=0)
    g.barrier()
    stamp('Pbar')
    if not OPT['vearly']:
        for s in range(OPT['vup']):
            for u in range(3): emit_list([v_read(u, s)])
        for s in range(OPT['vup'], 8):
            fq.add([v_read(u, s) for u in range(3)])
    elif V1A == 14:
        fq.add(p_reads32(0) + p_readsu2(0) + v_dma(1, range(6)))
    def after2(R):
        out = []
        if R == OPT['p1'] + 1: out += p_readsu2(1) + p_reads32(1)
        if R == 15 and not (OPT['vearly'] and V1A == 14): out += p_reads32(0) + p_readsu2(0)
        out += ring_dma(R + 2)
        if OPT['v1m']:
            if R == V1A: out += v_dma(1, range(4))
            if R == OPT['v1m']: out += v_dma(1, range(4, 8))
            if R == V1B: out += v_dma(1, range(8, 12))
        else:
            if R == V1A: out += v_dma(1, range(0, 12, 2))
            if R == V1B: out += v_dma(1, range(1, 12, 2), "V1b")
        out += early_touches(R)
        if R == OPT['p1']: out = p_write1() + out
        return out
    def wt(R):
        if R == 21: return ["R21", "V1b"]
        if OPT['fuse'] and R == 26: return ["R26", "ST0", "ST1"]
        return [f"R{R}", "V1"] if R == 20 else f"R{R}"
    run_stages(o_groups(), after2, wt, tail_barrier=False)
    fq.drain()
    stamp('G2end')
    emit_list(vw_cvt(27))
    fa, fb = final_groups(27, 27)
    for m in fa['mfmas'] + fb['mfmas']: g(m)
    emit_list(epilogue_ops(6))
    stamp('epi')
    if OPT['fuse']: fused_reduce(cls)
    if OPT['stamps']:
        g.wait_all()
        stamp('drain')
    finish_stamps(cls)

def reduce_kernel():
    global g
    lines = g.lines
    g = Gen(); g.lines = lines
    NF, WV = OPT['rnf'], OPT['rwv']
    nwg = 2688 // (NF * WV)
    kernel_open(RED)
    g(f"s_cmp_ge_u32 s2, {nwg}")
    g("s_cbranch_scc1 L_red_end")
    if OPT['stamps']: g("s_memrealtime s[40:41]")
    g("s_load_dwordx2 s[4:5], s[0:1], 80")
    g("s_load_dwordx2 s[6:7], s[0:1], 96")
    g("v_lshrrev_b32 v2, 6, v0")
    g("v_and_b32 v3, 63, v0")
    g("v_readfirstlane_b32 s21, v2")
    g("v_lshlrev_b32 v1, 4, v3")
    g("v_and_b32 v4, 15, v3")
    g("v_mul_u32_u24 v4, 1792, v4")
    g("v_lshrrev_b32 v5, 4, v3")
    g("v_lshl_add_u32 v4, v5, 4, v4")
    g(f"s_mul_i32 s16, s2, {WV}")
    g("s_add_u32 s16, s16, s21")
    g(f"s_mul_i32 s16, s16, {NF}")
    g("s_lshl_b32 s19, s16, 10")
    g.smem_wait()
    srd(8, 6, 7, 22020096)
    for f in range(NF):
        for p in range(8):
            g(f"s_add_u32 s20, s19, {p*64*43008}")
            g(f"buffer_load_dwordx4 {vr(8+4*(f*8+p))}, v1, s[8:11], s20 offen offset:{f*1024}{FL[OPT['ldf']]}")
    srd(12, 4, 5, 2752512)
    g("s_mov_b32 s30, 0x3f80")
    g("s_mov_b32 s31, 0x3f800000")
    for f in range(NF):
        g(f"s_add_u32 s17, s16, {f}")
        g("s_mul_i32 s18, s17, 6242")
        g("s_lshr_b32 s18, s18, 18")
        g("s_mul_i32 s22, s18, 42")
        g("s_sub_u32 s22, s17, s22")
        g("s_mul_i32 s23, s22, 43")
        g("s_lshr_b32 s23, s23, 7")
        g("s_mul_i32 s24, s23, 3")
        g("s_sub_u32 s24, s22, s24")
        g("s_and_b32 s25, s18, 31")
        g("s_mul_i32 s25, s25, 3")
        g("s_add_u32 s25, s25, s24")
        g(f"s_mul_i32 s{32+f}, s25, {16*1792}")
        g("s_lshr_b32 s25, s18, 5")
        g("s_mul_i32 s25, s25, 896")
        g(f"s_add_u32 s{32+f}, s{32+f}, s25")
        g("s_lshl_b32 s23, s23, 6")
        g(f"s_add_u32 s{32+f}, s{32+f}, s23")
    base = 8 + 32 * NF
    for f in range(NF):
        A, B, O = base, base + 8, base + 16
        for p in range(8):
            for k in range(4):
                src = 8 + 4 * (f * 8 + p) + k
                if OPT['rdot']:
                    for h in range(2):
                        g(f"v_dot2_f32_bf16 v{A+2*k+h}, v{src}, s{30+h}, {'v%d' % (A+2*k+h) if p else 0}")
                else:
                    d = A if p == 0 else B
                    g(f"v_lshlrev_b32 v{d+2*k}, 16, v{src}")
                    g(f"v_and_b32 v{d+2*k+1}, 0xffff0000, v{src}")
            if p and not OPT['rdot']:
                for k in range(8):
                    g(f"v_add_f32 v{A+k}, v{A+k}, v{B+k}")
        if OPT['rdot']: g.nop(3)
        for k in range(4):
            g(f"v_cvt_pk_bf16_f32 v{O+k}, v{A+2*k}, v{A+2*k+1}")
        g(f"v_permlane32_swap_b32 v{O}, v{O+2}")
        g(f"v_permlane32_swap_b32 v{O+1}, v{O+3}")
        g(f"v_permlane16_swap_b32 v{O}, v{O+2}")
        g(f"v_permlane16_swap_b32 v{O+1}, v{O+3}")
        g(f"buffer_store_dwordx4 {vr(O)}, v4, s[12:15], s{32+f} offen{FL[OPT['osf']]}")
    if OPT['stamps']:
        g.wait_all()
        g("s_memrealtime s[42:43]")
        g.smem_wait()
        g("s_mov_b32 s10, 0x10000000")
        g(f"s_lshl_b32 s20, s16, 3")
        g(f"s_add_u32 s20, s20, {25<<20}")
        g("v_mov_b32 v6, s40"); g("v_mov_b32 v7, s42"); g("v_mov_b32 v1, 0")
        g("buffer_store_dwordx2 v[6:7], v1, s[8:11], s20 offen")
    g.raw("L_red_end:")
    g("s_endpgm")
    g.raw("L_text_end:")

def descriptors():
    g.raw('.section .rodata,"a"')
    for name, nv, acc in ((MAIN, 512, 256), (RED, 32 * OPT['rnf'] + 32, 32 * OPT['rnf'] + 32))[:1 if OPT['fuse'] else 2]:
        g.raw(".p2align 6")
        g.raw(f".amdhsa_kernel {name}")
        g.raw(f"  .amdhsa_next_free_vgpr {nv}")
        g.raw("  .amdhsa_next_free_sgpr 102")
        g.raw(f"  .amdhsa_accum_offset {acc}")
        g.raw("  .amdhsa_group_segment_fixed_size 0")
        g.raw("  .amdhsa_kernarg_size 104")
        g.raw("  .amdhsa_user_sgpr_count 2")
        g.raw("  .amdhsa_user_sgpr_kernarg_segment_ptr 1")
        g.raw("  .amdhsa_system_sgpr_workgroup_id_x 1")
        g.raw("  .amdhsa_float_denorm_mode_32 3")
        g.raw(".end_amdhsa_kernel")

header()
main_kernel()
st = dict(g.stats)
if not OPT['fuse']: reduce_kernel()
else: g.raw('L_text_end:')
descriptors()
open(sys.argv[1], "w").write(g.text())
print("main stats", st, "forced", fq.forced)
```

```python
import sys, struct, json
from asmgen import Gen, classify

NAME = "concat_heads__mha_block_cached__gqa_block_cached__near_ridge"
MAIN = NAME + "_kernel"
RED = "reduce_partials_kernel"

OPT = dict(bar_group=10, D=7, stamps=0, code_pf=1, touch=1, ntk=1, ntv=1, nttw=0, nttx=0,
           k0=2, k1=6, k2=10, kw=3, t_wo0=8, t_wo1=16, v1=15, v1b=19, p1=17, t_a=0, t_b=4, v0a=13, nc=1, kstep=1, vstep=1, ntfirst=1, pace=1, diag=0, nok=0, nov=0, now=0, nost=0, nox=0, dbg=0, stf=1, ldf=0, osf=0, tlb=0, cpf_first=1, cpf_red=0, cpf2=0, fuse=1, slp=2, t_xa=0, t_xb=4, ret=0, hw=1, nobar=0, lastb=2, w1pro=1, pack=1, ring=8, spack=1, v0b=14, xdir=0, pw=1, arr=26, pubs=26, pubi=13, ic=2, ia=6, ib=8, ie=9, vup=3, t_v1=99, nttv=0, ntv1=1, v1m=0, rnf=1, rwv=6, rdot=0, sta=0, stb=14, w0dir=1, kw0=0, kw1=0, kw2=0, rs=1, ecv=1, svm=4, vearly=0, vpos=0, wdel=0, syncw=0, na=48, arri=12, wsb=1, pub0=10, lk0=23, lk1=4, e1=25, ld0=6, lazyst=1)
FL = ['', ' sc1', ' sc0 sc1', ' nt', ' sc1 nt', ' sc0 sc1 nt']
for a in sys.argv[2:]:
    k, v = a.split('=')
    assert k in OPT, k
    OPT[k] = int(v)
def NT(k): return ' nt' if OPT[k] else ''

SLOT = 32768
VB = 3 * SLOT
XU = 12288
KA = VB + 65536 - 4 * 8320
PB = VB + 49152
LDS_BYTES = 163840
BIG = 0x7ffff000

S_X, S_K, S_V, S_WQ, S_WO, S_WS = 8, 12, 16, 20, 24, 28
sW, sBSEL, sJ, sBR, sH0, sB0, sB = 32, 33, 34, 35, 36, 37, 38
sWQB = 39
sXB, sXM, sKB, sKM, sXO, sKO, sWQO, sWOO, sWOO2, sVO = 40, 41, 42, 43, 44, 45, 46, 47, 48, 49
sM, sVM, sST, sC = 50, 51, 52, 53
sT0, sT1, sT2, sT3 = 54, 55, 56, 57
sVBASE, sWOBASE = 58, 59
sPC = 60
sTWQ = 63
sTV = 62
sHG, sHP, sWI, sTWO, sCLS = 88, 89, 90, 91, 94
S_FLG, sFLG = 4, 95
sPD = 100
sPX, sPY = 3, 61
STB = 64

def QACC(T, t): return (((T // 2) * 3 + t) * 4) + (96 if T & 1 else 0)
def QFRAG(s, t): return (s * 3 + t) * 4
SACC = 192
vWQR = 192
vWQD = 208
vXR = 216
vXD = 218
vKR = 219
vKD = 223
vTWQ = 224
vTXA = 225
vTXB = 226
vT16 = 227
vWOD = 228
vVD = 232
vVR = 233
vWOR = 237
vSTO = 241
vPW = 242
vPW2 = 243
vT32 = 244
vDUM = 245
vFLAG = 252
vZERO = 253
vPUB = 250
vLOOK = 245
vSM = 246
def VFRAG(u, s): return (u * 8 + s) * 4
vPOWN = 96
vP32 = [114, 126]
vPU2 = 138
vPA, vPB = 162, 163
vVWB = 150
vEP = 96
def VWACC(par, T, u): return 180 + par * 24 + (T * 3 + u) * 4
aFR, aK, aX, XRING, aOUT = 0, 40, 136, 10, 40
def U2(c, T):
    k = c * 2 + T
    return 32 + 4 * k if k < 2 else 208 + 4 * (k - 2)
def OUTACC(c, T, t): return aOUT + ((c * 2 + T) * 3 + t) * 4

def vr(b, n=4): return f"v[{b}:{b+n-1}]"
def ar(b, n=4): return f"a[{b}:{b+n-1}]"
def sr(b, n=4): return f"s[{b}:{b+n-1}]"

g = Gen()
nstamp = 0
vSTAMP = 255
pending = False
names = []
def stamp_flush():
    global pending
    if pending:
        g(f"v_writelane_b32 v{vSTAMP}, s92, {nstamp-1}")
        pending = False
def stamp(name="", real=False, drained=False):
    global nstamp, pending
    if OPT['stamps']:
        if pending:
            if not drained: g.smem_wait()
            stamp_flush()
        g(f"{'s_memrealtime' if real else 's_memtime'} s[92:93]")
        names.append(name); nstamp += 1; pending = True

def header():
    g.raw("; fused attention block: each workgroup (2 batches x 2 heads of one branch) computes q-proj, softmax and a partial out-proj;")
    g.raw("; the 8 workgroups of a (branch, batch pair) then meet on counters and each sums 1/8 of the output tile")
    if OPT['fuse']:
        g.raw(f"; @launch grid=(256,1,1) block=(256,1,1) lds={LDS_BYTES}")
    else:
        g.raw(f"; @launch kernel={MAIN} grid=(256,1,1) block=(256,1,1) lds={LDS_BYTES}")
        g.raw(f"; @launch kernel={RED} grid=({2688 // (OPT['rnf'] * OPT['rwv'])},1,1) block=({64 * OPT['rwv']},1,1) lds=0")
    g.raw('.amdgcn_target "amdgcn-amd-amdhsa--gfx950"')
    g.raw(".text")

def kernel_open(name):
    g.raw(f".globl {name}")
    g.raw(".p2align 8")
    g.raw(f".type {name},@function")
    g.raw(f"{name}:")

def srd(dst, lo, hi, nbytes):
    g(f"s_mov_b32 s{dst}, s{lo}")
    g(f"s_and_b32 s{dst+1}, s{hi}, 0xffff")
    g(f"s_mov_b32 s{dst+2}, {nbytes}")
    g(f"s_mov_b32 s{dst+3}, 0x20000")

def wq_dma(R):
    slot = (R % 3) * SLOT
    out = [(f"s_add_u32 s{sWQO}, s{sWQB}, {R*262144}", None)]
    for i in range(8):
        if i % 4 == 0:
            out.append((f"s_add_u32 m0, s{sM}, {slot + (i//4)*4096}", None))
        out.append((f"buffer_load_dwordx4 v{vWQD+i}, {sr(S_WQ)}, s{sWQO} offen offset:{(i%4)*1024} lds", f"R{R}"))
    return out

def wo_dma(R):
    hh, c = divmod(R - 14, 7)
    slot = (R % 3) * SLOT
    out = [(f"s_add_u32 s{sWOO}, s{sWOBASE}, {hh*229376 + c*128}", None),
           (f"s_add_u32 s{sWOO2}, s{sWOBASE}, {hh*229376 + c*128 + 28672}", None)]
    for i in range(8):
        if i % 4 == 0:
            out.append((f"s_add_u32 m0, s{sM}, {slot + (i//4)*4096}", None))
        so = sWOO if i < 4 else sWOO2
        out.append((f"buffer_load_dwordx4 v{vWOD+(i%4)}, {sr(S_WO)}, s{so} offen offset:{(i%4)*1024} lds", f"R{R}"))
    return out

def ring_dma(R):
    if OPT['now'] and R > 2: return []
    if R < 14: return wq_dma(R)
    if R < 28: return wo_dma(R)
    return []

def x_dma(p, tag):
    out = []
    if OPT['nox'] and p > 1: return out
    for k in range(3):
        out.append((f"s_add_u32 s{sXO}, s{sXB}, {p*128 + k*28672}", None))
        out.append((f"s_add_u32 m0, s{sXM}, {(p % 2)*XU + k*4096}", None))
        out.append((f"buffer_load_dwordx4 v{vXD}, {sr(S_X)}, s{sXO} offen{NT('ntfirst') if (p < 2 or OPT['xdir']) else ''} lds", tag))
    return out

def x_reads(p):
    out = []
    for s2 in range(2):
        s = 2 * p + s2
        for t in range(3):
            d = aX + (s % XRING) * 12 + t * 4
            out.append((f"ds_read_b128 {ar(d)}, v{vXR+s2} offset:{(p % 2)*XU + t*2048}", None))
    return out

def k_dma(u, tag):
    out = []
    if OPT['nok']: return out
    for dh in range(2):
        out.append((f"s_add_u32 m0, s{sKM}, {dh*4160}", None))
        for j in range(4):
            out.append((f"s_add_u32 s{sKO}, s{sKB}, {u*8192 + dh*256 + j*(2048-1040)}", None))
            out.append((f"buffer_load_dwordx4 v{vKD}, {sr(S_K)}, s{sKO} offen offset:{j*1040}{NT('ntk')} lds", tag))
    return out

def k_reads(u):
    out = []
    for dh in range(2):
        for s4 in range(4):
            for p in range(2):
                d = aK + (u * 8 + dh * 4 + s4) * 4 + 2 * p
                out.append((f"ds_read_b64 {ar(d,2)}, v{vKR+s4} offset:{dh*4160 + 32*p}", None))
    return out

def v_dma(hh, subs, tag=None):
    out = []
    if OPT['nov']: return out
    for sub in subs:
        bb, r = divmod(sub, 6); u, dh = divmod(r, 2)
        out.append((f"s_add_u32 s{sVO}, s{sVBASE}, {hh*24576 + bb*393216 + u*8192 + dh*256}", None))
        out.append((f"s_add_u32 m0, s{sVM}, {sub*4096}", None))
        out.append((f"buffer_load_dwordx4 v{vVD}, {sr(S_V)}, s{sVO} offen{NT('ntv') if hh == 0 else NT('ntv1')} lds", tag or f"V{hh}"))
    return out

def v_read(u, s):
    dh, s4 = divmod(s, 4)
    return (f"ds_read_b128 {vr(VFRAG(u,s))}, v{vVR+s4} offset:{(u*2+dh)*4096}", None)

def touch(vaddr, srd_, sbase, add, plain=False):
    key = {S_WQ: 'nttw', S_WO: 'nttw', S_X: 'nttx', S_V: 'nttv'}[srd_]
    if not OPT['touch']: return []
    return [(f"s_add_u32 s{sT1}, s{sbase}, {add}", None),
            (f"buffer_load_dword v{vDUM}, v{vaddr}, {sr(srd_)}, s{sT1} offen{'' if plain else NT(key)}", None, True)]

def touch_table():
    return {'t_a': (vT16, S_WQ, sTWQ, 128 * 8192), 't_xa': (vTXA, S_X, sXB, 256), 't_b': (vTWQ, S_WQ, sTWQ, 256 * 8192),
            't_xb': (vTXB, S_X, sXB, 512), 't_wo0': (vT32, S_WO, sTWO, 0), 't_wo1': (vT32, S_WO, sTWO, 229376)}
def touches(R, shift=0):
    o = []
    for k, a in touch_table().items():
        if OPT['xdir'] and k.startswith('t_x'): continue
        at = OPT[k] + (shift if OPT[k] >= 1 and k != 't_wo1' else 0)
        if at == R: o += touch(*a)
        if OPT['ret'] and max(at, 0) + OPT['ret'] == R: o += touch(*a, plain=True)
    if R == OPT['t_v1']:
        for k in range(3): o += touch(vT32, S_V, sTV, 24576 + 4096 * k)
    return o

class FillQ:
    def __init__(self): self.q = []
    def add(self, items): self.q.extend(items)
    def pop(self):
        it = self.q.pop(0)
        if callable(it): it()
        else: g(it[0], tag=it[1], nodst=(len(it) > 2))
    def __len__(self): return len(self.q)
    def is_vm(self, it):
        return (not callable(it)) and it[0].startswith(('buffer_', 'global_'))
    def nvm(self): return sum(1 for it in self.q if self.is_vm(it))
    def drain(self):
        while self.q: self.pop()
    def drain_mem(self):
        while True:
            idx = [i for i, it in enumerate(self.q) if self.kind(it) not in ('v', 'e') and not (OPT['lazyst'] and not callable(it) and it[0].startswith('buffer_store'))]
            if not idx: return
            j = self.find('mds', nostore=bool(OPT['lazyst']))
            if j is None: self.pop()
            else: self.pop_at(j)
    def guard(self, text):
        _, _, _, _, rd, wr = classify(text)
        rd = {r for r in rd if r[0] != 's'}; wr = {r for r in wr if r[0] != 's'}
        last = -1
        for i, it in enumerate(self.q):
            if callable(it): continue
            _, _, _, _, frd, fwr = classify(it[0])
            if len(it) > 2: fwr = []
            if (set(fwr) & (rd | wr)) or (set(frd) & wr): last = i
        if last >= 0: self.forced += last + 1
        for _ in range(last + 1): self.pop()
    forced = 0
    def kind(self, it):
        if callable(it): return 'call'
        t = it[0]
        if t.startswith(('buffer_', 'global_')): return 'm'
        if t.startswith('ds_'): return 'd'
        if t.startswith(('v_exp', 'v_rcp', 'v_log', 'v_rsq', 'v_sqrt')): return 'e'
        if t.startswith('v_'): return 'v'
        return 's'
    def find(self, kinds, depth=200, nostore=False):
        seen_r, seen_w = set(), set()
        for i, it in enumerate(self.q[:depth]):
            if callable(it): return None
            k = self.kind(it)
            _, _, _, _, rd_, wr_ = classify(it[0])
            if len(it) > 2: wr_ = []
            rd_, wr_ = set(rd_), set(wr_)
            if k == 's': wr_ = wr_ | {('scc', 0)} if False else wr_
            if k in kinds:
                cls_ = lambda e: (self.kind(e), (not callable(e)) and e[0].startswith('buffer_store'))
                order_ok = not (k in 'md' and any(cls_(e) == cls_(it) for e in self.q[:i]))
                if nostore and it[0].startswith('buffer_store'): order_ok = False
                if order_ok and not (wr_ & (seen_r | seen_w)) and not (rd_ & seen_w): return i
            seen_r |= rd_; seen_w |= wr_
        return None
    def pop_at(self, i):
        it = self.q.pop(i)
        g(it[0], tag=it[1], nodst=(len(it) > 2))
fq = FillQ()

def fill_gap(ring_read, vm_due, reserve):
    if len(fq) and callable(fq.q[0]):
        fq.pop(); return False
    if vm_due and not reserve:
        i = fq.find('m')
        if i is not None:
            fq.pop_at(i); return True
    slots = 2 - (1 if reserve else 0)
    if ring_read:
        ring_read(); slots -= 1
    else:
        i = fq.find('d')
        if i is not None:
            fq.pop_at(i); slots -= 1
    while slots > 0:
        i = fq.find('vse' if slots == 2 else 'vs')
        if i is None: break
        slots -= 2 if fq.kind(fq.q[i]) == 'e' else 1
        fq.pop_at(i)
    return False
def emit_list(l):
    for it in l: g(it[0], tag=it[1], nodst=(len(it) > 2))

def run_stages(groups, after_barrier, wait_tags, tail_barrier=None, nreg=4):
    ring = OPT['ring']
    D = min(OPT['D'], ring - 1)
    open_stage = groups[0]['stage']
    pend = []
    fr = 0
    for n, gr in enumerate(groups):
        gr['fr'] = fr
        if gr['reads']:
            d = aFR + (fr % ring) * nreg
            for k, rt in enumerate(gr['reads']):
                pend.append((fr, gr['stage'], rt.format(d=ar(d + 2 * k, 2))))
            fr += 1
    rp = 0
    def can_read(f_cur):
        if rp >= len(pend): return False
        f, st, _ = pend[rp]
        return st <= open_stage and f <= f_cur + D
    while rp < len(pend) and pend[rp][0] < D and pend[rp][1] <= open_stage:
        g(pend[rp][2]); rp += 1
    last_stage = groups[-1]['stage']
    left = [0] * len(groups)
    acc = 0
    for n in range(len(groups) - 1, -1, -1):
        if groups[n].get('idx') == OPT['bar_group']: acc = 0
        acc += len(groups[n]['mfmas'])
        left[n] = acc
    since_vm = 1000
    for n, gr in enumerate(groups):
        f = gr['fr']
        d = aFR + (f % ring) * nreg
        if gr['reads']:
            while rp < len(pend) and pend[rp][0] <= f:
                assert pend[rp][1] <= open_stage
                g(pend[rp][2]); rp += 1
        if gr['reads'] and OPT['hw'] and f % 2 == 0 and any(p[0] == f + 1 for p in pend[:rp]) and sum(1 for p in pend[:rp] if p[0] == f + 1) == 2:
            d2 = aFR + ((f + 1) % ring) * nreg
            g.need([('a', d + i) for i in range(4)] + [('a', d2 + i) for i in range(4)])
        fcur = f if gr['reads'] else f - 1
        R = gr['stage']
        for it in gr.get('pre', []): fq.q.insert(0, it) if False else None
        if gr.get('front'):
            fq.q[0:0] = gr['front']
        for k, mt in enumerate(gr['mfmas']):
            fq.guard(mt.format(a=ar(d)))
            g(mt.format(a=ar(d)))
            since_vm += 1
            rem = left[n] - k - 1
            if OPT['pack']:
                nxt = groups[n+1] if n + 1 < len(groups) else None
                reserve = (k == len(gr['mfmas']) - 1 and nxt is not None and bool(nxt['reads']) and nxt['fr'] % 2 == 0)
                nv = fq.nvm()
                gap = max(1, (rem - 1) // max(1, nv))
                behind = rp < len(pend) and can_read(fcur) and pend[rp][0] <= fcur + OPT['D'] - 3
                vm_due = nv > 0 and since_vm >= min(gap, 6) and not behind
                def rr():
                    nonlocal rp
                    g(pend[rp][2]); rp += 1
                if fill_gap(rr if can_read(fcur) else None, vm_due, reserve): since_vm = 0
                continue
            budget = 2
            if k == len(gr['mfmas']) - 1 and n + 1 < len(groups) and groups[n+1]['reads'] and (groups[n+1]['fr'] % 2 == 0 or not OPT['hw']):
                budget = OPT['lastb']
            while budget:
                if can_read(fcur):
                    g(pend[rp][2]); rp += 1; budget -= 1
                elif len(fq):
                    j = None
                    if fq.is_vm(fq.q[0]) and OPT['pace']:
                        gap = max(1, (rem - 2) // max(1, fq.nvm()))
                        if since_vm >= min(gap, OPT['pace'] * 6): j = 0
                        else:
                            for i, it in enumerate(fq.q):
                                if callable(it): break
                                if fq.is_vm(it) or it[0].startswith('s_'): continue
                                _, _, _, _, rd_, wr_ = classify(it[0])
                                clash = False
                                for e in fq.q[:i]:
                                    _, _, _, _, erd, ewr = classify(e[0])
                                    if (set(erd) | set(ewr)) & set(wr_) or set(ewr) & set(rd_): clash = True
                                if not clash: j = i
                                break
                    else:
                        j = 0
                    if j is None: break
                    if j == 0:
                        if fq.is_vm(fq.q[0]): since_vm = 0
                        fq.pop()
                    else:
                        it = fq.q.pop(j); g(it[0], tag=it[1], nodst=(len(it) > 2))
                    budget -= 1
                else:
                    break
        for it in gr.get('post', []):
            fq.add([it])
        if gr.get('hook3'):
            wave0("L_wk_%d" % CLS[0], lambda: look(4))
            CLS[2] = g.vmtot
        if gr.get('hook4'):
            assert not any((not callable(it)) and it[0].startswith("v_cvt_pk_bf16_f32 v1") and int(it[0].split(',')[1].strip()[1:]) >= 180 for it in fq.q)
            fq.q[0:0] = part_loads(0)
        if gr.get('hook2'):
            tags = ["ST2", "ST3", "ST4"]
            while any((not callable(it)) and it[1] in tags for it in fq.q): fq.pop()
            g.wait_tag(tags)
            g.barrier()
            wave0("L_wy_%d" % CLS[0], lambda: arrive(2))
        if OPT['fuse'] and gr.get('idx') == OPT['bar_group'] and R == OPT['e1'] - 1:
            wave0("L_wf_%d" % CLS[0], lambda: poll(0, CLS[0], g.vmtot - CLS[2]))
        if OPT['fuse'] and gr.get('idx') == OPT['bar_group'] and R == 26:
            wave0("L_wx_%d" % CLS[0], lambda: poll(1, CLS[0], g.vmtot - CLS[2]))
        if gr.get('idx') == OPT['bar_group'] and (R < last_stage or tail_barrier):
            while rp < len(pend) and pend[rp][1] <= R:
                g(pend[rp][2]); rp += 1
            fq.drain_mem()
            wt_ = wait_tags(R + 1)
            while any((not callable(it)) and it[1] in (wt_ if isinstance(wt_, list) else [wt_]) for it in fq.q): fq.pop()
            g.wait_tag(wait_tags(R + 1), lg=0)
            if OPT['stamps'] > 1: g.smem_wait()
            if not OPT['nobar']: g.barrier()
            if OPT['stamps'] > 1: stamp(f"b{R+1}", drained=True)
            if OPT['fuse'] and R + 1 == OPT['pub0']:
                wave0("L_wp_%d" % CLS[0], lambda: publish(CLS[0], g.vmtot - CLS[1]))
            if OPT['fuse'] and R + 1 == OPT['e1']:
                wave0("L_we_%d" % CLS[0], lambda: arrive(1))
            if OPT['fuse'] and R + 1 == 27 and False:
                pass
            if OPT['fuse'] and R + 1 == OPT['lk0']:
                wave0("L_wl_%d" % CLS[0], lambda: look(0))
                CLS[2] = g.vmtot
            open_stage = R + 1
            fq.add(after_barrier(R + 1))

def interleave(mf, fill, per=2):
    fill = list(fill)
    for m in mf:
        g(m)
        for _ in range(per):
            if fill: g(fill.pop(0))
            elif len(fq): fq.pop()
    for f in fill: g(f)

def softmax_ops(t):
    S = [SACC + 12 * t + k for k in range(12)]
    m, x = vSM + 2 * t, vSM + 2 * t + 1
    o = []
    if OPT['rs']:
        for k in range(0, 12, 2):
            r = (m, x)[(k // 2) % 2]
            o.append(f"v_cvt_pk_bf16_f32 v{r}, v{S[k]}, v{S[k+1]}")
            o.append(f"v_lshlrev_b32 v{S[k]}, 16, v{r}")
            o.append(f"v_and_b32 v{S[k+1]}, 0xffff0000, v{r}")
    o.append(f"v_max3_f32 v{m}, v{S[0]}, v{S[1]}, v{S[2]}")
    o.append(f"v_max3_f32 v{x}, v{S[3]}, v{S[4]}, v{S[5]}")
    o.append(f"v_max3_f32 v{m}, v{m}, v{S[6]}, v{S[7]}")
    o.append(f"v_max3_f32 v{x}, v{x}, v{S[8]}, v{S[9]}")
    o.append(f"v_max3_f32 v{m}, v{m}, v{S[10]}, v{S[11]}")
    o.append(f"v_max_f32 v{m}, v{m}, v{x}")
    for sw in ("v_permlane32_swap_b32", "v_permlane16_swap_b32"):
        o.append(f"v_mov_b32 v{x}, v{m}")
        o.append(f"{sw} v{m}, v{x}")
        o.append(f"v_max_f32 v{m}, v{m}, v{x}")
    o.append(f"v_mul_f32 v{m}, s{sC}, v{m}")
    for k in range(12):
        o.append(f"v_fma_f32 v{S[k]}, v{S[k]}, s{sC}, -v{m}")
    for k in range(12):
        o.append(f"v_exp_f32 v{S[k]}, v{S[k]}")
    o.append(f"v_add_f32 v{m}, v{S[0]}, v{S[1]}")
    o.append(f"v_add_f32 v{x}, v{S[2]}, v{S[3]}")
    for k in range(4, 12, 2):
        o.append(f"v_add_f32 v{m}, v{m}, v{S[k]}")
        o.append(f"v_add_f32 v{x}, v{x}, v{S[k+1]}")
    o.append(f"v_add_f32 v{m}, v{m}, v{x}")
    for sw in ("v_permlane32_swap_b32", "v_permlane16_swap_b32"):
        o.append(f"v_mov_b32 v{x}, v{m}")
        o.append(f"{sw} v{m}, v{x}")
        o.append(f"v_add_f32 v{m}, v{m}, v{x}")
    o.append(f"v_rcp_f32 v{m}, v{m}")
    for k in range(12):
        o.append(f"v_mul_f32 v{S[k]}, v{S[k]}, v{m}")
    for k in range(6):
        o.append(f"v_cvt_pk_bf16_f32 v{vPOWN + 6*t + k}, v{S[2*k]}, v{S[2*k+1]}")
    return o

def merge(*lists):
    out = []
    n = max(len(l) for l in lists)
    for i in range(n):
        for l in lists:
            if i < len(l): out.append(l[i])
    return out

def cvt_pairs(acc, s_list, t):
    o = []
    for s in s_list:
        b, b2 = acc(2 * s, t), acc(2 * s + 1, t)
        o.append(f"v_cvt_pk_bf16_f32 v{b}, v{b}, v{b+1}")
        o.append(f"v_cvt_pk_bf16_f32 v{b+1}, v{b+2}, v{b+3}")
        o.append(f"v_cvt_pk_bf16_f32 v{b+2}, v{b2}, v{b2+1}")
        o.append(f"v_cvt_pk_bf16_f32 v{b+3}, v{b2+2}, v{b2+3}")
    return o

def p_write0():
    for t in range(3):
        g(f"ds_write_b128 v{vPA}, {vr(vPOWN+6*t)} offset:{t*1024}")
    g(f"s_mov_b64 exec, s[{sPD}:{sPD+1}]")
    for t in range(3):
        g(f"ds_write_b64 v{vPW2}, {vr(vPOWN+6*t+4,2)} offset:{t*512}")
    g("s_mov_b64 exec, -1")

def p_write1():
    return [(f"ds_write_b64 v{vPB}, {vr(vPOWN+6*t+4,2)} offset:{t*512}", None) for t in range(3)]

def p_reads32(hh):
    return [(f"ds_read_b128 {vr(vP32[hh]+4*t)}, v{vPW} offset:{hh*6144 + t*1024}", None) for t in range(3)]
def p_readsu2(hh):
    return [(f"ds_read_b64 {vr(vPU2+4*t+2*hh,2)}, v{vPW2} offset:{t*512}", None) for t in range(3)]

def q_groups():
    gs = []
    for s in range(14):
        slot = s % 3
        win, base = (1, 0) if slot == 2 else (0, slot * SLOT)
        for T in range(16):
            reads = [f"ds_read_b64_tr_b16 {{d}}, v{vWQR + win*8 + (T & 7)} offset:{base + rd*16384 + (T>>3)*256}" for rd in range(2)]
            mf = []
            for t in range(3):
                acc = vr(QACC(T, t))
                xb = ar(aX + (s % XRING) * 12 + t * 4)
                mf.append(f"v_mfma_f32_16x16x32_bf16 {acc}, {{a}}, {xb}, {acc if s else 0}")
            gr = dict(stage=s, reads=reads, mfmas=mf, idx=T)
            if s == 13 and OPT['ecv'] and T >= 3 and T % 2 == 1:
                gr['post'] = [(i, None) for t in range(3) for i in cvt_pairs(QACC, [(T - 3) // 2], t)]
            gs.append(gr)
    return gs

def vw_cvt(R):
    par = R % 2
    hh, c = divmod(R - 14, 7)
    o = []
    for T in range(2):
        for u in range(3):
            b = VWACC(par, T, u)
            d = vVWB + 4 * T + 2 * u if u < 2 else vVWB + 8 + 2 * T
            o.append((f"v_cvt_pk_bf16_f32 v{d}, v{b}, v{b+1}", None))
            o.append((f"v_cvt_pk_bf16_f32 v{d+1}, v{b+2}, v{b+3}", None))
    for T in range(2):
        for i in range(2):
            o.append((f"v_accvgpr_write_b32 a{U2(c,T)+2*hh+i}, v{vVWB+8+2*T+i}", None))
    return o

def final_groups(R, stage):
    hh, c = divmod(R - 14, 7)
    a, b = [], []
    for T in range(2):
        for t in range(3):
            acc = ar(OUTACC(c, T, t))
            a.append(f"v_mfma_f32_16x16x32_bf16 {acc}, {vr(vVWB+4*T)}, {vr(vP32[hh]+4*t)}, {acc if hh else 0}")
            if hh: b.append(f"v_mfma_f32_16x16x32_bf16 {acc}, {ar(U2(c,T))}, {vr(vPU2+4*t)}, {acc}")
    return dict(stage=stage, reads=[], mfmas=a), dict(stage=stage, reads=[], mfmas=b)

def epilogue_ops(c):
    o = [(f"s_add_u32 s{sT0}, s{sST}, {c*6144}", None)]
    for t in range(3):
        tb = vEP + t * 8
        for T in range(2):
            for r in range(4):
                o.append((f"v_accvgpr_read_b32 v{tb + T*4 + r}, a{OUTACC(c,T,t)+r}", None))
        for k in range(4):
            o.append((f"v_cvt_pk_bf16_f32 v{tb+k}, v{tb+2*k}, v{tb+2*k+1}", None))
        if not OPT['nost']: o.append((f"buffer_store_dwordx4 {vr(tb)}, v{vSTO}, {sr(S_WS)}, s{sT0} offen offset:{t*1024}{FL[OPT['stf']]}", f"ST{c}"))
    return o

def o_groups():
    gs = []
    for R in range(14, 28):
        hh, c = divmod(R - 14, 7)
        slot = R % 3
        win, base = (1, 0) if slot == 2 else (0, slot * SLOT)
        for s in range(8):
            for T in range(2):
                idx = 2 * s + T
                reads = [f"ds_read_b64_tr_b16 {{d}}, v{vWOR + win*2 + T} offset:{base + s*4096 + rd*2048}" for rd in range(2)]
                mf = []
                for u in range(3):
                    acc = vr(VWACC(R % 2, T, u))
                    mf.append(f"v_mfma_f32_16x16x32_bf16 {acc}, {vr(VFRAG(u,s))}, {{a}}, {acc if s else 0}")
                gr = dict(stage=R, reads=reads, mfmas=mf, idx=idx)
                if R > 14 and idx == OPT['ic']: gr['front'] = vw_cvt(R - 1)
                if R == 20 and T == 1:
                    ss = [s] if s not in (4, 5) else ([] if s == 4 else [4, 5])
                    assert OPT['bar_group'] == 10
                    gr['post'] = [v_read(u, s_) for s_ in ss for u in range(3)]
                gs.append(gr)
                if R > 14 and idx == OPT['ia']: gs.append(final_groups(R - 1, R)[0])
                if R > 14 and idx == OPT['ib']:
                    gb = final_groups(R - 1, R)[1]
                    if gb['mfmas']: gs.append(gb)
                if R > 21 and idx == OPT['ie']: gs[-1]['post'] = epilogue_ops(R - 22)
                if R == 27 and idx == OPT['arri'] and OPT['fuse']: gs[-1]['hook2'] = True
                if R == 26 and idx == OPT['lk1'] and OPT['fuse']: gs[-1]['hook3'] = True
                if R == 27 and idx == OPT['ld0'] and OPT['fuse']: gs[-1]['hook4'] = True
    return gs

def finish_stamps(cls):
    if OPT['stamps']:
        stamp("real_end", real=True)
        g.smem_wait(); stamp_flush()
        g(f"v_writelane_b32 v{vSTAMP}, s98, 62")
        g(f"v_writelane_b32 v{vSTAMP}, s96, 63")
        g(f"s_lshl_b32 s{sT0}, s2, 2")
        g(f"s_add_u32 s{sT0}, s{sT0}, s{sW}")
        g(f"s_lshl_b32 s{sT0}, s{sT0}, 8")
        g(f"s_add_u32 s{sT0}, s{sT0}, {24<<20}")
        g(f"s_mov_b32 s{S_WS+2}, 0x10000000")
        g(f"v_lshrrev_b32 v1, 2, v{vSTO}")
        if OPT['dbg']:
            g(f"s_cmp_lg_u32 s2, {OPT['dbg']}")
            g(f"s_cbranch_scc1 L_nodbg_{cls}")
            g(f"s_cmp_lg_u32 s{sW}, 1")
            g(f"s_cbranch_scc1 L_nodbg_{cls}")
            g(f"v_subrev_u32 v2, s98, v{vSTAMP}")
            g(f"s_mov_b64 exec, 0xffff")
            g(f"buffer_store_dword v2, v1, {sr(S_K)}, 0 offen")
            g.raw(f"L_nodbg_{cls}:")
        else:
            g(f"buffer_store_dword v{vSTAMP}, v1, {sr(S_WS)}, s{sT0} offen")
        json.dump(names, open(sys.argv[1] + ".names", "w"))
    g("s_endpgm")

def main_kernel():
    kernel_open(MAIN)
    g(f"s_cmp_ge_u32 s2, 256")
    g(f"s_cbranch_scc1 L_main_end")
    if OPT['stamps']:
        g("s_memrealtime s[96:97]")
        g("s_memtime s[98:99]")
    if OPT['cpf_first']:
        g(f"s_getpc_b64 s[{sPC}:{sPC+1}]")
        g.raw("L_pc0:")
        g(f"s_lshr_b32 s{sT0}, s2, 3")
        g(f"s_lshl_b32 s{sT0}, s{sT0}, 12")
        g(f"v_lshl_add_u32 v2, v0, 4, s{sT0}")
        g(f"v_min_u32 v2, (L_{'text' if OPT['cpf_red'] else 'main'}_end-L_pc0)/16*16-16, v2")
        g(f"global_load_dword v{vDUM}, v2, s[{sPC}:{sPC+1}]", nodst=True)
    g("s_load_dwordx8 s[64:71], s[0:1], 0")
    g("s_load_dwordx2 s[72:73], s[0:1], 32")
    g("s_load_dwordx8 s[76:83], s[0:1], 40")
    g("s_load_dwordx2 s[74:75], s[0:1], 72")
    g("s_load_dwordx4 s[84:87], s[0:1], 80")
    g("s_load_dwordx2 s[4:5], s[0:1], 96")
    g(f"s_getpc_b64 s[{sPC}:{sPC+1}]")
    g.raw("L_pc:")
    L = 1
    t0, t1, t2, t3, t4, t5 = 2, 3, 4, 5, 6, 7
    g(f"v_lshrrev_b32 v{t0}, 6, v0")
    g(f"v_and_b32 v{L}, 63, v0")
    g(f"v_readfirstlane_b32 s{sW}, v{t0}")
    g(f"s_and_b32 s{sT0}, s2, 7")
    g(f"s_lshr_b32 s{sT1}, s2, 3")
    g(f"s_lshr_b32 s{sBR}, s{sT0}, 2")
    g(f"s_and_b32 s{sHG}, s{sT0}, 3")
    g(f"s_lshl_b32 s{sT0}, s{sHG}, 2")
    g(f"s_and_b32 s{sHP}, s{sT1}, 1")
    g(f"s_lshl_b32 s{sT2}, s{sHP}, 1")
    g(f"s_add_u32 s{sH0}, s{sT0}, s{sT2}")
    g(f"s_lshr_b32 s{sB0}, s{sT1}, 1")
    if OPT['nc'] == 3:
        g(f"s_mul_i32 s{sCLS}, s{sB0}, 11")
        g(f"s_lshr_b32 s{sCLS}, s{sCLS}, 5")
        g(f"s_mul_i32 s{sCLS}, s{sCLS}, 3")
        g(f"s_sub_u32 s{sCLS}, s{sB0}, s{sCLS}")
    else:
        g(f"s_and_b32 s{sCLS}, s{sB0}, {OPT['nc']-1}")
    g(f"s_lshl_b32 s{sB0}, s{sB0}, 1")
    g(f"s_lshl_b32 s{sWI}, s{sT1}, 2")
    g(f"s_add_u32 s{sWI}, s{sWI}, s{sW}")
    g(f"s_and_b32 s{sBSEL}, s{sW}, 1")
    g(f"s_lshr_b32 s{sJ}, s{sW}, 1")
    g(f"s_add_u32 s{sB}, s{sB0}, s{sBSEL}")
    g(f"s_lshl_b32 s{sM}, s{sW}, 13")
    g(f"s_lshl_b32 s{sVM}, s{sW}, 10")
    g(f"s_add_u32 s{sVM}, s{sVM}, {VB}")
    g(f"s_mov_b32 s{sXM}, s{sVM}")
    g(f"s_lshl_b32 s{sWQB}, s{sH0}, 9")
    g(f"s_mul_i32 s{sXB}, s{sB0}, 43008")
    g(f"s_lshl_b32 s{sT0}, s{sBSEL}, 4")
    g(f"s_lshl_b32 s{sT1}, s{sJ}, 2")
    g(f"s_add_u32 s{sT0}, s{sT0}, s{sT1}")
    g(f"s_lshl_b32 s{sT0}, s{sT0}, 13")
    g(f"v_lshlrev_b32 v{vSTO}, 4, v{L}")
    g(f"v_add_u32 v{t1}, s{sT0}, v{vSTO}")
    for i in range(8):
        const = (8 * (i >> 2) + (i & 3)) * 8192 - (i & 3) * 1024
        g(f"v_xor_b32 v{t0}, {32*i}, v{t1}")
        g(f"v_add_u32 v{vWQD+i}, {const}, v{t0}")
    g(f"v_lshrrev_b32 v{t0}, 3, v{L}")
    g(f"v_mul_u32_u24 v{t0}, 896, v{t0}")
    g(f"v_lshrrev_b32 v{t1}, 4, v{L}")
    g(f"s_lshl_b32 s{sT0}, s{sBSEL}, 2")
    g(f"v_add_u32 v{t1}, s{sT0}, v{t1}")
    g(f"v_and_b32 v{t2}, 7, v{L}")
    g(f"v_xor_b32 v{t1}, v{t1}, v{t2}")
    g(f"v_lshl_add_u32 v{t0}, v{t1}, 4, v{t0}")
    g(f"s_mul_i32 s{sT0}, s{sW}, 7168")
    g(f"v_add_u32 v{vXD}, s{sT0}, v{t0}")
    g(f"v_and_b32 v{t0}, 15, v{L}")
    g(f"v_lshrrev_b32 v{t1}, 4, v{L}")
    g(f"v_mov_b32 v{t5}, {BIG}")
    g(f"v_lshlrev_b32 v{t2}, 7, v{t0}")
    g(f"v_cmp_gt_u32 vcc, 16, v{L}")
    g(f"s_lshl_b32 s{sTWQ}, s{sWI}, 13")
    g(f"s_lshl_b32 s{sT0}, s{sHG}, 11")
    g(f"v_cndmask_b32 v9, v{t5}, v{t2}, vcc")
    g(f"s_add_u32 s{sTWQ}, s{sTWQ}, s{sT0}")
    g(f"v_lshl_add_u32 v{t2}, v{t1}, 20, v{t2}")
    g(f"v_cmp_gt_u32 vcc, 32, v{L}")
    g(f"s_lshl_b32 s{sT0}, s{sHP}, 2")
    g(f"s_add_u32 s{sT0}, s{sT0}, s{sW}")
    g(f"v_cndmask_b32 v{vTWQ}, v{t5}, v{t2}, vcc")
    g(f"s_mul_i32 s{sT1}, s{sT0}, 24")
    g(f"s_mul_i32 s{sT2}, s{sT0}, 36")
    g(f"v_add_u32 v{t2}, s{sT1}, v{L}")
    g(f"v_lshrrev_b32 v{t3}, 1, v{t2}")
    g(f"v_mul_u32_u24 v{t3}, 896, v{t3}")
    g(f"v_and_b32 v{t2}, 1, v{t2}")
    g(f"v_lshl_add_u32 v{t2}, v{t2}, 7, v{t3}")
    g(f"v_cmp_gt_u32 vcc, 24, v{L}")
    g(f"v_add_u32 v{t3}, s{sT2}, v{L}")
    g(f"v_mul_u32_u24 v{t4}, 21846, v{t3}")
    g(f"v_cndmask_b32 v{vTXA}, v{t5}, v{t2}, vcc")
    g(f"v_lshrrev_b32 v{t4}, 16, v{t4}")
    g(f"v_mul_u32_u24 v{t2}, 3, v{t4}")
    g(f"v_sub_u32 v{t3}, v{t3}, v{t2}")
    g(f"v_mul_u32_u24 v{t4}, 896, v{t4}")
    g(f"v_lshl_add_u32 v{t3}, v{t3}, 7, v{t4}")
    g(f"v_cmp_gt_u32 vcc, 36, v{L}")
    g(f"s_nop 1")
    g(f"v_cndmask_b32 v{vTXB}, v{t5}, v{t3}, vcc")
    g.smem_wait()
    g(f"s_cmp_eq_u32 s{sBR}, 0")
    for k in (0, 3, 1, 2, 4):
        bsrc = 76 + 2 * k if k < 4 else 74
        g(f"s_cselect_b64 s[{64+2*k}:{65+2*k}], s[{64+2*k}:{65+2*k}], s[{bsrc}:{bsrc+1}]")
    srd(S_X, 64, 65, 1376256)
    srd(S_WQ, 70, 71, 3670016)
    if OPT['w0dir'] == 1:
        emit_list(x_dma(0, "R0")); emit_list(ring_dma(0))
    emit_list(touch(9, S_WQ, sTWQ, 0))
    if OPT['w0dir'] == 2:
        emit_list(x_dma(0, "R0")); emit_list(ring_dma(0))
    if OPT['code_pf'] and not OPT['cpf_first']:
        g(f"s_min_u32 s{sT0}, s{sWI}, (L_main_end-L_pc)/1024-1")
        g(f"s_lshl_b32 s{sT0}, s{sT0}, 10")
        g(f"v_add_u32 v{t2}, s{sT0}, v{vSTO}")
        g(f"global_load_dword v{vDUM}, v{t2}, s[{sPC}:{sPC+1}]", nodst=True)
    if not OPT['w0dir']: emit_list(x_dma(0, "R0"))
    emit_list(x_dma(1, "R1" if OPT['w0dir'] else "R0"))
    g(f"v_mov_b32 v{vT16}, v9")
    sl = []
    if OPT['sta']:
        g(f"s_add_u32 s{sT0}, s{sTWQ}, {128*8192}")
        g(f"s_add_u32 s76, s70, s{sT0}")
        g(f"s_addc_u32 s77, s71, 0")
        g(f"s_lshl_b32 s{sT0}, s{sHP}, 2")
        g(f"s_add_u32 s{sT0}, s{sT0}, s{sW}")
        g(f"s_mul_i32 s{sT0}, s{sT0}, {12*896}")
        g(f"s_add_u32 s{sT0}, s{sT0}, s{sXB}")
        g(f"s_add_u32 s78, s64, s{sT0}")
        g(f"s_addc_u32 s79, s65, 0")
        sl = [f"s_load_dword s80, s[76:77], {k*128}" for k in range(16)]
        sl += [f"s_load_dword s80, s[78:79], {r*896 + 256 + c*128}" for r in range(12) for c in range(2)]
        sl = sl[:OPT['sta']]
        for i in sl[:OPT['stb']]: g(i)
        sl = sl[OPT['stb']:]
    g(f"v_lshrrev_b32 v{t2}, 1, v{t0}")
    g(f"v_xor_b32 v{t2}, v{t2}, v{t1}")
    g(f"v_lshlrev_b32 v{t2}, 4, v{t2}")
    g(f"v_lshl_add_u32 v{t2}, v{t0}, 7, v{t2}")
    g(f"s_mul_i32 s{sT0}, s{sBSEL}, 6144")
    g(f"s_add_u32 s{sT0}, s{sT0}, {VB}")
    g(f"v_add_u32 v{vXR}, s{sT0}, v{t2}")
    g(f"v_xor_b32 v{vXR+1}, 64, v{vXR}")
    g(f"v_lshlrev_b32 v{t2}, 7, v{L}")
    g(f"v_cmp_gt_u32 vcc, 32, v{L}")
    srd(S_K, 66, 67, 12582912)
    g(f"v_cndmask_b32 v{vT32}, v{t5}, v{t2}, vcc")
    srd(S_V, 68, 69, 12582912)
    srd(S_WO, 72, 73, 3670016)
    srd(S_WS, 4, 5, 22020096)
    u0, u1, u2 = 10, 11, 12
    g(f"v_lshrrev_b32 v{u0}, 2, v{L}")
    g(f"v_and_b32 v{u1}, 7, v{u0}")
    g(f"v_and_b32 v{u2}, 3, v{L}")
    g(f"v_lshlrev_b32 v{u2}, 3, v{u2}")
    g(f"s_lshl_b32 s{sT0}, s{sJ}, 9")
    g(f"v_lshl_add_u32 v{t3}, v{u0}, 10, v{u2}")
    g(f"v_add_u32 v{t3}, s{sT0}, v{t3}")
    for T in range(8):
        g(f"v_xor_b32 v{t4}, {T}, v{u1}")
        g(f"v_lshl_add_u32 v{vWQR+T}, v{t4}, 5, v{t3}")
        g(f"v_add_u32 v{vWQR+8+T}, 0x10000, v{vWQR+T}")
    g(f"s_lshl_b32 s{sT0}, s{sB}, 4")
    g(f"s_add_u32 s{sT0}, s{sT0}, s{sH0}")
    g(f"s_add_u32 s{sT0}, s{sT0}, s{sJ}")
    g(f"s_mul_i32 s{sKB}, s{sT0}, 24576")
    g(f"s_mul_i32 s{sKM}, s{sW}, 8320")
    g(f"s_add_u32 s{sKM}, s{sKM}, {KA}")
    g(f"v_lshlrev_b32 v{t2}, 2, v{t1}")
    g(f"v_xor_b32 v{t2}, v{t2}, v{t0}")
    g(f"v_lshlrev_b32 v{t2}, 4, v{t2}")
    g(f"v_lshl_add_u32 v{vKD}, v{t1}, 9, v{t2}")
    g(f"v_lshrrev_b32 v{t2}, 2, v{t0}")
    g(f"v_mul_u32_u24 v{t2}, 1040, v{t2}")
    g(f"v_and_b32 v{t3}, 3, v{t0}")
    g(f"v_lshl_add_u32 v{t2}, v{t3}, 8, v{t2}")
    g(f"v_lshl_add_u32 v{t2}, v{t1}, 3, v{t2}")
    g(f"v_add_u32 v{t2}, s{sKM}, v{t2}")
    for s4 in range(4):
        g(f"v_xor_b32 v{t4}, {s4}, v{t3}")
        g(f"v_lshl_add_u32 v{vKR+s4}, v{t4}, 6, v{t2}")
    g(f"s_mul_i32 s{sWOBASE}, s{sH0}, 229376")
    g(f"s_lshl_b32 s{sT0}, s{sB0}, 4")
    g(f"s_add_u32 s{sT0}, s{sT0}, s{sH0}")
    g(f"s_mul_i32 s{sVBASE}, s{sT0}, 24576")
    g(f"s_mul_i32 s{sT0}, s{sJ}, 393216")
    g(f"s_mul_i32 s{sT1}, s{sBSEL}, 12288")
    g(f"s_add_u32 s{sTV}, s{sVBASE}, s{sT0}")
    g(f"s_add_u32 s{sTV}, s{sTV}, s{sT1}")
    g(f"s_add_u32 s{sT0}, s{sH0}, s{sBR}")
    g(f"s_lshl_b32 s{sT0}, s{sT0}, 5")
    g(f"s_add_u32 s{sT0}, s{sT0}, s{sB}")
    g(f"s_mul_i32 s{sST}, s{sT0}, 43008")
    g(f"s_mul_i32 s{sT0}, s{sJ}, 3072")
    g(f"s_add_u32 s{sST}, s{sST}, s{sT0}")
    g(f"s_mov_b32 s{sC}, 0x{struct.unpack('<I', struct.pack('<f', 1.4426950408889634/16.0))[0]:08x}")
    g(f"s_lshr_b32 s{sT0}, s{sWI}, 6")
    g(f"s_lshl_b32 s{sT1}, s{sHG}, 1")
    g(f"s_add_u32 s{sT0}, s{sT0}, s{sT1}")
    g(f"s_mul_i32 s{sTWO}, s{sT0}, 458752")
    g(f"s_and_b32 s{sT0}, s{sWI}, 63")
    g(f"s_mul_i32 s{sT0}, s{sT0}, 3584")
    g(f"s_add_u32 s{sTWO}, s{sTWO}, s{sT0}")
    g(f"s_mul_i32 s{sT0}, s{sBSEL}, 24576")
    g(f"s_add_u32 s{sT0}, s{sT0}, {VB}")
    g(f"v_xor_b32 v{t3}, v{t1}, v{t0}")
    g(f"v_lshlrev_b32 v{t3}, 4, v{t3}")
    g(f"v_lshl_add_u32 v{t3}, v{t0}, 8, v{t3}")
    g(f"v_add_u32 v{vVR}, s{sT0}, v{t3}")
    for s4 in range(1, 4):
        g(f"v_xor_b32 v{vVR+s4}, {64*s4}, v{vVR}")
    g(f"s_lshl_b32 s{sT0}, s{sW}, 2")
    g(f"v_add_u32 v{t3}, s{sT0}, v{t1}")
    g(f"v_xor_b32 v{t3}, v{t3}, v{t0}")
    g(f"v_lshlrev_b32 v{t3}, 4, v{t3}")
    g(f"v_lshl_add_u32 v{t3}, v{t1}, 9, v{t3}")
    g(f"s_lshl_b32 s{sT0}, s{sW}, 11")
    g(f"v_add_u32 v{vVD}, s{sT0}, v{t3}")
    g(f"v_lshl_add_u32 v{t3}, v{u0}, 7, v{u2}")
    g(f"v_bfe_u32 v{t2}, v{L}, 3, 2")
    g(f"s_lshl_b32 s{sT0}, s{sJ}, 1")
    for T in range(2):
        g(f"s_add_u32 s{sT3}, s{sT0}, {T}")
        g(f"v_xor_b32 v{t4}, s{sT3}, v{t2}")
        g(f"v_lshl_add_u32 v{vWOR+T}, v{t4}, 5, v{t3}")
        g(f"v_add_u32 v{vWOR+2+T}, 0x10000, v{vWOR+T}")
    g(f"v_lshrrev_b32 v{t3}, 5, v{L}")
    g(f"v_lshl_add_u32 v{t2}, v{t3}, 3, v{t2}")
    g(f"v_mul_u32_u24 v{t2}, 896, v{t2}")
    g(f"v_lshlrev_b32 v{t3}, 1, v{t1}")
    g(f"v_and_b32 v{t4}, 7, v{L}")
    g(f"v_xor_b32 v{t3}, v{t3}, v{t4}")
    g(f"v_lshl_add_u32 v{t2}, v{t3}, 4, v{t2}")
    g(f"s_mul_i32 s{sT0}, s{sW}, 57344")
    g(f"v_add_u32 v{vWOD}, s{sT0}, v{t2}")
    for k in range(1, 4):
        g(f"v_add_u32 v{vWOD+k}, {(16*(k&1) + 4*(k>>1))*896 - k*1024}, v{vWOD}")
    g(f"s_mul_i32 s{sT0}, s{sBSEL}, 3072")
    g(f"s_add_u32 s{sT0}, s{sT0}, {PB}")
    g(f"v_add_u32 v{vPW}, s{sT0}, v{vSTO}")
    g(f"s_mul_i32 s{sT1}, s{sBSEL}, 1536")
    g(f"s_add_u32 s{sT1}, s{sT1}, {PB + 12288}")
    g(f"v_lshl_add_u32 v{vPW2}, v{L}, 3, s{sT1}")
    g(f"s_mul_i32 s{sPX}, s{sJ}, 6144")
    g(f"s_cmp_eq_u32 s{sJ}, 0")
    g(f"s_cselect_b64 s[{sPD}:{sPD+1}], -1, 0")
    g(f"s_sub_u32 s{sT0}, s{sT0}, s{sT1}")
    g(f"s_cmp_eq_u32 s{sJ}, 0")
    g(f"s_cselect_b32 s{sPY}, s{sT0}, 0")
    if OPT['tlb']:
        g(f"v_and_b32 v{t2}, 1, v{L}")
        g(f"v_mul_u32_u24 v{t2}, 393216, v{t2}")
        g(f"v_lshrrev_b32 v{t3}, 1, v{L}")
        g(f"v_mul_u32_u24 v{t3}, 49024, v{t3}")
        g(f"v_add_u32 v{t2}, v{t2}, v{t3}")
        g(f"v_cmp_gt_u32 vcc, 4, v{L}")
        g(f"v_lshlrev_b32 v{t3}, 17, v{L}")
        g(f"v_mul_u32_u24 v{t4}, 39808, v{L}")
        g(f"v_cndmask_b32 v{t2}, v{t5}, v{t2}, vcc")
        g(f"v_cndmask_b32 v{t3}, v{t5}, v{t3}, vcc")
        g(f"v_cmp_gt_u32 vcc, 2, v{L}")
        g(f"buffer_load_dword v{vDUM}, v{t2}, {sr(S_K)}, s{sVBASE} offen nt", nodst=True)
        g(f"v_cndmask_b32 v{t4}, v{t5}, v{t4}, vcc")
        g(f"buffer_load_dword v{vDUM}, v{t2}, {sr(S_V)}, s{sVBASE} offen nt", nodst=True)
        g(f"buffer_load_dword v{vDUM}, v{t3}, {sr(S_WO)}, s{sWOBASE} offen", nodst=True)
        g(f"buffer_load_dword v{vDUM}, v{t4}, {sr(S_WS)}, s{sST} offen nt", nodst=True)
    while sl:
        g.smem_wait()
        for i in sl[:OPT['stb']]: g(i)
        sl = sl[OPT['stb']:]
    emit_list(touches(-1))
    if not OPT['w0dir']: emit_list(ring_dma(0))
    if OPT['w1pro']: emit_list(ring_dma(1))
    if OPT['fuse']:
        srd(S_FLG, 4, 5, 22020096 + 32 * 256)
        srd(S_OUT, 84, 85, 2752512)
        srd(S_DBG, 86, 87, 256)
        g(f"v_mov_b32 v{vZERO}, 0")
        g(f"s_lshl_b32 s{sT0}, s{sBR}, 5")
        g(f"s_add_u32 s{sT0}, s{sT0}, s{sB0}")
        g(f"s_lshl_b32 s{sFLG}, s{sT0}, 7")
        g(f"s_add_u32 s{sFLG}, s{sFLG}, 22020096")
    stamp('pro')
    if OPT['sta']: g.smem_wait()
    g.wait_tag("R0")
    g.barrier()
    stamp('b0')
    import copy
    NC = OPT['nc']
    for cls in range(1, NC):
        g(f"s_cmp_eq_u32 s{sCLS}, {cls}")
        g(f"s_cbranch_scc1 L_body_{cls}")
    saved = copy.deepcopy({k: v for k, v in g.__dict__.items() if k != 'lines'})
    st0 = (nstamp, pending, list(names))
    for cls in range(NC):
        for k, v in copy.deepcopy(saved).items(): setattr(g, k, v)
        globals().update(nstamp=st0[0], pending=st0[1], names=list(st0[2]))
        if cls: g.raw(".p2align 6"); g.raw(f"L_body_{cls}:")
        body(cls)
    g.raw("L_main_end:")
    g("s_endpgm")

S_OUT, S_DBG = 76, 80
sLD, sSTO, sCNT, sLASTA, sLASTB = 64, 68, 72, 73, 3
vARR = 254
def fuse_flag_loads():
    return [(f"v_mov_b32 v{vFLAG}, 0", None)] + ([] if OPT['wsb'] else [
            (f"buffer_load_dword v{vFLAG+1}, v{vFLAG}, {sr(S_FLG)}, s{sFLG} offen offset:128 sc1", None)]) + [
            (f"buffer_load_dword v{vFLAG}, v{vFLAG}, {sr(S_FLG)}, s{sFLG} offen sc1", None)]

def fuse_setup():
    o = []
    e = lambda t: o.append((t, None))
    A, C, Rr, T0, T1, TB, WN = 60, 74, 75, 86, 87, 84, 85
    e(f"s_lshl_b32 s{T0}, s{sBR}, 5")
    e(f"s_add_u32 s{T0}, s{T0}, s{sB0}")
    e(f"s_lshl_b32 s{sCNT}, s{T0}, {2 if OPT['wsb'] else 1}")
    e(f"s_mul_i32 s{TB}, s{T0}, 43008")
    e(f"s_lshr_b32 s{WN}, s{sH0}, 1")
    e(f"s_lshl_b32 s{T0}, s{sW}, 3")
    e(f"s_add_u32 s{WN}, s{WN}, s{T0}")
    for k, add in enumerate((0, 24, 56)):
        ld, st = sLD + k, sSTO + k
        e(f"s_add_u32 s{A}, s{WN}, {add}")
        e(f"s_mul_i32 s{C}, s{A}, 43")
        e(f"s_lshr_b32 s{C}, s{C}, 9")
        e(f"s_mul_i32 s{Rr}, s{C}, 12")
        e(f"s_sub_u32 s{Rr}, s{A}, s{Rr}")
        e(f"s_mul_i32 s{T0}, s{Rr}, 43")
        e(f"s_lshr_b32 s{T0}, s{T0}, 8")
        e(f"s_mul_i32 s{T1}, s{T0}, 6")
        e(f"s_sub_u32 s{Rr}, s{Rr}, s{T1}")
        e(f"s_mul_i32 s{ld}, s{C}, 6")
        e(f"s_add_u32 s{ld}, s{ld}, s{Rr}")
        e(f"s_lshl_b32 s{ld}, s{ld}, 10")
        e(f"s_mul_i32 s{T1}, s{T0}, 43008")
        e(f"s_add_u32 s{ld}, s{ld}, s{T1}")
        e(f"s_add_u32 s{ld}, s{ld}, s{TB}")
        e(f"s_mul_i32 s{T1}, s{Rr}, 43")
        e(f"s_lshr_b32 s{T1}, s{T1}, 7")
        e(f"s_lshl_b32 s{C}, s{C}, 1")
        e(f"s_add_u32 s{C}, s{C}, s{T1}")
        e(f"s_lshl_b32 s{C}, s{C}, 6")
        e(f"s_mul_i32 s{T1}, s{T1}, 3")
        e(f"s_sub_u32 s{Rr}, s{Rr}, s{T1}")
        e(f"s_add_u32 s{T0}, s{T0}, s{sB0}")
        e(f"s_mul_i32 s{T0}, s{T0}, 3")
        e(f"s_add_u32 s{T0}, s{T0}, s{Rr}")
        e(f"s_mul_i32 s{st}, s{T0}, {16*1792}")
        e(f"s_add_u32 s{st}, s{st}, s{C}")
        e(f"s_mul_i32 s{T0}, s{sBR}, 896")
        e(f"s_add_u32 s{st}, s{st}, s{T0}")
        lim = (24, 56, 84)[k]
        if add + 31 >= lim:
            e(f"s_add_u32 s{T0}, s{A}, {128 - lim}")
            e(f"s_lshr_b32 s{T0}, s{T0}, 7")
            e(f"s_mul_i32 s{T0}, s{T0}, {BIG}")
            e(f"s_add_u32 s{ld}, s{ld}, s{T0}")
            e(f"s_add_u32 s{st}, s{st}, s{T0}")
    return o

def wave0(lbl, fn):
    g(f"s_cmp_lg_u32 s{sW}, {OPT['syncw']}")
    g(f"s_cbranch_scc1 {lbl}")
    n0, vm0, lg0 = g.n, list(g.vm), list(g.lgkm)
    g("s_mov_b64 exec, 1")
    fn()
    g("s_mov_b64 exec, -1")
    g.raw(f"{lbl}:")
    g.n, g.vm, g.lgkm = n0, vm0, lg0

def arrive(which):
    g(f"v_mov_b32 v{vARR}, {(1, 0x10000, 0x100, 1)[which]}")
    if which == 0:
        g(f"v_mov_b32 v{vPUB}, v{vFLAG}")
        g(f"buffer_atomic_add v{vARR}, v{vZERO}, {sr(S_DBG)}, s{sCNT} offen sc0")
    else:
        g(f"buffer_atomic_add v{vARR}, v{vZERO}, {sr(S_FLG)}, s{sFLG} offen offset:4")

def publish(cls, nwait):
    g.raw(f"    s_waitcnt vmcnt({min(nwait, 63)})"); g.n += 1
    g(f"v_readfirstlane_b32 s{sLASTA}, v{vARR}")
    g(f"s_and_b32 s{sLASTA}, s{sLASTA}, 7")
    g(f"s_cmp_lg_u32 s{sLASTA}, 7")
    g(f"s_cbranch_scc1 L_nl_{cls}")
    g(f"v_add_u32 v{vPUB}, 1, v{vFLAG}")
    g(f"v_mov_b32 v{vPUB+1}, 0")
    g(f"buffer_store_dwordx2 {vr(vPUB,2)}, v{vZERO}, {sr(S_FLG)}, s{sFLG} offen sc1")
    g.raw(f"L_nl_{cls}:")

def look(off):
    g(f"buffer_load_dword v{vLOOK}, v{vZERO}, {sr(S_FLG)}, s{sFLG} offen offset:{off} sc1")

def poll(which, cls, nwait=None):
    off = 0 if which == 0 else 4
    def test():
        g(f"v_readfirstlane_b32 s86, v{vLOOK}")
        if which == 0:
            g(f"s_cmp_lg_u32 s86, s87")
        else:
            g(f"s_bfe_u32 s86, s86, {0x80000 + (0, 16, 8, 0)[which]}")
            g(f"s_cmp_eq_u32 s86, 8")
        g(f"s_cbranch_scc1 L_got{which}_{cls}")
    g(f"s_mov_b32 s85, 0x40000")
    if which == 0: g(f"v_readfirstlane_b32 s87, v{vFLAG}")
    if nwait is not None:
        g.raw(f"    s_waitcnt vmcnt({min(nwait, 63)})"); g.n += 1
        test()
    g.raw(f"L_poll{which}_{cls}:")
    look(off)
    g.raw("    s_waitcnt vmcnt(0)"); g.n += 1; g.vm = []
    test()
    g(f"s_sleep {OPT['slp']}")
    g(f"s_sub_u32 s85, s85, 1")
    g(f"s_cmp_lg_u32 s85, 0")
    g(f"s_cbranch_scc1 L_poll{which}_{cls}")
    g.raw(f"L_got{which}_{cls}:")

Q0 = [180, 184, 188, 192, 196, 200, 164, 168]
def quad(k, p): return Q0[p] if k == 0 else ((k % 2) * 8 + p) * 4
def part_loads(k):
    o = []
    for p in range(8):
        o.append((f"s_add_u32 s{sT2}, s{sLD+k}, {p*64*43008}", None))
        o.append((f"buffer_load_dwordx4 {vr(quad(k,p))}, v{vSTO}, {sr(S_WS)}, s{sT2} offen sc1", None))
    return o
def part_sum(k):
    A, B, O = 100 + 20 * (k % 2), 108 + 20 * (k % 2), 116 + 20 * (k % 2)
    for p in range(8):
        for q in range(4):
            src = quad(k, p) + q
            d = A if p == 0 else B
            g(f"v_lshlrev_b32 v{d+2*q}, 16, v{src}")
            g(f"v_and_b32 v{d+2*q+1}, 0xffff0000, v{src}")
        if p:
            for q in range(8):
                g(f"v_add_f32 v{A+q}, v{A+q}, v{B+q}")
    for q in range(4):
        g(f"v_cvt_pk_bf16_f32 v{O+q}, v{A+2*q}, v{A+2*q+1}")
    g(f"v_permlane32_swap_b32 v{O}, v{O+2}")
    g(f"v_permlane32_swap_b32 v{O+1}, v{O+3}")
    g(f"v_permlane16_swap_b32 v{O}, v{O+2}")
    g(f"v_permlane16_swap_b32 v{O+1}, v{O+3}")
    g(f"buffer_store_dwordx4 {vr(O)}, v{vOUT}, {sr(S_OUT)}, s{sSTO+k} offen{FL[OPT['osf']]}")

vOUT = 172
def fused_reduce(cls):
    g(f"v_lshrrev_b32 v173, 4, v{vSTO}")
    g(f"v_and_b32 v{vOUT}, 15, v173")
    g(f"v_mul_u32_u24 v{vOUT}, 1792, v{vOUT}")
    g(f"v_lshrrev_b32 v173, 4, v173")
    g(f"v_lshl_add_u32 v{vOUT}, v173, 4, v{vOUT}")
    wave0(f"L_w1_{cls}", lambda: poll(2, cls))
    g.wait_all()
    g.barrier()
    stamp('stdrain')
    wave0(f"L_w2_{cls}", lambda: arrive(3))
    emit_list(part_loads(1))
    part_sum(0)
    part_sum(1)
    stamp('sumA')
    wave0(f"L_w4_{cls}", lambda: poll(3, cls))
    g.barrier()
    stamp('metB')
    emit_list(part_loads(2))
    part_sum(2)

CLS = [0, 0, 0]
def body(cls):
    CLS[0] = cls
    KS = [OPT[f'k{u}'] + cls * OPT['kstep'] for u in range(3)]
    TWO0 = OPT['t_wo0'] + cls * OPT['kstep']
    TB = OPT['t_b'] + cls * OPT['kstep']
    V1A = OPT['v1'] + (cls * OPT['vstep']) % 3
    V1B = OPT['v1b'] - 3 + (3 + cls * OPT['vstep']) % 3 + (0 if True else 0)
    V1B = OPT['v1b']
    emit_list(x_reads(0))
    def early_touches(R): return touches(R, cls * OPT['kstep'])
    fq.add(([] if OPT['w0dir'] else x_reads(1)) + ([] if OPT['w1pro'] else ring_dma(1)) + ring_dma(2) + early_touches(0))
    x_issue = {1: (2, "R3"), 2: (3, "R4"), 5: (4, "R7"), 6: (5, "R8"), 8: (6, "R10")}
    x_read = {3: 2, 4: 3, 7: 4, 8: 5, 10: 6}
    if OPT['w0dir']: x_read[1] = 1
    x_issue = {k: [v] for k, v in x_issue.items()}
    x_read = {k: [v] for k, v in x_read.items()}
    if OPT['xdir']:
        kw = OPT['kw']
        x_issue = {KS[0]: [(2, f"R{KS[0]+kw}"), (3, f"R{KS[0]+kw}")], KS[1]: [(4, f"R{KS[1]+kw}"), (5, f"R{KS[1]+kw}")], KS[2]: [(6, f"R{KS[2]+kw}")]}
        x_read = {KS[0] + kw: [2, 3], KS[1] + kw: [4, 5], KS[2] + kw: [6]}
        assert KS[0] >= 1 and KS[0] + kw <= 4 and KS[1] + kw <= 8 and KS[2] + kw <= 12 and OPT['v0a'] > KS[2] + kw
    k_issue = {KS[u]: u for u in range(3)}
    KW = [OPT[f'kw{u}'] or OPT['kw'] for u in range(3)]
    k_read = {KS[u] + KW[u]: u for u in range(3)}
    assert max(k_read) <= 13 and OPT['v0b'] > max(k_read) and OPT['v0a'] >= 11
    for u in range(2): assert KS[u+1] > KS[u] + KW[u]
    if 0 in k_issue: fq.add(k_dma(k_issue[0], f"R{OPT['kw']}"))
    def after1(R):
        out = []
        for p in x_read.get(R, []): out += x_reads(p)
        if R in k_read: out += k_reads(k_read[R])
        late = []
        if OPT['wdel'] and R >= 13:
            if R == 14: late = ring_dma(15) + ring_dma(16)
            if R == 13 and OPT['wdel'] == 2: late = ring_dma(15)
            if R == 14 and OPT['wdel'] == 2: late = ring_dma(16)
        else:
            out += ring_dma(R + 2)
        for a in x_issue.get(R, []): out += x_dma(*a)
        if R in k_issue: out += k_dma(k_issue[R], f"R{R+KW[k_issue[R]]}")
        if OPT['fuse'] and R == KS[0]: out += fuse_flag_loads()
        if OPT['fuse'] and R in (3, 4, 6, 8):
            fs = fuse_setup(); q = (len(fs) + 3) // 4; i = (3, 4, 6, 8).index(R)
            out += fs[i*q:(i+1)*q]
        if OPT['fuse'] and R == KS[1]:
            def arr0():
                wave0(f"L_w0_{cls}", lambda: arrive(0)); CLS[1] = g.vmtot
            out.append(arr0)
        if R == OPT['v0a']: out += v_dma(0, range(7))
        if R == OPT['v0b']: out += v_dma(0, range(7, 12))
        out += late
        out += early_touches(R)
        return out
    run_stages(q_groups(), after1, lambda R: f"R{R}" if R < 14 else "none", tail_barrier=True)
    stamp('G1end')
    def s_mf(t):
        return [f"v_mfma_f32_16x16x32_bf16 {vr(SACC+(t*3+u)*4)}, {ar(aK+(u*8+s)*4)}, {vr(QFRAG(s,t))}, {vr(SACC+(t*3+u)*4) if s else 0}"
                for s in range(8) for u in range(3)]
    if OPT['spack']:
        left_v = [it for it in fq.q if fq.kind(it) == 'v']
        vmq = [it for it in fq.q if fq.kind(it) != 'v']; fq.q = []
        if OPT['ecv']:
            todo = set(it[0] for it in left_v) | set(i for t in range(3) for i in cvt_pairs(QACC, [7], t))
            lists = [[i for t in range(3) for i in cvt_pairs(QACC, range(8), t) if i in todo],
                     softmax_ops(0), softmax_ops(1)]
        else:
            for ins in cvt_pairs(QACC, range(2), 0): g(ins)
            lists = [cvt_pairs(QACC, range(2, 8), 0) + cvt_pairs(QACC, range(8), 1)[:18],
                     cvt_pairs(QACC, range(8), 1)[18:] + cvt_pairs(QACC, range(8), 2),
                     softmax_ops(0)]
        cnt = 0
        for t in range(3):
            fq.add([(i, None) for i in lists[t]])
            if t == 0: fq.q[0:0] = vmq; vmq = []
            for m in s_mf(t):
                fq.guard(m)
                g(m); cnt += 1
                fill_gap(None, cnt % OPT['svm'] == 0, False)
        rest = [it[0] for it in fq.q if fq.kind(it) in 've']
        fq.q = [it for it in fq.q if fq.kind(it) not in 've']
        fq.drain()
        if OPT['ecv']:
            r0 = [i for i in rest if i in set(softmax_ops(0))]
            r1 = [i for i in rest if i not in set(softmax_ops(0))]
            tail = merge(r0, r1, softmax_ops(2))
            if OPT['vearly']:
                for ins in tail[:OPT['vpos']]: g(ins)
                tail = tail[OPT['vpos']:]
                g.wait_tag("V0")
                g.barrier()
                vrs = [v_read(u, s_)[0] for s_ in range(8) for u in range(3)]
                step = max(1, (len(tail) - 20) // 24)
                for i, ins in enumerate(tail):
                    if i % step == 0 and vrs: g(vrs.pop(0))
                    g(ins)
                for r_ in vrs: g(r_)
            else:
                for ins in tail: g(ins)
        else:
            for ins in merge(rest, softmax_ops(1), softmax_ops(2)): g(ins)
    else:
        def paced(ins_list, every):
            n = 0
            for ins in ins_list:
                g(ins); n += 1
                if n % every == 0:
                    while len(fq) and not fq.is_vm(fq.q[0]): fq.pop()
                    if len(fq): fq.pop()
        paced(cvt_pairs(QACC, range(8), 0), 8)
        def mix(mf, fill):
            o = []; fill = list(fill)
            for m in mf:
                o.append(m)
                for _ in range(2):
                    if fill: o.append(fill.pop(0))
            return o + fill
        paced(mix(s_mf(0), cvt_pairs(QACC, range(8), 1)), 10)
        paced(mix(s_mf(1), cvt_pairs(QACC, range(8), 2)), 10)
        fq.drain()
        sm0 = softmax_ops(0)
        interleave(s_mf(2), sm0[:40])
        for ins in merge(sm0[40:], softmax_ops(1), softmax_ops(2)): g(ins)
    stamp('SM')
    g(f"v_add_u32 v{vPA}, s{sPX}, v{vPW}")
    g(f"v_add_u32 v{vPB}, s{sPY}, v{vPW2}")
    p_write0()
    g.wait_tag(["V0", "R14"], lg=0)
    g.barrier()
    stamp('Pbar')
    if not OPT['vearly']:
        for s in range(OPT['vup']):
            for u in range(3): emit_list([v_read(u, s)])
        for s in range(OPT['vup'], 8):
            fq.add([v_read(u, s) for u in range(3)])
    elif V1A == 14:
        fq.add(p_reads32(0) + p_readsu2(0) + v_dma(1, range(6)))
    def after2(R):
        out = []
        if R == OPT['p1'] + 1: out += p_readsu2(1) + p_reads32(1)
        if R == 15 and not (OPT['vearly'] and V1A == 14): out += p_reads32(0) + p_readsu2(0)
        out += ring_dma(R + 2)
        if OPT['v1m']:
            if R == V1A: out += v_dma(1, range(4))
            if R == OPT['v1m']: out += v_dma(1, range(4, 8))
            if R == V1B: out += v_dma(1, range(8, 12))
        else:
            if R == V1A: out += v_dma(1, range(0, 12, 2))
            if R == V1B: out += v_dma(1, range(1, 12, 2), "V1b")
        out += early_touches(R)
        if R == OPT['p1']: out = p_write1() + out
        return out
    def wt(R):
        if R == 21: return ["R21", "V1b"]
        if OPT['fuse'] and R == OPT['e1']: return [f"R{R}", "ST0", "ST1"]
        return [f"R{R}", "V1"] if R == 20 else f"R{R}"
    run_stages(o_groups(), after2, wt, tail_barrier=False)
    fq.drain()
    stamp('G2end')
    emit_list(vw_cvt(27))
    fa, fb = final_groups(27, 27)
    for m in fa['mfmas'] + fb['mfmas']: g(m)
    emit_list(epilogue_ops(6))
    stamp('epi')
    if OPT['fuse']: fused_reduce(cls)
    if OPT['stamps']:
        g.wait_all()
        stamp('drain')
    finish_stamps(cls)

def reduce_kernel():
    global g
    lines = g.lines
    g = Gen(); g.lines = lines
    NF, WV = OPT['rnf'], OPT['rwv']
    nwg = 2688 // (NF * WV)
    kernel_open(RED)
    g(f"s_cmp_ge_u32 s2, {nwg}")
    g("s_cbranch_scc1 L_red_end")
    if OPT['stamps']: g("s_memrealtime s[40:41]")
    g("s_load_dwordx2 s[4:5], s[0:1], 80")
    g("s_load_dwordx2 s[6:7], s[0:1], 96")
    g("v_lshrrev_b32 v2, 6, v0")
    g("v_and_b32 v3, 63, v0")
    g("v_readfirstlane_b32 s21, v2")
    g("v_lshlrev_b32 v1, 4, v3")
    g("v_and_b32 v4, 15, v3")
    g("v_mul_u32_u24 v4, 1792, v4")
    g("v_lshrrev_b32 v5, 4, v3")
    g("v_lshl_add_u32 v4, v5, 4, v4")
    g(f"s_mul_i32 s16, s2, {WV}")
    g("s_add_u32 s16, s16, s21")
    g(f"s_mul_i32 s16, s16, {NF}")
    g("s_lshl_b32 s19, s16, 10")
    g.smem_wait()
    srd(8, 6, 7, 22020096)
    for f in range(NF):
        for p in range(8):
            g(f"s_add_u32 s20, s19, {p*64*43008}")
            g(f"buffer_load_dwordx4 {vr(8+4*(f*8+p))}, v1, s[8:11], s20 offen offset:{f*1024}{FL[OPT['ldf']]}")
    srd(12, 4, 5, 2752512)
    g("s_mov_b32 s30, 0x3f80")
    g("s_mov_b32 s31, 0x3f800000")
    for f in range(NF):
        g(f"s_add_u32 s17, s16, {f}")
        g("s_mul_i32 s18, s17, 6242")
        g("s_lshr_b32 s18, s18, 18")
        g("s_mul_i32 s22, s18, 42")
        g("s_sub_u32 s22, s17, s22")
        g("s_mul_i32 s23, s22, 43")
        g("s_lshr_b32 s23, s23, 7")
        g("s_mul_i32 s24, s23, 3")
        g("s_sub_u32 s24, s22, s24")
        g("s_and_b32 s25, s18, 31")
        g("s_mul_i32 s25, s25, 3")
        g("s_add_u32 s25, s25, s24")
        g(f"s_mul_i32 s{32+f}, s25, {16*1792}")
        g("s_lshr_b32 s25, s18, 5")
        g("s_mul_i32 s25, s25, 896")
        g(f"s_add_u32 s{32+f}, s{32+f}, s25")
        g("s_lshl_b32 s23, s23, 6")
        g(f"s_add_u32 s{32+f}, s{32+f}, s23")
    base = 8 + 32 * NF
    for f in range(NF):
        A, B, O = base, base + 8, base + 16
        for p in range(8):
            for k in range(4):
                src = 8 + 4 * (f * 8 + p) + k
                if OPT['rdot']:
                    for h in range(2):
                        g(f"v_dot2_f32_bf16 v{A+2*k+h}, v{src}, s{30+h}, {'v%d' % (A+2*k+h) if p else 0}")
                else:
                    d = A if p == 0 else B
                    g(f"v_lshlrev_b32 v{d+2*k}, 16, v{src}")
                    g(f"v_and_b32 v{d+2*k+1}, 0xffff0000, v{src}")
            if p and not OPT['rdot']:
                for k in range(8):
                    g(f"v_add_f32 v{A+k}, v{A+k}, v{B+k}")
        if OPT['rdot']: g.nop(3)
        for k in range(4):
            g(f"v_cvt_pk_bf16_f32 v{O+k}, v{A+2*k}, v{A+2*k+1}")
        g(f"v_permlane32_swap_b32 v{O}, v{O+2}")
        g(f"v_permlane32_swap_b32 v{O+1}, v{O+3}")
        g(f"v_permlane16_swap_b32 v{O}, v{O+2}")
        g(f"v_permlane16_swap_b32 v{O+1}, v{O+3}")
        g(f"buffer_store_dwordx4 {vr(O)}, v4, s[12:15], s{32+f} offen{FL[OPT['osf']]}")
    if OPT['stamps']:
        g.wait_all()
        g("s_memrealtime s[42:43]")
        g.smem_wait()
        g("s_mov_b32 s10, 0x10000000")
        g(f"s_lshl_b32 s20, s16, 3")
        g(f"s_add_u32 s20, s20, {25<<20}")
        g("v_mov_b32 v6, s40"); g("v_mov_b32 v7, s42"); g("v_mov_b32 v1, 0")
        g("buffer_store_dwordx2 v[6:7], v1, s[8:11], s20 offen")
    g.raw("L_red_end:")
    g("s_endpgm")
    g.raw("L_text_end:")

def descriptors():
    g.raw('.section .rodata,"a"')
    for name, nv, acc in ((MAIN, 512, 256), (RED, 32 * OPT['rnf'] + 32, 32 * OPT['rnf'] + 32))[:1 if OPT['fuse'] else 2]:
        g.raw(".p2align 6")
        g.raw(f".amdhsa_kernel {name}")
        g.raw(f"  .amdhsa_next_free_vgpr {nv}")
        g.raw("  .amdhsa_next_free_sgpr 102")
        g.raw(f"  .amdhsa_accum_offset {acc}")
        g.raw("  .amdhsa_group_segment_fixed_size 0")
        g.raw("  .amdhsa_kernarg_size 104")
        g.raw("  .amdhsa_user_sgpr_count 2")
        g.raw("  .amdhsa_user_sgpr_kernarg_segment_ptr 1")
        g.raw("  .amdhsa_system_sgpr_workgroup_id_x 1")
        g.raw("  .amdhsa_float_denorm_mode_32 3")
        g.raw(".end_amdhsa_kernel")

header()
main_kernel()
st = dict(g.stats)
if not OPT['fuse']: reduce_kernel()
else: g.raw('L_text_end:')
descriptors()
open(sys.argv[1], "w").write(g.text())
print("main stats", st, "forced", fq.forced)
```
